```python
import torch

def _softmax(x, axis=-1):
    return torch.softmax(x, dim=axis)
def _gelu(x):
    return torch.nn.functional.gelu(x, approximate="tanh")
def _silu(x):
    return torch.nn.functional.silu(x)
def _sigmoid(x):
    return torch.sigmoid(x)
def _layernorm(x, axis=-1, eps=1e-5):
    m = x.mean(dim=axis, keepdim=True)
    v = x.var(dim=axis, keepdim=True, unbiased=False)
    return (x - m) / torch.sqrt(v + eps)
def _scatter_add(tgt, idx, src, axis=0):
    return tgt.clone().index_add_(axis, idx, src)
def _segment_sum(src, seg, n):
    out = torch.zeros((n,) + src.shape[1:], dtype=src.dtype)
    return out.index_add_(0, seg, src)
def _pad(x, pw):
    flat = tuple(v for pair in reversed(pw) for v in pair)
    return torch.nn.functional.pad(x, flat)

kernel_name = 'sequential_preLN__sliding_block_cached__geglu_ffn__decode'

def setup_inputs():

    _w = (lambda a: (lambda t: t.to(torch.bfloat16) if t.is_floating_point() else t)(torch.as_tensor(a)))
    def _A_setup():
        B, Sq, D = 1, 1, 448
        Hq, Hkv, Sk, Dh = 16, 8, 16384, 256
        assert Hq % Hkv == 0, (Hq, Hkv)
        return {
            "x": _w((lambda *s: torch.randn(*s, dtype=torch.bfloat16) * 0.05)(B, Sq, D)),
            "k_cache": _w((lambda *s: torch.randn(*s, dtype=torch.bfloat16) * 3.2)(B, Hkv, Sk, Dh)),
            "v_cache": _w((lambda *s: torch.randn(*s, dtype=torch.bfloat16) * 0.4)(B, Hkv, Sk, Dh)),
            "wq": _w((lambda *s: torch.randn(*s, dtype=torch.bfloat16) * 3.2)(D, Hq * Dh) * (D ** -0.5)),
            "wo": _w((lambda *s: torch.randn(*s, dtype=torch.bfloat16) * 0.4)(Hq * Dh, D) * ((Hq * Dh) ** -0.5)),
        }
    _A_in = _A_setup()

    def _B_setup():
        B, S, D, F = 1, 1, 448, 1792
        return {
            "x": _w((lambda *s: torch.randn(*s, dtype=torch.bfloat16) * 0.05)(B, S, D)),
            "w_gate": _w((lambda *s: torch.randn(*s, dtype=torch.bfloat16) * 0.05)(D, F)),
            "w_up": _w((lambda *s: torch.randn(*s, dtype=torch.bfloat16) * 0.05)(D, F)),
            "w_down": _w((lambda *s: torch.randn(*s, dtype=torch.bfloat16) * 0.05)(F, D)),
        }
    _B_in = _B_setup()

    return {
        "A_x": _A_in["x"],
        "A_k_cache": _A_in["k_cache"],
        "A_v_cache": _A_in["v_cache"],
        "A_wq": _A_in["wq"],
        "A_wo": _A_in["wo"],
        "B_x": _B_in["x"],
        "B_w_gate": _B_in["w_gate"],
        "B_w_up": _B_in["w_up"],
        "B_w_down": _B_in["w_down"],
    }

def reference(A_x, A_k_cache, A_v_cache, A_wq, A_wo, B_x, B_w_gate, B_w_up, B_w_down):
    def _A_ref(x, k_cache, v_cache, wq, wo):
        B, Sq, D = x.shape
        Hq, Dh = 16, 256
        Hkv, Sk = k_cache.shape[1], k_cache.shape[2]
        W = min(4096, max(256, Sk // 4))
        rep = Hq // Hkv
        q = (lambda x, *d: x.permute(*d))((x @ wq).reshape(B, Sq, Hq, Dh), 0, 2, 1, 3)
        k = (lambda x, n, axis: torch.repeat_interleave(x, n, dim=axis))(k_cache[:, :, Sk - W:, :], rep, axis=1)
        v = (lambda x, n, axis: torch.repeat_interleave(x, n, dim=axis))(v_cache[:, :, Sk - W:, :], rep, axis=1)
        scores = torch.einsum("bhqd,bhkd->bhqk", q, k) * (Dh ** -0.5)
        p = _softmax(scores, axis=-1)
        o = torch.einsum("bhqk,bhkd->bhqd", p, v)
        return (lambda x, *d: x.permute(*d))(o, 0, 2, 1, 3).reshape(B, Sq, Hq * Dh) @ wo

    def _B_ref(x, w_gate, w_up, w_down):
        return (_gelu(x @ w_gate) * (x @ w_up)) @ w_down

    x = A_x
    h = x + _A_ref(_layernorm(x, axis=-1), A_k_cache, A_v_cache, A_wq, A_wo)
    h2 = h + _B_ref(_layernorm(h, axis=-1), B_w_gate, B_w_up, B_w_down)
    return h2
```

```python
import re

_V = re.compile(r'(?<![\w.])v(\d+)(?![\w\[])|(?<![\w.])v\[(\d+):(\d+)\]')
_S = re.compile(r'(?<![\w.])s(\d+)(?![\w\[])|(?<![\w.])s\[(\d+):(\d+)\]')

def regs(pat, text):
    out = set()
    for m in pat.finditer(text):
        if m.group(1) is not None: out.add(int(m.group(1)))
        else: out.update(range(int(m.group(2)), int(m.group(3)) + 1))
    return out

def split_ops(rest):
    ops, depth, cur = [], 0, ""
    for ch in rest:
        if ch == "[": depth += 1
        if ch == "]": depth -= 1
        if ch == "," and depth == 0: ops.append(cur.strip()); cur = ""
        else: cur += ch
    if cur.strip(): ops.append(cur.strip())
    return ops

TRANS = ("v_exp_", "v_log_", "v_rcp_", "v_rsq_", "v_sqrt_", "v_sin_", "v_cos_")

class Ins:
    def __init__(self, text):
        self.text = text
        parts = text.split(None, 1)
        self.op = op = parts[0]
        rest = parts[1] if len(parts) > 1 else ""
        ops = split_ops(rest)
        self.mfma = op.startswith("v_mfma")
        self.valu = op.startswith("v_") and not self.mfma
        self.trans = op.startswith(TRANS)
        self.dpp = "_dpp" in op
        self.perml = op.startswith("v_permlane")
        self.rdlane = op.startswith(("v_readlane", "v_readfirstlane"))
        self.wrlane = op.startswith("v_writelane")
        self.vmem = op.startswith(("buffer_", "global_"))
        self.ds = op.startswith("ds_")
        self.store = self.vmem and ("store" in op)
        self.wide_store = self.store and op.endswith(("x3", "x4"))
        self.vw, self.vr, self.sw, self.sr, self.srcc = set(), set(), set(), set(), set()
        self.vccw = self.vccr = self.execw = False
        self.states = 1
        if op == "s_nop": self.states = int(rest, 0) + 1
        if self.mfma:
            self.vw = regs(_V, ops[0]); self.vr = regs(_V, ",".join(ops[1:])); self.srcc = regs(_V, ops[3])
            self.ab = regs(_V, ops[1] + "," + ops[2])
            self.passes = 8 if "32x32" in op else 4
        elif self.valu:
            d = ops[0]
            src = ops[1:]
            if op.startswith("v_cmp"):
                self.vccw = d == "vcc"; self.sw = regs(_S, d)
                self.execw = op.startswith("v_cmpx")
            elif self.rdlane:
                self.sw = regs(_S, d)
            else:
                self.vw = regs(_V, d)
                if op.startswith(("v_add_co", "v_sub_co", "v_addc_co", "v_subb_co")):
                    self.vccw = src[0] == "vcc"; self.sw = regs(_S, src[0]); src = src[1:]
            s = ",".join(src)
            self.vr = regs(_V, s); self.sr = regs(_S, s); self.vccr = "vcc" in s
            if self.perml: self.vw |= self.vr; self.vr |= regs(_V, d)
            if op.startswith(("v_fmac", "v_dot2c")) or self.wrlane or self.dpp: self.vr |= regs(_V, d)
        elif self.vmem or self.ds:
            load = ("load" in op or "read" in op or "bpermute" in op or "swizzle" in op or "_rtn" in op) and " lds" not in text
            if load: self.vw = regs(_V, ops[0]); self.vr = regs(_V, ",".join(ops[1:]))
            else: self.vr = regs(_V, rest)
            self.sr = regs(_S, rest)
            if self.store:
                self.data = regs(_V, ops[0] if op.startswith("buffer_") else ops[1])

def need(p, c):
    n = 0
    if p.valu:
        if p.vw & c.vr:
            if c.dpp or c.perml or c.mfma: n = max(n, 2)
            if c.rdlane: n = max(n, 1)
            if p.trans and c.valu: n = max(n, 1)
        if (p.sw & c.sr) or (p.vccw and c.vccr):
            if c.vmem: n = max(n, 5)
            elif c.rdlane or c.wrlane: n = max(n, 4)
            elif c.valu: n = max(n, 2)
        if p.execw and (c.dpp or c.perml or c.mfma or c.rdlane or c.wrlane): n = max(n, 5)
    if p.mfma:
        big = {4: 8, 8: 12}[p.passes]
        if c.mfma:
            if p.vw & c.ab: n = max(n, big)
            if p.vw & c.srcc and not (p.vw == c.srcc and p.passes == c.passes): n = max(n, big - 2)
            if p.vw & c.vw and p.vw != c.srcc: n = max(n, big)
        elif p.vw & (c.vr | c.vw): n = max(n, big)
        if c.valu and (p.srcc & c.vw): n = max(n, {4: 3, 8: 7}[p.passes])
    if p.wide_store and (p.data & c.vw): n = max(n, 2)
    return n

class Emitter:
    def __init__(self):
        self.lines = []; self.hist = []
    def raw(self, text): self.lines.append(text)
    def label(self, name): self.lines.append(name + ":")
    def barrier_hist(self): self.hist = []
    def __call__(self, block):
        for line in block.strip("\n").split("\n"):
            t = line.split(";")[0].strip()
            if not t: continue
            if t.endswith(":"): self.lines.append(t); continue
            if t.startswith("."): self.lines.append(t); continue
            c = Ins(t)
            dist, pad = 0, 0
            for p in reversed(self.hist):
                pad = max(pad, need(p, c) - dist)
                dist += p.states
                if dist >= 20: break
            if pad > 0:
                nop = Ins(f"s_nop {pad-1}")
                self.hist.append(nop); self.lines.append("    " + nop.text)
            self.hist.append(c); self.lines.append("    " + t)
            if c.op in ("s_branch", "s_endpgm"): self.hist = []
    def text(self): return "\n".join(self.lines) + "\n"
```

```python
import sys, struct
from emit import Emitter, Ins, need

NAME = "sequential_preLN__sliding_block_cached__geglu_ffn__decode"
def f2u(x): return struct.unpack("<I", struct.pack("<f", x))[0]

QP, ML, CP, ST, EP, OP, HP, DP, STAMP, WS_SIZE = 0x10000, 0x20000, 0x22000, 0x2A000, 0x30000, 0x40000, 0xC0000, 0x140000, 0x1E0000, 0x200000
XN, QS, FLAGS, MLW, EB, LDS_SIZE = 0, 2048, 3072, 3328, 4096, 5120
OOB = 0x7ffffff0
SPIN = 1 << 16
CEXP = f2u(1.4426950408889634 / 16.0)

def gen(nt="nt", stamps=False, force_global=False, wpos="late", touch_out=True, code_pf=True):
    e = Emitter()
    uid = [0]
    def lab(p): uid[0] += 1; return f"L_{p}{uid[0]}"
    def srd(d, b, n): e(f"s_mov_b32 s{d}, s{b}\ns_mov_b32 s{d+1}, s{b+1}\ns_mov_b32 s{d+2}, {n}\ns_mov_b32 s{d+3}, 0x00020000")
    def stamp(k):
        if stamps: e(f"s_memrealtime s[{64+2*k}:{65+2*k}]")
    def finish(nst):
        if stamps:
            e("s_waitcnt lgkmcnt(0)\ns_mov_b64 exec, -1\nv_mov_b32 v250, 0")
            for k in range(nst): e(f"v_writelane_b32 v250, s{64+2*k}, {k}")
            e(f"""s_lshl_b32 s60, s2, 3
                  s_add_u32 s60, s60, s30
                  s_lshl_b32 s60, s60, 6
                  s_add_u32 s60, s60, {STAMP}
                  v_lshlrev_b32 v251, 2, v0
                  s_mov_b64 exec, 0xffff
                  buffer_store_dword v250, v251, s[32:35], s60 offen""")
        e("s_endpgm")
    def mode_store(ins):
        g, d = lab("g"), lab("d")
        e("s_cmp_eq_u32 s59, 1")
        pad = 0
        for t in ins:
            c = Ins(t); dist = 0
            for p in reversed(e.hist):
                pad = max(pad, need(p, c) - dist); dist += p.states
                if dist >= 20: break
        if pad - 1 > 0: e(f"s_nop {pad-2}")
        e(f"s_cbranch_scc0 {g}")
        for t in ins: e(t)
        e(f"s_branch {d}\n{g}:")
        for t in ins: e(t + " sc1")
        e(f"{d}:")
    def masks(m, t0, t1):
        e(f"""v_and_b32 v{t0}, 1, v0
              v_lshlrev_b32 v{t0}, 4, v{t0}
              v_mov_b32 v{t1}, 0xffff
              v_lshlrev_b32 v{t1}, v{t0}, v{t1}
              v_bfe_u32 v{t0}, v0, 1, 2""")
        for j in range(4):
            e(f"v_cmp_eq_u32 vcc, {j}, v{t0}\nv_cndmask_b32 v{m+j}, 0, v{t1}, vcc")
    def dpp_red(op, vs, ctrls):
        for c in ctrls:
            for v in vs: e(f"{op}_dpp v{v}, v{v}, v{v} {c} row_mask:0xf bank_mask:0xf")
    def xrow(op, vs, tmps):
        for sw in ("v_permlane16_swap_b32", "v_permlane32_swap_b32"):
            for v, t in zip(vs, tmps): e(f"v_mov_b32 v{t}, v{v}")
            for v, t in zip(vs, tmps): e(f"{sw} v{v}, v{t}")
            for v, t in zip(vs, tmps): e(f"{op} v{v}, v{v}, v{t}")
    def bfround(v, t=None):
        e(f"v_cvt_pk_bf16_f32 v{v}, v{v}, v{v}\nv_and_b32 v{v}, 0xffff0000, v{v}")
    def tred4(a):
        e(f"""v_permlane32_swap_b32 v{a}, v{a+2}
              v_permlane32_swap_b32 v{a+1}, v{a+3}
              v_add_f32 v{a}, v{a}, v{a+2}
              v_add_f32 v{a+1}, v{a+1}, v{a+3}
              v_permlane16_swap_b32 v{a}, v{a+1}
              v_add_f32 v{a}, v{a}, v{a+1}""")
        dpp_red("v_add_f32", [a], ["row_ror:4", "row_ror:8"])
    def poll_sentinel(loads, chk):
        l, d = lab("poll"), lab("pdone")
        e(f"s_mov_b32 s58, {SPIN}\n{l}:")
        for t in loads: e(t)
        e(f"s_sub_u32 s58, s58, 1\ns_cbranch_scc1 {d}")
        n = len(chk)
        if n == 1:
            e(f"s_waitcnt vmcnt(0)\nv_cmp_eq_u32 vcc, -1, v{chk[0]}")
        else:
            e(f"s_waitcnt vmcnt({n-2})\nv_max_u32 v249, v{chk[0]}, v{chk[1]}")
            i = 2
            while i < n:
                if i + 1 < n:
                    e(f"s_waitcnt vmcnt({n-i-2})\nv_max3_u32 v249, v249, v{chk[i]}, v{chk[i+1]}"); i += 2
                else:
                    e(f"s_waitcnt vmcnt(0)\nv_max_u32 v249, v249, v{chk[i]}"); i += 1
            e("v_cmp_eq_u32 vcc, -1, v249")
        e(f"s_cbranch_vccnz {l}\n{d}:\ns_waitcnt vmcnt(0)")
    def lds_spin(off, cmp, val, dst):
        l, d = lab("spin"), lab("sdone")
        e(f"v_mov_b32 v248, {FLAGS}\ns_mov_b32 s58, {SPIN*16}\n{l}:\nds_read_b32 v249, v248 offset:{off}\ns_sub_u32 s58, s58, 1\ns_cbranch_scc1 {d}")
        e(f"s_waitcnt lgkmcnt(0)\nv_readfirstlane_b32 s{dst}, v249\n{cmp} s{dst}, {val}\ns_cbranch_scc1 {l}\n{d}:\ns_waitcnt lgkmcnt(0)")
    def ffn_scalars():
        e("""s_mul_i32 s50, s29, 37
             s_lshr_b32 s50, s50, 8
             s_mul_i32 s51, s50, 7
             s_sub_u32 s51, s29, s51
             s_lshl_b32 s52, s50, 3
             s_add_u32 s52, s52, s28""")

    e(f"""s_cmp_ge_u32 s2, 256
          s_cbranch_scc1 L_exit
          s_load_dwordx16 s[4:19], s[0:1], 0
          s_load_dwordx8 s[20:27], s[0:1], 64""")
    stamp(0)
    e("""v_lshrrev_b32 v1, 6, v0
         v_and_b32 v0, 63, v0
         v_readfirstlane_b32 s30, v1
         s_and_b32 s28, s2, 7
         s_lshr_b32 s29, s2, 3
         s_lshl_b32 s53, s28, 23
         s_lshl_b32 s54, s29, 16
         s_add_u32 s53, s53, s54
         s_add_u32 s53, s53, 6291456
         s_lshl_b32 s55, s28, 5
         s_add_u32 s55, s55, s29
         s_cmp_eq_u32 s30, 4
         s_cbranch_scc1 L_Q
         s_cmp_gt_u32 s30, 4
         s_cbranch_scc1 L_V""")

    KR, ACC, SC, QB, MK = 16, 80, 112, 120, 128
    WO, GU, A0, A1 = 132, 148, 180, 184
    e("""v_bfe_u32 v1, v0, 2, 2
         v_lshlrev_b32 v1, 9, v1
         v_lshrrev_b32 v2, 4, v0
         v_lshl_add_u32 v1, v2, 6, v1
         v_and_b32 v3, 3, v0
         v_lshl_add_u32 v1, v3, 4, v1
         s_lshl_b32 s54, s30, 14
         s_add_u32 s54, s54, s53
         s_waitcnt lgkmcnt(0)""")
    srd(36, 6, 67108864)
    for i in range(8):
        for dh in range(2):
            r = KR + 8*i + 4*dh
            e(f"buffer_load_dwordx4 v[{r}:{r+3}], v1, s[36:39], s54 offen offset:{(i&1)*2048 + dh*256} {nt}")
        if i == 0:
            e("s_load_dword s31, s[26:27], 0\ns_barrier")
        if i & 1 and i < 7: e("s_add_u32 s54, s54, 4096")
    stamp(1)
    srd(32, 26, WS_SIZE); srd(40, 12, 4096*896)
    ffn_scalars()
    masks(MK, 4, 5)

    def load_wo():
        e("""s_lshr_b32 s54, s29, 3
             s_lshl_b32 s54, s54, 7
             s_and_b32 s56, s29, 3
             s_lshl_b32 s56, s56, 5
             s_add_u32 s54, s54, s56
             s_and_b32 s56, s29, 4
             s_add_u32 s54, s54, s56
             s_lshl_b32 s56, s28, 9
             s_add_u32 s54, s54, s56
             s_mul_i32 s54, s54, 896
             s_lshl_b32 s56, s30, 8
             s_add_u32 s54, s54, s56
             v_lshrrev_b32 v6, 4, v0
             v_mul_u32_u24 v6, 896, v6
             v_and_b32 v7, 15, v0
             v_lshl_add_u32 v6, v7, 4, v6
             s_cmp_eq_u32 s30, 3
             s_cselect_b32 s56, 8, 16""")
        e(f"v_mov_b32 v8, {OOB}\nv_cmp_gt_u32 vcc, s56, v7\nv_cndmask_b32 v6, v8, v6, vcc")
        for c in range(4):
            e(f"buffer_load_dwordx4 v[{WO+4*c}:{WO+4*c+3}], v6, s[40:43], s54 offen {nt}")
            if c < 3: e("s_add_u32 s54, s54, 7168")
    def load_ffn():
        skip, dn = lab("noffn"), lab("dn")
        e(f"""s_cmp_ge_u32 s52, 28
              s_cbranch_scc1 {skip}
              s_cmp_eq_u32 s30, 0
              s_cbranch_scc1 {skip}
              v_lshrrev_b32 v6, 4, v0
              v_and_b32 v7, 1, v6
              v_lshrrev_b32 v6, 1, v6
              v_bfe_u32 v9, v0, 2, 2
              v_and_b32 v10, 3, v0
              v_lshlrev_b32 v11, 5, v7
              v_lshl_add_u32 v11, v6, 2, v11
              v_lshl_add_u32 v12, v10, 3, v11
              v_add_u32 v12, v12, v9
              v_lshlrev_b32 v12, 1, v12
              s_lshl_b32 s56, s51, 7""")
        srd(44, 4, 896)
        e(f"""buffer_load_ushort v13, v12, s[44:47], s56 offen
              s_cmp_eq_u32 s30, 3
              s_cbranch_scc1 {dn}
              s_lshl_b32 s54, s51, 6
              s_lshl_b32 s56, s30, 1
              s_add_u32 s54, s54, s56
              s_sub_u32 s54, s54, 2
              s_mul_i32 s54, s54, 3584
              s_lshl_b32 s56, s52, 7
              s_add_u32 s54, s54, s56
              v_mul_u32_u24 v11, 3584, v11
              v_and_b32 v10, 7, v0
              v_lshl_add_u32 v11, v10, 4, v11
              v_add_u32 v11, s54, v11
              v_and_b32 v10, 8, v0
              v_cmp_eq_u32 vcc, 0, v10
              v_mov_b32 v8, s18
              v_mov_b32 v9, s16
              v_cndmask_b32 v8, v8, v9, vcc
              v_mov_b32 v9, s19
              v_mov_b32 v10, s17
              v_cndmask_b32 v9, v9, v10, vcc
              v_add_co_u32 v8, vcc, v8, v11
              v_addc_co_u32 v9, vcc, 0, v9, vcc""")
        for q in range(4):
            for r in range(2):
                d = GU + 4*(4*r + q)
                e(f"global_load_dwordx4 v[{d}:{d+3}], v[8:9], off offset:{3584*r} {nt}")
            if q < 3: e("v_add_co_u32 v8, vcc, 28672, v8\nv_addc_co_u32 v9, vcc, 0, v9, vcc")
        e(f"s_branch {skip}\n{dn}:")
        srd(44, 20, 1792*896)
        e("""v_lshlrev_b32 v7, 2, v7
             v_lshl_add_u32 v7, v6, 1, v7
             v_mul_u32_u24 v7, 896, v7
             v_and_b32 v10, 15, v0
             v_lshl_add_u32 v7, v10, 3, v7
             s_mul_i32 s54, s52, 57344
             s_lshl_b32 s56, s51, 7
             s_add_u32 s54, s54, s56""")
        for i in range(8):
            for hi in range(2):
                d = GU + 2*(8*hi + i)
                e(f"buffer_load_dwordx2 v[{d}:{d+1}], v7, s[44:47], s54 offen offset:{896*hi} {nt}")
            if i < 7: e("s_add_u32 s54, s54, 7168")
        srd(44, 22, 896)
        if touch_out: e("v_mov_b32 v7, 0\nbuffer_load_dword v14, v7, s[44:47], 0 offen")
        e(f"{skip}:")
        e.barrier_hist()

    if wpos == "early":
        load_wo(); load_ffn()
    e(f"""v_bfe_u32 v4, v0, 3, 1
          v_lshlrev_b32 v4, 9, v4
          v_lshl_add_u32 v4, v2, 6, v4
          v_lshl_add_u32 v4, v3, 4, v4
          s_waitcnt vmcnt(0)""")
    stamp(2)
    lds_spin(0, "s_cmp_eq_u32", 0, 59)
    e(f"ds_read_b128 v[{QB}:{QB+3}], v4 offset:{QS}\nds_read_b128 v[{QB+4}:{QB+7}], v4 offset:{QS+256}\ns_add_u32 s31, s31, 0x9E3779B1\ns_waitcnt lgkmcnt(0)")
    stamp(3)
    for i in range(8):
        a, k = ACC + 4*i, KR + 8*i
        e(f"v_mfma_f32_16x16x32_bf16 v[{a}:{a+3}], v[{k}:{k+3}], v[{QB}:{QB+3}], 0")
        e(f"v_mfma_f32_16x16x32_bf16 v[{a}:{a+3}], v[{k+4}:{k+7}], v[{QB+4}:{QB+7}], v[{a}:{a+3}]")
    for r in range(4):
        for i in range(8):
            a = ACC + 4*i
            if r == 0: e(f"v_mov_b32_dpp v{SC+i}, v{a} quad_perm:[0,0,0,0] row_mask:0xf bank_mask:0xf")
            else: e(f"v_add_f32_dpp v{SC+i}, v{a+r}, v{SC+i} quad_perm:[{r},{r},{r},{r}] row_mask:0xf bank_mask:0xf")
    for i in range(0, 8, 2):
        e(f"v_cvt_pk_bf16_f32 v{SC+i+1}, v{SC+i}, v{SC+i+1}")
    for i in range(0, 8, 2):
        e(f"v_lshlrev_b32 v{SC+i}, 16, v{SC+i+1}\nv_and_b32 v{SC+i+1}, 0xffff0000, v{SC+i+1}")
    e(f"""v_max3_f32 v4, v{SC}, v{SC+1}, v{SC+2}
          v_max3_f32 v4, v4, v{SC+3}, v{SC+4}
          v_max3_f32 v4, v4, v{SC+5}, v{SC+6}
          v_max_f32 v4, v4, v{SC+7}""")
    xrow("v_max_f32", [4], [5])
    e(f"s_mov_b32 s57, {CEXP}")
    for i in range(8): e(f"v_sub_f32 v{SC+i}, v{SC+i}, v4")
    for i in range(8): e(f"v_mul_f32 v{SC+i}, s57, v{SC+i}")
    for i in range(8): e(f"v_exp_f32 v{SC+i}, v{SC+i}")
    e(f"""v_lshrrev_b32 v6, 3, v0
          v_lshlrev_b32 v7, 4, v6
          s_lshl_b32 s56, s30, 8
          v_add_u32 v7, s56, v7
          v_add_f32 v5, v{SC}, v{SC+1}""")
    for i in range(2, 8): e(f"v_add_f32 v5, v5, v{SC+i}")
    xrow("v_add_f32", [5], [8])
    e(f"""v_and_b32 v6, 1, v6
          v_lshlrev_b32 v6, 4, v6
          s_lshl_b32 s56, s30, 2
          v_add_u32 v6, s56, v6
          v_mov_b32 v8, 1
          v_mov_b32 v9, {FLAGS}
          s_mov_b32 exec_lo, 0x01010101
          s_mov_b32 exec_hi, 0x01010101
          ds_write_b128 v7, v[{SC}:{SC+3}] offset:{EB}
          ds_write_b128 v7, v[{SC+4}:{SC+7}] offset:{EB+128}
          ds_write_b32 v6, v4 offset:{MLW}
          ds_write_b32 v6, v5 offset:{MLW+32}
          s_mov_b64 exec, 1
          s_waitcnt lgkmcnt(0)
          ds_add_u32 v9, v8 offset:4
          s_mov_b64 exec, -1""")
    stamp(4)
    if wpos == "late":
        load_wo(); load_ffn()
    e(f"""v_lshrrev_b32 v4, 2, v0
          v_lshlrev_b32 v5, 4, v4
          s_lshl_b32 s54, s28, 9
          s_lshr_b32 s56, s29, 4
          s_lshl_b32 s56, s56, 3
          s_add_u32 s54, s54, s56
          s_add_u32 s54, s54, {ML}""")
    poll_sentinel(["buffer_load_dwordx2 v[16:17], v5, s[32:35], s54 offen sc1",
                   "buffer_load_dwordx2 v[18:19], v5, s[32:35], s54 offen offset:256 sc1"], [16, 18])
    e("v_max_f32 v20, v16, v18")
    dpp_red("v_max_f32", [20], ["row_ror:4", "row_ror:8"])
    xrow("v_max_f32", [20], [21])
    e("""v_sub_f32 v16, v16, v20
         v_sub_f32 v18, v18, v20
         v_mul_f32 v16, s57, v16
         v_mul_f32 v18, s57, v18
         v_exp_f32 v16, v16
         v_exp_f32 v18, v18
         v_mul_f32 v20, v16, v17
         v_fmac_f32 v20, v18, v19""")
    dpp_red("v_add_f32", [20], ["row_ror:4", "row_ror:8"])
    xrow("v_add_f32", [20], [21])
    e(f"""v_rcp_f32 v20, v20
          v_mul_f32 v16, v16, v20
          v_mul_f32 v18, v18, v20
          v_lshlrev_b32 v5, 11, v4
          v_lshl_add_u32 v5, v3, 4, v5
          s_lshl_b32 s54, s28, 16
          s_lshl_b32 s56, s29, 6
          s_add_u32 s54, s54, s56
          s_add_u32 s54, s54, {OP}
          s_add_u32 s56, s54, 32768
          v_mul_u32_u24 v22, 1792, v4
          v_lshl_add_u32 v22, v3, 4, v22
          v_bfe_u32 v6, v0, 3, 1
          v_lshlrev_b32 v6, 8, v6
          v_lshl_add_u32 v6, v2, 7, v6
          v_and_b32 v7, 7, v0
          v_lshl_add_u32 v6, v7, 4, v6
          s_cmp_eq_u32 s30, 3
          s_cselect_b32 s61, 40, 32
          v_and_b32 v7, s61, v0
          v_mov_b32 v8, {OOB}
          v_cmp_eq_u32 vcc, 0, v7
          v_cndmask_b32 v6, v8, v6, vcc
          s_mul_i32 s61, s55, 1792
          s_lshl_b32 s62, s30, 9
          s_add_u32 s61, s61, s62
          s_add_u32 s61, s61, {HP}""")
    stamp(5)
    e("s_barrier")
    stamp(6)
    poll_sentinel(["buffer_load_dwordx4 v[24:27], v5, s[32:35], s54 offen sc1",
                   "buffer_load_dwordx4 v[28:31], v5, s[32:35], s56 offen sc1"], [24, 28])
    stamp(7)
    for r in range(4): e(f"v_mul_f32 v{24+r}, v{24+r}, v16")
    for r in range(4): e(f"v_fmac_f32 v{24+r}, v{28+r}, v18")
    tred4(24)
    e("v_cvt_pk_bf16_f32 v24, v24, v24")
    for c in range(4):
        a = (A0, A1)[c & 1]
        for j in range(4): e(f"v_and_b32_dpp v{a+j}, v24, v{MK+j} quad_perm:[{c},{c},{c},{c}] row_mask:0xf bank_mask:0xf")
        e(f"v_mfma_f32_16x16x32_bf16 v[32:35], v[{a}:{a+3}], v[{WO+4*c}:{WO+4*c+3}], " + ("0" if c == 0 else "v[32:35]"))
    mode_store(["buffer_store_dwordx4 v[32:35], v6, s[32:35], s61 offen"])
    stamp(8)
    e("s_cmp_lg_u32 s30, 0\ns_cbranch_scc1 L_C")
    e(f"""s_cmp_ge_u32 s29, 28
          s_cbranch_scc1 L_Tend
          s_mul_i32 s54, s28, 57344
          s_lshl_b32 s56, s29, 6
          s_add_u32 s54, s54, s56
          s_add_u32 s54, s54, {HP}
          s_add_u32 s56, s54, 28672
          s_lshr_b32 s61, s29, 2
          s_lshl_b32 s61, s61, 12
          s_lshl_b32 s62, s28, 9
          s_add_u32 s61, s61, s62
          s_and_b32 s62, s29, 3
          s_lshl_b32 s62, s62, 7
          s_add_u32 s61, s61, s62
          s_add_u32 s61, s61, {CP}
          v_lshlrev_b32 v6, 5, v2
          v_lshl_add_u32 v6, v3, 3, v6
          v_and_b32 v7, 12, v0
          v_cmp_eq_u32 vcc, 0, v7
          v_cndmask_b32 v6, v8, v6, vcc""")
    poll_sentinel(["buffer_load_dwordx4 v[36:39], v22, s[32:35], s54 offen sc1",
                   "buffer_load_dwordx4 v[40:43], v22, s[32:35], s56 offen sc1"], [36, 40])
    stamp(9)
    for r in range(4): e(f"v_add_f32 v{36+r}, v{36+r}, v{40+r}")
    tred4(36)
    e("v_mov_b32 v37, s31\nbuffer_store_dwordx2 v[36:37], v6, s[32:35], s61 offen sc1")
    stamp(10)
    e("L_Tend:")
    finish(16)
    e(f"""L_C:
          s_cmp_ge_u32 s52, 28
          s_cbranch_scc1 L_Tend
          s_lshl_b32 s54, s51, 12
          s_add_u32 s54, s54, {CP}
          v_lshlrev_b32 v5, 3, v0
          v_lshlrev_b32 v13, 16, v13
          v_mov_b32 v23, 0x3f803f80""")
    for a in (A0, A1):
        for j in range(4): e(f"v_and_b32 v{a+j}, v23, v{MK+j}")
    e(f"""s_mul_i32 s61, s52, 14336
          s_add_u32 s61, s61, {DP}
          s_lshl_b32 s62, s51, 1
          s_add_u32 s62, s62, s30
          s_sub_u32 s62, s62, 1
          s_lshl_b32 s62, s62, 10
          s_add_u32 s62, s62, s61
          v_lshlrev_b32 v6, 4, v0
          v_mov_b32 v23, s31
          s_mov_b32 s58, {SPIN}
          L_Cpoll:""")
    for g in range(8): e(f"buffer_load_dwordx2 v[{36+2*g}:{37+2*g}], v5, s[32:35], s54 offen offset:{512*g} sc1")
    e("s_sub_u32 s58, s58, 1\ns_cbranch_scc1 L_Cdone\ns_waitcnt vmcnt(7)\nv_xor_b32 v52, v37, v23")
    for g in range(1, 8): e(f"s_waitcnt vmcnt({7-g})\nv_bitop3_b32 v52, v{37+2*g}, v23, v52 bitop3:0xbe")
    e("v_cmp_ne_u32 vcc, 0, v52\ns_cbranch_vccnz L_Cpoll\nL_Cdone:\ns_waitcnt vmcnt(0)")
    stamp(9)
    e("""v_add_f32 v36, v36, v38
         v_add_f32 v40, v40, v42
         v_add_f32 v44, v44, v46
         v_add_f32 v48, v48, v50
         v_add_f32 v36, v36, v40
         v_add_f32 v44, v44, v48
         v_add_f32 v36, v36, v44""")
    bfround(36)
    e("v_add_f32 v36, v36, v13\nv_cvt_pk_bf16_f32 v36, v36, v36\ns_cmp_eq_u32 s30, 3\ns_cbranch_scc1 L_D\ns_cmp_eq_u32 s30, 2\ns_cbranch_scc1 L_GU1")
    for u in range(2):
        if u == 1: e("L_GU1:")
        for i in range(8):
            a = (A0, A1)[i & 1]
            for j in range(4): e(f"v_and_b32_dpp v{a+j}, v36, v{MK+j} row_newbcast:{8*u+i} row_mask:0xf bank_mask:0x3")
            e(f"v_mfma_f32_16x16x32_bf16 v[32:35], v[{a}:{a+3}], v[{GU+4*i}:{GU+4*i+3}], " + ("0" if i == 0 else "v[32:35]"))
        mode_store(["buffer_store_dwordx4 v[32:35], v6, s[32:35], s62 offen"])
        stamp(10)
        e("s_branch L_Tend")
    e(f"""L_D:
          v_and_b32 v36, 0xffff0000, v36
          v_mov_b32 v38, v36
          v_mul_f32 v39, v36, v36""")
    dpp_red("v_add_f32", [38, 39], ["row_ror:8", "row_ror:4", "row_ror:2", "row_ror:1"])
    xrow("v_add_f32", [38, 39], [40, 41])
    e(f"""s_lshl_b32 s54, s52, 7
          s_add_u32 s54, s54, {ST}
          s_lshl_b32 s56, s51, 4
          v_mov_b32 v7, s56
          v_cmp_eq_u32 vcc, 0, v0
          v_cndmask_b32 v7, v8, v7, vcc""")
    mode_store(["buffer_store_dwordx2 v[38:39], v7, s[32:35], s54 offen"])
    e("""v_and_b32 v7, 7, v0
         v_cmp_gt_u32 vcc, 7, v7
         v_lshlrev_b32 v7, 4, v7
         v_cndmask_b32 v7, v8, v7, vcc""")
    poll_sentinel(["buffer_load_dwordx2 v[40:41], v7, s[32:35], s54 offen sc1"], [40])
    stamp(10)
    dpp_red("v_add_f32", [40, 41], ["quad_perm:[1,0,3,2]", "quad_perm:[2,3,0,1]", "row_half_mirror"])
    e(f"""v_mul_f32 v40, {f2u(1/448)}, v40
          v_mul_f32 v41, {f2u(1/448)}, v41
          v_fma_f32 v41, -v40, v40, v41
          v_max_f32 v41, 0, v41""")
    bfround(40); bfround(41)
    e(f"v_add_f32 v41, {f2u(1e-5)}, v41"); bfround(41)
    e("v_sqrt_f32 v41, v41"); bfround(41)
    e(f"""v_rcp_f32 v41, v41
          s_add_u32 s54, s61, 4096
          s_add_u32 s56, s61, 8192
          s_add_u32 s62, s61, 12288""")
    so = ["s61", "s54", "s56", "s62"]
    poll_sentinel([f"buffer_load_dwordx4 v[{44+4*p}:{47+4*p}], v6, s[32:35], {so[p>>2]} offen offset:{(p&3)*1024} sc1" for p in range(14)], [44+4*p for p in range(14)])
    stamp(11)
    n = 14; idx = [44+4*p for p in range(14)]
    while len(idx) > 1:
        nx = []
        for a, b in zip(idx[0::2], idx[1::2]):
            for r in range(4): e(f"v_add_f32 v{a+r}, v{a+r}, v{b+r}")
            nx.append(a)
        if len(idx) & 1: nx.append(idx[-1])
        idx = nx
    e("""v_permlane32_swap_b32 v44, v46
         v_permlane32_swap_b32 v45, v47
         v_fma_f32 v44, -v40, v46, v44
         v_fma_f32 v45, -v40, v47, v45
         v_mul_f32 v44, v44, v41
         v_mul_f32 v45, v45, v41
         v_mov_b32 v46, v44
         v_mov_b32_dpp v44, v45 row_ror:8 row_mask:0xf bank_mask:0xc
         v_mov_b32_dpp v45, v46 row_ror:8 row_mask:0xf bank_mask:0x3
         v_cvt_pk_bf16_f32 v45, v44, v45
         v_lshlrev_b32 v44, 16, v45
         v_and_b32 v45, 0xffff0000, v45""")
    k0 = -2.0 * 0.7978845608028654 * 1.4426950408889634
    e(f"""v_mul_f32 v46, v44, v44
          v_mul_f32 v46, {f2u(k0*0.044715)}, v46
          v_add_f32 v46, {f2u(k0)}, v46
          v_mul_f32 v46, v46, v44
          v_exp_f32 v46, v46
          v_add_f32 v46, 1.0, v46
          v_rcp_f32 v46, v46
          v_mul_f32 v46, v46, v44""")
    bfround(46)
    e("v_mul_f32 v46, v46, v45\nv_cvt_pk_bf16_f32 v46, v46, v46")
    for i in range(16):
        a = 180 + 2*(i & 3)
        for j in range(2): e(f"v_and_b32_dpp v{a+j}, v46, v{MK+j} row_newbcast:{i} row_mask:0xf bank_mask:0xf")
        if i >= 1:
            p = i - 1; ap = 180 + 2*(p & 3)
            e(f"v_mfma_f32_16x16x16_bf16 v[32:35], v[{ap}:{ap+1}], v[{GU+2*p}:{GU+2*p+1}], " + ("0" if p == 0 else "v[32:35]"))
    e(f"""s_mul_i32 s54, s51, 7168
          s_add_u32 s54, s54, {EP}
          v_mfma_f32_16x16x16_bf16 v[32:35], v[186:187], v[{GU+30}:{GU+31}], v[32:35]
          s_lshl_b32 s56, s52, 8
          s_add_u32 s56, s56, s54
          v_cmp_gt_u32 vcc, 16, v0
          v_cndmask_b32 v6, v8, v6, vcc
          buffer_store_dwordx4 v[32:35], v6, s[32:35], s56 offen sc1""")
    stamp(12)
    e(f"""s_sub_u32 s62, s52, 4
          s_cmp_gt_u32 s62, 3
          s_cbranch_scc1 L_Tend
          s_lshl_b32 s56, s62, 6
          s_add_u32 s54, s54, s56
          v_lshlrev_b32 v5, 8, v4
          v_lshl_add_u32 v5, v3, 4, v5
          v_add_u32 v6, 4096, v5
          v_cmp_gt_u32 vcc, 48, v0
          v_cndmask_b32 v6, v8, v6, vcc
          s_lshl_b32 s56, s62, 1
          v_lshrrev_b32 v9, 1, v3
          v_add_u32 v9, s56, v9
          v_and_b32 v10, 3, v9
          v_lshrrev_b32 v9, 2, v9
          v_and_b32 v11, 1, v3
          v_lshl_add_u32 v9, v11, 1, v9
          v_lshl_add_u32 v9, v9, 2, v2
          v_lshl_add_u32 v9, v9, 2, v10
          v_lshlrev_b32 v9, 2, v9
          ds_bpermute_b32 v36, v9, v36
          v_lshl_add_u32 v7, v3, 2, v2
          v_lshlrev_b32 v7, 1, v7
          v_and_b32 v9, 12, v0
          v_cmp_eq_u32 vcc, 0, v9
          v_cndmask_b32 v7, v8, v7, vcc
          s_lshl_b32 s61, s51, 7
          s_lshl_b32 s56, s62, 5
          s_add_u32 s61, s61, s56""")
    srd(44, 22, 896)
    poll_sentinel(["buffer_load_dwordx4 v[48:51], v5, s[32:35], s54 offen sc1",
                   "buffer_load_dwordx4 v[52:55], v6, s[32:35], s54 offen sc1"], [48, 52])
    stamp(13)
    for r in range(4): e(f"v_add_f32 v{48+r}, v{48+r}, v{52+r}")
    tred4(48)
    bfround(48)
    e(f"""s_waitcnt lgkmcnt(0)
          v_add_f32 v48, v48, v36
          v_cvt_pk_bf16_f32 v48, v48, v48
          buffer_store_short v48, v7, s[44:47], s61 offen
          s_cmp_lg_u32 s2, 4
          s_cbranch_scc1 L_Eend
          v_cmp_eq_u32 vcc, 0, v0
          v_cndmask_b32 v7, v8, v0, vcc
          buffer_store_dword v23, v7, s[32:35], 0 offen sc1
          L_Eend:""")
    stamp(14)
    e("s_branch L_Tend")

    VR, PE, MK = 16, 144, 176
    e(f"""L_V:
          v_lshlrev_b32 v1, 2, v0
          v_mov_b32 v2, 0
          ds_write_b32 v1, v2 offset:{FLAGS}
          v_lshrrev_b32 v2, 4, v0
          v_and_b32 v3, 15, v0
          v_lshlrev_b32 v1, 9, v2
          v_lshl_add_u32 v1, v3, 4, v1
          s_sub_u32 s56, s30, 5
          s_lshl_b32 s54, s56, 8
          s_add_u32 s54, s54, s53
          s_waitcnt lgkmcnt(0)
          s_barrier""")
    srd(36, 8, 67108864); srd(32, 26, WS_SIZE)
    masks(MK, 4, 5)
    e(f"""v_lshrrev_b32 v6, 1, v2
          v_lshlrev_b32 v6, 10, v6
          v_and_b32 v7, 1, v2
          v_lshl_add_u32 v6, v7, 8, v6
          v_lshl_add_u32 v6, v3, 4, v6
          s_lshl_b32 s61, s55, 11
          s_lshl_b32 s56, s56, 9
          s_add_u32 s61, s61, s56
          s_add_u32 s61, s61, {OP}
          v_lshrrev_b32 v7, 3, v0
          v_and_b32 v8, 1, v7
          v_lshlrev_b32 v7, 4, v7
          v_lshlrev_b32 v8, 4, v8
          s_mov_b32 s57, {CEXP}""")
    if code_pf:
        e("s_getpc_b64 s[48:49]\nL_pc:\ns_sub_u32 s48, s48, L_pc-" + NAME + "_kernel\ns_subb_u32 s49, s49, 0\ns_cmp_lg_u32 s30, 6\ns_cbranch_scc1 L_nopf")
        e("s_lshl_b32 s56, s29, 9\nv_lshl_add_u32 v9, v0, 3, s56\nv_cmp_gt_u32 vcc, L_exit-" + NAME + "_kernel-8, v9\nv_cndmask_b32 v9, 0, v9, vcc\nglobal_load_dwordx2 v[10:11], v9, s[48:49]\nL_nopf:")
    for i in range(32):
        e(f"buffer_load_dwordx4 v[{VR+4*i}:{VR+4*i+3}], v1, s[36:39], s54 offen offset:{(i&1)*2048} {nt}")
        if i & 1 and i < 31: e("s_add_u32 s54, s54, 4096")
    stamp(1)
    lds_spin(4, "s_cmp_lt_u32", 4, 56)
    stamp(2)
    e(f"ds_read_b32 v249, v248\nds_read_b128 v[12:15], v8 offset:{MLW}")
    for w in range(4):
        for h in range(2): e(f"ds_read_b128 v[{PE+8*w+4*h}:{PE+8*w+4*h+3}], v7 offset:{EB+256*w+128*h}")
    e("""s_waitcnt lgkmcnt(0)
         v_readfirstlane_b32 s59, v249
         v_max3_f32 v4, v12, v13, v14
         v_max_f32 v4, v4, v15""")
    for w in range(4): e(f"v_sub_f32 v{12+w}, v{12+w}, v4")
    for w in range(4): e(f"v_mul_f32 v{12+w}, s57, v{12+w}")
    for w in range(4): e(f"v_exp_f32 v{12+w}, v{12+w}")
    for i in range(32): e(f"v_mul_f32 v{PE+i}, v{PE+i}, v{12+(i>>3)}")
    for i in range(32): e(f"v_cvt_pk_bf16_f32 v{PE+i}, v{PE+i}, v{PE+i}")
    for i in range(33):
        if i < 32:
            a = (A0, A1)[i & 1]
            for j in range(4): e(f"v_and_b32 v{a+j}, v{PE+i}, v{MK+j}")
        if i >= 1:
            p = i - 1; a = (A0, A1)[p & 1]
            e(f"s_waitcnt vmcnt({31-p})\nv_mfma_f32_16x16x32_bf16 v[12:15], v[{a}:{a+3}], v[{VR+4*p}:{VR+4*p+3}], " + ("0" if p == 0 else "v[12:15]"))
    stamp(3)
    mode_store(["buffer_store_dwordx4 v[12:15], v6, s[32:35], s61 offen"])
    e("s_barrier")
    stamp(4)
    finish(8)

    WQ, F, XA, MK = 16, 80, 96, 112
    e(f"""L_Q:
          s_setprio 3
          v_lshlrev_b32 v1, 4, v0
          v_lshrrev_b32 v2, 3, v0
          v_and_b32 v3, 7, v0
          v_mul_u32_u24 v4, {14*8192}, v2
          v_lshl_add_u32 v4, v3, 4, v4
          s_lshr_b32 s48, s29, 3
          s_and_b32 s49, s29, 7
          s_mul_i32 s54, s48, {112*8192}
          s_lshl_b32 s56, s28, 10
          s_add_u32 s54, s54, s56
          s_lshl_b32 s56, s49, 7
          s_add_u32 s54, s54, s56
          s_waitcnt lgkmcnt(0)""")
    srd(40, 4, 896)
    e("buffer_load_dwordx4 v[8:11], v1, s[40:43], 0 offen")
    srd(36, 10, 448*8192)
    for i in range(14):
        e(f"buffer_load_dwordx4 v[{WQ+4*i}:{WQ+4*i+3}], v4, s[36:39], s54 offen {nt}")
        if i < 13: e("s_add_u32 s54, s54, 8192")
    e("s_load_dword s31, s[26:27], 0\ns_barrier")
    srd(32, 26, WS_SIZE)
    ffn_scalars()
    e(f"""v_mov_b32 v12, -1
          v_mov_b32 v13, -1
          v_mov_b32 v14, -1
          v_mov_b32 v15, -1
          s_lshl_b32 s44, s55, 11
          s_add_u32 s44, s44, {OP}
          s_mul_i32 s45, s55, 1792
          s_add_u32 s45, s45, {HP}
          buffer_store_dwordx4 v[12:15], v1, s[32:35], s44 offen sc1
          buffer_store_dwordx4 v[12:15], v1, s[32:35], s44 offen offset:1024 sc1
          buffer_store_dwordx4 v[12:15], v1, s[32:35], s45 offen sc1
          s_mul_i32 s46, s52, 14336
          s_lshl_b32 s56, s51, 11
          s_add_u32 s46, s46, s56
          s_add_u32 s46, s46, {DP}
          s_mul_i32 s47, s51, 7168
          s_lshl_b32 s56, s52, 8
          s_add_u32 s47, s47, s56
          s_add_u32 s47, s47, {EP-768}
          s_lshl_b32 s61, s52, 7
          s_lshl_b32 s56, s51, 4
          s_add_u32 s61, s61, s56
          s_add_u32 s61, s61, {ST}
          s_cmp_lt_u32 s52, 28
          s_cselect_b32 s46, s46, 0x70000000
          s_cselect_b32 s47, s47, 0x70000000
          s_cselect_b32 s61, s61, 0x70000000
          s_add_u32 s56, s45, 1024
          v_add_u32 v5, s56, v1
          v_add_u32 v6, s47, v1
          v_cmp_gt_u32 vcc, 48, v0
          v_cndmask_b32 v5, v6, v5, vcc
          v_add_u32 v6, s46, v1
          s_lshl_b32 s62, s55, 4
          s_add_u32 s62, s62, {ML}
          v_mov_b32 v7, {OOB}
          v_writelane_b32 v7, s62, 0
          v_writelane_b32 v7, s61, 1
          buffer_store_dwordx4 v[12:15], v5, s[32:35], 0 offen sc1
          buffer_store_dwordx4 v[12:15], v6, s[32:35], 0 offen sc1
          buffer_store_dwordx4 v[12:15], v6, s[32:35], 0 offen offset:1024 sc1
          buffer_store_dwordx4 v[12:15], v7, s[32:35], 0 offen sc1""")
    NST = 7
    masks(MK, 72, 73)
    e(f"s_waitcnt vmcnt({14+NST})")
    stamp(1)
    for i in range(4): e(f"v_lshlrev_b32 v{F+2*i}, 16, v{8+i}\nv_and_b32 v{F+2*i+1}, 0xffff0000, v{8+i}")
    e(f"v_add_f32 v72, v{F}, v{F+1}")
    for i in range(2, 8): e(f"v_add_f32 v72, v72, v{F+i}")
    dpp_red("v_add_f32", [72], ["row_ror:8", "row_ror:4", "row_ror:2", "row_ror:1"])
    xrow("v_add_f32", [72], [73])
    e(f"v_mul_f32 v72, {f2u(1/448)}, v72\nv_mov_b32 v73, 0")
    for i in range(8): e(f"v_sub_f32 v74, v{F+i}, v72\nv_fmac_f32 v73, v74, v74")
    e("v_cmp_gt_u32 vcc, 56, v0\nv_cndmask_b32 v73, 0, v73, vcc")
    dpp_red("v_add_f32", [73], ["row_ror:8", "row_ror:4", "row_ror:2", "row_ror:1"])
    xrow("v_add_f32", [73], [74])
    e(f"v_mul_f32 v73, {f2u(1/448)}, v73")
    bfround(72); bfround(73)
    e(f"v_add_f32 v73, {f2u(1e-5)}, v73"); bfround(73)
    e("v_sqrt_f32 v73, v73"); bfround(73)
    e("v_rcp_f32 v74, v73")
    for i in range(8): e(f"v_sub_f32 v{F+i}, v{F+i}, v72")
    for i in range(0, 8, 2): e(f"v_cvt_pk_bf16_f32 v{F+i+1}, v{F+i}, v{F+i+1}")
    for i in range(0, 8, 2): e(f"v_lshlrev_b32 v{F+i}, 16, v{F+i+1}\nv_and_b32 v{F+i+1}, 0xffff0000, v{F+i+1}")
    for i in range(8): e(f"v_mul_f32 v{F+8+i}, v{F+i}, v74")
    for i in range(8): e(f"v_fma_f32 v{F+i}, -v{F+8+i}, v73, v{F+i}")
    for i in range(8): e(f"v_fmac_f32 v{F+8+i}, v{F+i}, v74")
    for i in range(8): e(f"v_cvt_pk_bf16_f32 v{F+i}, v{F+8+i}, v{F+8+i}")
    e(f"""v_lshlrev_b32 v72, 5, v0
          ds_write_b128 v72, v[{F}:{F+3}] offset:{XN}
          ds_write_b128 v72, v[{F+4}:{F+7}] offset:{XN+16}
          v_mul_u32_u24 v73, 56, v2
          s_mul_i32 s56, s48, 448
          v_add_u32 v73, s56, v73
          s_waitcnt lgkmcnt(0)""")
    for i in range(7): e(f"ds_read_b64 v[{XA+2*i}:{XA+2*i+1}], v73 offset:{XN+8*i}")
    e(f"""s_add_u32 s31, s31, 0x9E3779B1
          s_getreg_b32 s56, hwreg(HW_REG_XCC_ID, 0, 4)
          s_and_b32 s63, s31, 0xfffffff0
          s_or_b32 s63, s63, s56
          v_mov_b32 v75, s63
          s_waitcnt lgkmcnt(0)""")
    stamp(2)
    for i in range(15):
        if i < 14:
            a = (116, 120)[i & 1]
            for j in range(4): e(f"v_and_b32 v{a+j}, v{XA+i}, v{MK+j}")
        if i >= 1:
            p = i - 1; a = (116, 120)[p & 1]
            e(f"s_waitcnt vmcnt({13-p+NST})\nv_mfma_f32_16x16x32_bf16 v[8:11], v[{a}:{a+3}], v[{WQ+4*p}:{WQ+4*p+3}], " + ("0" if p == 0 else "v[8:11]"))
    e(f"""v_lshrrev_b32 v72, 4, v0
          v_lshlrev_b32 v72, 4, v72
          v_lshl_add_u32 v72, v3, 5, v72
          v_and_b32 v73, 40, v0
          v_mov_b32 v74, {OOB}
          v_cmp_eq_u32 vcc, 0, v73
          v_cndmask_b32 v72, v74, v72, vcc
          s_lshl_b32 s54, s28, 13
          s_add_u32 s54, s54, {QP}
          s_lshl_b32 s56, s48, 11
          s_add_u32 s56, s56, s54
          s_lshl_b32 s61, s49, 8
          s_add_u32 s56, s56, s61""")
    for r in range(4): e(f"v_mov_b32_dpp v{F+r}, v{8+r} row_ror:8 row_mask:0xf bank_mask:0xf")
    for r in range(4): e(f"v_permlane32_swap_b32 v{F+r}, v{F+4+r}")
    for r in range(4): e(f"v_add_f32 v{8+r}, v{8+r}, v{F+4+r}")
    for r in range(4): e(f"v_add_u32 v{8+r}, 0x80, v{8+r}")
    for r in range(4): e(f"s_mov_b32 s61, {0x07060500 + r}\nv_perm_b32 v{8+r}, v{8+r}, v75, s61")
    e("s_waitcnt vmcnt(0)\nbuffer_store_dwordx4 v[8:11], v72, s[32:35], s56 offen sc1")
    stamp(3)
    e(f"""s_add_u32 s56, s54, 4096
          s_mov_b32 s61, 0x0c0c0400
          s_mov_b32 s47, 0x04000c0c
          s_mov_b32 s58, {SPIN}
          s_waitcnt vmcnt(0)""")
    stamp(4)
    e("L_Qpoll:")
    for p in range(8): e(f"buffer_load_dwordx4 v[{16+4*p}:{19+4*p}], v1, s[32:35], {('s54','s56')[p>>2]} offen offset:{(p&3)*1024} sc1")
    e("v_mov_b32 v76, 0\ns_sub_u32 s58, s58, 1\ns_cbranch_scc1 L_Qdone")
    for p in range(8):
        b = 16 + 4*p
        e(f"""s_waitcnt vmcnt({7-p})
              v_perm_b32 v72, v{b+1}, v{b}, s61
              v_perm_b32 v73, v{b+3}, v{b+2}, s47
              v_bitop3_b32 v72, v72, v73, v75 bitop3:0x56
              v_or_b32 v76, v76, v72""")
    e("v_cmp_lt_u32 vcc, 15, v76\ns_cbranch_vccnz L_Qpoll\nL_Qdone:\ns_waitcnt vmcnt(0)")
    stamp(5)
    e("v_cmp_ne_u32 vcc, 0, v76")
    for i in range(32): e(f"v_and_b32 v{16+i}, 0xffffff00, v{16+i}")
    e("s_cmp_eq_u64 vcc, 0\ns_cselect_b32 s59, %d, 2" % (2 if force_global else 1))
    for k in range(2):
        for r in range(4):
            b = 16 + 4*k + r
            e(f"v_add_f32 v{b}, v{b}, v{b+8}\nv_add_f32 v{b+16}, v{b+16}, v{b+24}")
    for k in range(2):
        for r in range(4):
            b = 16 + 4*k + r
            e(f"v_add_f32 v{b}, v{b}, v{b+16}")
    e(f"""v_cvt_pk_bf16_f32 v16, v16, v17
          v_cvt_pk_bf16_f32 v17, v18, v19
          v_cvt_pk_bf16_f32 v18, v20, v21
          v_cvt_pk_bf16_f32 v19, v22, v23
          v_lshlrev_b32 v72, 3, v0
          ds_write_b64 v72, v[16:17] offset:{QS}
          ds_write_b64 v72, v[18:19] offset:{QS+512}
          v_mov_b32 v73, {FLAGS}
          v_mov_b32 v74, s59
          s_mov_b64 exec, 1
          s_waitcnt lgkmcnt(0)
          ds_write_b32 v73, v74
          s_mov_b64 exec, -1
          s_setprio 0
          buffer_load_dwordx4 v[24:27], v7, s[32:35], 0 offen sc1
          buffer_load_dwordx4 v[24:27], v1, s[32:35], s44 offen sc1
          buffer_load_dwordx4 v[24:27], v1, s[32:35], s44 offen offset:1024 sc1
          buffer_load_dwordx4 v[24:27], v1, s[32:35], s45 offen sc1
          buffer_load_dwordx4 v[24:27], v1, s[32:35], s45 offen offset:1024 sc1
          buffer_load_dwordx4 v[24:27], v6, s[32:35], 0 offen sc1
          buffer_load_dwordx4 v[24:27], v6, s[32:35], 0 offen offset:1024 sc1
          v_and_b32 v72, 1, v0
          v_lshlrev_b32 v72, 4, v72
          v_writelane_b32 v7, 0x70000000, 1
          s_mov_b32 s57, {CEXP}""".replace("v_writelane_b32 v7, 0x70000000, 1", "s_mov_b32 s56, 0x70000000\nv_writelane_b32 v7, s56, 1"))
    stamp(6)
    lds_spin(4, "s_cmp_lt_u32", 4, 56)
    e(f"""s_setprio 3
          ds_read_b128 v[16:19], v72 offset:{MLW}
          ds_read_b128 v[20:23], v72 offset:{MLW+32}
          s_waitcnt lgkmcnt(0)
          v_max3_f32 v8, v16, v17, v18
          v_max_f32 v8, v8, v19""")
    for w in range(4): e(f"v_sub_f32 v{16+w}, v{16+w}, v8")
    for w in range(4): e(f"v_mul_f32 v{16+w}, s57, v{16+w}")
    for w in range(4): e(f"v_exp_f32 v{16+w}, v{16+w}")
    e("""v_mul_f32 v9, v16, v20
         v_fmac_f32 v9, v17, v21
         v_fmac_f32 v9, v18, v22
         v_fmac_f32 v9, v19, v23
         v_mov_b32_dpp v10, v8 quad_perm:[1,1,1,1] row_mask:0xf bank_mask:0xf
         v_mov_b32_dpp v11, v9 quad_perm:[1,1,1,1] row_mask:0xf bank_mask:0xf""")
    mode_store(["buffer_store_dwordx4 v[8:11], v7, s[32:35], 0 offen"])
    stamp(7)
    finish(8)
    e("L_exit:\ns_endpgm")

    head = open("cdna_kernels/" + NAME + ".s.ref").read()
    head = head[:head.index("; @launch")]
    out = head + f"; @launch grid=(256,1,1) block=(448,1,1) lds={LDS_SIZE}\n"
    out += f""".amdgcn_target "amdgcn-amd-amdhsa--gfx950"
.text
.globl {NAME}_kernel
.p2align 8
.type {NAME}_kernel,@function
{NAME}_kernel:
"""
    out += e.text()
    out += f""".section .rodata,"a"
.p2align 6
.amdhsa_kernel {NAME}_kernel
  .amdhsa_next_free_vgpr 256
  .amdhsa_next_free_sgpr 102
  .amdhsa_accum_offset 256
  .amdhsa_group_segment_fixed_size 0
  .amdhsa_kernarg_size 96
  .amdhsa_user_sgpr_count 2
  .amdhsa_user_sgpr_kernarg_segment_ptr 1
  .amdhsa_system_sgpr_workgroup_id_x 1
.end_amdhsa_kernel
"""
    return out

if __name__ == "__main__":
    kw = {}
    for a in sys.argv[2:]:
        k, v = a.split("=")
        kw[k] = {"True": True, "False": False}.get(v, v)
    open(sys.argv[1], "w").write(gen(**kw))
```

```python
import sys, struct
from emit import Emitter, Ins, need

NAME = "sequential_preLN__sliding_block_cached__geglu_ffn__decode"
def f2u(x): return struct.unpack("<I", struct.pack("<f", x))[0]

QP, ML, CP, ST, EP, OP, HP, DP, STAMP, WS_SIZE = 0x10000, 0x20000, 0x22000, 0x2A000, 0x30000, 0x40000, 0xC0000, 0x140000, 0x1E0000, 0x200000
XN, QS, FLAGS, MLW, EB, LDS_SIZE = 0, 2048, 3072, 3328, 4096, 5120
OOB = 0x7ffffff0
SPIN = 1 << 16
CEXP = f2u(1.4426950408889634 / 16.0)

def gen(amp=None, nt="nt", stamps=False, force_global=False, wpos="late", touch_out=True, code_pf=True):
    e = Emitter()
    uid = [0]
    def lab(p): uid[0] += 1; return f"L_{p}{uid[0]}"
    def srd(d, b, n): e(f"s_mov_b32 s{d}, s{b}\ns_mov_b32 s{d+1}, s{b+1}\ns_mov_b32 s{d+2}, {n}\ns_mov_b32 s{d+3}, 0x00020000")
    def stamp(k):
        if stamps or (amp is not None and k in (0, int(amp))): e(f"s_memrealtime s[{64+2*k}:{65+2*k}]")
    def finish(nst):
        if stamps:
            e("s_waitcnt lgkmcnt(0)\ns_mov_b64 exec, -1\nv_mov_b32 v250, 0")
            for k in range(nst): e(f"v_writelane_b32 v250, s{64+2*k}, {k}")
            e(f"""s_lshl_b32 s60, s2, 3
                  s_add_u32 s60, s60, s30
                  s_lshl_b32 s60, s60, 6
                  s_add_u32 s60, s60, {STAMP}
                  v_lshlrev_b32 v251, 2, v0
                  s_mov_b64 exec, 0xffff
                  buffer_store_dword v250, v251, s[32:35], s60 offen""")
        e("s_endpgm")
    def mode_store(ins):
        g, d = lab("g"), lab("d")
        e("s_cmp_eq_u32 s59, 1")
        pad = 0
        for t in ins:
            c = Ins(t); dist = 0
            for p in reversed(e.hist):
                pad = max(pad, need(p, c) - dist); dist += p.states
                if dist >= 20: break
        if pad - 1 > 0: e(f"s_nop {pad-2}")
        e(f"s_cbranch_scc0 {g}")
        for t in ins: e(t)
        e(f"s_branch {d}\n{g}:")
        for t in ins: e(t + " sc1")
        e(f"{d}:")
    def masks(m, t0, t1):
        e(f"""v_and_b32 v{t0}, 1, v0
              v_lshlrev_b32 v{t0}, 4, v{t0}
              v_mov_b32 v{t1}, 0xffff
              v_lshlrev_b32 v{t1}, v{t0}, v{t1}
              v_bfe_u32 v{t0}, v0, 1, 2""")
        for j in range(4):
            e(f"v_cmp_eq_u32 vcc, {j}, v{t0}\nv_cndmask_b32 v{m+j}, 0, v{t1}, vcc")
    def dpp_red(op, vs, ctrls):
        for c in ctrls:
            for v in vs: e(f"{op}_dpp v{v}, v{v}, v{v} {c} row_mask:0xf bank_mask:0xf")
    def xrow(op, vs, tmps):
        for sw in ("v_permlane16_swap_b32", "v_permlane32_swap_b32"):
            for v, t in zip(vs, tmps): e(f"v_mov_b32 v{t}, v{v}")
            for v, t in zip(vs, tmps): e(f"{sw} v{v}, v{t}")
            for v, t in zip(vs, tmps): e(f"{op} v{v}, v{v}, v{t}")
    def bfround(v, t=None):
        e(f"v_cvt_pk_bf16_f32 v{v}, v{v}, v{v}\nv_and_b32 v{v}, 0xffff0000, v{v}")
    def tred4(a):
        e(f"""v_permlane32_swap_b32 v{a}, v{a+2}
              v_permlane32_swap_b32 v{a+1}, v{a+3}
              v_add_f32 v{a}, v{a}, v{a+2}
              v_add_f32 v{a+1}, v{a+1}, v{a+3}
              v_permlane16_swap_b32 v{a}, v{a+1}
              v_add_f32 v{a}, v{a}, v{a+1}""")
        dpp_red("v_add_f32", [a], ["row_ror:4", "row_ror:8"])
    def poll_sentinel(loads, chk):
        l, d = lab("poll"), lab("pdone")
        e(f"s_mov_b32 s58, {SPIN}\n{l}:")
        for t in loads: e(t)
        e(f"s_sub_u32 s58, s58, 1\ns_cbranch_scc1 {d}")
        n = len(chk)
        if n == 1:
            e(f"s_waitcnt vmcnt(0)\nv_cmp_eq_u32 vcc, -1, v{chk[0]}")
        else:
            e(f"s_waitcnt vmcnt({n-2})\nv_max_u32 v249, v{chk[0]}, v{chk[1]}")
            i = 2
            while i < n:
                if i + 1 < n:
                    e(f"s_waitcnt vmcnt({n-i-2})\nv_max3_u32 v249, v249, v{chk[i]}, v{chk[i+1]}"); i += 2
                else:
                    e(f"s_waitcnt vmcnt(0)\nv_max_u32 v249, v249, v{chk[i]}"); i += 1
            e("v_cmp_eq_u32 vcc, -1, v249")
        e(f"s_cbranch_vccnz {l}\n{d}:\ns_waitcnt vmcnt(0)")
    def lds_spin(off, cmp, val, dst):
        l, d = lab("spin"), lab("sdone")
        e(f"v_mov_b32 v248, {FLAGS}\ns_mov_b32 s58, {SPIN*16}\n{l}:\nds_read_b32 v249, v248 offset:{off}\ns_sub_u32 s58, s58, 1\ns_cbranch_scc1 {d}")
        e(f"s_waitcnt lgkmcnt(0)\nv_readfirstlane_b32 s{dst}, v249\n{cmp} s{dst}, {val}\ns_cbranch_scc1 {l}\n{d}:\ns_waitcnt lgkmcnt(0)")
    def ffn_scalars():
        e("""s_mul_i32 s50, s29, 37
             s_lshr_b32 s50, s50, 8
             s_mul_i32 s51, s50, 7
             s_sub_u32 s51, s29, s51
             s_lshl_b32 s52, s50, 3
             s_add_u32 s52, s52, s28""")

    e(f"""s_cmp_ge_u32 s2, 256
          s_cbranch_scc1 L_exit
          s_load_dwordx16 s[4:19], s[0:1], 0
          s_load_dwordx8 s[20:27], s[0:1], 64""")
    stamp(0)
    e("""v_lshrrev_b32 v1, 6, v0
         v_and_b32 v0, 63, v0
         v_readfirstlane_b32 s30, v1
         s_and_b32 s28, s2, 7
         s_lshr_b32 s29, s2, 3
         s_lshl_b32 s53, s28, 23
         s_lshl_b32 s54, s29, 16
         s_add_u32 s53, s53, s54
         s_add_u32 s53, s53, 6291456
         s_lshl_b32 s55, s28, 5
         s_add_u32 s55, s55, s29
         s_cmp_eq_u32 s30, 4
         s_cbranch_scc1 L_Q
         s_cmp_gt_u32 s30, 4
         s_cbranch_scc1 L_V""")

    KR, ACC, SC, QB, MK = 16, 80, 112, 120, 128
    WO, GU, A0, A1 = 132, 148, 180, 184
    e("""v_bfe_u32 v1, v0, 2, 2
         v_lshlrev_b32 v1, 9, v1
         v_lshrrev_b32 v2, 4, v0
         v_lshl_add_u32 v1, v2, 6, v1
         v_and_b32 v3, 3, v0
         v_lshl_add_u32 v1, v3, 4, v1
         s_lshl_b32 s54, s30, 14
         s_add_u32 s54, s54, s53
         s_waitcnt lgkmcnt(0)""")
    srd(36, 6, 67108864)
    for i in range(8):
        for dh in range(2):
            r = KR + 8*i + 4*dh
            e(f"buffer_load_dwordx4 v[{r}:{r+3}], v1, s[36:39], s54 offen offset:{(i&1)*2048 + dh*256} {nt}")
        if i == 0:
            e("s_load_dword s31, s[26:27], 0\ns_barrier")
        if i & 1 and i < 7: e("s_add_u32 s54, s54, 4096")
    stamp(1)
    srd(32, 26, WS_SIZE); srd(40, 12, 4096*896)
    ffn_scalars()
    masks(MK, 4, 5)

    def load_wo():
        e("""s_lshr_b32 s54, s29, 3
             s_lshl_b32 s54, s54, 7
             s_and_b32 s56, s29, 3
             s_lshl_b32 s56, s56, 5
             s_add_u32 s54, s54, s56
             s_and_b32 s56, s29, 4
             s_add_u32 s54, s54, s56
             s_lshl_b32 s56, s28, 9
             s_add_u32 s54, s54, s56
             s_mul_i32 s54, s54, 896
             s_lshl_b32 s56, s30, 8
             s_add_u32 s54, s54, s56
             v_lshrrev_b32 v6, 4, v0
             v_mul_u32_u24 v6, 896, v6
             v_and_b32 v7, 15, v0
             v_lshl_add_u32 v6, v7, 4, v6
             s_cmp_eq_u32 s30, 3
             s_cselect_b32 s56, 8, 16""")
        e(f"v_mov_b32 v8, {OOB}\nv_cmp_gt_u32 vcc, s56, v7\nv_cndmask_b32 v6, v8, v6, vcc")
        for c in range(4):
            e(f"buffer_load_dwordx4 v[{WO+4*c}:{WO+4*c+3}], v6, s[40:43], s54 offen {nt}")
            if c < 3: e("s_add_u32 s54, s54, 7168")
    def load_ffn():
        skip, dn = lab("noffn"), lab("dn")
        e(f"""s_cmp_ge_u32 s52, 28
              s_cbranch_scc1 {skip}
              s_cmp_eq_u32 s30, 0
              s_cbranch_scc1 {skip}
              v_lshrrev_b32 v6, 4, v0
              v_and_b32 v7, 1, v6
              v_lshrrev_b32 v6, 1, v6
              v_bfe_u32 v9, v0, 2, 2
              v_and_b32 v10, 3, v0
              v_lshlrev_b32 v11, 5, v7
              v_lshl_add_u32 v11, v6, 2, v11
              v_lshl_add_u32 v12, v10, 3, v11
              v_add_u32 v12, v12, v9
              v_lshlrev_b32 v12, 1, v12
              s_lshl_b32 s56, s51, 7""")
        srd(44, 4, 896)
        e(f"""buffer_load_ushort v13, v12, s[44:47], s56 offen
              s_cmp_eq_u32 s30, 3
              s_cbranch_scc1 {dn}
              s_lshl_b32 s54, s51, 6
              s_lshl_b32 s56, s30, 1
              s_add_u32 s54, s54, s56
              s_sub_u32 s54, s54, 2
              s_mul_i32 s54, s54, 3584
              s_lshl_b32 s56, s52, 7
              s_add_u32 s54, s54, s56
              v_mul_u32_u24 v11, 3584, v11
              v_and_b32 v10, 7, v0
              v_lshl_add_u32 v11, v10, 4, v11
              v_add_u32 v11, s54, v11
              v_and_b32 v10, 8, v0
              v_cmp_eq_u32 vcc, 0, v10
              v_mov_b32 v8, s18
              v_mov_b32 v9, s16
              v_cndmask_b32 v8, v8, v9, vcc
              v_mov_b32 v9, s19
              v_mov_b32 v10, s17
              v_cndmask_b32 v9, v9, v10, vcc
              v_add_co_u32 v8, vcc, v8, v11
              v_addc_co_u32 v9, vcc, 0, v9, vcc""")
        for q in range(4):
            for r in range(2):
                d = GU + 4*(4*r + q)
                e(f"global_load_dwordx4 v[{d}:{d+3}], v[8:9], off offset:{3584*r} {nt}")
            if q < 3: e("v_add_co_u32 v8, vcc, 28672, v8\nv_addc_co_u32 v9, vcc, 0, v9, vcc")
        e(f"s_branch {skip}\n{dn}:")
        srd(44, 20, 1792*896)
        e("""v_lshlrev_b32 v7, 2, v7
             v_lshl_add_u32 v7, v6, 1, v7
             v_mul_u32_u24 v7, 896, v7
             v_and_b32 v10, 15, v0
             v_lshl_add_u32 v7, v10, 3, v7
             s_mul_i32 s54, s52, 57344
             s_lshl_b32 s56, s51, 7
             s_add_u32 s54, s54, s56""")
        for i in range(8):
            for hi in range(2):
                d = GU + 2*(8*hi + i)
                e(f"buffer_load_dwordx2 v[{d}:{d+1}], v7, s[44:47], s54 offen offset:{896*hi} {nt}")
            if i < 7: e("s_add_u32 s54, s54, 7168")
        srd(44, 22, 896)
        if touch_out: e("v_mov_b32 v7, 0\nbuffer_load_dword v14, v7, s[44:47], 0 offen")
        e(f"{skip}:")
        e.barrier_hist()

    if wpos == "early":
        load_wo(); load_ffn()
    e(f"""v_bfe_u32 v4, v0, 3, 1
          v_lshlrev_b32 v4, 9, v4
          v_lshl_add_u32 v4, v2, 6, v4
          v_lshl_add_u32 v4, v3, 4, v4
          s_waitcnt vmcnt(0)""")
    stamp(2)
    lds_spin(0, "s_cmp_eq_u32", 0, 59)
    e(f"ds_read_b128 v[{QB}:{QB+3}], v4 offset:{QS}\nds_read_b128 v[{QB+4}:{QB+7}], v4 offset:{QS+256}\ns_add_u32 s31, s31, 0x9E3779B1\ns_waitcnt lgkmcnt(0)")
    stamp(3)
    for i in range(8):
        a, k = ACC + 4*i, KR + 8*i
        e(f"v_mfma_f32_16x16x32_bf16 v[{a}:{a+3}], v[{k}:{k+3}], v[{QB}:{QB+3}], 0")
        e(f"v_mfma_f32_16x16x32_bf16 v[{a}:{a+3}], v[{k+4}:{k+7}], v[{QB+4}:{QB+7}], v[{a}:{a+3}]")
    for r in range(4):
        for i in range(8):
            a = ACC + 4*i
            if r == 0: e(f"v_mov_b32_dpp v{SC+i}, v{a} quad_perm:[0,0,0,0] row_mask:0xf bank_mask:0xf")
            else: e(f"v_add_f32_dpp v{SC+i}, v{a+r}, v{SC+i} quad_perm:[{r},{r},{r},{r}] row_mask:0xf bank_mask:0xf")
    for i in range(0, 8, 2):
        e(f"v_cvt_pk_bf16_f32 v{SC+i+1}, v{SC+i}, v{SC+i+1}")
    for i in range(0, 8, 2):
        e(f"v_lshlrev_b32 v{SC+i}, 16, v{SC+i+1}\nv_and_b32 v{SC+i+1}, 0xffff0000, v{SC+i+1}")
    e(f"""v_max3_f32 v4, v{SC}, v{SC+1}, v{SC+2}
          v_max3_f32 v4, v4, v{SC+3}, v{SC+4}
          v_max3_f32 v4, v4, v{SC+5}, v{SC+6}
          v_max_f32 v4, v4, v{SC+7}""")
    xrow("v_max_f32", [4], [5])
    e(f"s_mov_b32 s57, {CEXP}")
    for i in range(8): e(f"v_sub_f32 v{SC+i}, v{SC+i}, v4")
    for i in range(8): e(f"v_mul_f32 v{SC+i}, s57, v{SC+i}")
    for i in range(8): e(f"v_exp_f32 v{SC+i}, v{SC+i}")
    e(f"""v_lshrrev_b32 v6, 3, v0
          v_lshlrev_b32 v7, 4, v6
          s_lshl_b32 s56, s30, 8
          v_add_u32 v7, s56, v7
          v_add_f32 v5, v{SC}, v{SC+1}""")
    for i in range(2, 8): e(f"v_add_f32 v5, v5, v{SC+i}")
    xrow("v_add_f32", [5], [8])
    e(f"""v_and_b32 v6, 1, v6
          v_lshlrev_b32 v6, 4, v6
          s_lshl_b32 s56, s30, 2
          v_add_u32 v6, s56, v6
          v_mov_b32 v8, 1
          v_mov_b32 v9, {FLAGS}
          s_mov_b32 exec_lo, 0x01010101
          s_mov_b32 exec_hi, 0x01010101
          ds_write_b128 v7, v[{SC}:{SC+3}] offset:{EB}
          ds_write_b128 v7, v[{SC+4}:{SC+7}] offset:{EB+128}
          ds_write_b32 v6, v4 offset:{MLW}
          ds_write_b32 v6, v5 offset:{MLW+32}
          s_mov_b64 exec, 1
          s_waitcnt lgkmcnt(0)
          ds_add_u32 v9, v8 offset:4
          s_mov_b64 exec, -1""")
    stamp(4)
    if wpos == "late":
        load_wo(); load_ffn()
    e(f"""v_lshrrev_b32 v4, 2, v0
          v_lshlrev_b32 v5, 4, v4
          s_lshl_b32 s54, s28, 9
          s_lshr_b32 s56, s29, 4
          s_lshl_b32 s56, s56, 3
          s_add_u32 s54, s54, s56
          s_add_u32 s54, s54, {ML}""")
    poll_sentinel(["buffer_load_dwordx2 v[16:17], v5, s[32:35], s54 offen sc1",
                   "buffer_load_dwordx2 v[18:19], v5, s[32:35], s54 offen offset:256 sc1"], [16, 18])
    e("v_max_f32 v20, v16, v18")
    dpp_red("v_max_f32", [20], ["row_ror:4", "row_ror:8"])
    xrow("v_max_f32", [20], [21])
    e("""v_sub_f32 v16, v16, v20
         v_sub_f32 v18, v18, v20
         v_mul_f32 v16, s57, v16
         v_mul_f32 v18, s57, v18
         v_exp_f32 v16, v16
         v_exp_f32 v18, v18
         v_mul_f32 v20, v16, v17
         v_fmac_f32 v20, v18, v19""")
    dpp_red("v_add_f32", [20], ["row_ror:4", "row_ror:8"])
    xrow("v_add_f32", [20], [21])
    e(f"""v_rcp_f32 v20, v20
          v_mul_f32 v16, v16, v20
          v_mul_f32 v18, v18, v20
          v_lshlrev_b32 v5, 11, v4
          v_lshl_add_u32 v5, v3, 4, v5
          s_lshl_b32 s54, s28, 16
          s_lshl_b32 s56, s29, 6
          s_add_u32 s54, s54, s56
          s_add_u32 s54, s54, {OP}
          s_add_u32 s56, s54, 32768
          v_mul_u32_u24 v22, 1792, v4
          v_lshl_add_u32 v22, v3, 4, v22
          v_bfe_u32 v6, v0, 3, 1
          v_lshlrev_b32 v6, 8, v6
          v_lshl_add_u32 v6, v2, 7, v6
          v_and_b32 v7, 7, v0
          v_lshl_add_u32 v6, v7, 4, v6
          s_cmp_eq_u32 s30, 3
          s_cselect_b32 s61, 40, 32
          v_and_b32 v7, s61, v0
          v_mov_b32 v8, {OOB}
          v_cmp_eq_u32 vcc, 0, v7
          v_cndmask_b32 v6, v8, v6, vcc
          s_mul_i32 s61, s55, 1792
          s_lshl_b32 s62, s30, 9
          s_add_u32 s61, s61, s62
          s_add_u32 s61, s61, {HP}""")
    stamp(5)
    e("s_barrier")
    stamp(6)
    poll_sentinel(["buffer_load_dwordx4 v[24:27], v5, s[32:35], s54 offen sc1",
                   "buffer_load_dwordx4 v[28:31], v5, s[32:35], s56 offen sc1"], [24, 28])
    stamp(7)
    for r in range(4): e(f"v_mul_f32 v{24+r}, v{24+r}, v16")
    for r in range(4): e(f"v_fmac_f32 v{24+r}, v{28+r}, v18")
    tred4(24)
    e("v_cvt_pk_bf16_f32 v24, v24, v24")
    for c in range(4):
        a = (A0, A1)[c & 1]
        for j in range(4): e(f"v_and_b32_dpp v{a+j}, v24, v{MK+j} quad_perm:[{c},{c},{c},{c}] row_mask:0xf bank_mask:0xf")
        e(f"v_mfma_f32_16x16x32_bf16 v[32:35], v[{a}:{a+3}], v[{WO+4*c}:{WO+4*c+3}], " + ("0" if c == 0 else "v[32:35]"))
    mode_store(["buffer_store_dwordx4 v[32:35], v6, s[32:35], s61 offen"])
    stamp(8)
    e("s_cmp_lg_u32 s30, 0\ns_cbranch_scc1 L_C")
    e(f"""s_cmp_ge_u32 s29, 28
          s_cbranch_scc1 L_Tend
          s_mul_i32 s54, s28, 57344
          s_lshl_b32 s56, s29, 6
          s_add_u32 s54, s54, s56
          s_add_u32 s54, s54, {HP}
          s_add_u32 s56, s54, 28672
          s_lshr_b32 s61, s29, 2
          s_lshl_b32 s61, s61, 12
          s_lshl_b32 s62, s28, 9
          s_add_u32 s61, s61, s62
          s_and_b32 s62, s29, 3
          s_lshl_b32 s62, s62, 7
          s_add_u32 s61, s61, s62
          s_add_u32 s61, s61, {CP}
          v_lshlrev_b32 v6, 5, v2
          v_lshl_add_u32 v6, v3, 3, v6
          v_and_b32 v7, 12, v0
          v_cmp_eq_u32 vcc, 0, v7
          v_cndmask_b32 v6, v8, v6, vcc""")
    poll_sentinel(["buffer_load_dwordx4 v[36:39], v22, s[32:35], s54 offen sc1",
                   "buffer_load_dwordx4 v[40:43], v22, s[32:35], s56 offen sc1"], [36, 40])
    stamp(9)
    for r in range(4): e(f"v_add_f32 v{36+r}, v{36+r}, v{40+r}")
    tred4(36)
    e("v_mov_b32 v37, s31\nbuffer_store_dwordx2 v[36:37], v6, s[32:35], s61 offen sc1")
    stamp(10)
    e("L_Tend:")
    finish(16)
    e(f"""L_C:
          s_cmp_ge_u32 s52, 28
          s_cbranch_scc1 L_Tend
          s_lshl_b32 s54, s51, 12
          s_add_u32 s54, s54, {CP}
          v_lshlrev_b32 v5, 3, v0
          v_lshlrev_b32 v13, 16, v13
          v_mov_b32 v23, 0x3f803f80""")
    for a in (A0, A1):
        for j in range(4): e(f"v_and_b32 v{a+j}, v23, v{MK+j}")
    e(f"""s_mul_i32 s61, s52, 14336
          s_add_u32 s61, s61, {DP}
          s_lshl_b32 s62, s51, 1
          s_add_u32 s62, s62, s30
          s_sub_u32 s62, s62, 1
          s_lshl_b32 s62, s62, 10
          s_add_u32 s62, s62, s61
          v_lshlrev_b32 v6, 4, v0
          v_mov_b32 v23, s31
          s_mov_b32 s58, {SPIN}
          L_Cpoll:""")
    for g in range(8): e(f"buffer_load_dwordx2 v[{36+2*g}:{37+2*g}], v5, s[32:35], s54 offen offset:{512*g} sc1")
    e("s_sub_u32 s58, s58, 1\ns_cbranch_scc1 L_Cdone\ns_waitcnt vmcnt(7)\nv_xor_b32 v52, v37, v23")
    for g in range(1, 8): e(f"s_waitcnt vmcnt({7-g})\nv_bitop3_b32 v52, v{37+2*g}, v23, v52 bitop3:0xbe")
    e("v_cmp_ne_u32 vcc, 0, v52\ns_cbranch_vccnz L_Cpoll\nL_Cdone:\ns_waitcnt vmcnt(0)")
    stamp(9)
    e("""v_add_f32 v36, v36, v38
         v_add_f32 v40, v40, v42
         v_add_f32 v44, v44, v46
         v_add_f32 v48, v48, v50
         v_add_f32 v36, v36, v40
         v_add_f32 v44, v44, v48
         v_add_f32 v36, v36, v44""")
    bfround(36)
    e("v_add_f32 v36, v36, v13\nv_cvt_pk_bf16_f32 v36, v36, v36\ns_cmp_eq_u32 s30, 3\ns_cbranch_scc1 L_D\ns_cmp_eq_u32 s30, 2\ns_cbranch_scc1 L_GU1")
    for u in range(2):
        if u == 1: e("L_GU1:")
        for i in range(8):
            a = (A0, A1)[i & 1]
            for j in range(4): e(f"v_and_b32_dpp v{a+j}, v36, v{MK+j} row_newbcast:{8*u+i} row_mask:0xf bank_mask:0x3")
            e(f"v_mfma_f32_16x16x32_bf16 v[32:35], v[{a}:{a+3}], v[{GU+4*i}:{GU+4*i+3}], " + ("0" if i == 0 else "v[32:35]"))
        mode_store(["buffer_store_dwordx4 v[32:35], v6, s[32:35], s62 offen"])
        stamp(10)
        e("s_branch L_Tend")
    e(f"""L_D:
          v_and_b32 v36, 0xffff0000, v36
          v_mov_b32 v38, v36
          v_mul_f32 v39, v36, v36""")
    dpp_red("v_add_f32", [38, 39], ["row_ror:8", "row_ror:4", "row_ror:2", "row_ror:1"])
    xrow("v_add_f32", [38, 39], [40, 41])
    e(f"""s_lshl_b32 s54, s52, 7
          s_add_u32 s54, s54, {ST}
          s_lshl_b32 s56, s51, 4
          v_mov_b32 v7, s56
          v_cmp_eq_u32 vcc, 0, v0
          v_cndmask_b32 v7, v8, v7, vcc""")
    mode_store(["buffer_store_dwordx2 v[38:39], v7, s[32:35], s54 offen"])
    e("""v_and_b32 v7, 7, v0
         v_cmp_gt_u32 vcc, 7, v7
         v_lshlrev_b32 v7, 4, v7
         v_cndmask_b32 v7, v8, v7, vcc""")
    poll_sentinel(["buffer_load_dwordx2 v[40:41], v7, s[32:35], s54 offen sc1"], [40])
    stamp(10)
    dpp_red("v_add_f32", [40, 41], ["quad_perm:[1,0,3,2]", "quad_perm:[2,3,0,1]", "row_half_mirror"])
    e(f"""v_mul_f32 v40, {f2u(1/448)}, v40
          v_mul_f32 v41, {f2u(1/448)}, v41
          v_fma_f32 v41, -v40, v40, v41
          v_max_f32 v41, 0, v41""")
    bfround(40); bfround(41)
    e(f"v_add_f32 v41, {f2u(1e-5)}, v41"); bfround(41)
    e("v_sqrt_f32 v41, v41"); bfround(41)
    e(f"""v_rcp_f32 v41, v41
          s_add_u32 s54, s61, 4096
          s_add_u32 s56, s61, 8192
          s_add_u32 s62, s61, 12288""")
    so = ["s61", "s54", "s56", "s62"]
    poll_sentinel([f"buffer_load_dwordx4 v[{44+4*p}:{47+4*p}], v6, s[32:35], {so[p>>2]} offen offset:{(p&3)*1024} sc1" for p in range(14)], [44+4*p for p in range(14)])
    stamp(11)
    n = 14; idx = [44+4*p for p in range(14)]
    while len(idx) > 1:
        nx = []
        for a, b in zip(idx[0::2], idx[1::2]):
            for r in range(4): e(f"v_add_f32 v{a+r}, v{a+r}, v{b+r}")
            nx.append(a)
        if len(idx) & 1: nx.append(idx[-1])
        idx = nx
    e("""v_permlane32_swap_b32 v44, v46
         v_permlane32_swap_b32 v45, v47
         v_fma_f32 v44, -v40, v46, v44
         v_fma_f32 v45, -v40, v47, v45
         v_mul_f32 v44, v44, v41
         v_mul_f32 v45, v45, v41
         v_mov_b32 v46, v44
         v_mov_b32_dpp v44, v45 row_ror:8 row_mask:0xf bank_mask:0xc
         v_mov_b32_dpp v45, v46 row_ror:8 row_mask:0xf bank_mask:0x3
         v_cvt_pk_bf16_f32 v45, v44, v45
         v_lshlrev_b32 v44, 16, v45
         v_and_b32 v45, 0xffff0000, v45""")
    k0 = -2.0 * 0.7978845608028654 * 1.4426950408889634
    e(f"""v_mul_f32 v46, v44, v44
          v_mul_f32 v46, {f2u(k0*0.044715)}, v46
          v_add_f32 v46, {f2u(k0)}, v46
          v_mul_f32 v46, v46, v44
          v_exp_f32 v46, v46
          v_add_f32 v46, 1.0, v46
          v_rcp_f32 v46, v46
          v_mul_f32 v46, v46, v44""")
    bfround(46)
    e("v_mul_f32 v46, v46, v45\nv_cvt_pk_bf16_f32 v46, v46, v46")
    for i in range(16):
        a = 180 + 2*(i & 3)
        for j in range(2): e(f"v_and_b32_dpp v{a+j}, v46, v{MK+j} row_newbcast:{i} row_mask:0xf bank_mask:0xf")
        if i >= 1:
            p = i - 1; ap = 180 + 2*(p & 3)
            e(f"v_mfma_f32_16x16x16_bf16 v[32:35], v[{ap}:{ap+1}], v[{GU+2*p}:{GU+2*p+1}], " + ("0" if p == 0 else "v[32:35]"))
    e(f"""s_mul_i32 s54, s51, 7168
          s_add_u32 s54, s54, {EP}
          v_mfma_f32_16x16x16_bf16 v[32:35], v[186:187], v[{GU+30}:{GU+31}], v[32:35]
          s_lshl_b32 s56, s52, 8
          s_add_u32 s56, s56, s54
          v_cmp_gt_u32 vcc, 16, v0
          v_cndmask_b32 v6, v8, v6, vcc
          buffer_store_dwordx4 v[32:35], v6, s[32:35], s56 offen sc1""")
    stamp(12)
    e(f"""s_sub_u32 s62, s52, 4
          s_cmp_gt_u32 s62, 3
          s_cbranch_scc1 L_Tend
          s_lshl_b32 s56, s62, 6
          s_add_u32 s54, s54, s56
          v_lshlrev_b32 v5, 8, v4
          v_lshl_add_u32 v5, v3, 4, v5
          v_add_u32 v6, 4096, v5
          v_cmp_gt_u32 vcc, 48, v0
          v_cndmask_b32 v6, v8, v6, vcc
          s_lshl_b32 s56, s62, 1
          v_lshrrev_b32 v9, 1, v3
          v_add_u32 v9, s56, v9
          v_and_b32 v10, 3, v9
          v_lshrrev_b32 v9, 2, v9
          v_and_b32 v11, 1, v3
          v_lshl_add_u32 v9, v11, 1, v9
          v_lshl_add_u32 v9, v9, 2, v2
          v_lshl_add_u32 v9, v9, 2, v10
          v_lshlrev_b32 v9, 2, v9
          ds_bpermute_b32 v36, v9, v36
          v_lshl_add_u32 v7, v3, 2, v2
          v_lshlrev_b32 v7, 1, v7
          v_and_b32 v9, 12, v0
          v_cmp_eq_u32 vcc, 0, v9
          v_cndmask_b32 v7, v8, v7, vcc
          s_lshl_b32 s61, s51, 7
          s_lshl_b32 s56, s62, 5
          s_add_u32 s61, s61, s56""")
    srd(44, 22, 896)
    poll_sentinel(["buffer_load_dwordx4 v[48:51], v5, s[32:35], s54 offen sc1",
                   "buffer_load_dwordx4 v[52:55], v6, s[32:35], s54 offen sc1"], [48, 52])
    stamp(13)
    for r in range(4): e(f"v_add_f32 v{48+r}, v{48+r}, v{52+r}")
    tred4(48)
    bfround(48)
    e(f"""s_waitcnt lgkmcnt(0)
          v_add_f32 v48, v48, v36
          v_cvt_pk_bf16_f32 v48, v48, v48
          buffer_store_short v48, v7, s[44:47], s61 offen
          s_cmp_lg_u32 s2, 4
          s_cbranch_scc1 L_Eend
          v_cmp_eq_u32 vcc, 0, v0
          v_cndmask_b32 v7, v8, v0, vcc
          buffer_store_dword v23, v7, s[32:35], 0 offen sc1
          L_Eend:""")
    stamp(14)
    if amp is not None:
        e(f"""s_cmp_lg_u32 s2, 4
              s_cbranch_scc1 L_Tend
              s_memrealtime s[96:97]
              s_waitcnt lgkmcnt(0)
              s_sub_u32 s98, s{64+2*int(amp)}, s64
              s_lshl_b32 s98, s98, 3
              s_min_u32 s98, s98, 100000
              L_amp:
              s_memrealtime s[100:101]
              s_waitcnt lgkmcnt(0)
              s_sub_u32 s99, s100, s96
              s_cmp_lt_u32 s99, s98
              s_cbranch_scc1 L_amp""")
    e("s_branch L_Tend")

    VR, PE, MK = 16, 144, 176
    e(f"""L_V:
          v_lshlrev_b32 v1, 2, v0
          v_mov_b32 v2, 0
          ds_write_b32 v1, v2 offset:{FLAGS}
          v_lshrrev_b32 v2, 4, v0
          v_and_b32 v3, 15, v0
          v_lshlrev_b32 v1, 9, v2
          v_lshl_add_u32 v1, v3, 4, v1
          s_sub_u32 s56, s30, 5
          s_lshl_b32 s54, s56, 8
          s_add_u32 s54, s54, s53
          s_waitcnt lgkmcnt(0)
          s_barrier""")
    srd(36, 8, 67108864); srd(32, 26, WS_SIZE)
    masks(MK, 4, 5)
    e(f"""v_lshrrev_b32 v6, 1, v2
          v_lshlrev_b32 v6, 10, v6
          v_and_b32 v7, 1, v2
          v_lshl_add_u32 v6, v7, 8, v6
          v_lshl_add_u32 v6, v3, 4, v6
          s_lshl_b32 s61, s55, 11
          s_lshl_b32 s56, s56, 9
          s_add_u32 s61, s61, s56
          s_add_u32 s61, s61, {OP}
          v_lshrrev_b32 v7, 3, v0
          v_and_b32 v8, 1, v7
          v_lshlrev_b32 v7, 4, v7
          v_lshlrev_b32 v8, 4, v8
          s_mov_b32 s57, {CEXP}""")
    if code_pf:
        e("s_getpc_b64 s[48:49]\nL_pc:\ns_sub_u32 s48, s48, L_pc-" + NAME + "_kernel\ns_subb_u32 s49, s49, 0\ns_cmp_lg_u32 s30, 6\ns_cbranch_scc1 L_nopf")
        e("s_lshl_b32 s56, s29, 9\nv_lshl_add_u32 v9, v0, 3, s56\nv_cmp_gt_u32 vcc, L_exit-" + NAME + "_kernel-8, v9\nv_cndmask_b32 v9, 0, v9, vcc\nglobal_load_dwordx2 v[10:11], v9, s[48:49]\nL_nopf:")
    for i in range(32):
        e(f"buffer_load_dwordx4 v[{VR+4*i}:{VR+4*i+3}], v1, s[36:39], s54 offen offset:{(i&1)*2048} {nt}")
        if i & 1 and i < 31: e("s_add_u32 s54, s54, 4096")
    stamp(1)
    lds_spin(4, "s_cmp_lt_u32", 4, 56)
    stamp(2)
    e(f"ds_read_b32 v249, v248\nds_read_b128 v[12:15], v8 offset:{MLW}")
    for w in range(4):
        for h in range(2): e(f"ds_read_b128 v[{PE+8*w+4*h}:{PE+8*w+4*h+3}], v7 offset:{EB+256*w+128*h}")
    e("""s_waitcnt lgkmcnt(0)
         v_readfirstlane_b32 s59, v249
         v_max3_f32 v4, v12, v13, v14
         v_max_f32 v4, v4, v15""")
    for w in range(4): e(f"v_sub_f32 v{12+w}, v{12+w}, v4")
    for w in range(4): e(f"v_mul_f32 v{12+w}, s57, v{12+w}")
    for w in range(4): e(f"v_exp_f32 v{12+w}, v{12+w}")
    for i in range(32): e(f"v_mul_f32 v{PE+i}, v{PE+i}, v{12+(i>>3)}")
    for i in range(32): e(f"v_cvt_pk_bf16_f32 v{PE+i}, v{PE+i}, v{PE+i}")
    for i in range(33):
        if i < 32:
            a = (A0, A1)[i & 1]
            for j in range(4): e(f"v_and_b32 v{a+j}, v{PE+i}, v{MK+j}")
        if i >= 1:
            p = i - 1; a = (A0, A1)[p & 1]
            e(f"s_waitcnt vmcnt({31-p})\nv_mfma_f32_16x16x32_bf16 v[12:15], v[{a}:{a+3}], v[{VR+4*p}:{VR+4*p+3}], " + ("0" if p == 0 else "v[12:15]"))
    stamp(3)
    mode_store(["buffer_store_dwordx4 v[12:15], v6, s[32:35], s61 offen"])
    e("s_barrier")
    stamp(4)
    finish(8)

    WQ, F, XA, MK = 16, 80, 96, 112
    e(f"""L_Q:
          s_setprio 3
          v_lshlrev_b32 v1, 4, v0
          v_lshrrev_b32 v2, 3, v0
          v_and_b32 v3, 7, v0
          v_mul_u32_u24 v4, {14*8192}, v2
          v_lshl_add_u32 v4, v3, 4, v4
          s_lshr_b32 s48, s29, 3
          s_and_b32 s49, s29, 7
          s_mul_i32 s54, s48, {112*8192}
          s_lshl_b32 s56, s28, 10
          s_add_u32 s54, s54, s56
          s_lshl_b32 s56, s49, 7
          s_add_u32 s54, s54, s56
          s_waitcnt lgkmcnt(0)""")
    srd(40, 4, 896)
    e("buffer_load_dwordx4 v[8:11], v1, s[40:43], 0 offen")
    srd(36, 10, 448*8192)
    for i in range(14):
        e(f"buffer_load_dwordx4 v[{WQ+4*i}:{WQ+4*i+3}], v4, s[36:39], s54 offen {nt}")
        if i < 13: e("s_add_u32 s54, s54, 8192")
    e("s_load_dword s31, s[26:27], 0\ns_barrier")
    srd(32, 26, WS_SIZE)
    ffn_scalars()
    e(f"""v_mov_b32 v12, -1
          v_mov_b32 v13, -1
          v_mov_b32 v14, -1
          v_mov_b32 v15, -1
          s_lshl_b32 s44, s55, 11
          s_add_u32 s44, s44, {OP}
          s_mul_i32 s45, s55, 1792
          s_add_u32 s45, s45, {HP}
          buffer_store_dwordx4 v[12:15], v1, s[32:35], s44 offen sc1
          buffer_store_dwordx4 v[12:15], v1, s[32:35], s44 offen offset:1024 sc1
          buffer_store_dwordx4 v[12:15], v1, s[32:35], s45 offen sc1
          s_mul_i32 s46, s52, 14336
          s_lshl_b32 s56, s51, 11
          s_add_u32 s46, s46, s56
          s_add_u32 s46, s46, {DP}
          s_mul_i32 s47, s51, 7168
          s_lshl_b32 s56, s52, 8
          s_add_u32 s47, s47, s56
          s_add_u32 s47, s47, {EP-768}
          s_lshl_b32 s61, s52, 7
          s_lshl_b32 s56, s51, 4
          s_add_u32 s61, s61, s56
          s_add_u32 s61, s61, {ST}
          s_cmp_lt_u32 s52, 28
          s_cselect_b32 s46, s46, 0x70000000
          s_cselect_b32 s47, s47, 0x70000000
          s_cselect_b32 s61, s61, 0x70000000
          s_add_u32 s56, s45, 1024
          v_add_u32 v5, s56, v1
          v_add_u32 v6, s47, v1
          v_cmp_gt_u32 vcc, 48, v0
          v_cndmask_b32 v5, v6, v5, vcc
          v_add_u32 v6, s46, v1
          s_lshl_b32 s62, s55, 4
          s_add_u32 s62, s62, {ML}
          v_mov_b32 v7, {OOB}
          v_writelane_b32 v7, s62, 0
          v_writelane_b32 v7, s61, 1
          buffer_store_dwordx4 v[12:15], v5, s[32:35], 0 offen sc1
          buffer_store_dwordx4 v[12:15], v6, s[32:35], 0 offen sc1
          buffer_store_dwordx4 v[12:15], v6, s[32:35], 0 offen offset:1024 sc1
          buffer_store_dwordx4 v[12:15], v7, s[32:35], 0 offen sc1""")
    NST = 7
    masks(MK, 72, 73)
    e(f"s_waitcnt vmcnt({14+NST})")
    stamp(1)
    for i in range(4): e(f"v_lshlrev_b32 v{F+2*i}, 16, v{8+i}\nv_and_b32 v{F+2*i+1}, 0xffff0000, v{8+i}")
    e(f"v_add_f32 v72, v{F}, v{F+1}")
    for i in range(2, 8): e(f"v_add_f32 v72, v72, v{F+i}")
    dpp_red("v_add_f32", [72], ["row_ror:8", "row_ror:4", "row_ror:2", "row_ror:1"])
    xrow("v_add_f32", [72], [73])
    e(f"v_mul_f32 v72, {f2u(1/448)}, v72\nv_mov_b32 v73, 0")
    for i in range(8): e(f"v_sub_f32 v74, v{F+i}, v72\nv_fmac_f32 v73, v74, v74")
    e("v_cmp_gt_u32 vcc, 56, v0\nv_cndmask_b32 v73, 0, v73, vcc")
    dpp_red("v_add_f32", [73], ["row_ror:8", "row_ror:4", "row_ror:2", "row_ror:1"])
    xrow("v_add_f32", [73], [74])
    e(f"v_mul_f32 v73, {f2u(1/448)}, v73")
    bfround(72); bfround(73)
    e(f"v_add_f32 v73, {f2u(1e-5)}, v73"); bfround(73)
    e("v_sqrt_f32 v73, v73"); bfround(73)
    e("v_rcp_f32 v74, v73")
    for i in range(8): e(f"v_sub_f32 v{F+i}, v{F+i}, v72")
    for i in range(0, 8, 2): e(f"v_cvt_pk_bf16_f32 v{F+i+1}, v{F+i}, v{F+i+1}")
    for i in range(0, 8, 2): e(f"v_lshlrev_b32 v{F+i}, 16, v{F+i+1}\nv_and_b32 v{F+i+1}, 0xffff0000, v{F+i+1}")
    for i in range(8): e(f"v_mul_f32 v{F+8+i}, v{F+i}, v74")
    for i in range(8): e(f"v_fma_f32 v{F+i}, -v{F+8+i}, v73, v{F+i}")
    for i in range(8): e(f"v_fmac_f32 v{F+8+i}, v{F+i}, v74")
    for i in range(8): e(f"v_cvt_pk_bf16_f32 v{F+i}, v{F+8+i}, v{F+8+i}")
    e(f"""v_lshlrev_b32 v72, 5, v0
          ds_write_b128 v72, v[{F}:{F+3}] offset:{XN}
          ds_write_b128 v72, v[{F+4}:{F+7}] offset:{XN+16}
          v_mul_u32_u24 v73, 56, v2
          s_mul_i32 s56, s48, 448
          v_add_u32 v73, s56, v73
          s_waitcnt lgkmcnt(0)""")
    for i in range(7): e(f"ds_read_b64 v[{XA+2*i}:{XA+2*i+1}], v73 offset:{XN+8*i}")
    e(f"""s_add_u32 s31, s31, 0x9E3779B1
          s_getreg_b32 s56, hwreg(HW_REG_XCC_ID, 0, 4)
          s_and_b32 s63, s31, 0xfffffff0
          s_or_b32 s63, s63, s56
          v_mov_b32 v75, s63
          s_waitcnt lgkmcnt(0)""")
    stamp(2)
    for i in range(15):
        if i < 14:
            a = (116, 120)[i & 1]
            for j in range(4): e(f"v_and_b32 v{a+j}, v{XA+i}, v{MK+j}")
        if i >= 1:
            p = i - 1; a = (116, 120)[p & 1]
            e(f"s_waitcnt vmcnt({13-p+NST})\nv_mfma_f32_16x16x32_bf16 v[8:11], v[{a}:{a+3}], v[{WQ+4*p}:{WQ+4*p+3}], " + ("0" if p == 0 else "v[8:11]"))
    e(f"""v_lshrrev_b32 v72, 4, v0
          v_lshlrev_b32 v72, 4, v72
          v_lshl_add_u32 v72, v3, 5, v72
          v_and_b32 v73, 40, v0
          v_mov_b32 v74, {OOB}
          v_cmp_eq_u32 vcc, 0, v73
          v_cndmask_b32 v72, v74, v72, vcc
          s_lshl_b32 s54, s28, 13
          s_add_u32 s54, s54, {QP}
          s_lshl_b32 s56, s48, 11
          s_add_u32 s56, s56, s54
          s_lshl_b32 s61, s49, 8
          s_add_u32 s56, s56, s61""")
    for r in range(4): e(f"v_mov_b32_dpp v{F+r}, v{8+r} row_ror:8 row_mask:0xf bank_mask:0xf")
    for r in range(4): e(f"v_permlane32_swap_b32 v{F+r}, v{F+4+r}")
    for r in range(4): e(f"v_add_f32 v{8+r}, v{8+r}, v{F+4+r}")
    for r in range(4): e(f"v_add_u32 v{8+r}, 0x80, v{8+r}")
    for r in range(4): e(f"s_mov_b32 s61, {0x07060500 + r}\nv_perm_b32 v{8+r}, v{8+r}, v75, s61")
    e("s_waitcnt vmcnt(0)\nbuffer_store_dwordx4 v[8:11], v72, s[32:35], s56 offen sc1")
    stamp(3)
    e(f"""s_add_u32 s56, s54, 4096
          s_mov_b32 s61, 0x0c0c0400
          s_mov_b32 s47, 0x04000c0c
          s_mov_b32 s58, {SPIN}
          s_waitcnt vmcnt(0)""")
    stamp(4)
    e("L_Qpoll:")
    for p in range(8): e(f"buffer_load_dwordx4 v[{16+4*p}:{19+4*p}], v1, s[32:35], {('s54','s56')[p>>2]} offen offset:{(p&3)*1024} sc1")
    e("v_mov_b32 v76, 0\ns_sub_u32 s58, s58, 1\ns_cbranch_scc1 L_Qdone")
    for p in range(8):
        b = 16 + 4*p
        e(f"""s_waitcnt vmcnt({7-p})
              v_perm_b32 v72, v{b+1}, v{b}, s61
              v_perm_b32 v73, v{b+3}, v{b+2}, s47
              v_bitop3_b32 v72, v72, v73, v75 bitop3:0x56
              v_or_b32 v76, v76, v72""")
    e("v_cmp_lt_u32 vcc, 15, v76\ns_cbranch_vccnz L_Qpoll\nL_Qdone:\ns_waitcnt vmcnt(0)")
    stamp(5)
    e("v_cmp_ne_u32 vcc, 0, v76")
    for i in range(32): e(f"v_and_b32 v{16+i}, 0xffffff00, v{16+i}")
    e("s_cmp_eq_u64 vcc, 0\ns_cselect_b32 s59, %d, 2" % (2 if force_global else 1))
    for k in range(2):
        for r in range(4):
            b = 16 + 4*k + r
            e(f"v_add_f32 v{b}, v{b}, v{b+8}\nv_add_f32 v{b+16}, v{b+16}, v{b+24}")
    for k in range(2):
        for r in range(4):
            b = 16 + 4*k + r
            e(f"v_add_f32 v{b}, v{b}, v{b+16}")
    e(f"""v_cvt_pk_bf16_f32 v16, v16, v17
          v_cvt_pk_bf16_f32 v17, v18, v19
          v_cvt_pk_bf16_f32 v18, v20, v21
          v_cvt_pk_bf16_f32 v19, v22, v23
          v_lshlrev_b32 v72, 3, v0
          ds_write_b64 v72, v[16:17] offset:{QS}
          ds_write_b64 v72, v[18:19] offset:{QS+512}
          v_mov_b32 v73, {FLAGS}
          v_mov_b32 v74, s59
          s_mov_b64 exec, 1
          s_waitcnt lgkmcnt(0)
          ds_write_b32 v73, v74
          s_mov_b64 exec, -1
          s_setprio 0
          buffer_load_dwordx4 v[24:27], v7, s[32:35], 0 offen sc1
          buffer_load_dwordx4 v[24:27], v1, s[32:35], s44 offen sc1
          buffer_load_dwordx4 v[24:27], v1, s[32:35], s44 offen offset:1024 sc1
          buffer_load_dwordx4 v[24:27], v1, s[32:35], s45 offen sc1
          buffer_load_dwordx4 v[24:27], v1, s[32:35], s45 offen offset:1024 sc1
          buffer_load_dwordx4 v[24:27], v6, s[32:35], 0 offen sc1
          buffer_load_dwordx4 v[24:27], v6, s[32:35], 0 offen offset:1024 sc1
          v_and_b32 v72, 1, v0
          v_lshlrev_b32 v72, 4, v72
          v_writelane_b32 v7, 0x70000000, 1
          s_mov_b32 s57, {CEXP}""".replace("v_writelane_b32 v7, 0x70000000, 1", "s_mov_b32 s56, 0x70000000\nv_writelane_b32 v7, s56, 1"))
    stamp(6)
    lds_spin(4, "s_cmp_lt_u32", 4, 56)
    e(f"""s_setprio 3
          ds_read_b128 v[16:19], v72 offset:{MLW}
          ds_read_b128 v[20:23], v72 offset:{MLW+32}
          s_waitcnt lgkmcnt(0)
          v_max3_f32 v8, v16, v17, v18
          v_max_f32 v8, v8, v19""")
    for w in range(4): e(f"v_sub_f32 v{16+w}, v{16+w}, v8")
    for w in range(4): e(f"v_mul_f32 v{16+w}, s57, v{16+w}")
    for w in range(4): e(f"v_exp_f32 v{16+w}, v{16+w}")
    e("""v_mul_f32 v9, v16, v20
         v_fmac_f32 v9, v17, v21
         v_fmac_f32 v9, v18, v22
         v_fmac_f32 v9, v19, v23
         v_mov_b32_dpp v10, v8 quad_perm:[1,1,1,1] row_mask:0xf bank_mask:0xf
         v_mov_b32_dpp v11, v9 quad_perm:[1,1,1,1] row_mask:0xf bank_mask:0xf""")
    mode_store(["buffer_store_dwordx4 v[8:11], v7, s[32:35], 0 offen"])
    stamp(7)
    finish(8)
    e("L_exit:\ns_endpgm")

    head = open("cdna_kernels/" + NAME + ".s.ref").read()
    head = head[:head.index("; @launch")]
    out = head + f"; @launch grid=(256,1,1) block=(448,1,1) lds={LDS_SIZE}\n"
    out += f""".amdgcn_target "amdgcn-amd-amdhsa--gfx950"
.text
.globl {NAME}_kernel
.p2align 8
.type {NAME}_kernel,@function
{NAME}_kernel:
"""
    out += e.text()
    out += f""".section .rodata,"a"
.p2align 6
.amdhsa_kernel {NAME}_kernel
  .amdhsa_next_free_vgpr 256
  .amdhsa_next_free_sgpr 102
  .amdhsa_accum_offset 256
  .amdhsa_group_segment_fixed_size 0
  .amdhsa_kernarg_size 96
  .amdhsa_user_sgpr_count 2
  .amdhsa_user_sgpr_kernarg_segment_ptr 1
  .amdhsa_system_sgpr_workgroup_id_x 1
.end_amdhsa_kernel
"""
    return out

if __name__ == "__main__":
    kw = {}
    for a in sys.argv[2:]:
        k, v = a.split("=")
        kw[k] = {"True": True, "False": False}.get(v, v)
    open(sys.argv[1], "w").write(gen(**kw))
```

```python
import sys, struct
from emit import Emitter, Ins, need

NAME = "sequential_preLN__sliding_block_cached__geglu_ffn__decode"
def f2u(x): return struct.unpack("<I", struct.pack("<f", x))[0]

QP, ML, CP, EP, OP, HH, DP, STAMP, WS_SIZE = 0x10000, 0x20000, 0x22000, 0x30000, 0x40000, 0xC0000, 0xD0000, 0x1E0000, 0x200000
XN, XR, QS, EB, RED, RED2, FLAGS, MLW, HL, LDS_SIZE = 0, 2048, 3072, 4096, 5120, 7168, 11264, 11520, 11776, 12288
OOB = 0x7ffffff0
SPIN = 1 << 16
CEXP = f2u(1.4426950408889634 / 16.0)
T0, T1, T2 = "s31", "s96", "s97"
TAGS = (T0, T0, T1, T2)

def gen(amp=None, nt="nt", wnt=None, stamps=False, force_global=False, wopos="V", gupos="B1", dnpos="V",
        code_pf=True, eack=True, kpre=1, vlead=0, kw=7, vw=14, lc=15, rot='gj', skew=None):
    if wnt is None: wnt = nt
    kpre, vlead, kw, vw = int(kpre), int(vlead), int(kw), int(vw)
    lc = int(lc); nb = lc - 12
    def koff(st): return ((st >> nb) << (lc + 5)) | ((st & ((1 << nb) - 1)) << 12)
    if skew is not None: amp = 0
    e = Emitter()
    uid = [0]
    deferred = []
    def lab(p): uid[0] += 1; return f"L_{p}{uid[0]}"
    def srd(d, b, n): e(f"s_mov_b32 s{d}, s{b}\ns_mov_b32 s{d+1}, s{b+1}\ns_mov_b32 s{d+2}, {n}\ns_mov_b32 s{d+3}, 0x00020000")
    def stamp(k):
        if stamps or (amp is not None and k in (0, int(amp))): e(f"s_memrealtime s[{64+2*k}:{65+2*k}]")
    def finish():
        if stamps: e("s_branch L_stamps")
        else: e("s_endpgm")
    def mode_store(ins):
        far, back = lab("far"), lab("back")
        e(f"s_cmp_lg_u32 s59, 0\ns_cbranch_scc1 {far}")
        for t in ins: e(t)
        e(f"{back}:")
        deferred.append((far, back, ins))
    def tags():
        e(f"""s_add_u32 s31, s31, 0x9E3779B1
              s_lshr_b32 s96, s31, 8
              s_or_b32 s96, s96, 1
              s_xor_b32 s96, s96, s31
              s_lshr_b32 s97, s31, 16""")
    def tag4(b, ff, last=T2):
        for r in range(4): e(f"v_bfi_b32 v{b+r}, v{ff}, {(T0, T0, T1, last)[r]}, v{b+r}")
    def lane_tag(d, idx, t):
        e(f"""v_mov_b32 v{d}, {T0}
              v_mov_b32 v{t}, {T1}
              v_cmp_eq_u32 vcc, 2, v{idx}
              v_cndmask_b32 v{d}, v{d}, v{t}, vcc
              v_mov_b32 v{t}, {T2}
              v_cmp_eq_u32 vcc, 3, v{idx}
              v_cndmask_b32 v{d}, v{d}, v{t}, vcc
              v_and_b32 v{d}, 0xff, v{d}""")
    def masks(m, t0, t1):
        e(f"""v_and_b32 v{t0}, 1, v0
              v_lshlrev_b32 v{t0}, 4, v{t0}
              v_mov_b32 v{t1}, 0xffff
              v_lshlrev_b32 v{t1}, v{t0}, v{t1}
              v_bfe_u32 v{t0}, v0, 1, 2""")
        for j in range(4):
            e(f"v_cmp_eq_u32 vcc, {j}, v{t0}\nv_cndmask_b32 v{m+j}, 0, v{t1}, vcc")
    def dpp_red(op, vs, ctrls):
        for c in ctrls:
            for v in vs: e(f"{op}_dpp v{v}, v{v}, v{v} {c} row_mask:0xf bank_mask:0xf")
    def xrow(op, vs, tmps):
        for sw in ("v_permlane16_swap_b32", "v_permlane32_swap_b32"):
            for v, t in zip(vs, tmps): e(f"v_mov_b32 v{t}, v{v}")
            for v, t in zip(vs, tmps): e(f"{sw} v{v}, v{t}")
            for v, t in zip(vs, tmps): e(f"{op} v{v}, v{v}, v{t}")
    def bfround(v): e(f"v_cvt_pk_bf16_f32 v{v}, v{v}, v{v}\nv_and_b32 v{v}, 0xffff0000, v{v}")
    def trows(a):
        e(f"""v_permlane32_swap_b32 v{a}, v{a+2}
              v_permlane32_swap_b32 v{a+1}, v{a+3}
              v_add_f32 v{a}, v{a}, v{a+2}
              v_add_f32 v{a+1}, v{a+1}, v{a+3}
              v_permlane16_swap_b32 v{a}, v{a+1}
              v_add_f32 v{a}, v{a}, v{a+1}""")
    def pk_add4(d, a, b):
        e(f"v_pk_add_f32 v[{d}:{d+1}], v[{a}:{a+1}], v[{b}:{b+1}]\nv_pk_add_f32 v[{d+2}:{d+3}], v[{a+2}:{a+3}], v[{b+2}:{b+3}]")
    def check(b, m, t):
        e(f"""v_bitop3_b32 v{t}, v{b}, v{b+1}, {T0} bitop3:0x7e
              v_bitop3_b32 v{t}, v{b+2}, {T1}, v{t} bitop3:0xbe
              v_bitop3_b32 v{t}, v{b+3}, {T2}, v{t} bitop3:0xbe
              v_cmp_ne_u32_sdwa s[{m}:{m+1}], v{t}, v246 src0_sel:BYTE_0 src1_sel:DWORD""")
    def qtag_reg(d, idx):
        e(f"v_lshlrev_b32 v{d}, 3, v{idx}\nv_lshrrev_b32 v{d}, v{d}, {T0}\nv_and_b32 v{d}, 0xff, v{d}")
    def qclean(loads):
        for t, b in loads: e(f"v_and_b32 v{b}, 0xffffff00, v{b}")
    def poll_init(n, m0, init=None):
        for i in range(n):
            v = (init or {}).get(i)
            if v is None: e(f"s_mov_b64 s[{m0+2*i}:{m0+2*i+1}], -1")
            else: e(f"s_mov_b32 s{m0+2*i}, {v & 0xffffffff}\ns_mov_b32 s{m0+2*i+1}, {v >> 32}")
        e(f"s_mov_b32 s58, {SPIN}")
    def poll(loads, m0, issued=False, behind=0, quad=None):
        n = len(loads)
        top, chk, done = lab("poll"), lab("chk"), lab("pdone")
        if issued: e(f"s_branch {chk}")
        e(f"{top}:\ns_sub_u32 s58, s58, 1\ns_cbranch_scc1 {done}")
        for i, (t, b) in enumerate(loads): e(f"s_wqm_b64 exec, s[{m0+2*i}:{m0+2*i+1}]\n{t}")
        e("s_mov_b64 exec, -1")
        if behind: e("s_waitcnt vmcnt(0)")
        if issued: e(f"{chk}:")
        for i, (t, b) in enumerate(loads):
            e(f"s_waitcnt vmcnt({n-1-i+behind})")
            if quad: e(f"v_cmp_ne_u32_sdwa s[{m0+2*i}:{m0+2*i+1}], v{b}, v{quad} src0_sel:BYTE_0 src1_sel:DWORD")
            else: check(b, m0 + 2*i, 247 + (i & 1))
        if n == 1: e(f"s_cmp_lg_u64 s[{m0}:{m0+1}], 0")
        else:
            e(f"s_or_b64 vcc, s[{m0}:{m0+1}], s[{m0+2}:{m0+3}]")
            for i in range(2, n): e(f"s_or_b64 vcc, vcc, s[{m0+2*i}:{m0+2*i+1}]")
        e(f"s_cbranch_scc1 {top}\n{done}:")
        if quad: qclean(loads)
    def lds_spin(off, dst):
        l, d = lab("spin"), lab("sdone")
        e(f"v_mov_b32 v248, {FLAGS}\ns_mov_b32 s58, {SPIN*16}\n{l}:\nds_read_b32 v249, v248 offset:{off}\ns_sub_u32 s58, s58, 1\ns_cbranch_scc1 {d}")
        e(f"s_waitcnt lgkmcnt(0)\nv_readfirstlane_b32 s{dst}, v249\ns_bitcmp0_b32 s{dst}, 2\ns_cbranch_scc1 {l}\n{d}:\ns_waitcnt lgkmcnt(0)")
    def lds_signal(off, val=None):
        e(f"v_mov_b32 v248, {FLAGS}\nv_mov_b32 v249, {val or 1}\ns_mov_b64 exec, 1\ns_waitcnt lgkmcnt(0)\nds_add_u32 v248, v249 offset:{off}\ns_mov_b64 exec, -1")
    def ffn_scalars():
        e("""s_mul_i32 s50, s29, 37
             s_lshr_b32 s50, s50, 8
             s_mul_i32 s51, s50, 7
             s_sub_u32 s51, s29, s51
             s_lshl_b32 s52, s50, 3
             s_add_u32 s52, s52, s28""")

    e(f"""s_cmp_ge_u32 s2, 256
          s_cbranch_scc1 L_exit
          s_load_dwordx16 s[4:19], s[0:1], 0
          s_load_dwordx8 s[20:27], s[0:1], 64""")
    stamp(0)
    e(f"""v_lshrrev_b32 v1, 6, v0
         v_and_b32 v0, 63, v0
         v_readfirstlane_b32 s30, v1
         s_and_b32 s28, s2, 7
         s_lshr_b32 s29, s2, 3
         s_lshl_b32 s55, s28, 5
         s_add_u32 s55, s55, s29
         s_cmp_eq_u32 s30, 4
         s_cbranch_scc1 L_Q
         s_lshl_b32 s53, s28, 23
         s_lshl_b32 s54, s29, {lc}
         s_add_u32 s53, s53, s54
         s_add_u32 s53, s53, 6291456""")
    e({"0": "s_mov_b32 s56, 0", "gj": "s_lshl_b32 s56, s28, 1\ns_xor_b32 s56, s56, s29\ns_and_b32 s56, s56, 15",
       "gj1": "s_lshl_b32 s56, s28, 1\ns_and_b32 s54, s29, 1\ns_or_b32 s56, s56, s54", "j": "s_and_b32 s56, s29, 15",
       "mul": "s_mul_i32 s56, s2, s2\ns_mul_i32 s56, s56, 0x9E3779B1\ns_lshr_b32 s56, s56, 28"}[rot])
    e(f"""s_lshr_b32 s54, s56, {nb}
         s_lshl_b32 s54, s54, {lc+5}
         s_or_b32 s53, s53, s54
         s_and_b32 s54, s56, {(1 << nb) - 1}
         s_lshl_b32 s54, s54, 12
         s_or_b32 s53, s53, s54
         s_cmp_gt_u32 s30, 4
         s_cbranch_scc1 L_V""")

    KR, ACC, SC, QB, MK, WO, GU, AF, GA = 16, 80, 144, 152, 160, 164, 180, 196, 212
    e(f"""v_bfe_u32 v9, v0, 3, 1
          v_lshlrev_b32 v1, 9, v9
          v_lshrrev_b32 v2, 4, v0
          v_lshl_add_u32 v1, v2, 7, v1
          v_and_b32 v10, 7, v0
          v_lshl_add_u32 v1, v10, 4, v1
          s_lshl_b32 s54, s30, 10
          s_add_u32 s53, s54, s53
          s_waitcnt lgkmcnt(0)""")
    srd(36, 6, 67108864)
    qg = [f"buffer_load_dwordx4 v[{ACC}:{ACC+3}], v4, s[32:35], s61 offen sc1", f"buffer_load_dwordx4 v[{ACC+4}:{ACC+7}], v4, s[32:35], s62 offen sc1"]
    for i in range(8):
        if vlead and i == 8 - vlead: lds_signal(8)
        for dh in range(2):
            r = KR + 8*i + 4*dh
            if 2*i + dh >= kw: e(f"s_waitcnt vmcnt({kw-1})")
            e(f"s_xor_b32 s54, s53, {koff(2*i+dh)}\nbuffer_load_dwordx4 v[{r}:{r+3}], v1, s[36:39], s54 offen {nt}")
        if i == kpre - 1:
            e("s_load_dword s31, s[26:27], 0")
            srd(32, 26, WS_SIZE)
            e(f"""v_lshrrev_b32 v5, 5, v0
                  v_and_b32 v6, 31, v0
                  v_lshlrev_b32 v4, 11, v5
                  v_lshl_add_u32 v4, v6, 4, v4
                  s_lshl_b32 s61, s28, 13
                  s_lshl_b32 s62, s30, 9
                  s_add_u32 s61, s61, s62
                  s_add_u32 s61, s61, {QP}
                  s_add_u32 s62, s61, 4096
                  s_barrier""")
    for t in qg:
        if kw <= 16: e(f"s_waitcnt vmcnt({kw-1})")
        e(t)
    if not vlead: lds_signal(8)
    stamp(1)
    srd(40, 12, 4096*896)
    ffn_scalars()
    masks(MK, 7, 8)
    tags()
    e(f"""v_mov_b32 v246, 0
          s_getreg_b32 s56, hwreg(HW_REG_XCC_ID, 0, 4)
          s_and_b32 s63, s97, 0xf0
          s_or_b32 s63, s63, s56
          v_lshlrev_b32 v6, 3, v6
          v_lshl_add_u32 v6, v5, 2, v6
          s_lshl_b32 s56, s30, 8
          v_add_u32 v6, s56, v6
          v_and_b32 v3, 3, v0
          v_xor_b32 v7, 64, v1
          v_lshl_add_u32 v11, v9, 5, v2
          v_mul_u32_u24 v11, 896, v11
          v_lshl_add_u32 v11, v10, 4, v11
          s_lshl_b32 s48, s28, 9
          s_lshl_b32 s56, s50, 7
          s_add_u32 s48, s48, s56
          s_and_b32 s56, s30, 1
          s_lshl_b32 s56, s56, 6
          s_add_u32 s48, s48, s56
          s_lshr_b32 s56, s30, 1
          s_lshl_b32 s56, s56, 2
          s_add_u32 s48, s48, s56
          s_mul_i32 s48, s48, 896
          s_lshl_b32 s56, s51, 7
          s_add_u32 s48, s48, s56
          s_lshl_b32 s54, s51, 6
          s_lshl_b32 s56, s30, 4
          s_add_u32 s49, s54, s56
          s_mul_i32 s54, s49, 3584
          s_lshl_b32 s56, s52, 7
          s_add_u32 s54, s54, s56
          v_mul_u32_u24 v12, 3584, v2
          v_lshl_add_u32 v12, v10, 4, v12
          v_add_u32 v12, s54, v12
          v_cmp_eq_u32 vcc, 0, v9
          v_mov_b32 v13, s18
          v_mov_b32 v14, s16
          v_cndmask_b32 v13, v13, v14, vcc
          v_mov_b32 v14, s19
          v_mov_b32 v15, s17
          v_cndmask_b32 v14, v14, v15, vcc
          v_add_co_u32 v{GA}, vcc, v13, v12
          v_addc_co_u32 v{GA+1}, vcc, 0, v14, vcc""")
    for m in range(1, 4):
        e(f"v_add_co_u32 v{GA+2*m}, vcc, 14336, v{GA+2*m-2}\nv_addc_co_u32 v{GA+2*m+1}, vcc, 0, v{GA+2*m-1}, vcc")
    def load_wo():
        for m in range(4):
            e(f"buffer_load_dwordx4 v[{WO+4*m}:{WO+4*m+3}], v11, s[40:43], s48 offen {wnt}")
            if m < 3: e("s_add_u32 s48, s48, 7168")
    def load_gu(guard=True):
        skip = lab("nogu")
        if guard: e(f"s_cmp_ge_u32 s52, 28\ns_cbranch_scc1 {skip}")
        for m in range(4): e(f"global_load_dwordx4 v[{GU+4*m}:{GU+4*m+3}], v[{GA+2*m}:{GA+2*m+1}], off {wnt}")
        e(f"{skip}:")
    e(f"s_mov_b32 s58, {SPIN}\nL_qpoll:\ns_waitcnt vmcnt(0)")
    stamp(2)
    a = ACC
    e(f"""v_bitop3_b32 v12, v{a}, v{a+1}, {T0} bitop3:0x7e
          v_bitop3_b32 v13, v{a+4}, v{a+5}, {T0} bitop3:0x7e
          v_bitop3_b32 v14, v{a+2}, v{a+6}, {T1} bitop3:0x7e
          v_bitop3_b32 v15, v{a+3}, v{a+7}, s63 bitop3:0x7e
          v_or3_b32 v12, v12, v13, v14
          v_and_b32 v13, 0xf0, v15
          v_or_b32 v12, v12, v13
          v_cmp_ne_u32_sdwa vcc, v12, v246 src0_sel:BYTE_0 src1_sel:DWORD
          s_cbranch_vccz L_qdone
          s_sub_u32 s58, s58, 1
          s_cbranch_scc1 L_qdone""")
    for t in qg: e(t)
    e("s_branch L_qpoll\nL_qdone:\nv_and_b32 v15, 15, v15\nv_cmp_ne_u32 vcc, 0, v15")
    for r in range(8): e(f"v_and_b32 v{a+r}, 0xffffff00, v{a+r}")
    e("s_cmp_eq_u64 vcc, 0\ns_cselect_b32 s56, %d, 0x101" % (0x101 if force_global else 1))
    for r in range(4): e(f"v_add_f32 v{a+r}, v{a+r}, v{a+4+r}")
    e(f"""v_permlane32_swap_b32 v{a}, v{a+2}
          v_permlane32_swap_b32 v{a+1}, v{a+3}
          v_add_f32 v{a}, v{a}, v{a+2}
          v_add_f32 v{a+1}, v{a+1}, v{a+3}
          v_cvt_pk_bf16_f32 v{a}, v{a}, v{a+1}
          ds_write_b32 v6, v{a} offset:{QS}""")
    lds_signal(0, "s56")
    lds_spin(0, 59)
    e(f"ds_read_b128 v[{QB}:{QB+3}], v1 offset:{QS}\nds_read_b128 v[{QB+4}:{QB+7}], v7 offset:{QS}\ns_lshr_b32 s59, s59, 8\ns_waitcnt lgkmcnt(0)")
    stamp(3)
    for m in list(range(0, 16, 2)) + list(range(1, 16, 2)):
        a, k, q = ACC + 4*m, KR + 4*m, QB + 4*(m & 1)
        e(f"v_mfma_f32_16x16x32_bf16 v[{a}:{a+3}], v[{k}:{k+3}], v[{q}:{q+3}], 0")
    for par in range(2):
        pat = (0xf0f00f0f, 0x0f0ff0f0)[par]
        e(f"s_mov_b32 exec_lo, {pat}\ns_mov_b32 exec_hi, {pat}")
        for r in range(4):
            for p in range(8):
                a = ACC + 4*(2*p + par)
                if r == 0: e(f"v_mov_b32_dpp v{SC+p}, v{a} quad_perm:[0,0,0,0] row_mask:0xf bank_mask:0xf")
                else: e(f"v_add_f32_dpp v{SC+p}, v{a+r}, v{SC+p} quad_perm:[{r},{r},{r},{r}] row_mask:0xf bank_mask:0xf")
    e("s_mov_b64 exec, -1")
    Z = ACC
    for u in range(4): e(f"v_permlane16_swap_b32 v{SC+2*u}, v{SC+2*u+1}")
    for u in range(4): e(f"v_add_f32_dpp v{Z+u}, v{SC+2*u+1}, v{SC+2*u} row_half_mirror row_mask:0xf bank_mask:0xf")
    for u in (0, 2): e(f"v_cvt_pk_bf16_f32 v{Z+u+1}, v{Z+u}, v{Z+u+1}")
    for u in (0, 2): e(f"v_lshlrev_b32 v{Z+u}, 16, v{Z+u+1}\nv_and_b32 v{Z+u+1}, 0xffff0000, v{Z+u+1}")
    e(f"""v_max3_f32 v4, v{Z}, v{Z+1}, v{Z+2}
          v_max_f32 v4, v4, v{Z+3}
          v_bfe_u32 v6, v0, 2, 1
          v_lshrrev_b32 v7, 5, v0""")
    dpp_red("v_max_f32", [4], ["row_half_mirror"])
    xrow("v_max_f32", [4], [5])
    e(f"s_mov_b32 s57, {CEXP}")
    for u in range(4): e(f"v_sub_f32 v{Z+u}, v{Z+u}, v4")
    for u in range(4): e(f"v_mul_f32 v{Z+u}, s57, v{Z+u}")
    for u in range(4): e(f"v_exp_f32 v{Z+u}, v{Z+u}")
    e(f"""v_lshl_add_u32 v7, v7, 1, v9
          v_lshl_add_u32 v7, v6, 4, v7
          v_add_f32 v5, v{Z}, v{Z+1}
          v_add_f32 v5, v5, v{Z+2}
          v_add_f32 v5, v5, v{Z+3}
          v_and_b32 v6, 1, v2
          v_lshl_add_u32 v7, v6, 5, v7""")
    dpp_red("v_add_f32", [5], ["row_half_mirror"])
    xrow("v_add_f32", [5], [8])
    e(f"""s_lshl_b32 s56, s30, 6
          v_lshl_add_u32 v7, v7, 4, s56
          s_lshl_b32 s56, s30, 2
          v_lshl_add_u32 v6, v9, 4, s56
          s_mov_b32 exec_lo, 0x11111111
          s_mov_b32 exec_hi, 0x11111111
          ds_write_b128 v7, v[{Z}:{Z+3}] offset:{EB}
          ds_write_b32 v6, v4 offset:{MLW}
          ds_write_b32 v6, v5 offset:{MLW+32}""")
    lds_signal(4)
    stamp(4)
    e(f"""s_cmp_ge_u32 s29, 28
          s_cbranch_scc1 L_end
          v_bfe_u32 v4, v0, 2, 1
          v_lshl_add_u32 v4, v2, 1, v4
          v_lshl_add_u32 v5, v4, 2, v3
          v_lshlrev_b32 v5, 4, v5
          v_lshlrev_b32 v4, 11, v4
          v_lshl_add_u32 v4, v9, 6, v4
          v_lshl_add_u32 v4, v3, 4, v4
          s_lshl_b32 s54, s28, 9
          s_add_u32 s54, s54, {ML}
          s_lshl_b32 s60, s28, 16
          s_lshl_b32 s56, s50, 9
          s_add_u32 s60, s60, s56
          s_lshl_b32 s56, s30, 7
          s_add_u32 s60, s60, s56
          s_add_u32 s60, s60, {OP}
          s_add_u32 s61, s60, 16384
          s_add_u32 s62, s60, 32768
          s_add_u32 s63, s60, 49152
          v_and_b32 v6, 1, v2
          v_lshlrev_b32 v6, 4, v6
          v_lshl_add_u32 v6, v10, 5, v6
          v_lshl_add_u32 v6, v9, 8, v6
          s_lshl_b32 s56, s30, 9
          v_add_u32 v6, s56, v6
          v_lshl_add_u32 v7, v3, 2, v2
          v_add_u32 v7, s49, v7
          v_lshlrev_b32 v8, 1, v7
          ds_read_u16 v8, v8 offset:{XR}
          v_lshlrev_b32 v7, 2, v7
          v_and_b32 v12, 0xff, v7
          v_lshl_add_u32 v7, v2, 2, v3
          v_add_u32 v7, s49, v7
          v_lshlrev_b32 v7, 2, v7
          v_and_b32 v13, 12, v0
          v_cmp_eq_u32 vcc, 0, v13
          v_mov_b32 v13, {OOB}
          v_cndmask_b32 v7, v13, v7, vcc
          v_lshrrev_b32 v13, 2, v0
          v_lshlrev_b32 v13, 8, v13
          v_lshl_add_u32 v13, v3, 4, v13
          s_lshl_b32 s56, s30, 10
          v_lshl_add_u32 v14, v0, 4, s56""")
    lane_tag(15, 3, 16)
    qtag_reg(245, 3)
    poll_init(1, 4)
    e("s_waitcnt lgkmcnt(0)\nv_lshlrev_b32 v8, 16, v8\ns_barrier")
    stamp(5)
    mlg = [("buffer_load_dwordx4 v[16:19], v5, s[32:35], s54 offen sc1", 16)]
    if gupos == "V": load_gu()
    e(mlg[0][0])
    if wopos == "V": load_wo()
    poll(mlg, 4, issued=True, behind=4 if wopos == "V" else 0)
    e("""s_cmp_ge_u32 s50, 2
         s_cselect_b64 vcc, -1, 0
         v_cndmask_b32 v16, v16, v18, vcc
         v_cndmask_b32 v17, v17, v19, vcc
         v_and_b32 v16, 0xffffff00, v16
         v_and_b32 v17, 0xffffff00, v17
         v_mov_b32 v18, v16""")
    q8 = ["quad_perm:[1,0,3,2]", "quad_perm:[2,3,0,1]", "row_half_mirror"]
    dpp_red("v_max_f32", [18], q8); xrow("v_max_f32", [18], [19])
    e("v_sub_f32 v16, v16, v18\nv_mul_f32 v16, s57, v16\nv_exp_f32 v16, v16\nv_mul_f32 v18, v16, v17")
    dpp_red("v_add_f32", [18], q8); xrow("v_add_f32", [18], [19])
    e("v_rcp_f32 v18, v18\nv_mul_f32 v16, v16, v18")
    for i in range(4): e(f"v_mov_b32_dpp v{32+i}, v16 quad_perm:[{i},{i},{i},{i}] row_mask:0xf bank_mask:0xf")
    poll_init(4, 4)
    stamp(6)
    e("s_barrier")
    stamp(7)
    poll([(f"buffer_load_dwordx4 v[{16+4*i}:{19+4*i}], v4, s[32:35], s{60+i} offen sc1", 16 + 4*i) for i in range(4)], 4, quad=245)
    stamp(8)
    if gupos == "B1": load_gu()
    for i in range(4):
        w, s = 32 + (i & 2), i & 1
        for p in (0, 2):
            if i == 0: e(f"v_pk_mul_f32 v[{36+p}:{37+p}], v[{16+p}:{17+p}], v[{w}:{w+1}] op_sel:[0,0] op_sel_hi:[1,0]")
            else: e(f"v_pk_fma_f32 v[{36+p}:{37+p}], v[{16+4*i+p}:{17+4*i+p}], v[{w}:{w+1}], v[{36+p}:{37+p}] op_sel:[0,{s},0] op_sel_hi:[1,{s},1]")
    trows(36)
    e("""v_add_f32_dpp v37, v36, v36 row_shr:4 row_mask:0xf bank_mask:0xa
         v_add_f32_dpp v37, v36, v36 row_shl:4 row_mask:0xf bank_mask:0x5
         v_cvt_pk_bf16_f32 v37, v37, v37""")
    def gemv4(src, wbase, bank):
        for m in range(5):
            if m < 4:
                for j in range(4): e(f"v_and_b32_dpp v{AF+4*m+j}, v{src}, v{MK+j} quad_perm:[{m},{m},{m},{m}] row_mask:0xf bank_mask:{bank}")
            if m >= 1:
                p = m - 1
                e(f"v_mfma_f32_16x16x32_bf16 v[40:43], v[{AF+4*p}:{AF+4*p+3}], v[{wbase+4*p}:{wbase+4*p+3}], " + ("0" if p == 0 else "v[40:43]"))
    gemv4(37, WO, "0xf")
    e(f"""s_mov_b32 exec_lo, 0x00ff00ff
          s_mov_b32 exec_hi, 0xff00ff00
          ds_write_b128 v6, v[40:43] offset:{RED}
          s_mov_b64 exec, -1
          s_waitcnt lgkmcnt(0)""")
    stamp(9)
    e(f"""s_barrier
          s_cmp_ge_u32 s52, 28
          s_cbranch_scc1 L_end""")
    if gupos == "B4": load_gu(False)
    e(f"""v_mov_b32 v16, 0x3f803f80
          s_lshl_b32 s60, s51, 13
          s_lshl_b32 s56, s30, 6
          s_add_u32 s60, s60, s56
          s_add_u32 s60, s60, {CP}
          s_add_u32 s61, s60, 4096
          s_lshl_b32 s62, s52, 11
          s_add_u32 s62, s62, {HH}
          s_mov_b32 s63, 0xffff0000""")
    for m in range(4):
        for j in range(4): e(f"v_and_b32 v{AF+4*m+j}, v16, v{MK+j}")
    poll_init(2, 4)
    poll([(f"buffer_load_dwordx4 v[{16+4*i}:{19+4*i}], v13, s[32:35], s{60+i} offen sc1", 16 + 4*i) for i in range(2)], 4, quad=245)
    stamp(10)
    pk_add4(16, 16, 20)
    trows(16)
    dpp_red("v_add_f32", [16], ["row_ror:4", "row_ror:8"])
    bfround(16)
    e("v_add_f32 v16, v16, v8\nv_cvt_pk_bf16_f32 v16, v16, v16\nv_and_or_b32 v17, v16, s63, v15")
    mode_store(["buffer_store_dword v17, v7, s[32:35], s62 offen"])
    e(f"ds_write_b32 v12, v17 offset:{HL}")
    gemv4(16, GU, "0x3")
    e(f"ds_write_b128 v14, v[40:43] offset:{RED2}\ns_waitcnt lgkmcnt(0)")
    stamp(11)
    e("s_barrier\nL_end:")
    finish()

    VR, PE, MK, A0, A1 = 16, 144, 176, 180, 184
    e("L_V:")
    if code_pf:
        e(f"""s_getpc_b64 s[48:49]
              L_pc:
              s_lshl_b32 s56, s29, 1
              s_add_u32 s56, s56, s30
              s_sub_u32 s56, s56, 5
              s_lshl_b32 s56, s56, 8
              s_min_u32 s56, s56, L_exit-{NAME}_kernel-256
              s_sub_u32 s48, s48, L_pc-{NAME}_kernel
              s_subb_u32 s49, s49, 0
              v_lshl_add_u32 v1, v0, 7, s56
              s_mov_b64 exec, 3
              global_load_dword v10, v1, s[48:49]
              s_mov_b64 exec, -1""")
    e(f"""v_lshlrev_b32 v1, 2, v0
          v_mov_b32 v2, 0
          ds_write_b32 v1, v2 offset:{FLAGS}
          v_lshrrev_b32 v2, 4, v0
          v_and_b32 v3, 15, v0
          v_lshlrev_b32 v1, 9, v2
          v_lshl_add_u32 v1, v3, 4, v1
          s_sub_u32 s56, s30, 5
          s_lshl_b32 s54, s56, 8
          s_add_u32 s53, s54, s53
          s_waitcnt lgkmcnt(0)
          s_barrier
          s_load_dword s31, s[26:27], 0""")
    srd(36, 8, 67108864); srd(32, 26, WS_SIZE)
    masks(MK, 4, 5)
    e(f"""v_lshrrev_b32 v6, 1, v2
          v_lshlrev_b32 v6, 10, v6
          v_and_b32 v7, 1, v2
          v_lshl_add_u32 v6, v7, 8, v6
          v_lshl_add_u32 v6, v3, 4, v6
          s_lshl_b32 s61, s55, 11
          s_lshl_b32 s56, s56, 9
          s_add_u32 s61, s61, s56
          s_add_u32 s61, s61, {OP}
          v_lshrrev_b32 v7, 3, v0
          v_and_b32 v8, 1, v7
          v_lshlrev_b32 v7, 4, v7
          v_lshlrev_b32 v8, 4, v8
          v_mov_b32 v9, 0xff
          s_mov_b32 s57, {CEXP}
          s_waitcnt lgkmcnt(0)""")
    e("s_add_u32 s31, s31, 0x9E3779B1\nv_and_b32 v11, 3, v0")
    qtag_reg(11, 11)
    lds_spin(8, 56)
    stamp(1)
    for i in range(32):
        if i >= vw: e(f"s_waitcnt vmcnt({vw-1})")
        if i & 1 == 0: e(f"s_xor_b32 s54, s53, {koff(i >> 1)}")
        e(f"buffer_load_dwordx4 v[{VR+4*i}:{VR+4*i+3}], v1, s[36:39], s54 offen offset:{(i&1)*2048} {nt}")
    stamp(2)
    e("s_barrier")
    stamp(3)
    e(f"ds_read_b32 v249, v248\nds_read_b128 v[12:15], v8 offset:{MLW}")
    for w in range(4):
        for h in range(2): e(f"ds_read_b128 v[{PE+8*w+4*h}:{PE+8*w+4*h+3}], v7 offset:{EB+256*w+128*h}")
    e("""s_waitcnt lgkmcnt(8)
         v_readfirstlane_b32 s59, v249
         v_max3_f32 v4, v12, v13, v14
         v_max_f32 v4, v4, v15
         s_lshr_b32 s59, s59, 8""")
    for w in range(4): e(f"v_sub_f32 v{12+w}, v{12+w}, v4")
    for w in range(4): e(f"v_mul_f32 v{12+w}, s57, v{12+w}")
    for w in range(4): e(f"v_exp_f32 v{12+w}, v{12+w}")
    e("v_cmp_gt_u32 vcc, 32, v0\nv_cndmask_b32 v12, v13, v12, vcc\nv_cndmask_b32 v13, v15, v14, vcc\ns_waitcnt lgkmcnt(0)")
    for i in range(0, 32, 2):
        s = (i >> 2) & 1; b = 12
        e(f"v_pk_mul_f32 v[{PE+i}:{PE+i+1}], v[{PE+i}:{PE+i+1}], v[{b}:{b+1}] op_sel:[0,{s}] op_sel_hi:[1,{s}]")
    for i in range(32): e(f"v_cvt_pk_bf16_f32 v{PE+i}, v{PE+i}, v{PE+i}")
    for i in range(33):
        if i < 32:
            a = (A0, A1)[i & 1]
            for j in range(4): e(f"v_and_b32 v{a+j}, v{PE + 4*(i & 7) + (i >> 3)}, v{MK+j}")
        if i >= 1:
            p = i - 1; a = (A0, A1)[p & 1]
            e(f"s_waitcnt vmcnt({31-p})\nv_mfma_f32_16x16x32_bf16 v[12:15], v[{a}:{a+3}], v[{VR+4*p}:{VR+4*p+3}], " + ("0" if p == 0 else "v[12:15]"))
    e("v_bfi_b32 v12, v9, v11, v12")
    mode_store(["buffer_store_dwordx4 v[12:15], v6, s[32:35], s61 offen"])
    stamp(4)
    e("s_barrier")
    finish()

    WQ, F, XA, MK, DN = 16, 80, 96, 112, 128
    e(f"""L_Q:
          s_setprio 3
          v_lshlrev_b32 v1, 4, v0
          v_lshrrev_b32 v2, 3, v0
          v_and_b32 v3, 7, v0
          v_mul_u32_u24 v4, {14*8192}, v2
          v_lshl_add_u32 v4, v3, 4, v4
          s_lshr_b32 s48, s29, 3
          s_and_b32 s49, s29, 7
          s_mul_i32 s54, s48, {112*8192}
          s_lshl_b32 s56, s28, 10
          s_add_u32 s54, s54, s56
          s_lshl_b32 s56, s49, 7
          s_add_u32 s54, s54, s56
          s_waitcnt lgkmcnt(0)""")
    srd(40, 4, 896)
    e("buffer_load_dwordx4 v[8:11], v1, s[40:43], 0 offen")
    srd(36, 10, 448*8192)
    for i in range(14):
        e(f"buffer_load_dwordx4 v[{WQ+4*i}:{WQ+4*i+3}], v4, s[36:39], s54 offen {wnt}")
        if i < 13: e("s_add_u32 s54, s54, 8192")
    e("s_load_dword s31, s[26:27], 0\ns_barrier")
    srd(32, 26, WS_SIZE); srd(40, 22, 896); srd(44, 20, 1792*896)
    ffn_scalars()
    masks(MK, 72, 73)
    e("v_mov_b32 v246, 0\nv_mov_b32 v245, 0xff\ns_waitcnt vmcnt(14)")
    skew_store = f"s_lshl_b32 s56, s2, 2\ns_add_u32 s56, s56, {STAMP}\nv_mov_b32 v13, s64\nbuffer_store_dword v13, v246, s[32:35], s56 offen sc1"
    stamp(1)
    e(f"ds_write_b128 v1, v[8:11] offset:{XR}")
    for i in range(4): e(f"v_lshlrev_b32 v{F+2*i}, 16, v{8+i}\nv_and_b32 v{F+2*i+1}, 0xffff0000, v{8+i}")
    e(f"v_add_f32 v72, v{F}, v{F+1}")
    for i in range(2, 8): e(f"v_add_f32 v72, v72, v{F+i}")
    r16 = ["row_ror:8", "row_ror:4", "row_ror:2", "row_ror:1"]
    dpp_red("v_add_f32", [72], r16)
    xrow("v_add_f32", [72], [73])
    e(f"v_mul_f32 v72, {f2u(1/448)}, v72\nv_mov_b32 v73, 0")
    for i in range(8): e(f"v_sub_f32 v74, v{F+i}, v72\nv_fmac_f32 v73, v74, v74")
    e("v_cmp_gt_u32 vcc, 56, v0\nv_cndmask_b32 v73, 0, v73, vcc")
    dpp_red("v_add_f32", [73], r16)
    xrow("v_add_f32", [73], [74])
    e(f"v_mul_f32 v73, {f2u(1/448)}, v73")
    bfround(72); bfround(73)
    e(f"v_add_f32 v73, {f2u(1e-5)}, v73"); bfround(73)
    e("v_sqrt_f32 v73, v73"); bfround(73)
    e("v_rcp_f32 v74, v73")
    for i in range(8): e(f"v_sub_f32 v{F+i}, v{F+i}, v72")
    for i in range(0, 8, 2): e(f"v_cvt_pk_bf16_f32 v{F+i+1}, v{F+i}, v{F+i+1}")
    for i in range(0, 8, 2): e(f"v_lshlrev_b32 v{F+i}, 16, v{F+i+1}\nv_and_b32 v{F+i+1}, 0xffff0000, v{F+i+1}")
    for i in range(8): e(f"v_mul_f32 v{F+8+i}, v{F+i}, v74")
    for i in range(8): e(f"v_fma_f32 v{F+i}, -v{F+8+i}, v73, v{F+i}")
    for i in range(8): e(f"v_fmac_f32 v{F+8+i}, v{F+i}, v74")
    for i in range(8): e(f"v_cvt_pk_bf16_f32 v{F+i}, v{F+8+i}, v{F+8+i}")
    e(f"""v_lshlrev_b32 v72, 5, v0
          ds_write_b128 v72, v[{F}:{F+3}] offset:{XN}
          ds_write_b128 v72, v[{F+4}:{F+7}] offset:{XN+16}
          v_mul_u32_u24 v73, 56, v2
          s_mul_i32 s56, s48, 448
          v_add_u32 v73, s56, v73
          s_waitcnt lgkmcnt(0)""")
    for i in range(7): e(f"ds_read_b64 v[{XA+2*i}:{XA+2*i+1}], v73 offset:{XN+8*i}")
    tags()
    e(f"""s_getreg_b32 s56, hwreg(HW_REG_XCC_ID, 0, 4)
          s_and_b32 s63, s97, 0xf0
          s_or_b32 s63, s63, s56
          s_waitcnt lgkmcnt(0)""")
    stamp(2)
    for i in range(15):
        if i < 14:
            a = (116, 120)[i & 1]
            for j in range(4): e(f"v_and_b32 v{a+j}, v{XA+i}, v{MK+j}")
        if i >= 1:
            p = i - 1; a = (116, 120)[p & 1]
            e(f"s_waitcnt vmcnt({13-p})\nv_mfma_f32_16x16x32_bf16 v[8:11], v[{a}:{a+3}], v[{WQ+4*p}:{WQ+4*p+3}], " + ("0" if p == 0 else "v[8:11]"))
    e(f"""v_lshrrev_b32 v5, 4, v0
          v_lshlrev_b32 v72, 4, v5
          v_lshl_add_u32 v72, v3, 5, v72
          v_and_b32 v73, 40, v0
          v_mov_b32 v12, {OOB}
          v_cmp_eq_u32 vcc, 0, v73
          v_cndmask_b32 v72, v12, v72, vcc
          s_lshl_b32 s54, s28, 13
          s_add_u32 s54, s54, {QP}
          s_lshl_b32 s56, s48, 11
          s_add_u32 s56, s56, s54
          s_lshl_b32 s61, s49, 8
          s_add_u32 s56, s56, s61""")
    for r in range(4): e(f"v_mov_b32_dpp v{F+r}, v{8+r} row_ror:8 row_mask:0xf bank_mask:0xf")
    for r in range(4): e(f"v_permlane32_swap_b32 v{F+r}, v{F+4+r}")
    for r in range(4): e(f"v_add_f32 v{8+r}, v{8+r}, v{F+4+r}")
    for r in range(4): e(f"v_add_u32 v{8+r}, 0x80, v{8+r}")
    tag4(8, 245, "s63")
    e("buffer_store_dwordx4 v[8:11], v72, s[32:35], s56 offen sc1")
    stamp(3)
    if skew is not None: e(skew_store)
    e(f"""s_setprio 0
          s_lshl_b32 s54, s55, 11
          s_add_u32 s54, s54, {OP}
          v_lshl_add_u32 v6, v0, 7, s54
          s_lshl_b32 s60, s49, 6
          s_lshl_b32 s56, s48, 4
          s_add_u32 s60, s60, s56
          s_lshl_b32 s56, s28, 9
          s_add_u32 s60, s60, s56
          s_add_u32 s60, s60, {ML}
          s_mul_i32 s61, s52, 7168
          s_add_u32 s61, s61, {DP}
          s_lshl_b32 s56, s51, 10
          s_add_u32 s62, s61, s56
          s_sub_u32 s56, s62, {16*128}
          v_lshl_add_u32 v7, v0, 7, s56
          v_cmp_gt_u32 vcc, 16, v0
          v_cndmask_b32 v6, v7, v6, vcc
          s_lshl_b32 s63, s52, 11
          s_add_u32 s63, s63, {HH}
          s_lshl_b32 s56, s51, 8
          s_add_u32 s56, s56, s63
          v_writelane_b32 v6, s56, 24
          s_add_u32 s56, s56, 128
          v_writelane_b32 v6, s56, 25
          v_writelane_b32 v6, s60, 26
          s_cmp_lt_u32 s52, 28
          s_cselect_b32 s56, 0x03ff0000, 0
          s_or_b32 exec_lo, s56, 0x0400ffff
          s_mov_b32 exec_hi, 0
          buffer_load_dword v13, v6, s[32:35], 0 offen sc1
          s_mov_b64 exec, -1
          v_cmp_eq_u32 vcc, 0, v0
          v_cndmask_b32 v14, v12, v0, vcc
          v_and_b32 v72, 1, v0
          v_lshlrev_b32 v72, 4, v72
          s_mov_b32 s57, {CEXP}
          v_and_b32 v3, 3, v0
          v_and_b32 v6, 1, v5
          v_lshlrev_b32 v6, 2, v6
          v_lshrrev_b32 v7, 1, v5
          v_lshl_add_u32 v6, v7, 1, v6
          v_mul_u32_u24 v6, 896, v6
          v_and_b32 v7, 15, v0
          v_lshl_add_u32 v6, v7, 3, v6
          s_mul_i32 s48, s52, 57344
          s_lshl_b32 s56, s51, 7
          s_add_u32 s48, s48, s56
          s_lshl_b32 s49, s51, 13
          s_lshl_b32 s56, s28, 10
          s_add_u32 s49, s49, s56
          s_lshl_b32 s56, s50, 8
          s_add_u32 s49, s49, s56
          s_add_u32 s49, s49, {CP}
          v_lshlrev_b32 v2, 2, v0""")
    qtag_reg(244, 3)
    e("v_bfe_u32 v15, v0, 2, 2")
    qtag_reg(15, 15)
    e("v_cmp_eq_u32 vcc, 0, v3\nv_cndmask_b32 v243, 0, v245, vcc")
    def load_dn(guard=True):
        skip = lab("nodn")
        if guard: e(f"s_cmp_ge_u32 s52, 28\ns_cbranch_scc1 {skip}")
        for i in range(8):
            for hi in range(2):
                d = DN + 2*(8*hi + i)
                e(f"buffer_load_dwordx2 v[{d}:{d+1}], v6, s[44:47], s48 offen offset:{896*hi} {wnt}")
            if i < 7: e("s_add_u32 s48, s48, 7168")
        e(f"{skip}:")
    lds_spin(4, 56)
    stamp(4)
    e(f"""s_setprio 3
          ds_read_b32 v249, v248
          ds_read_b128 v[16:19], v72 offset:{MLW}
          ds_read_b128 v[20:23], v72 offset:{MLW+32}
          s_waitcnt lgkmcnt(0)
          v_readfirstlane_b32 s59, v249
          v_max3_f32 v8, v16, v17, v18
          v_max_f32 v8, v8, v19
          s_lshr_b32 s59, s59, 8""")
    for w in range(4): e(f"v_sub_f32 v{16+w}, v{16+w}, v8")
    for w in range(4): e(f"v_mul_f32 v{16+w}, s57, v{16+w}")
    for w in range(4): e(f"v_exp_f32 v{16+w}, v{16+w}")
    e("""v_mul_f32 v9, v16, v20
         v_fmac_f32 v9, v17, v21
         v_fmac_f32 v9, v18, v22
         v_fmac_f32 v9, v19, v23
         v_mov_b32_dpp v10, v8 quad_perm:[1,1,1,1] row_mask:0xf bank_mask:0xf
         v_mov_b32_dpp v11, v9 quad_perm:[1,1,1,1] row_mask:0xf bank_mask:0xf""")
    tag4(8, 245)
    mode_store(["buffer_store_dwordx4 v[8:11], v14, s[32:35], s60 offen"])
    stamp(5)
    e("s_cmp_ge_u32 s29, 28\ns_cbranch_scc1 L_end\ns_setprio 0\ns_barrier")
    if dnpos == "V": load_dn()
    e("s_barrier\ns_setprio 3\ns_barrier")
    stamp(6)
    for k in range(4): e(f"ds_read2st64_b32 v[{16+2*k}:{17+2*k}], v2 offset0:{RED//256+2*k} offset1:{RED//256+2*k+1}")
    e("""s_waitcnt lgkmcnt(2)
         v_pk_add_f32 v[16:17], v[16:17], v[18:19]
         s_waitcnt lgkmcnt(0)
         v_pk_add_f32 v[20:21], v[20:21], v[22:23]
         v_pk_add_f32 v[16:17], v[16:17], v[20:21]
         v_add_f32 v16, v16, v17
         v_bfi_b32 v16, v243, v15, v16
         buffer_store_dword v16, v2, s[32:35], s49 offen sc1""")
    stamp(7)
    e("s_setprio 0\ns_cmp_ge_u32 s52, 28\ns_cbranch_scc1 L_end")
    if dnpos == "B4": load_dn(False)
    for r in range(4): e(f"v_and_b32 v{20+r}, {TAGS[r]}, v245\nv_mov_b32 v{84+r}, {'v244' if r == 0 else 0}")
    e(f"""s_add_u32 s60, s61, 4096
          s_mul_i32 s54, s51, 7168
          s_add_u32 s54, s54, {EP}
          s_lshl_b32 s56, s52, 8
          s_add_u32 s49, s54, s56
          v_cmp_gt_u32 vcc, 16, v0
          v_cndmask_b32 v4, v12, v1, vcc
          s_sub_u32 s50, s52, 4
          s_lshl_b32 s56, s50, 6
          s_add_u32 s54, s54, s56
          s_add_u32 s53, s54, 4096
          v_lshrrev_b32 v7, 2, v0
          v_lshlrev_b32 v7, 8, v7
          v_lshl_add_u32 v7, v3, 4, v7
          v_lshl_add_u32 v8, v3, 2, v5
          v_lshl_add_u32 v9, v8, 2, s56
          v_and_b32 v9, 0xff, v9
          v_lshlrev_b32 v8, 1, v8
          v_and_b32 v10, 12, v0
          v_cmp_eq_u32 vcc, 0, v10
          v_cndmask_b32 v8, v12, v8, vcc
          s_lshl_b32 s55, s51, 7
          s_lshl_b32 s56, s50, 5
          s_add_u32 s55, s55, s56""")
    L48 = (1 << 48) - 1
    poll_init(2, 4, {1: L48}); poll_init(7, 8)
    e("s_setprio 3\ns_barrier")
    stamp(8)
    hg = [("buffer_load_dwordx4 v[16:19], v1, s[32:35], s63 offen sc1", 16), ("buffer_load_dwordx4 v[20:23], v1, s[32:35], s63 offen offset:1024 sc1", 20)]
    for k in range(4): e(f"ds_read_b128 v[{24+4*k}:{27+4*k}], v1 offset:{RED2+1024*k}")
    e(f"{hg[0][0]}\ns_mov_b32 exec_hi, 0xffff\n{hg[1][0]}\ns_mov_b32 exec_hi, -1\ns_waitcnt lgkmcnt(2)")
    pk_add4(24, 24, 28)
    e("s_waitcnt lgkmcnt(0)")
    pk_add4(32, 32, 36); pk_add4(24, 24, 32)
    e("v_bfi_b32 v24, v245, v244, v24")
    mode_store(["buffer_store_dwordx4 v[24:27], v1, s[32:35], s62 offen"])
    dg = [(f"buffer_load_dwordx4 v[{44+4*p}:{47+4*p}], v1, s[32:35], {('s61','s60')[p>>2]} offen offset:{(p&3)*1024} sc1", 44 + 4*p) for p in range(7)]
    for t, b in dg: e(t)
    e(f"ds_read_b32 v13, v9 offset:{HL}")
    stamp(9)
    poll(hg, 4, issued=True, behind=8)
    for r in range(8): e(f"v_and_b32 v{16+r}, 0xffff0000, v{16+r}")
    e("""v_pk_add_f32 v[28:29], v[16:17], v[18:19]
         v_pk_mul_f32 v[30:31], v[16:17], v[16:17]
         v_pk_add_f32 v[28:29], v[28:29], v[20:21]
         v_pk_fma_f32 v[30:31], v[18:19], v[18:19], v[30:31]
         v_pk_add_f32 v[28:29], v[28:29], v[22:23]
         v_pk_fma_f32 v[30:31], v[20:21], v[20:21], v[30:31]
         v_add_f32 v40, v28, v29
         v_pk_fma_f32 v[30:31], v[22:23], v[22:23], v[30:31]
         v_add_f32 v41, v30, v31""")
    dpp_red("v_add_f32", [40, 41], r16)
    xrow("v_add_f32", [40, 41], [42, 43])
    e(f"""v_mul_f32 v40, {f2u(1/448)}, v40
          v_mul_f32 v41, {f2u(1/448)}, v41
          v_fma_f32 v41, -v40, v40, v41
          v_max_f32 v41, 0, v41""")
    bfround(40); bfround(41)
    e(f"v_add_f32 v41, {f2u(1e-5)}, v41"); bfround(41)
    e("v_sqrt_f32 v41, v41"); bfround(41)
    e("v_rcp_f32 v41, v41")
    stamp(10)
    poll(dg, 8, issued=True, quad=244)
    stamp(11)
    pk_add4(44, 44, 48); pk_add4(52, 52, 56); pk_add4(60, 60, 64)
    pk_add4(44, 44, 68); pk_add4(52, 52, 60); pk_add4(44, 44, 52)
    e("""v_permlane32_swap_b32 v44, v46
         v_permlane32_swap_b32 v45, v47
         v_fma_f32 v44, -v40, v46, v44
         v_fma_f32 v45, -v40, v47, v45
         v_mul_f32 v44, v44, v41
         v_mul_f32 v45, v45, v41
         v_mov_b32 v46, v44
         v_mov_b32_dpp v44, v45 row_ror:8 row_mask:0xf bank_mask:0xc
         v_mov_b32_dpp v45, v46 row_ror:8 row_mask:0xf bank_mask:0x3
         v_cvt_pk_bf16_f32 v45, v44, v45
         v_lshlrev_b32 v44, 16, v45
         v_and_b32 v45, 0xffff0000, v45""")
    k0 = -2.0 * 0.7978845608028654 * 1.4426950408889634
    e(f"""v_mul_f32 v46, v44, v44
          v_mul_f32 v46, {f2u(k0*0.044715)}, v46
          v_add_f32 v46, {f2u(k0)}, v46
          v_mul_f32 v46, v46, v44
          v_exp_f32 v46, v46
          v_add_f32 v46, 1.0, v46
          v_rcp_f32 v46, v46
          v_mul_f32 v46, v46, v44""")
    bfround(46)
    e("v_mul_f32 v46, v46, v45\nv_cvt_pk_bf16_f32 v46, v46, v46")
    for i in range(17):
        if i < 16:
            a = 116 + 2*(i & 3)
            for j in range(2): e(f"v_and_b32_dpp v{a+j}, v46, v{MK+j} row_newbcast:{i} row_mask:0xf bank_mask:0xf")
        if i >= 1:
            p = i - 1; ap = 116 + 2*(p & 3)
            e(f"v_mfma_f32_16x16x16_bf16 v[32:35], v[{ap}:{ap+1}], v[{DN+2*p}:{DN+2*p+1}], " + ("0" if p == 0 else "v[32:35]"))
    poll_init(2, 4, {1: L48})
    e("v_bfi_b32 v32, v245, v244, v32")
    e("buffer_store_dwordx4 v[32:35], v4, s[32:35], s49 offen sc1")
    stamp(12)
    e("s_cmp_gt_u32 s50, 3\ns_cbranch_scc1 L_end\ns_waitcnt lgkmcnt(0)\nv_and_b32 v13, 0xffff0000, v13")
    if eack: e("s_waitcnt vmcnt(0)")
    poll([("buffer_load_dwordx4 v[80:83], v7, s[32:35], s54 offen sc1", 80), ("buffer_load_dwordx4 v[84:87], v7, s[32:35], s53 offen sc1", 84)], 4, quad=244)
    stamp(13)
    pk_add4(80, 80, 84)
    trows(80)
    dpp_red("v_add_f32", [80], ["row_ror:4", "row_ror:8"])
    bfround(80)
    e(f"""v_add_f32 v80, v80, v13
          v_cvt_pk_bf16_f32 v80, v80, v80
          buffer_store_short v80, v8, s[40:43], s55 offen
          s_cmp_lg_u32 s2, 4
          s_cbranch_scc1 L_Eend
          v_mov_b32 v16, s31
          buffer_store_dword v16, v14, s[32:35], 0 offen sc1
          L_Eend:""")
    stamp(14)
    if amp is not None:
        e(f"""s_cmp_lg_u32 s2, 4
              s_cbranch_scc1 L_end
              s_memrealtime s[96:97]
              s_waitcnt lgkmcnt(0)
              s_sub_u32 s98, s{64+2*int(amp)}, s64
              s_lshl_b32 s98, s98, 3""")
        if skew is not None:
            e(f"""s_mov_b32 s56, {STAMP}
              buffer_load_dword v16, v246, s[32:35], s56 offen sc1
              buffer_load_dword v17, v246, s[32:35], s56 offen offset:{4*int(skew)} sc1
              s_waitcnt vmcnt(0)
              v_sub_u32 v16, v17, v16
              v_add_u32 v16, 100, v16
              v_readfirstlane_b32 s98, v16
              s_lshl_b32 s98, s98, 5""")
        e(f"""
              s_min_u32 s98, s98, 100000
              L_amp:
              s_memrealtime s[100:101]
              s_waitcnt lgkmcnt(0)
              s_sub_u32 s99, s100, s96
              s_cmp_lt_u32 s99, s98
              s_cbranch_scc1 L_amp""")
    finish()
    for far, back, ins in deferred:
        e(f"{far}:\ns_nop 7")
        for t in ins: e(t + " sc1")
        e(f"s_nop 1\ns_branch {back}")
    if stamps:
        e("L_stamps:\ns_waitcnt lgkmcnt(0)\ns_mov_b64 exec, -1\nv_mov_b32 v250, 0")
        for k in range(16): e(f"v_writelane_b32 v250, s{64+2*k}, {k}")
        e(f"""s_lshl_b32 s60, s2, 3
              s_add_u32 s60, s60, s30
              s_lshl_b32 s60, s60, 6
              s_add_u32 s60, s60, {STAMP}
              v_lshlrev_b32 v251, 2, v0
              s_mov_b64 exec, 0xffff
              buffer_store_dword v250, v251, s[32:35], s60 offen""")
    e("L_exit:\ns_endpgm")

    head = open("cdna_kernels/" + NAME + ".s.ref").read()
    head = head[:head.index("; @launch")]
    out = head + f"; @launch grid=(256,1,1) block=(448,1,1) lds={LDS_SIZE}\n"
    out += f""".amdgcn_target "amdgcn-amd-amdhsa--gfx950"
.text
.globl {NAME}_kernel
.p2align 8
.type {NAME}_kernel,@function
{NAME}_kernel:
"""
    out += e.text()
    out += f""".section .rodata,"a"
.p2align 6
.amdhsa_kernel {NAME}_kernel
  .amdhsa_next_free_vgpr 256
  .amdhsa_next_free_sgpr 102
  .amdhsa_accum_offset 256
  .amdhsa_group_segment_fixed_size 0
  .amdhsa_kernarg_size 96
  .amdhsa_user_sgpr_count 2
  .amdhsa_user_sgpr_kernarg_segment_ptr 1
  .amdhsa_system_sgpr_workgroup_id_x 1
.end_amdhsa_kernel
"""
    return out

if __name__ == "__main__":
    kw = {}
    for a in sys.argv[2:]:
        k, v = a.split("=")
        kw[k] = {"True": True, "False": False}.get(v, v)
    open(sys.argv[1], "w").write(gen(**kw))
```

```python
import sys, struct
from emit import Emitter, Ins, need

NAME = "sequential_preLN__sliding_block_cached__geglu_ffn__decode"
def f2u(x): return struct.unpack("<I", struct.pack("<f", x))[0]

QP, ML, CP, EP, OP, HH, DP, STAMP, WS_SIZE = 0x10000, 0x20000, 0x22000, 0x30000, 0x40000, 0xC0000, 0xD0000, 0x1E0000, 0x200000
XN, XR, QS, EB, RED, RED2, FLAGS, MLW, HL, PR, LDS_SIZE = 0, 2048, 3072, 4096, 5120, 7168, 11264, 11520, 11776, 12288, 14336
OOB = 0x7ffffff0
SPIN = 1 << 16
CEXP = f2u(1.4426950408889634 / 16.0)
T0, T1, T2 = "s31", "s96", "s97"
TAGS = (T0, T0, T1, T2)

def gen(amp=None, nt="nt", wnt=None, stamps=False, force_global=False, wopos="V", gupos="V", dnpos="p",
        code_pf=True, eack=True, kpre=2, W=7, qa=3, lc=15, rot="gj", skew=None):
    if wnt is None: wnt = nt
    kpre, W, qa = int(kpre), int(W), int(qa)
    lc = int(lc); nb = lc - 12
    def koff(st): return ((st >> nb) << (lc + 5)) | ((st & ((1 << nb) - 1)) << 12)
    if skew is not None: amp = 0
    e = Emitter()
    uid = [0]
    deferred = []
    extra = []
    def lab(p): uid[0] += 1; return f"L_{p}{uid[0]}"
    def srd(d, b, n): e(f"s_mov_b32 s{d}, s{b}\ns_mov_b32 s{d+1}, s{b+1}\ns_mov_b32 s{d+2}, {n}\ns_mov_b32 s{d+3}, 0x00020000")
    def stamp(k):
        if stamps or (amp is not None and k in (0, int(amp))): e(f"s_memrealtime s[{64+2*k}:{65+2*k}]")
    def finish():
        if stamps: e("s_branch L_stamps")
        else: e("s_endpgm")
    def mode_store(ins):
        far, back = lab("far"), lab("back")
        e(f"s_cmp_lg_u32 s59, 0\ns_cbranch_scc1 {far}")
        for t in ins: e(t)
        e(f"{back}:")
        deferred.append((far, back, ins))
    def tags():
        e(f"""s_add_u32 s31, s31, 0x9E3779B1
              s_lshr_b32 s96, s31, 8
              s_or_b32 s96, s96, 1
              s_xor_b32 s96, s96, s31
              s_lshr_b32 s97, s31, 16""")
    def tag4(b, ff, last=T2):
        for r in range(4): e(f"v_bfi_b32 v{b+r}, v{ff}, {(T0, T0, T1, last)[r]}, v{b+r}")
    def lane_tag(d, idx, t):
        e(f"""v_mov_b32 v{d}, {T0}
              v_mov_b32 v{t}, {T1}
              v_cmp_eq_u32 vcc, 2, v{idx}
              v_cndmask_b32 v{d}, v{d}, v{t}, vcc
              v_mov_b32 v{t}, {T2}
              v_cmp_eq_u32 vcc, 3, v{idx}
              v_cndmask_b32 v{d}, v{d}, v{t}, vcc
              v_and_b32 v{d}, 0xff, v{d}""")
    def masks(m, t0, t1):
        e(f"""v_and_b32 v{t0}, 1, v0
              v_lshlrev_b32 v{t0}, 4, v{t0}
              v_mov_b32 v{t1}, 0xffff
              v_lshlrev_b32 v{t1}, v{t0}, v{t1}
              v_bfe_u32 v{t0}, v0, 1, 2""")
        for j in range(4):
            e(f"v_cmp_eq_u32 vcc, {j}, v{t0}\nv_cndmask_b32 v{m+j}, 0, v{t1}, vcc")
    def dpp_red(op, vs, ctrls):
        for c in ctrls:
            for v in vs: e(f"{op}_dpp v{v}, v{v}, v{v} {c} row_mask:0xf bank_mask:0xf")
    def xrow(op, vs, tmps):
        for sw in ("v_permlane16_swap_b32", "v_permlane32_swap_b32"):
            for v, t in zip(vs, tmps): e(f"v_mov_b32 v{t}, v{v}")
            for v, t in zip(vs, tmps): e(f"{sw} v{v}, v{t}")
            for v, t in zip(vs, tmps): e(f"{op} v{v}, v{v}, v{t}")
    def bfround(v): e(f"v_cvt_pk_bf16_f32 v{v}, v{v}, v{v}\nv_and_b32 v{v}, 0xffff0000, v{v}")
    def trows(a):
        e(f"""v_permlane32_swap_b32 v{a}, v{a+2}
              v_permlane32_swap_b32 v{a+1}, v{a+3}
              v_add_f32 v{a}, v{a}, v{a+2}
              v_add_f32 v{a+1}, v{a+1}, v{a+3}
              v_permlane16_swap_b32 v{a}, v{a+1}
              v_add_f32 v{a}, v{a}, v{a+1}""")
    def pk_add4(d, a, b):
        e(f"v_pk_add_f32 v[{d}:{d+1}], v[{a}:{a+1}], v[{b}:{b+1}]\nv_pk_add_f32 v[{d+2}:{d+3}], v[{a+2}:{a+3}], v[{b+2}:{b+3}]")
    def check(b, m, t):
        e(f"""v_bitop3_b32 v{t}, v{b}, v{b+1}, {T0} bitop3:0x7e
              v_bitop3_b32 v{t}, v{b+2}, {T1}, v{t} bitop3:0xbe
              v_bitop3_b32 v{t}, v{b+3}, {T2}, v{t} bitop3:0xbe
              v_cmp_ne_u32_sdwa s[{m}:{m+1}], v{t}, v246 src0_sel:BYTE_0 src1_sel:DWORD""")
    def qtag_reg(d, idx):
        e(f"v_lshlrev_b32 v{d}, 3, v{idx}\nv_lshrrev_b32 v{d}, v{d}, {T0}\nv_and_b32 v{d}, 0xff, v{d}")
    def qclean(loads):
        for t, b in loads: e(f"v_and_b32 v{b}, 0xffffff00, v{b}")
    def poll_init(n, m0, init=None):
        for i in range(n):
            v = (init or {}).get(i)
            if v is None: e(f"s_mov_b64 s[{m0+2*i}:{m0+2*i+1}], -1")
            else: e(f"s_mov_b32 s{m0+2*i}, {v & 0xffffffff}\ns_mov_b32 s{m0+2*i+1}, {v >> 32}")
        e(f"s_mov_b32 s58, {SPIN}")
    def poll(loads, m0, issued=False, behind=0, quad=None):
        n = len(loads)
        top, chk, done = lab("poll"), lab("chk"), lab("pdone")
        if issued: e(f"s_branch {chk}")
        e(f"{top}:\ns_sub_u32 s58, s58, 1\ns_cbranch_scc1 {done}")
        for i, (t, b) in enumerate(loads): e(f"s_wqm_b64 exec, s[{m0+2*i}:{m0+2*i+1}]\n{t}")
        e("s_mov_b64 exec, -1")
        if behind: e("s_waitcnt vmcnt(0)")
        if issued: e(f"{chk}:")
        for i, (t, b) in enumerate(loads):
            e(f"s_waitcnt vmcnt({n-1-i+behind})")
            if quad: e(f"v_cmp_ne_u32_sdwa s[{m0+2*i}:{m0+2*i+1}], v{b}, v{quad} src0_sel:BYTE_0 src1_sel:DWORD")
            else: check(b, m0 + 2*i, 247 + (i & 1))
        if n == 1: e(f"s_cmp_lg_u64 s[{m0}:{m0+1}], 0")
        else:
            e(f"s_or_b64 vcc, s[{m0}:{m0+1}], s[{m0+2}:{m0+3}]")
            for i in range(2, n): e(f"s_or_b64 vcc, vcc, s[{m0+2*i}:{m0+2*i+1}]")
        e(f"s_cbranch_scc1 {top}\n{done}:")
        if quad: qclean(loads)
    def read_mode(t):
        e(f"v_or3_b32 v{t}, v{t}, v{t+1}, v{t+2}\nv_or_b32 v{t}, v{t}, v{t+3}\nv_readfirstlane_b32 s59, v{t}")
    def ffn_scalars():
        e("""s_mul_i32 s50, s29, 37
             s_lshr_b32 s50, s50, 8
             s_mul_i32 s51, s50, 7
             s_sub_u32 s51, s29, s51
             s_lshl_b32 s52, s50, 3
             s_add_u32 s52, s52, s28""")

    e(f"""s_cmp_ge_u32 s2, 256
          s_cbranch_scc1 L_exit
          s_load_dwordx16 s[4:19], s[0:1], 0
          s_load_dwordx8 s[20:27], s[0:1], 64""")
    stamp(0)
    e(f"""v_lshrrev_b32 v1, 6, v0
         v_and_b32 v0, 63, v0
         v_readfirstlane_b32 s30, v1
         s_and_b32 s28, s2, 7
         s_lshr_b32 s29, s2, 3
         s_lshl_b32 s55, s28, 5
         s_add_u32 s55, s55, s29
         s_cmp_eq_u32 s30, 4
         s_cbranch_scc1 L_Q""")

    KR, VR, QG, SC, MK, WO, GU, AF, GA, MG = 16, 80, 148, 156, 164, 168, 184, 200, 216, 224
    QB, PE = QG, KR + 16
    if code_pf:
        e(f"""s_getpc_b64 s[48:49]
              L_pc:
              s_lshl_b32 s56, s29, 2
              s_add_u32 s56, s56, s30
              s_lshl_b32 s56, s56, 7
              s_min_u32 s56, s56, L_exit-{NAME}_kernel
              s_sub_u32 s48, s48, L_pc-{NAME}_kernel
              s_subb_u32 s49, s49, 0
              v_mov_b32 v1, s56
              s_mov_b64 exec, 1
              global_load_dword v15, v1, s[48:49]
              s_mov_b64 exec, -1""")
    e(f"""s_lshl_b32 s53, s28, 23
         s_lshl_b32 s54, s29, {lc}
         s_add_u32 s53, s53, s54
         s_add_u32 s53, s53, 6291456""")
    e({"0": "s_mov_b32 s56, 0", "gj": "s_lshl_b32 s56, s28, 1\ns_xor_b32 s56, s56, s29\ns_and_b32 s56, s56, 15",
       "gj1": "s_lshl_b32 s56, s28, 1\ns_and_b32 s54, s29, 1\ns_or_b32 s56, s56, s54", "j": "s_and_b32 s56, s29, 15",
       "mul": "s_mul_i32 s56, s2, s2\ns_mul_i32 s56, s56, 0x9E3779B1\ns_lshr_b32 s56, s56, 28"}[rot])
    e(f"""s_lshr_b32 s54, s56, {nb}
          s_lshl_b32 s54, s54, {lc+5}
          s_or_b32 s53, s53, s54
          s_and_b32 s54, s56, {(1 << nb) - 1}
          s_lshl_b32 s54, s54, 12
          s_or_b32 s53, s53, s54
          v_bfe_u32 v9, v0, 3, 1
          v_lshlrev_b32 v1, 9, v9
          v_lshrrev_b32 v2, 4, v0
          v_lshl_add_u32 v1, v2, 7, v1
          v_and_b32 v10, 7, v0
          v_lshl_add_u32 v1, v10, 4, v1
          s_lshl_b32 s54, s30, 10
          s_add_u32 s98, s54, s53
          s_waitcnt lgkmcnt(0)""")
    srd(36, 6, 67108864)

    pos, state = {}, {"n": 0, "done": -1}
    def arrived(i):
        if i > state["done"]:
            e(f"s_waitcnt vmcnt({state['n'] - 1 - i})"); state["done"] = i
    def issue(name, text):
        arrived(state["n"] - W)
        e(text); pos[name] = state["n"]; state["n"] += 1
    qg = [f"buffer_load_dwordx4 v[{QG}:{QG+3}], v4, s[32:35], s61 offen sc1", f"buffer_load_dwordx4 v[{QG+4}:{QG+7}], v4, s[32:35], s62 offen sc1"]
    mlg = f"buffer_load_dwordx4 v[{MG}:{MG+3}], v230, s[32:35], s3 offen sc1"
    def vop(i):
        t = f"buffer_load_dwordx4 v[{VR+4*i}:{VR+4*i+3}], v228, s[44:47], s54 offen offset:{2048*(i >> 4)} {nt}"
        t = f"s_xor_b32 s54, s99, {koff(min(i, 15))}\n" + t
        if i >= 15: t = "s_mov_b64 exec, s[22:23]\n" + t + "\ns_mov_b64 exec, -1"
        return (f"V{i}", t)
    wops = [(f"WO{m}", f"buffer_load_dwordx4 v[{WO+4*m}:{WO+4*m+3}], v11, s[40:43], s48 offen {wnt}\ns_add_u32 s48, s48, 7168") for m in range(4)]
    gops = [(f"GU{m}", f"s_mov_b64 exec, s[24:25]\nglobal_load_dwordx4 v[{GU+4*m}:{GU+4*m+3}], v[{GA+2*m}:{GA+2*m+1}], off {wnt}\ns_mov_b64 exec, -1") for m in range(4)]
    ops = [vop(i) for i in range(17)] + [("ML", mlg)]
    if wopos == "V": ops += wops
    if gupos == "V": ops += gops
    if wopos == "K": ops = wops + ops
    if gupos == "K": ops = gops + ops
    ops = ops[:qa] + [("G0", qg[0]), ("G1", qg[1])] + ops[qa:]
    def next_op():
        if ops: issue(*ops.pop(0))

    for i in range(16):
        issue(f"K{i}", f"s_xor_b32 s54, s98, {koff(i)}\nbuffer_load_dwordx4 v[{KR+4*i}:{KR+4*i+3}], v1, s[36:39], s54 offen {nt}")
        if i == kpre - 1: e("s_load_dword s31, s[26:27], 0\ns_barrier")
        if i == W - 1:
            srd(32, 26, WS_SIZE); srd(40, 12, 4096*896); srd(44, 8, 67108864)
            ffn_scalars()
            masks(MK, 7, 8)
            e(f"""v_mov_b32 v246, 0
                  v_mov_b32 v244, 0xff
                  v_and_b32 v3, 3, v0
                  v_lshrrev_b32 v5, 5, v0
                  v_and_b32 v6, 31, v0
                  v_lshlrev_b32 v4, 11, v5
                  v_lshl_add_u32 v4, v6, 4, v4
                  s_lshl_b32 s61, s28, 13
                  s_lshl_b32 s62, s30, 9
                  s_add_u32 s61, s61, s62
                  s_add_u32 s61, s61, {QP}
                  s_add_u32 s62, s61, 4096
                  v_lshlrev_b32 v6, 3, v6
                  v_lshl_add_u32 v6, v5, 2, v6
                  s_lshl_b32 s56, s30, 8
                  v_add_u32 v6, s56, v6
                  v_xor_b32 v7, 64, v1
                  v_and_b32 v12, 15, v0
                  v_lshlrev_b32 v228, 9, v2
                  v_lshl_add_u32 v228, v12, 4, v228
                  s_and_b32 s57, s30, 1
                  s_lshr_b32 s60, s30, 1
                  s_lshl_b32 s56, s57, 8
                  s_add_u32 s99, s53, s56
                  s_lshl_b32 s56, s60, 11
                  s_add_u32 s99, s99, s56
                  v_lshlrev_b32 v229, 10, v5
                  v_and_b32 v13, 1, v2
                  v_lshl_add_u32 v229, v13, 8, v229
                  v_lshl_add_u32 v229, v12, 4, v229
                  s_lshl_b32 s53, s55, 11
                  s_lshl_b32 s56, s57, 9
                  s_add_u32 s53, s53, s56
                  s_add_u32 s53, s53, {OP}
                  s_lshl_b32 s56, s57, 10
                  v_lshl_add_u32 v238, v0, 4, s56
                  v_bfe_u32 v14, v0, 2, 1
                  v_lshl_add_u32 v239, v5, 1, v9
                  v_lshl_add_u32 v239, v14, 4, v239
                  v_lshl_add_u32 v239, v13, 5, v239
                  s_lshl_b32 s56, s30, 6
                  v_lshl_add_u32 v239, v239, 4, s56
                  s_lshl_b32 s56, s30, 2
                  v_lshl_add_u32 v240, v9, 4, s56
                  v_mov_b32 v243, s56
                  v_lshrrev_b32 v241, 3, v0
                  s_lshl_b32 s56, s60, 7
                  v_lshl_add_u32 v241, v241, 4, s56
                  v_lshlrev_b32 v242, 4, v9
                  v_lshl_add_u32 v14, v2, 1, v14
                  v_lshl_add_u32 v230, v14, 2, v3
                  v_lshlrev_b32 v230, 4, v230
                  v_lshlrev_b32 v231, 11, v14
                  v_lshl_add_u32 v231, v9, 6, v231
                  v_lshl_add_u32 v231, v3, 4, v231
                  s_lshl_b32 s3, s28, 9
                  s_add_u32 s3, s3, {ML}
                  v_lshlrev_b32 v232, 4, v13
                  v_lshl_add_u32 v232, v10, 5, v232
                  v_lshl_add_u32 v232, v9, 8, v232
                  s_lshl_b32 s56, s30, 9
                  v_add_u32 v232, s56, v232
                  v_lshl_add_u32 v11, v9, 5, v2
                  v_mul_u32_u24 v11, 896, v11
                  v_lshl_add_u32 v11, v10, 4, v11
                  s_lshl_b32 s48, s28, 9
                  s_lshl_b32 s56, s50, 7
                  s_add_u32 s48, s48, s56
                  s_lshl_b32 s56, s57, 6
                  s_add_u32 s48, s48, s56
                  s_lshl_b32 s56, s60, 2
                  s_add_u32 s48, s48, s56
                  s_mul_i32 s48, s48, 896
                  s_lshl_b32 s56, s51, 7
                  s_add_u32 s48, s48, s56
                  s_cmp_lt_u32 s29, 28
                  s_cselect_b32 s42, s42, 0
                  s_cselect_b32 s48, s48, 0
                  s_lshl_b32 s49, s51, 6
                  s_lshl_b32 s56, s30, 4
                  s_add_u32 s49, s49, s56
                  s_mul_i32 s63, s49, 3584
                  s_min_u32 s56, s52, 27
                  s_lshl_b32 s56, s56, 7
                  s_add_u32 s63, s63, s56
                  v_mul_u32_u24 v12, 3584, v2
                  v_lshl_add_u32 v12, v10, 4, v12
                  v_add_u32 v12, s63, v12
                  v_cmp_eq_u32 vcc, 0, v9
                  v_mov_b32 v13, s18
                  v_mov_b32 v14, s16
                  v_cndmask_b32 v13, v13, v14, vcc
                  v_mov_b32 v14, s19
                  v_mov_b32 v8, s17
                  v_cndmask_b32 v14, v14, v8, vcc
                  v_add_co_u32 v{GA}, vcc, v13, v12
                  v_addc_co_u32 v{GA+1}, vcc, 0, v14, vcc""")
            for m in range(1, 4):
                e(f"v_add_co_u32 v{GA+2*m}, vcc, 14336, v{GA+2*m-2}\nv_addc_co_u32 v{GA+2*m+1}, vcc, 0, v{GA+2*m-1}, vcc")
            e(f"""s_cmp_eq_u32 s60, 0
                  s_cselect_b64 s[22:23], -1, 0
                  s_cmp_lt_u32 s52, 28
                  s_cselect_b64 s[24:25], -1, 0
                  v_lshl_add_u32 v233, v3, 2, v2
                  v_add_u32 v233, s49, v233
                  v_lshlrev_b32 v234, 2, v233
                  v_and_b32 v234, 0xff, v234
                  v_lshlrev_b32 v233, 1, v233
                  v_lshl_add_u32 v235, v2, 2, v3
                  v_add_u32 v235, s49, v235
                  v_lshlrev_b32 v235, 2, v235
                  v_and_b32 v13, 12, v0
                  v_cmp_eq_u32 vcc, 0, v13
                  v_mov_b32 v13, {OOB}
                  v_cndmask_b32 v235, v13, v235, vcc
                  v_lshrrev_b32 v236, 2, v0
                  v_lshlrev_b32 v236, 8, v236
                  v_lshl_add_u32 v236, v3, 4, v236
                  s_lshl_b32 s56, s30, 10
                  v_lshl_add_u32 v237, v0, 4, s56
                  s_mov_b32 s57, {CEXP}
                  s_waitcnt lgkmcnt(0)""")
            tags()
            e(f"""s_getreg_b32 s56, hwreg(HW_REG_XCC_ID, 0, 4)
                  s_and_b32 s63, s97, 0xf0
                  s_or_b32 s63, s63, s56
                  s_mov_b32 s58, {SPIN}""")
            lane_tag(8, 3, 13)
            qtag_reg(245, 3)
    stamp(1)
    while "G1" not in pos or state["n"] - W < pos["G1"]: next_op()
    arrived(pos["G1"])
    e("L_qpoll:")
    stamp(2)
    a = QG
    e(f"""v_bitop3_b32 v12, v{a}, v{a+1}, {T0} bitop3:0x7e
          v_bitop3_b32 v13, v{a+4}, v{a+5}, {T0} bitop3:0x7e
          v_bitop3_b32 v14, v{a+2}, v{a+6}, {T1} bitop3:0x7e
          v_bitop3_b32 v15, v{a+3}, v{a+7}, s63 bitop3:0x7e
          v_or3_b32 v12, v12, v13, v14
          v_and_b32 v13, 0xf0, v15
          v_or_b32 v12, v12, v13
          v_cmp_ne_u32_sdwa vcc, v12, v246 src0_sel:BYTE_0 src1_sel:DWORD
          s_cbranch_vccnz L_qretry
          L_qdone:
          v_and_b32 v15, 15, v15
          v_cmp_ne_u32 vcc, 0, v15""")
    extra.append("L_qretry:\ns_sub_u32 s58, s58, 1\ns_cbranch_scc1 L_qdone\n" + "\n".join(qg) + "\ns_waitcnt vmcnt(0)\ns_branch L_qpoll")
    next_op()
    for r in range(8): e(f"v_and_b32 v{a+r}, 0xffffff00, v{a+r}")
    e("s_cmp_eq_u64 vcc, 0\ns_cselect_b32 s56, %d, 1" % (1 if force_global else 0))
    for r in range(4): e(f"v_add_f32 v{a+r}, v{a+r}, v{a+4+r}")
    e(f"""v_mov_b32 v12, s56
          v_permlane32_swap_b32 v{a}, v{a+2}
          v_permlane32_swap_b32 v{a+1}, v{a+3}
          ds_write_b32 v243, v12 offset:{FLAGS}
          v_add_f32 v{a}, v{a}, v{a+2}
          v_add_f32 v{a+1}, v{a+1}, v{a+3}
          v_cvt_pk_bf16_f32 v{a}, v{a}, v{a+1}
          ds_write_b32 v6, v{a} offset:{QS}
          s_waitcnt lgkmcnt(0)
          s_barrier
          ds_read_b128 v[{QB}:{QB+3}], v1 offset:{QS}
          ds_read_b128 v[{QB+4}:{QB+7}], v7 offset:{QS}
          ds_read_b128 v[12:15], v246 offset:{FLAGS}
          ds_read_u16 v233, v233 offset:{XR}""")
    next_op()
    e("s_waitcnt lgkmcnt(0)")
    stamp(3)
    for m in list(range(0, 16, 2)) + list(range(1, 16, 2)):
        k, q = KR + 4*m, QB + 4*(m & 1)
        e(f"v_mfma_f32_16x16x32_bf16 v[{k}:{k+3}], v[{k}:{k+3}], v[{q}:{q+3}], 0")
    read_mode(12)
    e("v_lshlrev_b32 v233, 16, v233")
    for par in range(2):
        pat = (0xf0f00f0f, 0x0f0ff0f0)[par]
        e(f"s_mov_b32 exec_lo, {pat}\ns_mov_b32 exec_hi, {pat}")
        for r in range(4):
            for p in range(8):
                a = KR + 4*(2*p + par)
                if r == 0: e(f"v_mov_b32_dpp v{SC+p}, v{a} quad_perm:[0,0,0,0] row_mask:0xf bank_mask:0xf")
                else: e(f"v_add_f32_dpp v{SC+p}, v{a+r}, v{SC+p} quad_perm:[{r},{r},{r},{r}] row_mask:0xf bank_mask:0xf")
        e("s_mov_b64 exec, -1")
        if par == 0: next_op()
    Z = KR
    for u in range(4): e(f"v_permlane16_swap_b32 v{SC+2*u}, v{SC+2*u+1}")
    for u in range(4): e(f"v_add_f32_dpp v{Z+u}, v{SC+2*u+1}, v{SC+2*u} row_half_mirror row_mask:0xf bank_mask:0xf")
    for u in (0, 2): e(f"v_cvt_pk_bf16_f32 v{Z+u+1}, v{Z+u}, v{Z+u+1}")
    for u in (0, 2): e(f"v_lshlrev_b32 v{Z+u}, 16, v{Z+u+1}\nv_and_b32 v{Z+u+1}, 0xffff0000, v{Z+u+1}")
    e(f"v_max3_f32 v4, v{Z}, v{Z+1}, v{Z+2}\nv_max_f32 v4, v4, v{Z+3}")
    dpp_red("v_max_f32", [4], ["row_half_mirror"])
    xrow("v_max_f32", [4], [5])
    next_op()
    for u in range(4): e(f"v_sub_f32 v{Z+u}, v{Z+u}, v4")
    for u in range(4): e(f"v_mul_f32 v{Z+u}, s57, v{Z+u}")
    for u in range(4): e(f"v_exp_f32 v{Z+u}, v{Z+u}")
    e(f"v_add_f32 v5, v{Z}, v{Z+1}\nv_add_f32 v5, v5, v{Z+2}\nv_add_f32 v5, v5, v{Z+3}")
    dpp_red("v_add_f32", [5], ["row_half_mirror"])
    xrow("v_add_f32", [5], [6])
    e(f"""s_mov_b32 exec_lo, 0x11111111
          s_mov_b32 exec_hi, 0x11111111
          ds_write_b128 v239, v[{Z}:{Z+3}] offset:{EB}
          ds_write_b32 v240, v4 offset:{MLW}
          ds_write_b32 v240, v5 offset:{MLW+32}
          s_mov_b64 exec, -1
          s_waitcnt lgkmcnt(0)""")
    stamp(4)
    e(f"s_barrier\nds_read_b128 v[12:15], v242 offset:{MLW}")
    for mm in range(4): e(f"ds_read_b128 v[{PE+4*mm}:{PE+4*mm+3}], v241 offset:{EB+256*mm}")
    e(f"ds_read_b32 v{PE+16}, v241 offset:{EB+7*128+12}")
    next_op()
    e("s_waitcnt lgkmcnt(5)\nv_max3_f32 v4, v12, v13, v14\nv_max_f32 v4, v4, v15\nv_cmp_gt_u32 vcc, 32, v0")
    e("v_cndmask_b32 v12, v13, v12, vcc\nv_cndmask_b32 v13, v15, v14, vcc\nv_cndmask_b32 v12, v13, v12, s[22:23]")
    for w in range(2): e(f"v_sub_f32 v{12+w}, v{12+w}, v4")
    for w in range(2): e(f"v_mul_f32 v{12+w}, s57, v{12+w}")
    for w in range(2): e(f"v_exp_f32 v{12+w}, v{12+w}")
    e("s_waitcnt lgkmcnt(0)")
    for i in range(0, 16, 2): e(f"v_pk_mul_f32 v[{PE+i}:{PE+i+1}], v[{PE+i}:{PE+i+1}], v[12:13] op_sel:[0,0] op_sel_hi:[1,0]")
    e(f"v_mul_f32 v{PE+16}, v{PE+16}, v13")
    for i in range(17): e(f"v_cvt_pk_bf16_f32 v{PE+i}, v{PE+i}, v{PE+i}")
    stamp(5)
    def prep(i):
        p = PE + (4*(i & 3) + (i >> 2) if i < 16 else 16)
        for j in range(4): e(f"v_and_b32 v{AF+4*(i&3)+j}, v{p}, v{MK+j}")
    def pv(i):
        arrived(pos[f"V{i}"])
        a = AF + 4*(i & 3)
        e(f"v_mfma_f32_16x16x32_bf16 v[12:15], v[{a}:{a+3}], v[{VR+4*i}:{VR+4*i+3}], " + ("0" if i == 0 else "v[12:15]"))
    prep(0)
    since = 99
    for i in range(15):
        while ops and (since >= 5 or f"V{i}" not in pos or pos[f"V{i}"] > state["done"]):
            next_op(); since = 0
        prep(i + 1); pv(i); since += 1
    late = list(ops); ops.clear()
    assert "V16" in pos
    e("s_cmp_lg_u32 s60, 0\ns_cbranch_scc1 L_hand")
    saved = dict(state)
    prep(16); pv(15)
    e(f"s_barrier\nds_read_b128 v[4:7], v238 offset:{PR}")
    pv(16)
    e("s_waitcnt lgkmcnt(0)")
    pk_add4(12, 12, 4)
    e("v_bfi_b32 v12, v244, v245, v12")
    mode_store(["buffer_store_dwordx4 v[12:15], v229, s[32:35], s53 offen"])
    e("L_joined:")
    extra.append(f"L_hand:\ns_nop 7\nds_write_b128 v238, v[12:15] offset:{PR}\ns_waitcnt lgkmcnt(0)\ns_barrier\ns_branch L_joined")
    state.update(saved)
    for name, t in late:
        e(t); pos[name] = state["n"]; state["n"] += 1
    stamp(6)
    e(f"""s_cmp_ge_u32 s29, 28
          s_cbranch_scc1 L_end
          s_lshl_b32 s60, s28, 16
          s_lshl_b32 s56, s50, 9
          s_add_u32 s60, s60, s56
          s_lshl_b32 s56, s30, 7
          s_add_u32 s60, s60, s56
          s_add_u32 s60, s60, {OP}
          s_add_u32 s61, s60, 16384
          s_add_u32 s62, s60, 32768
          s_add_u32 s63, s60, 49152
          s_mov_b32 s58, {SPIN}
          s_barrier""")
    stamp(7)
    opg = [(f"buffer_load_dwordx4 v[{16+4*i}:{19+4*i}], v231, s[32:35], s{60+i} offen sc1", 16 + 4*i) for i in range(4)]
    for t, b in opg: e(t)
    poll([(mlg, MG)], 4, issued=True, behind=state["n"] - 1 - pos["ML"] + 4)
    e(f"""s_cmp_ge_u32 s50, 2
          s_cselect_b64 vcc, -1, 0
          v_cndmask_b32 v4, v{MG}, v{MG+2}, vcc
          v_cndmask_b32 v5, v{MG+1}, v{MG+3}, vcc
          v_and_b32 v4, 0xffffff00, v4
          v_and_b32 v5, 0xffffff00, v5
          v_mov_b32 v6, v4""")
    q8 = ["quad_perm:[1,0,3,2]", "quad_perm:[2,3,0,1]", "row_half_mirror"]
    dpp_red("v_max_f32", [6], q8); xrow("v_max_f32", [6], [7])
    e("v_sub_f32 v4, v4, v6\nv_mul_f32 v4, s57, v4\nv_exp_f32 v4, v4\nv_mul_f32 v6, v4, v5")
    dpp_red("v_add_f32", [6], q8); xrow("v_add_f32", [6], [7])
    e("v_rcp_f32 v6, v6\nv_mul_f32 v4, v4, v6")
    for i in range(4): e(f"v_mov_b32_dpp v{32+i}, v4 quad_perm:[{i},{i},{i},{i}] row_mask:0xf bank_mask:0xf")
    stamp(12)
    poll(opg, 4, issued=True, quad=245)
    stamp(8)
    for i in range(4):
        w, s = 32 + (i & 2), i & 1
        for p in (0, 2):
            if i == 0: e(f"v_pk_mul_f32 v[{36+p}:{37+p}], v[{16+p}:{17+p}], v[{w}:{w+1}] op_sel:[0,0] op_sel_hi:[1,0]")
            else: e(f"v_pk_fma_f32 v[{36+p}:{37+p}], v[{16+4*i+p}:{17+4*i+p}], v[{w}:{w+1}], v[{36+p}:{37+p}] op_sel:[0,{s},0] op_sel_hi:[1,{s},1]")
    trows(36)
    e("""v_add_f32_dpp v37, v36, v36 row_shr:4 row_mask:0xf bank_mask:0xa
         v_add_f32_dpp v37, v36, v36 row_shl:4 row_mask:0xf bank_mask:0x5
         v_cvt_pk_bf16_f32 v37, v37, v37""")
    def gemv4(src, wbase, bank):
        for m in range(5):
            if m < 4:
                for j in range(4): e(f"v_and_b32_dpp v{AF+4*m+j}, v{src}, v{MK+j} quad_perm:[{m},{m},{m},{m}] row_mask:0xf bank_mask:{bank}")
            if m >= 1:
                p = m - 1
                e(f"v_mfma_f32_16x16x32_bf16 v[40:43], v[{AF+4*p}:{AF+4*p+3}], v[{wbase+4*p}:{wbase+4*p+3}], " + ("0" if p == 0 else "v[40:43]"))
    gemv4(37, WO, "0xf")
    e(f"""s_mov_b32 exec_lo, 0x00ff00ff
          s_mov_b32 exec_hi, 0xff00ff00
          ds_write_b128 v232, v[40:43] offset:{RED}
          s_mov_b64 exec, -1
          s_waitcnt lgkmcnt(0)""")
    stamp(9)
    e(f"""s_barrier
          s_cmp_ge_u32 s52, 28
          s_cbranch_scc1 L_end
          v_mov_b32 v16, 0x3f803f80
          s_lshl_b32 s60, s51, 13
          s_lshl_b32 s56, s30, 6
          s_add_u32 s60, s60, s56
          s_add_u32 s60, s60, {CP}
          s_add_u32 s61, s60, 4096
          s_lshl_b32 s62, s52, 11
          s_add_u32 s62, s62, {HH}
          s_mov_b32 s63, 0xffff0000""")
    for m in range(4):
        for j in range(4): e(f"v_and_b32 v{AF+4*m+j}, v16, v{MK+j}")
    if gupos == "B4":
        for name, t in gops: e(t)
    poll_init(2, 4)
    poll([(f"buffer_load_dwordx4 v[{16+4*i}:{19+4*i}], v236, s[32:35], s{60+i} offen sc1", 16 + 4*i) for i in range(2)], 4, quad=245)
    stamp(10)
    pk_add4(16, 16, 20)
    trows(16)
    dpp_red("v_add_f32", [16], ["row_ror:4", "row_ror:8"])
    bfround(16)
    e("v_add_f32 v16, v16, v233\nv_cvt_pk_bf16_f32 v16, v16, v16\nv_and_or_b32 v17, v16, s63, v8")
    mode_store(["buffer_store_dword v17, v235, s[32:35], s62 offen"])
    e(f"ds_write_b32 v234, v17 offset:{HL}")
    gemv4(16, GU, "0x3")
    e(f"ds_write_b128 v237, v[40:43] offset:{RED2}\ns_waitcnt lgkmcnt(0)")
    stamp(11)
    e("s_barrier\nL_end:")
    finish()

    WQ, F, XA, MK, DN = 16, 80, 96, 112, 128
    e(f"""L_Q:
          s_setprio 3
          v_lshlrev_b32 v1, 4, v0
          v_lshrrev_b32 v2, 3, v0
          v_and_b32 v3, 7, v0
          v_mul_u32_u24 v4, {14*8192}, v2
          v_lshl_add_u32 v4, v3, 4, v4
          s_lshr_b32 s48, s29, 3
          s_and_b32 s49, s29, 7
          s_mul_i32 s54, s48, {112*8192}
          s_lshl_b32 s56, s28, 10
          s_add_u32 s54, s54, s56
          s_lshl_b32 s56, s49, 7
          s_add_u32 s54, s54, s56
          s_waitcnt lgkmcnt(0)""")
    srd(40, 4, 896)
    e("buffer_load_dwordx4 v[8:11], v1, s[40:43], 0 offen")
    srd(36, 10, 448*8192)
    for i in range(14):
        e(f"buffer_load_dwordx4 v[{WQ+4*i}:{WQ+4*i+3}], v4, s[36:39], s54 offen {wnt}")
        if i < 13: e("s_add_u32 s54, s54, 8192")
    e("s_load_dword s31, s[26:27], 0\ns_barrier")
    srd(32, 26, WS_SIZE); srd(40, 22, 896); srd(44, 20, 1792*896)
    ffn_scalars()
    masks(MK, 72, 73)
    e("v_mov_b32 v246, 0\nv_mov_b32 v245, 0xff\ns_waitcnt vmcnt(14)")
    skew_store = f"s_lshl_b32 s56, s2, 2\ns_add_u32 s56, s56, {STAMP}\nv_mov_b32 v13, s64\nbuffer_store_dword v13, v246, s[32:35], s56 offen sc1"
    stamp(1)
    e(f"ds_write_b128 v1, v[8:11] offset:{XR}")
    for i in range(4): e(f"v_lshlrev_b32 v{F+2*i}, 16, v{8+i}\nv_and_b32 v{F+2*i+1}, 0xffff0000, v{8+i}")
    e(f"v_add_f32 v72, v{F}, v{F+1}")
    for i in range(2, 8): e(f"v_add_f32 v72, v72, v{F+i}")
    r16 = ["row_ror:8", "row_ror:4", "row_ror:2", "row_ror:1"]
    dpp_red("v_add_f32", [72], r16)
    xrow("v_add_f32", [72], [73])
    e(f"v_mul_f32 v72, {f2u(1/448)}, v72\nv_mov_b32 v73, 0")
    for i in range(8): e(f"v_sub_f32 v74, v{F+i}, v72\nv_fmac_f32 v73, v74, v74")
    e("v_cmp_gt_u32 vcc, 56, v0\nv_cndmask_b32 v73, 0, v73, vcc")
    dpp_red("v_add_f32", [73], r16)
    xrow("v_add_f32", [73], [74])
    e(f"v_mul_f32 v73, {f2u(1/448)}, v73")
    bfround(72); bfround(73)
    e(f"v_add_f32 v73, {f2u(1e-5)}, v73"); bfround(73)
    e("v_sqrt_f32 v73, v73"); bfround(73)
    e("v_rcp_f32 v74, v73")
    for i in range(8): e(f"v_sub_f32 v{F+i}, v{F+i}, v72")
    for i in range(0, 8, 2): e(f"v_cvt_pk_bf16_f32 v{F+i+1}, v{F+i}, v{F+i+1}")
    for i in range(0, 8, 2): e(f"v_lshlrev_b32 v{F+i}, 16, v{F+i+1}\nv_and_b32 v{F+i+1}, 0xffff0000, v{F+i+1}")
    for i in range(8): e(f"v_mul_f32 v{F+8+i}, v{F+i}, v74")
    for i in range(8): e(f"v_fma_f32 v{F+i}, -v{F+8+i}, v73, v{F+i}")
    for i in range(8): e(f"v_fmac_f32 v{F+8+i}, v{F+i}, v74")
    for i in range(8): e(f"v_cvt_pk_bf16_f32 v{F+i}, v{F+8+i}, v{F+8+i}")
    e(f"""v_lshlrev_b32 v72, 5, v0
          ds_write_b128 v72, v[{F}:{F+3}] offset:{XN}
          ds_write_b128 v72, v[{F+4}:{F+7}] offset:{XN+16}
          v_mul_u32_u24 v73, 56, v2
          s_mul_i32 s56, s48, 448
          v_add_u32 v73, s56, v73
          s_waitcnt lgkmcnt(0)""")
    for i in range(7): e(f"ds_read_b64 v[{XA+2*i}:{XA+2*i+1}], v73 offset:{XN+8*i}")
    tags()
    e(f"""s_getreg_b32 s56, hwreg(HW_REG_XCC_ID, 0, 4)
          s_and_b32 s63, s97, 0xf0
          s_or_b32 s63, s63, s56
          s_waitcnt lgkmcnt(0)""")
    stamp(2)
    for i in range(15):
        if i < 14:
            a = (116, 120)[i & 1]
            for j in range(4): e(f"v_and_b32 v{a+j}, v{XA+i}, v{MK+j}")
        if i >= 1:
            p = i - 1; a = (116, 120)[p & 1]
            e(f"s_waitcnt vmcnt({13-p})\nv_mfma_f32_16x16x32_bf16 v[8:11], v[{a}:{a+3}], v[{WQ+4*p}:{WQ+4*p+3}], " + ("0" if p == 0 else "v[8:11]"))
    e(f"""v_lshrrev_b32 v5, 4, v0
          v_lshlrev_b32 v72, 4, v5
          v_lshl_add_u32 v72, v3, 5, v72
          v_and_b32 v73, 40, v0
          v_mov_b32 v12, {OOB}
          v_cmp_eq_u32 vcc, 0, v73
          v_cndmask_b32 v72, v12, v72, vcc
          s_lshl_b32 s54, s28, 13
          s_add_u32 s54, s54, {QP}
          s_lshl_b32 s56, s48, 11
          s_add_u32 s56, s56, s54
          s_lshl_b32 s61, s49, 8
          s_add_u32 s56, s56, s61""")
    for r in range(4): e(f"v_mov_b32_dpp v{F+r}, v{8+r} row_ror:8 row_mask:0xf bank_mask:0xf")
    for r in range(4): e(f"v_permlane32_swap_b32 v{F+r}, v{F+4+r}")
    for r in range(4): e(f"v_add_f32 v{8+r}, v{8+r}, v{F+4+r}")
    for r in range(4): e(f"v_add_u32 v{8+r}, 0x80, v{8+r}")
    tag4(8, 245, "s63")
    e("buffer_store_dwordx4 v[8:11], v72, s[32:35], s56 offen sc1")
    stamp(3)
    if skew is not None: e(skew_store)
    e(f"""s_setprio 0
          s_lshl_b32 s54, s55, 11
          s_add_u32 s54, s54, {OP}
          v_lshl_add_u32 v6, v0, 7, s54
          s_lshl_b32 s60, s49, 6
          s_lshl_b32 s56, s48, 4
          s_add_u32 s60, s60, s56
          s_lshl_b32 s56, s28, 9
          s_add_u32 s60, s60, s56
          s_add_u32 s60, s60, {ML}
          s_mul_i32 s61, s52, 7168
          s_add_u32 s61, s61, {DP}
          s_lshl_b32 s56, s51, 10
          s_add_u32 s62, s61, s56
          s_sub_u32 s56, s62, {16*128}
          v_lshl_add_u32 v7, v0, 7, s56
          v_cmp_gt_u32 vcc, 16, v0
          v_cndmask_b32 v6, v7, v6, vcc
          s_lshl_b32 s63, s52, 11
          s_add_u32 s63, s63, {HH}
          s_lshl_b32 s56, s51, 8
          s_add_u32 s56, s56, s63
          v_writelane_b32 v6, s56, 24
          s_add_u32 s56, s56, 128
          v_writelane_b32 v6, s56, 25
          v_writelane_b32 v6, s60, 26
          s_cmp_lt_u32 s52, 28
          s_cselect_b32 s56, 0x03ff0000, 0
          s_or_b32 exec_lo, s56, 0x0400ffff
          s_mov_b32 exec_hi, 0
          buffer_load_dword v13, v6, s[32:35], 0 offen sc1
          s_mov_b64 exec, -1
          v_cmp_eq_u32 vcc, 0, v0
          v_cndmask_b32 v14, v12, v0, vcc
          v_and_b32 v72, 1, v0
          v_lshlrev_b32 v72, 4, v72
          s_mov_b32 s57, {CEXP}
          v_and_b32 v3, 3, v0
          v_and_b32 v6, 1, v5
          v_lshlrev_b32 v6, 2, v6
          v_lshrrev_b32 v7, 1, v5
          v_lshl_add_u32 v6, v7, 1, v6
          v_mul_u32_u24 v6, 896, v6
          v_and_b32 v7, 15, v0
          v_lshl_add_u32 v6, v7, 3, v6
          s_mul_i32 s48, s52, 57344
          s_lshl_b32 s56, s51, 7
          s_add_u32 s48, s48, s56
          s_lshl_b32 s49, s51, 13
          s_lshl_b32 s56, s28, 10
          s_add_u32 s49, s49, s56
          s_lshl_b32 s56, s50, 8
          s_add_u32 s49, s49, s56
          s_add_u32 s49, s49, {CP}
          v_lshlrev_b32 v2, 2, v0""")
    qtag_reg(244, 3)
    e("v_bfe_u32 v15, v0, 2, 2")
    qtag_reg(15, 15)
    e("v_cmp_eq_u32 vcc, 0, v3\nv_cndmask_b32 v243, 0, v245, vcc")
    def load_dn(guard=True):
        skip = lab("nodn")
        if guard: e(f"s_cmp_ge_u32 s52, 28\ns_cbranch_scc1 {skip}")
        for i in range(8):
            for hi in range(2):
                d = DN + 2*(8*hi + i)
                e(f"buffer_load_dwordx2 v[{d}:{d+1}], v6, s[44:47], s48 offen offset:{896*hi} {wnt}")
            if i < 7: e("s_add_u32 s48, s48, 7168")
        e(f"{skip}:")
    if dnpos == "K": load_dn()
    e(f"s_barrier\nds_read_b128 v[24:27], v246 offset:{FLAGS}\ns_waitcnt lgkmcnt(0)")
    read_mode(24)
    if dnpos == "q": load_dn()
    e("s_setprio 3\ns_barrier")
    stamp(4)
    e(f"""
          ds_read_b128 v[16:19], v72 offset:{MLW}
          ds_read_b128 v[20:23], v72 offset:{MLW+32}
          s_waitcnt lgkmcnt(0)
          v_max3_f32 v8, v16, v17, v18
          v_max_f32 v8, v8, v19""")
    for w in range(4): e(f"v_sub_f32 v{16+w}, v{16+w}, v8")
    for w in range(4): e(f"v_mul_f32 v{16+w}, s57, v{16+w}")
    for w in range(4): e(f"v_exp_f32 v{16+w}, v{16+w}")
    e("""v_mul_f32 v9, v16, v20
         v_fmac_f32 v9, v17, v21
         v_fmac_f32 v9, v18, v22
         v_fmac_f32 v9, v19, v23
         v_mov_b32_dpp v10, v8 quad_perm:[1,1,1,1] row_mask:0xf bank_mask:0xf
         v_mov_b32_dpp v11, v9 quad_perm:[1,1,1,1] row_mask:0xf bank_mask:0xf""")
    tag4(8, 245)
    mode_store(["buffer_store_dwordx4 v[8:11], v14, s[32:35], s60 offen"])
    stamp(5)
    e("s_cmp_ge_u32 s29, 28\ns_cbranch_scc1 L_end\ns_setprio 0")
    if dnpos == "p": load_dn()
    e("s_barrier")
    if dnpos == "h": e("s_barrier"); load_dn()
    else: e("s_barrier")
    e("s_setprio 3\ns_barrier")
    stamp(6)
    for k in range(4): e(f"ds_read2st64_b32 v[{16+2*k}:{17+2*k}], v2 offset0:{RED//256+2*k} offset1:{RED//256+2*k+1}")
    e("""s_waitcnt lgkmcnt(2)
         v_pk_add_f32 v[16:17], v[16:17], v[18:19]
         s_waitcnt lgkmcnt(0)
         v_pk_add_f32 v[20:21], v[20:21], v[22:23]
         v_pk_add_f32 v[16:17], v[16:17], v[20:21]
         v_add_f32 v16, v16, v17
         v_bfi_b32 v16, v243, v15, v16
         buffer_store_dword v16, v2, s[32:35], s49 offen sc1""")
    stamp(7)
    e("s_setprio 0\ns_cmp_ge_u32 s52, 28\ns_cbranch_scc1 L_end")
    if dnpos == "B4": load_dn(False)
    for r in range(4): e(f"v_and_b32 v{20+r}, {TAGS[r]}, v245\nv_mov_b32 v{84+r}, {'v244' if r == 0 else 0}")
    e(f"""s_add_u32 s60, s61, 4096
          s_mul_i32 s54, s51, 7168
          s_add_u32 s54, s54, {EP}
          s_lshl_b32 s56, s52, 8
          s_add_u32 s49, s54, s56
          v_cmp_gt_u32 vcc, 16, v0
          v_cndmask_b32 v4, v12, v1, vcc
          s_sub_u32 s50, s52, 4
          s_lshl_b32 s56, s50, 6
          s_add_u32 s54, s54, s56
          s_add_u32 s53, s54, 4096
          v_lshrrev_b32 v7, 2, v0
          v_lshlrev_b32 v7, 8, v7
          v_lshl_add_u32 v7, v3, 4, v7
          v_lshl_add_u32 v8, v3, 2, v5
          v_lshl_add_u32 v9, v8, 2, s56
          v_and_b32 v9, 0xff, v9
          v_lshlrev_b32 v8, 1, v8
          v_and_b32 v10, 12, v0
          v_cmp_eq_u32 vcc, 0, v10
          v_cndmask_b32 v8, v12, v8, vcc
          s_lshl_b32 s55, s51, 7
          s_lshl_b32 s56, s50, 5
          s_add_u32 s55, s55, s56""")
    L48 = (1 << 48) - 1
    poll_init(2, 4, {1: L48}); poll_init(7, 8)
    e("s_setprio 3\ns_barrier")
    stamp(8)
    hg = [("buffer_load_dwordx4 v[16:19], v1, s[32:35], s63 offen sc1", 16), ("buffer_load_dwordx4 v[20:23], v1, s[32:35], s63 offen offset:1024 sc1", 20)]
    for k in range(4): e(f"ds_read_b128 v[{24+4*k}:{27+4*k}], v1 offset:{RED2+1024*k}")
    e(f"{hg[0][0]}\ns_mov_b32 exec_hi, 0xffff\n{hg[1][0]}\ns_mov_b32 exec_hi, -1\ns_waitcnt lgkmcnt(2)")
    pk_add4(24, 24, 28)
    e("s_waitcnt lgkmcnt(0)")
    pk_add4(32, 32, 36); pk_add4(24, 24, 32)
    e("v_bfi_b32 v24, v245, v244, v24")
    mode_store(["buffer_store_dwordx4 v[24:27], v1, s[32:35], s62 offen"])
    dg = [(f"buffer_load_dwordx4 v[{44+4*p}:{47+4*p}], v1, s[32:35], {('s61','s60')[p>>2]} offen offset:{(p&3)*1024} sc1", 44 + 4*p) for p in range(7)]
    for t, b in dg: e(t)
    e(f"ds_read_b32 v13, v9 offset:{HL}")
    stamp(9)
    poll(hg, 4, issued=True, behind=8)
    for r in range(8): e(f"v_and_b32 v{16+r}, 0xffff0000, v{16+r}")
    e("""v_pk_add_f32 v[28:29], v[16:17], v[18:19]
         v_pk_mul_f32 v[30:31], v[16:17], v[16:17]
         v_pk_add_f32 v[28:29], v[28:29], v[20:21]
         v_pk_fma_f32 v[30:31], v[18:19], v[18:19], v[30:31]
         v_pk_add_f32 v[28:29], v[28:29], v[22:23]
         v_pk_fma_f32 v[30:31], v[20:21], v[20:21], v[30:31]
         v_add_f32 v40, v28, v29
         v_pk_fma_f32 v[30:31], v[22:23], v[22:23], v[30:31]
         v_add_f32 v41, v30, v31""")
    dpp_red("v_add_f32", [40, 41], r16)
    xrow("v_add_f32", [40, 41], [42, 43])
    e(f"""v_mul_f32 v40, {f2u(1/448)}, v40
          v_mul_f32 v41, {f2u(1/448)}, v41
          v_fma_f32 v41, -v40, v40, v41
          v_max_f32 v41, 0, v41""")
    bfround(40); bfround(41)
    e(f"v_add_f32 v41, {f2u(1e-5)}, v41"); bfround(41)
    e("v_sqrt_f32 v41, v41"); bfround(41)
    e("v_rcp_f32 v41, v41")
    stamp(10)
    poll(dg, 8, issued=True, quad=244)
    stamp(11)
    pk_add4(44, 44, 48); pk_add4(52, 52, 56); pk_add4(60, 60, 64)
    pk_add4(44, 44, 68); pk_add4(52, 52, 60); pk_add4(44, 44, 52)
    e("""v_permlane32_swap_b32 v44, v46
         v_permlane32_swap_b32 v45, v47
         v_fma_f32 v44, -v40, v46, v44
         v_fma_f32 v45, -v40, v47, v45
         v_mul_f32 v44, v44, v41
         v_mul_f32 v45, v45, v41
         v_mov_b32 v46, v44
         v_mov_b32_dpp v44, v45 row_ror:8 row_mask:0xf bank_mask:0xc
         v_mov_b32_dpp v45, v46 row_ror:8 row_mask:0xf bank_mask:0x3
         v_cvt_pk_bf16_f32 v45, v44, v45
         v_lshlrev_b32 v44, 16, v45
         v_and_b32 v45, 0xffff0000, v45""")
    k0 = -2.0 * 0.7978845608028654 * 1.4426950408889634
    e(f"""v_mul_f32 v46, v44, v44
          v_mul_f32 v46, {f2u(k0*0.044715)}, v46
          v_add_f32 v46, {f2u(k0)}, v46
          v_mul_f32 v46, v46, v44
          v_exp_f32 v46, v46
          v_add_f32 v46, 1.0, v46
          v_rcp_f32 v46, v46
          v_mul_f32 v46, v46, v44""")
    bfround(46)
    e("v_mul_f32 v46, v46, v45\nv_cvt_pk_bf16_f32 v46, v46, v46")
    for i in range(17):
        if i < 16:
            a = 116 + 2*(i & 3)
            for j in range(2): e(f"v_and_b32_dpp v{a+j}, v46, v{MK+j} row_newbcast:{i} row_mask:0xf bank_mask:0xf")
        if i >= 1:
            p = i - 1; ap = 116 + 2*(p & 3)
            e(f"v_mfma_f32_16x16x16_bf16 v[32:35], v[{ap}:{ap+1}], v[{DN+2*p}:{DN+2*p+1}], " + ("0" if p == 0 else "v[32:35]"))
    poll_init(2, 4, {1: L48})
    e("v_bfi_b32 v32, v245, v244, v32")
    e("buffer_store_dwordx4 v[32:35], v4, s[32:35], s49 offen sc1")
    stamp(12)
    e("s_cmp_gt_u32 s50, 3\ns_cbranch_scc1 L_end\ns_waitcnt lgkmcnt(0)\nv_and_b32 v13, 0xffff0000, v13")
    if eack: e("s_waitcnt vmcnt(0)")
    poll([("buffer_load_dwordx4 v[80:83], v7, s[32:35], s54 offen sc1", 80), ("buffer_load_dwordx4 v[84:87], v7, s[32:35], s53 offen sc1", 84)], 4, quad=244)
    stamp(13)
    pk_add4(80, 80, 84)
    trows(80)
    dpp_red("v_add_f32", [80], ["row_ror:4", "row_ror:8"])
    bfround(80)
    e(f"""v_add_f32 v80, v80, v13
          v_cvt_pk_bf16_f32 v80, v80, v80
          buffer_store_short v80, v8, s[40:43], s55 offen
          s_cmp_lg_u32 s2, 4
          s_cbranch_scc1 L_Eend
          v_mov_b32 v16, s31
          buffer_store_dword v16, v14, s[32:35], 0 offen sc1
          L_Eend:""")
    stamp(14)
    if amp is not None:
        e(f"""s_cmp_lg_u32 s2, 4
              s_cbranch_scc1 L_end
              s_memrealtime s[96:97]
              s_waitcnt lgkmcnt(0)
              s_sub_u32 s98, s{64+2*int(amp)}, s64
              s_lshl_b32 s98, s98, 3""")
        if skew is not None:
            e(f"""s_mov_b32 s56, {STAMP}
              buffer_load_dword v16, v246, s[32:35], s56 offen sc1
              buffer_load_dword v17, v246, s[32:35], s56 offen offset:{4*int(skew)} sc1
              s_waitcnt vmcnt(0)
              v_sub_u32 v16, v17, v16
              v_add_u32 v16, 100, v16
              v_readfirstlane_b32 s98, v16
              s_lshl_b32 s98, s98, 5""")
        e(f"""
              s_min_u32 s98, s98, 100000
              L_amp:
              s_memrealtime s[100:101]
              s_waitcnt lgkmcnt(0)
              s_sub_u32 s99, s100, s96
              s_cmp_lt_u32 s99, s98
              s_cbranch_scc1 L_amp""")
    finish()
    for t in extra: e(t)
    for far, back, ins in deferred:
        e(f"{far}:\ns_nop 7")
        for t in ins: e(t + " sc1")
        e(f"s_nop 1\ns_branch {back}")
    if stamps:
        e("L_stamps:\ns_waitcnt lgkmcnt(0)\ns_mov_b64 exec, -1\nv_mov_b32 v250, 0")
        for k in range(16): e(f"v_writelane_b32 v250, s{64+2*k}, {k}")
        e(f"""s_lshl_b32 s60, s2, 3
              s_add_u32 s60, s60, s30
              s_lshl_b32 s60, s60, 6
              s_add_u32 s60, s60, {STAMP}
              v_lshlrev_b32 v251, 2, v0
              s_mov_b64 exec, 0xffff
              buffer_store_dword v250, v251, s[32:35], s60 offen""")
    e("L_exit:\ns_endpgm")

    head = open("cdna_kernels/" + NAME + ".s.ref").read()
    head = head[:head.index("; @launch")]
    out = head + f"; @launch grid=(256,1,1) block=(320,1,1) lds={LDS_SIZE}\n"
    out += f""".amdgcn_target "amdgcn-amd-amdhsa--gfx950"
.text
.globl {NAME}_kernel
.p2align 8
.type {NAME}_kernel,@function
{NAME}_kernel:
"""
    out += e.text()
    out += f""".section .rodata,"a"
.p2align 6
.amdhsa_kernel {NAME}_kernel
  .amdhsa_next_free_vgpr 256
  .amdhsa_next_free_sgpr 102
  .amdhsa_accum_offset 256
  .amdhsa_group_segment_fixed_size 0
  .amdhsa_kernarg_size 96
  .amdhsa_user_sgpr_count 2
  .amdhsa_user_sgpr_kernarg_segment_ptr 1
  .amdhsa_system_sgpr_workgroup_id_x 1
.end_amdhsa_kernel
"""
    return out

if __name__ == "__main__":
    kw = {}
    for a in sys.argv[2:]:
        k, v = a.split("=")
        kw[k] = {"True": True, "False": False}.get(v, v)
    open(sys.argv[1], "w").write(gen(**kw))
```

```python
import sys, struct, re
from emit import Emitter, Ins, need

NAME = "sequential_preLN__sliding_block_cached__geglu_ffn__decode"
def f2u(x): return struct.unpack("<I", struct.pack("<f", x))[0]

QP, ML, CP, EP, OP, HH, DP, STAMP, WS_SIZE = 0x10000, 0x20000, 0x22000, 0x30000, 0x40000, 0xC0000, 0xD0000, 0x1E0000, 0x200000
XN, XR, QS, EB, RED, RED2, FLAGS, MLW, HL, PR, LDS_SIZE = 0, 2048, 3072, 4096, 5120, 7168, 11264, 11520, 11776, 12288, 14336
OOB = 0x7ffffff0
SPIN = 1 << 16
CEXP = f2u(1.4426950408889634 / 16.0)
T0, T1, T2 = "s31", "s96", "s97"
TAGS = (T0, T0, T1, T2)

def gen(amp=None, nt="nt", wnt=None, stamps=False, force_global=False, wopos="V", gupos="V", dnpos="p",
        code_pf=True, eack=True, kpre=2, W=7, qa=3, lc=15, rot="gj", skew=None, cack=True, prec="l", pree="l", ctmap="u", pad=0xD00, ksplit=4, order=None, tlb=0, tmap=1, w0=0, qnt=None, pts=0):
    if wnt is None: wnt = nt
    kpre, W, qa = int(kpre), int(W), int(qa)
    lc = int(lc); nb = lc - 12
    def koff(st): return ((st >> nb) << (lc + 5)) | ((st & ((1 << nb) - 1)) << 12)
    if skew is not None: amp = 0
    e = Emitter()
    uid = [0]
    deferred = []
    extra = []
    secs = {"A": e.lines}
    def sec(name, jump=None):
        if jump: e(f"s_branch {jump}")
        e.lines = secs.setdefault(name, []); e.hist = []
        if jump: e(f"{jump}:")
    def lab(p): uid[0] += 1; return f"L_{p}{uid[0]}"
    def srd_hi(d, n): e(f"s_mov_b32 s{d+2}, {n}\ns_mov_b32 s{d+3}, 0x00020000")
    def srd_lo(d, b): e(f"s_mov_b64 s[{d}:{d+1}], s[{b}:{b+1}]")
    def srd(d, b, n): srd_lo(d, b); srd_hi(d, n)
    def stamp(k):
        if stamps or (amp is not None and k in (0, int(amp))): e(f"s_memrealtime s[{64+2*k}:{65+2*k}]")
    def finish():
        if stamps: e("s_branch L_stamps")
        else: e("s_endpgm")
    def mode_store(ins):
        far, back = lab("far"), lab("back")
        e(f"s_cmp_lg_u32 s59, 0\ns_cbranch_scc1 {far}")
        for t in ins: e(t)
        e(f"{back}:")
        deferred.append((far, back, ins))
    def tags():
        e(f"""s_add_u32 s31, s31, 0x9E3779B1
              s_lshr_b32 s96, s31, 8
              s_or_b32 s96, s96, 1
              s_xor_b32 s96, s96, s31
              s_lshr_b32 s97, s31, 16""")
    def tag4(b, ff, last=T2):
        for r in range(4): e(f"v_bfi_b32 v{b+r}, v{ff}, {(T0, T0, T1, last)[r]}, v{b+r}")
    def lane_tag(d, idx, t):
        e(f"""v_mov_b32 v{d}, {T0}
              v_mov_b32 v{t}, {T1}
              v_cmp_eq_u32 vcc, 2, v{idx}
              v_cndmask_b32 v{d}, v{d}, v{t}, vcc
              v_mov_b32 v{t}, {T2}
              v_cmp_eq_u32 vcc, 3, v{idx}
              v_cndmask_b32 v{d}, v{d}, v{t}, vcc
              v_and_b32 v{d}, 0xff, v{d}""")
    def masks(m, t0, t1):
        e(f"""v_and_b32 v{t0}, 1, v0
              v_lshlrev_b32 v{t0}, 4, v{t0}
              v_mov_b32 v{t1}, 0xffff
              v_lshlrev_b32 v{t1}, v{t0}, v{t1}
              v_bfe_u32 v{t0}, v0, 1, 2""")
        for j in range(4):
            e(f"v_cmp_eq_u32 vcc, {j}, v{t0}\nv_cndmask_b32 v{m+j}, 0, v{t1}, vcc")
    def dpp_red(op, vs, ctrls):
        for c in ctrls:
            for v in vs: e(f"{op}_dpp v{v}, v{v}, v{v} {c} row_mask:0xf bank_mask:0xf")
    def xrow(op, vs, tmps):
        for sw in ("v_permlane16_swap_b32", "v_permlane32_swap_b32"):
            for v, t in zip(vs, tmps): e(f"v_mov_b32 v{t}, v{v}")
            for v, t in zip(vs, tmps): e(f"{sw} v{v}, v{t}")
            for v, t in zip(vs, tmps): e(f"{op} v{v}, v{v}, v{t}")
    def bfround(v): e(f"v_cvt_pk_bf16_f32 v{v}, v{v}, v{v}\nv_and_b32 v{v}, 0xffff0000, v{v}")
    def trows(a):
        e(f"""v_permlane32_swap_b32 v{a}, v{a+2}
              v_permlane32_swap_b32 v{a+1}, v{a+3}
              v_add_f32 v{a}, v{a}, v{a+2}
              v_add_f32 v{a+1}, v{a+1}, v{a+3}
              v_permlane16_swap_b32 v{a}, v{a+1}
              v_add_f32 v{a}, v{a}, v{a+1}""")
    def pk_add4(d, a, b):
        e(f"v_pk_add_f32 v[{d}:{d+1}], v[{a}:{a+1}], v[{b}:{b+1}]\nv_pk_add_f32 v[{d+2}:{d+3}], v[{a+2}:{a+3}], v[{b+2}:{b+3}]")
    def check(b, m, t):
        e(f"""v_bitop3_b32 v{t}, v{b}, v{b+1}, {T0} bitop3:0x7e
              v_bitop3_b32 v{t}, v{b+2}, {T1}, v{t} bitop3:0xbe
              v_bitop3_b32 v{t}, v{b+3}, {T2}, v{t} bitop3:0xbe
              v_cmp_ne_u32_sdwa s[{m}:{m+1}], v{t}, v246 src0_sel:BYTE_0 src1_sel:DWORD""")
    def qtag_reg(d, idx):
        e(f"v_lshlrev_b32 v{d}, 3, v{idx}\nv_lshrrev_b32 v{d}, v{d}, {T0}\nv_and_b32 v{d}, 0xff, v{d}")
    def qclean(loads):
        for t, b in loads: e(f"v_and_b32 v{b}, 0xffffff00, v{b}")
    def poll_init(n, m0, init=None):
        for i in range(n):
            v = (init or {}).get(i)
            if v is None: e(f"s_mov_b64 s[{m0+2*i}:{m0+2*i+1}], -1")
            else: e(f"s_mov_b32 s{m0+2*i}, {v & 0xffffffff}\ns_mov_b32 s{m0+2*i+1}, {v >> 32}")
        e(f"s_mov_b32 s58, {SPIN}")
    def poll(loads, m0, issued=False, behind=0, quad=None):
        n = len(loads)
        top, chk, done = lab("poll"), lab("chk"), lab("pdone")
        if issued: e(f"s_branch {chk}")
        e(f"{top}:\ns_sub_u32 s58, s58, 1\ns_cbranch_scc1 {done}")
        for i, (t, b) in enumerate(loads): e(f"s_wqm_b64 exec, s[{m0+2*i}:{m0+2*i+1}]\n{t}")
        e("s_mov_b64 exec, -1")
        if behind: e("s_waitcnt vmcnt(0)")
        if issued: e(f"{chk}:")
        for i, (t, b) in enumerate(loads):
            e(f"s_waitcnt vmcnt({n-1-i+behind})")
            if quad: e(f"v_cmp_ne_u32_sdwa s[{m0+2*i}:{m0+2*i+1}], v{b}, v{quad} src0_sel:BYTE_0 src1_sel:DWORD")
            else: check(b, m0 + 2*i, 247 + (i & 1))
        if n == 1: e(f"s_cmp_lg_u64 s[{m0}:{m0+1}], 0")
        else:
            e(f"s_or_b64 vcc, s[{m0}:{m0+1}], s[{m0+2}:{m0+3}]")
            for i in range(2, n): e(f"s_or_b64 vcc, vcc, s[{m0+2*i}:{m0+2*i+1}]")
        e(f"s_cbranch_scc1 {top}\n{done}:")
        if quad: qclean(loads)
    def read_mode(t):
        e(f"v_or3_b32 v{t}, v{t}, v{t+1}, v{t+2}\nv_or_b32 v{t}, v{t}, v{t+3}\nv_readfirstlane_b32 s59, v{t}")
    def ffn_scalars():
        e("""s_mul_i32 s50, s29, 37
             s_lshr_b32 s50, s50, 8
             s_mul_i32 s51, s50, 7
             s_sub_u32 s51, s29, s51
             s_lshl_b32 s52, s50, 3
             s_add_u32 s52, s52, s28""")
        if int(tmap): e("s_mul_i32 s100, s28, 3\ns_min_u32 s101, s28, 4\ns_add_u32 s100, s100, s101\ns_add_u32 s100, s100, s50\ns_min_u32 s100, s100, 27")
        else: e("s_min_u32 s100, s52, 27")

    e(f"""s_cmp_ge_u32 s2, 256
          s_cbranch_scc1 L_exit
          s_load_dwordx16 s[4:19], s[0:1], 0
          s_load_dwordx8 s[20:27], s[0:1], 64""")
    stamp(0)
    e(f"""v_lshrrev_b32 v1, 6, v0
         v_and_b32 v0, 63, v0
         v_readfirstlane_b32 s30, v1
         s_and_b32 s28, s2, 7
         s_lshr_b32 s29, s2, 3
         s_lshl_b32 s55, s28, 5
         s_add_u32 s55, s55, s29
         s_cmp_lg_u32 s30, 4
         s_cbranch_scc1 L_K""")
    sec("K1")
    e("L_K:")

    KR, VR, QG, SC, MK, WO, GU, AF, GA, MG = 16, 80, 148, 156, 164, 168, 184, 200, 216, 224
    QB, PE = QG, KR + 16
    if code_pf:
        e(f"""s_getpc_b64 s[48:49]
              L_pc:
              s_lshl_b32 s56, s29, 2
              s_add_u32 s56, s56, s30
              s_lshl_b32 s56, s56, 7
              s_min_u32 s56, s56, L_exit-{NAME}_kernel
              s_sub_u32 s48, s48, L_pc-{NAME}_kernel
              s_subb_u32 s49, s49, 0
              v_mov_b32 v1, s56
              s_mov_b64 exec, 1
              global_load_dword v15, v1, s[48:49]
              s_mov_b64 exec, -1""")
    e(f"""s_lshl_b32 s53, s28, 23
         s_lshl_b32 s54, s29, {lc}
         s_add_u32 s53, s53, s54
         s_add_u32 s53, s53, 6291456""")
    e({"0": "s_mov_b32 s56, 0", "gj": "s_lshl_b32 s56, s28, 1\ns_xor_b32 s56, s56, s29\ns_and_b32 s56, s56, 15",
       "gj1": "s_lshl_b32 s56, s28, 1\ns_and_b32 s54, s29, 1\ns_or_b32 s56, s56, s54", "j": "s_and_b32 s56, s29, 15",
       "mul": "s_mul_i32 s56, s2, s2\ns_mul_i32 s56, s56, 0x9E3779B1\ns_lshr_b32 s56, s56, 28"}[rot])
    e(f"""s_lshr_b32 s54, s56, {nb}
          s_lshl_b32 s54, s54, {lc+5}
          s_or_b32 s53, s53, s54
          s_and_b32 s54, s56, {(1 << nb) - 1}
          s_lshl_b32 s54, s54, 12
          s_or_b32 s53, s53, s54
          v_bfe_u32 v9, v0, 3, 1
          v_lshlrev_b32 v1, 9, v9
          v_lshrrev_b32 v2, 4, v0
          v_lshl_add_u32 v1, v2, 7, v1
          v_and_b32 v10, 7, v0
          v_lshl_add_u32 v1, v10, 4, v1
          s_lshl_b32 s54, s30, 10
          s_add_u32 s98, s54, s53""")
    srd_hi(36, 67108864)
    stamp(15)
    e("s_waitcnt lgkmcnt(0)")
    srd_lo(36, 6)
    if kpre == 0: e("s_load_dword s31, s[26:27], 0\ns_barrier")
    stamp(13)

    pos, state = {}, {"n": 0, "done": -1}
    def arrived(i):
        if i > state["done"]:
            e(f"s_waitcnt vmcnt({state['n'] - 1 - i})"); state["done"] = i
    def issue(name, text):
        arrived(state["n"] - W)
        e(text); pos[name] = state["n"]; state["n"] += 1
    qg = [f"buffer_load_dwordx4 v[{QG}:{QG+3}], v4, s[32:35], s61 offen sc1", f"buffer_load_dwordx4 v[{QG+4}:{QG+7}], v4, s[32:35], s62 offen sc1"]
    mlg = f"buffer_load_dwordx4 v[{MG}:{MG+3}], v230, s[32:35], s3 offen sc1"
    def vop(i):
        t = f"buffer_load_dwordx4 v[{VR+4*i}:{VR+4*i+3}], v228, s[44:47], s54 offen offset:{2048*(i >> 4)} {nt}"
        t = f"s_xor_b32 s54, s99, {koff(min(i, 15))}\n" + t
        if i >= 15: t = "s_mov_b64 exec, s[22:23]\n" + t + "\ns_mov_b64 exec, -1"
        return (f"V{i}", t)
    wops = [(f"WO{m}", f"buffer_load_dwordx4 v[{WO+4*m}:{WO+4*m+3}], v11, s[40:43], s48 offen {wnt}\ns_add_u32 s48, s48, 7168") for m in range(4)]
    gops = [(f"GU{m}", f"s_mov_b64 exec, s[24:25]\nglobal_load_dwordx4 v[{GU+4*m}:{GU+4*m+3}], v[{GA+2*m}:{GA+2*m+1}], off {wnt}\ns_mov_b64 exec, -1") for m in range(4)]
    ops = [vop(i) for i in range(17)] + [("ML", mlg)]
    if wopos == "V": ops += wops
    if gupos == "V": ops += gops
    if wopos == "K": ops = wops + ops
    if gupos == "K": ops = gops + ops
    ops = ops[:qa] + [("G0", qg[0]), ("G1", qg[1])] + ops[qa:]
    if order:
        pool = {"V": [vop(i) for i in range(17)], "M": [("ML", mlg)], "W": list(wops), "U": list(gops), "G": [("G0", qg[0]), ("G1", qg[1])]}
        ops = []
        for c, n in re.findall(r"([A-Z])(\d*)", order):
            for _ in range(int(n) if n else len(pool[c])): ops.append(pool[c].pop(0))
        assert not any(pool[c] for c in "VMWG") and bool(pool["U"]) == (gupos in ("B4", "B1"))
        gops = pool["U"]
    def next_op():
        if ops: issue(*ops.pop(0))

    w0 = int(w0) or W
    for i in range(16):
        if i == w0: arrived(0)
        issue(f"K{i}", f"s_xor_b32 s54, s98, {koff(i)}\nbuffer_load_dwordx4 v[{KR+4*i}:{KR+4*i+3}], v1, s[36:39], s54 offen {nt}")
        if i == kpre - 1: e("s_load_dword s31, s[26:27], 0\ns_barrier"); stamp(14)
        if i == w0 - 1:
            srd(32, 26, WS_SIZE); srd(40, 12, 4096*896); srd(44, 8, 67108864)
            ffn_scalars()
            masks(MK, 7, 8)
            e(f"""v_mov_b32 v246, 0
                  v_mov_b32 v244, 0xff
                  v_and_b32 v3, 3, v0
                  v_lshrrev_b32 v5, 5, v0
                  v_and_b32 v6, 31, v0
                  v_lshlrev_b32 v4, 11, v5
                  v_lshl_add_u32 v4, v6, 4, v4
                  s_lshl_b32 s61, s28, 13
                  s_lshl_b32 s62, s30, 9
                  s_add_u32 s61, s61, s62
                  s_add_u32 s61, s61, {QP}
                  s_add_u32 s62, s61, 4096
                  v_lshlrev_b32 v6, 3, v6
                  v_lshl_add_u32 v6, v5, 2, v6
                  s_lshl_b32 s56, s30, 8
                  v_add_u32 v6, s56, v6
                  v_xor_b32 v7, 64, v1
                  v_and_b32 v12, 15, v0
                  v_lshlrev_b32 v228, 9, v2
                  v_lshl_add_u32 v228, v12, 4, v228
                  s_and_b32 s57, s30, 1
                  s_lshr_b32 s60, s30, 1
                  s_lshl_b32 s56, s57, 8
                  s_add_u32 s99, s53, s56
                  s_lshl_b32 s56, s60, 11
                  s_add_u32 s99, s99, s56
                  v_lshlrev_b32 v229, 10, v5
                  v_and_b32 v13, 1, v2
                  v_lshl_add_u32 v229, v13, 8, v229
                  v_lshl_add_u32 v229, v12, 4, v229
                  s_lshl_b32 s53, s55, 11
                  s_lshl_b32 s56, s57, 9
                  s_add_u32 s53, s53, s56
                  s_add_u32 s53, s53, {OP}
                  s_lshl_b32 s56, s57, 10
                  v_lshl_add_u32 v238, v0, 4, s56
                  v_bfe_u32 v14, v0, 2, 1
                  v_lshl_add_u32 v239, v5, 1, v9
                  v_lshl_add_u32 v239, v14, 4, v239
                  v_lshl_add_u32 v239, v13, 5, v239
                  s_lshl_b32 s56, s30, 6
                  v_lshl_add_u32 v239, v239, 4, s56
                  s_lshl_b32 s56, s30, 2
                  v_lshl_add_u32 v240, v9, 4, s56
                  v_mov_b32 v243, s56
                  v_lshrrev_b32 v241, 3, v0
                  s_lshl_b32 s56, s60, 7
                  v_lshl_add_u32 v241, v241, 4, s56
                  v_lshlrev_b32 v242, 4, v9
                  v_lshl_add_u32 v14, v2, 1, v14
                  v_lshl_add_u32 v230, v14, 2, v3
                  v_lshlrev_b32 v230, 4, v230
                  v_lshlrev_b32 v231, 11, v14
                  v_lshl_add_u32 v231, v9, 6, v231
                  v_lshl_add_u32 v231, v3, 4, v231
                  s_lshl_b32 s3, s28, 9
                  s_add_u32 s3, s3, {ML}
                  v_lshlrev_b32 v232, 4, v13
                  v_lshl_add_u32 v232, v10, 5, v232
                  v_lshl_add_u32 v232, v9, 8, v232
                  s_lshl_b32 s56, s30, 9
                  v_add_u32 v232, s56, v232
                  v_lshl_add_u32 v11, v9, 5, v2
                  v_mul_u32_u24 v11, 896, v11
                  v_lshl_add_u32 v11, v10, 4, v11
                  s_lshl_b32 s48, s28, 9
                  s_lshl_b32 s56, s50, 7
                  s_add_u32 s48, s48, s56
                  s_lshl_b32 s56, s57, 6
                  s_add_u32 s48, s48, s56
                  s_lshl_b32 s56, s60, 2
                  s_add_u32 s48, s48, s56
                  s_mul_i32 s48, s48, 896
                  s_lshl_b32 s56, s51, 7
                  s_add_u32 s48, s48, s56
                  s_cmp_lt_u32 s29, 28
                  s_cselect_b32 s42, s42, 0
                  s_cselect_b32 s48, s48, 0
                  s_lshl_b32 s49, s51, 6
                  s_lshl_b32 s56, s30, 4
                  s_add_u32 s49, s49, s56
                  s_mul_i32 s63, s49, 3584
                  s_lshl_b32 s56, s100, 7
                  s_add_u32 s63, s63, s56
                  v_mul_u32_u24 v12, 3584, v2
                  v_lshl_add_u32 v12, v10, 4, v12
                  v_add_u32 v12, s63, v12
                  v_cmp_eq_u32 vcc, 0, v9
                  v_mov_b32 v13, s18
                  v_mov_b32 v14, s16
                  v_cndmask_b32 v13, v13, v14, vcc
                  v_mov_b32 v14, s19
                  v_mov_b32 v8, s17
                  v_cndmask_b32 v14, v14, v8, vcc
                  v_add_co_u32 v{GA}, vcc, v13, v12
                  v_addc_co_u32 v{GA+1}, vcc, 0, v14, vcc""")
            for m in range(1, 4):
                e(f"v_add_co_u32 v{GA+2*m}, vcc, 14336, v{GA+2*m-2}\nv_addc_co_u32 v{GA+2*m+1}, vcc, 0, v{GA+2*m-1}, vcc")
            e(f"""s_cmp_eq_u32 s60, 0
                  s_cselect_b64 s[22:23], -1, 0
                  s_cmp_lt_u32 s52, 28
                  s_cselect_b64 s[24:25], -1, 0
                  v_lshl_add_u32 v233, v3, 2, v2
                  v_add_u32 v233, s49, v233
                  v_lshlrev_b32 v234, 2, v233
                  v_and_b32 v234, 0xff, v234
                  v_lshlrev_b32 v233, 1, v233
                  v_lshl_add_u32 v235, v2, 2, v3
                  v_add_u32 v235, s49, v235
                  v_lshlrev_b32 v235, 2, v235
                  v_and_b32 v13, 12, v0
                  v_cmp_eq_u32 vcc, 0, v13
                  v_mov_b32 v13, {OOB}
                  v_cndmask_b32 v235, v13, v235, vcc
                  v_lshrrev_b32 v236, 2, v0
                  v_lshlrev_b32 v236, 8, v236
                  v_lshl_add_u32 v236, v3, 4, v236
                  s_lshl_b32 s56, s30, 10
                  v_lshl_add_u32 v237, v0, 4, s56
                  s_mov_b32 s57, {CEXP}""")
        if i == W + 1:
            e("s_waitcnt lgkmcnt(0)")
            tags()
            e(f"""s_getreg_b32 s56, hwreg(HW_REG_XCC_ID, 0, 4)
                  s_and_b32 s63, s97, 0xf0
                  s_or_b32 s63, s63, s56
                  s_mov_b32 s58, {SPIN}""")
            lane_tag(8, 3, 13)
            qtag_reg(245, 3)
    stamp(1)
    while "G1" not in pos or state["n"] - W < pos["G1"]: next_op()
    arrived(pos["G1"])
    e("L_qpoll:")
    stamp(2)
    a = QG
    e(f"""v_bitop3_b32 v12, v{a}, v{a+1}, {T0} bitop3:0x7e
          v_bitop3_b32 v13, v{a+4}, v{a+5}, {T0} bitop3:0x7e
          v_bitop3_b32 v14, v{a+2}, v{a+6}, {T1} bitop3:0x7e
          v_bitop3_b32 v15, v{a+3}, v{a+7}, s63 bitop3:0x7e
          v_or3_b32 v12, v12, v13, v14
          v_and_b32 v13, 0xf0, v15
          v_or_b32 v12, v12, v13
          v_cmp_ne_u32_sdwa vcc, v12, v246 src0_sel:BYTE_0 src1_sel:DWORD
          s_cbranch_vccnz L_qretry
          L_qdone:
          v_and_b32 v15, 15, v15
          v_cmp_ne_u32 vcc, 0, v15""")
    extra.append("L_qretry:\ns_sub_u32 s58, s58, 1\ns_cbranch_scc1 L_qdone\n" + "\n".join(qg) + "\ns_waitcnt vmcnt(0)\ns_branch L_qpoll")
    next_op()
    for r in range(8): e(f"v_and_b32 v{a+r}, 0xffffff00, v{a+r}")
    e("s_cmp_eq_u64 vcc, 0\ns_cselect_b32 s56, %d, 1" % (1 if force_global else 0))
    for r in range(4): e(f"v_add_f32 v{a+r}, v{a+r}, v{a+4+r}")
    e(f"""v_mov_b32 v12, s56
          v_permlane32_swap_b32 v{a}, v{a+2}
          v_permlane32_swap_b32 v{a+1}, v{a+3}
          ds_write_b32 v243, v12 offset:{FLAGS}
          v_add_f32 v{a}, v{a}, v{a+2}
          v_add_f32 v{a+1}, v{a+1}, v{a+3}
          v_cvt_pk_bf16_f32 v{a}, v{a}, v{a+1}
          ds_write_b32 v6, v{a} offset:{QS}
          s_waitcnt lgkmcnt(0)
          s_barrier
          ds_read_b128 v[{QB}:{QB+3}], v1 offset:{QS}
          ds_read_b128 v[{QB+4}:{QB+7}], v7 offset:{QS}
          ds_read_b128 v[12:15], v246 offset:{FLAGS}
          ds_read_u16 v233, v233 offset:{XR}""")
    next_op()
    e("s_waitcnt lgkmcnt(0)")
    stamp(3)
    for m in list(range(0, 16, 2)) + list(range(1, 16, 2)):
        k, q = KR + 4*m, QB + 4*(m & 1)
        e(f"v_mfma_f32_16x16x32_bf16 v[{k}:{k+3}], v[{k}:{k+3}], v[{q}:{q+3}], 0")
    read_mode(12)
    e("v_lshlrev_b32 v233, 16, v233")
    for par in range(2):
        pat = (0xf0f00f0f, 0x0f0ff0f0)[par]
        e(f"s_mov_b32 exec_lo, {pat}\ns_mov_b32 exec_hi, {pat}")
        for r in range(4):
            for p in range(8):
                a = KR + 4*(2*p + par)
                if r == 0: e(f"v_mov_b32_dpp v{SC+p}, v{a} quad_perm:[0,0,0,0] row_mask:0xf bank_mask:0xf")
                else: e(f"v_add_f32_dpp v{SC+p}, v{a+r}, v{SC+p} quad_perm:[{r},{r},{r},{r}] row_mask:0xf bank_mask:0xf")
        e("s_mov_b64 exec, -1")
        if par == 0: next_op()
    Z = KR
    for u in range(4): e(f"v_permlane16_swap_b32 v{SC+2*u}, v{SC+2*u+1}")
    for u in range(4): e(f"v_add_f32_dpp v{Z+u}, v{SC+2*u+1}, v{SC+2*u} row_half_mirror row_mask:0xf bank_mask:0xf")
    for u in (0, 2): e(f"v_cvt_pk_bf16_f32 v{Z+u+1}, v{Z+u}, v{Z+u+1}")
    for u in (0, 2): e(f"v_lshlrev_b32 v{Z+u}, 16, v{Z+u+1}\nv_and_b32 v{Z+u+1}, 0xffff0000, v{Z+u+1}")
    e(f"v_max3_f32 v4, v{Z}, v{Z+1}, v{Z+2}\nv_max_f32 v4, v4, v{Z+3}")
    dpp_red("v_max_f32", [4], ["row_half_mirror"])
    xrow("v_max_f32", [4], [5])
    next_op()
    for u in range(4): e(f"v_sub_f32 v{Z+u}, v{Z+u}, v4")
    for u in range(4): e(f"v_mul_f32 v{Z+u}, s57, v{Z+u}")
    for u in range(4): e(f"v_exp_f32 v{Z+u}, v{Z+u}")
    e(f"v_add_f32 v5, v{Z}, v{Z+1}\nv_add_f32 v5, v5, v{Z+2}\nv_add_f32 v5, v5, v{Z+3}")
    dpp_red("v_add_f32", [5], ["row_half_mirror"])
    xrow("v_add_f32", [5], [6])
    e(f"""s_mov_b32 exec_lo, 0x11111111
          s_mov_b32 exec_hi, 0x11111111
          ds_write_b128 v239, v[{Z}:{Z+3}] offset:{EB}
          ds_write_b32 v240, v4 offset:{MLW}
          ds_write_b32 v240, v5 offset:{MLW+32}
          s_mov_b64 exec, -1
          s_waitcnt lgkmcnt(0)""")
    stamp(4)
    e(f"s_barrier\nds_read_b128 v[12:15], v242 offset:{MLW}")
    for mm in range(4): e(f"ds_read_b128 v[{PE+4*mm}:{PE+4*mm+3}], v241 offset:{EB+256*mm}")
    e(f"ds_read_b32 v{PE+16}, v241 offset:{EB+7*128+12}")
    next_op()
    e("s_waitcnt lgkmcnt(5)\nv_max3_f32 v4, v12, v13, v14\nv_max_f32 v4, v4, v15\nv_cmp_gt_u32 vcc, 32, v0")
    e("v_cndmask_b32 v12, v13, v12, vcc\nv_cndmask_b32 v13, v15, v14, vcc\nv_cndmask_b32 v12, v13, v12, s[22:23]")
    for w in range(2): e(f"v_sub_f32 v{12+w}, v{12+w}, v4")
    for w in range(2): e(f"v_mul_f32 v{12+w}, s57, v{12+w}")
    for w in range(2): e(f"v_exp_f32 v{12+w}, v{12+w}")
    e("s_waitcnt lgkmcnt(0)")
    for i in range(0, 16, 2): e(f"v_pk_mul_f32 v[{PE+i}:{PE+i+1}], v[{PE+i}:{PE+i+1}], v[12:13] op_sel:[0,0] op_sel_hi:[1,0]")
    e(f"v_mul_f32 v{PE+16}, v{PE+16}, v13")
    for i in range(17): e(f"v_cvt_pk_bf16_f32 v{PE+i}, v{PE+i}, v{PE+i}")
    stamp(5)
    def prep(i):
        p = PE + (4*(i & 3) + (i >> 2) if i < 16 else 16)
        for j in range(4): e(f"v_and_b32 v{AF+4*(i&3)+j}, v{p}, v{MK+j}")
    def pv(i):
        arrived(pos[f"V{i}"])
        a = AF + 4*(i & 3)
        e(f"v_mfma_f32_16x16x32_bf16 v[12:15], v[{a}:{a+3}], v[{VR+4*i}:{VR+4*i+3}], " + ("0" if i == 0 else "v[12:15]"))
    prep(0)
    since = 99
    for i in range(15):
        while ops and (since >= 5 or f"V{i}" not in pos or pos[f"V{i}"] > state["done"]):
            next_op(); since = 0
        prep(i + 1); pv(i); since += 1
        if i == int(ksplit): sec("K2", "L_K2"); e("s_nop 4")
    late = list(ops); ops.clear()
    assert "V16" in pos
    e(f"s_cmp_eq_u32 s60, 0\ns_cbranch_scc1 L_keep\nds_write_b128 v238, v[12:15] offset:{PR}\ns_waitcnt lgkmcnt(0)\ns_barrier\ns_branch L_joined\nL_keep:")
    saved = dict(state)
    prep(16); pv(15)
    e(f"s_barrier\nds_read_b128 v[4:7], v238 offset:{PR}")
    pv(16)
    e("s_waitcnt lgkmcnt(0)")
    pk_add4(12, 12, 4)
    e("v_bfi_b32 v12, v244, v245, v12")
    mode_store(["buffer_store_dwordx4 v[12:15], v229, s[32:35], s53 offen"])
    e("L_joined:")
    state.update(saved)
    for name, t in late:
        e(t); pos[name] = state["n"]; state["n"] += 1
    stamp(6)
    e(f"""s_cmp_ge_u32 s29, 28
          s_cbranch_scc1 L_end
          s_lshl_b32 s60, s28, 16
          s_lshl_b32 s56, s50, 9
          s_add_u32 s60, s60, s56
          s_lshl_b32 s56, s30, 7
          s_add_u32 s60, s60, s56
          s_add_u32 s60, s60, {OP}
          s_add_u32 s61, s60, 16384
          s_add_u32 s62, s60, 32768
          s_add_u32 s63, s60, 49152
          s_mov_b32 s58, {SPIN}
          s_barrier""")
    stamp(7)
    opg = [(f"buffer_load_dwordx4 v[{16+4*i}:{19+4*i}], v231, s[32:35], s{60+i} offen sc1", 16 + 4*i) for i in range(4)]
    for t, b in opg: e(t)
    poll([(mlg, MG)], 4, issued=True, behind=state["n"] - 1 - pos["ML"] + 4)
    e(f"""s_cmp_ge_u32 s50, 2
          s_cselect_b64 vcc, -1, 0
          v_cndmask_b32 v4, v{MG}, v{MG+2}, vcc
          v_cndmask_b32 v5, v{MG+1}, v{MG+3}, vcc
          v_and_b32 v4, 0xffffff00, v4
          v_and_b32 v5, 0xffffff00, v5
          v_mov_b32 v6, v4""")
    q8 = ["quad_perm:[1,0,3,2]", "quad_perm:[2,3,0,1]", "row_half_mirror"]
    dpp_red("v_max_f32", [6], q8); xrow("v_max_f32", [6], [7])
    e("v_sub_f32 v4, v4, v6\nv_mul_f32 v4, s57, v4\nv_exp_f32 v4, v4\nv_mul_f32 v6, v4, v5")
    dpp_red("v_add_f32", [6], q8); xrow("v_add_f32", [6], [7])
    e("v_rcp_f32 v6, v6\nv_mul_f32 v4, v4, v6")
    for i in range(4): e(f"v_mov_b32_dpp v{32+i}, v4 quad_perm:[{i},{i},{i},{i}] row_mask:0xf bank_mask:0xf")
    stamp(12)
    poll(opg, 4, issued=True, quad=245)
    stamp(8)
    if gupos == "B1":
        for name, t in gops: e(t)
    for i in range(4):
        w, s = 32 + (i & 2), i & 1
        for p in (0, 2):
            if i == 0: e(f"v_pk_mul_f32 v[{36+p}:{37+p}], v[{16+p}:{17+p}], v[{w}:{w+1}] op_sel:[0,0] op_sel_hi:[1,0]")
            else: e(f"v_pk_fma_f32 v[{36+p}:{37+p}], v[{16+4*i+p}:{17+4*i+p}], v[{w}:{w+1}], v[{36+p}:{37+p}] op_sel:[0,{s},0] op_sel_hi:[1,{s},1]")
    trows(36)
    e("""v_add_f32_dpp v37, v36, v36 row_shr:4 row_mask:0xf bank_mask:0xa
         v_add_f32_dpp v37, v36, v36 row_shl:4 row_mask:0xf bank_mask:0x5
         v_cvt_pk_bf16_f32 v37, v37, v37""")
    def gemv4(src, wbase, bank):
        for m in range(5):
            if m < 4:
                for j in range(4): e(f"v_and_b32_dpp v{AF+4*m+j}, v{src}, v{MK+j} quad_perm:[{m},{m},{m},{m}] row_mask:0xf bank_mask:{bank}")
            if m >= 1:
                p = m - 1
                e(f"v_mfma_f32_16x16x32_bf16 v[40:43], v[{AF+4*p}:{AF+4*p+3}], v[{wbase+4*p}:{wbase+4*p+3}], " + ("0" if p == 0 else "v[40:43]"))
    gemv4(37, WO, "0xf")
    e(f"""s_mov_b32 exec_lo, 0x00ff00ff
          s_mov_b32 exec_hi, 0xff00ff00
          ds_write_b128 v232, v[40:43] offset:{RED}
          s_mov_b64 exec, -1
          s_waitcnt lgkmcnt(0)""")
    stamp(9)
    e(f"""s_barrier
          s_cmp_ge_u32 s52, 28
          s_cbranch_scc1 L_end
          v_mov_b32 v16, 0x3f803f80
          s_lshl_b32 s60, s51, 13
          s_lshl_b32 s56, s30, 6
          s_add_u32 s60, s60, s56
          s_add_u32 s60, s60, {CP}
          s_add_u32 s61, s60, 4096
          s_lshl_b32 s62, s52, 11
          s_add_u32 s62, s62, {HH}
          s_mov_b32 s63, 0xffff0000""")
    for m in range(4):
        for j in range(4): e(f"v_and_b32 v{AF+4*m+j}, v16, v{MK+j}")
    if gupos == "B4":
        for name, t in gops: e(t)
    poll_init(2, 4)
    if cack: e("s_barrier")
    poll([(f"buffer_load_dwordx4 v[{16+4*i}:{19+4*i}], v236, s[32:35], s{60+i} offen sc1", 16 + 4*i) for i in range(2)], 4, quad=245)
    stamp(10)
    pk_add4(16, 16, 20)
    trows(16)
    dpp_red("v_add_f32", [16], ["row_ror:4", "row_ror:8"])
    bfround(16)
    e("v_add_f32 v16, v16, v233\nv_cvt_pk_bf16_f32 v16, v16, v16\nv_and_or_b32 v17, v16, s63, v8")
    mode_store(["buffer_store_dword v17, v235, s[32:35], s62 offen"])
    e(f"ds_write_b32 v234, v17 offset:{HL}")
    gemv4(16, GU, "0x3")
    e(f"ds_write_b128 v237, v[40:43] offset:{RED2}\ns_waitcnt lgkmcnt(0)")
    stamp(11)
    e("s_barrier\nL_end:")
    finish()

    WQ, F, XA, MK, DN = 16, 80, 96, 112, 128
    ctm = {"0": "s_lshr_b32 s48, s29, 3\ns_and_b32 s49, s29, 7", "1": "s_lshr_b32 s48, s29, 3\ns_add_u32 s49, s29, 1\ns_and_b32 s49, s49, 7",
           "t": "s_lshr_b32 s49, s29, 2\ns_and_b32 s48, s29, 3", "u": "s_lshr_b32 s49, s29, 2\ns_xor_b32 s49, s49, 4\ns_and_b32 s48, s29, 3"}[ctmap]
    sec("A")
    e(f"""s_setprio 3
          v_lshlrev_b32 v1, 4, v0
          v_lshrrev_b32 v2, 3, v0
          v_and_b32 v3, 7, v0
          v_mul_u32_u24 v4, {14*8192}, v2
          v_lshl_add_u32 v4, v3, 4, v4
          {ctm}
          s_mul_i32 s54, s48, {112*8192}
          s_lshl_b32 s56, s28, 10
          s_add_u32 s54, s54, s56
          s_lshl_b32 s56, s49, 7
          s_add_u32 s54, s54, s56""")
    srd_hi(40, 896); srd_hi(36, 448*8192)
    stamp(15)
    e("s_waitcnt lgkmcnt(0)")
    srd_lo(40, 4)
    e("buffer_load_dwordx4 v[8:11], v1, s[40:43], 0 offen")
    srd_lo(36, 10)
    for i in range(14):
        e(f"buffer_load_dwordx4 v[{WQ+4*i}:{WQ+4*i+3}], v4, s[36:39], s54 offen {wnt if qnt is None else qnt}")
        if i < 13: e("s_add_u32 s54, s54, 8192")
    e("s_load_dword s31, s[26:27], 0\ns_barrier")
    sec("Q1", "L_Q1")
    tlb = int(tlb)
    if tlb:
        e(f"""s_lshl_b32 s54, s28, 23
              s_add_u32 s54, s54, 6291456
              s_add_u32 s60, s8, s54
              s_addc_u32 s61, s9, 0
              s_mul_i32 s54, s28, {512*896}
              s_add_u32 s62, s12, s54
              s_addc_u32 s63, s13, 0
              s_add_u32 s56, s62, {512*896-128}
              s_addc_u32 s57, s63, 0
              v_mov_b32 v12, s60
              v_mov_b32 v13, s61""")
        for ln, r in enumerate((62, 56, 16, 18, 20, 22, 26)):
            e(f"v_writelane_b32 v12, s{r}, {ln+1}\nv_writelane_b32 v13, s{r+1}, {ln+1}")
        e("s_mov_b64 exec, 0xff\nglobal_load_dword v250, v[12:13], off\ns_mov_b64 exec, -1")
    srd(32, 26, WS_SIZE); srd(40, 22, 896); srd(44, 20, 1792*896)
    ffn_scalars()
    masks(MK, 72, 73)
    e("v_mov_b32 v246, 0\nv_mov_b32 v245, 0xff\ns_waitcnt vmcnt(%d)" % (14 + (tlb > 0)))
    skew_store = f"s_lshl_b32 s56, s2, 2\ns_add_u32 s56, s56, {STAMP}\nv_mov_b32 v13, s64\nbuffer_store_dword v13, v246, s[32:35], s56 offen sc1"
    stamp(1)
    e(f"ds_write_b128 v1, v[8:11] offset:{XR}")
    for i in range(4): e(f"v_lshlrev_b32 v{F+2*i}, 16, v{8+i}\nv_and_b32 v{F+2*i+1}, 0xffff0000, v{8+i}")
    e(f"v_add_f32 v72, v{F}, v{F+1}")
    for i in range(2, 8): e(f"v_add_f32 v72, v72, v{F+i}")
    r16 = ["row_ror:8", "row_ror:4", "row_ror:2", "row_ror:1"]
    dpp_red("v_add_f32", [72], r16)
    xrow("v_add_f32", [72], [73])
    e(f"v_mul_f32 v72, {f2u(1/448)}, v72\nv_mov_b32 v73, 0")
    for i in range(8): e(f"v_sub_f32 v74, v{F+i}, v72\nv_fmac_f32 v73, v74, v74")
    e("v_cmp_gt_u32 vcc, 56, v0\nv_cndmask_b32 v73, 0, v73, vcc")
    dpp_red("v_add_f32", [73], r16)
    xrow("v_add_f32", [73], [74])
    e(f"v_mul_f32 v73, {f2u(1/448)}, v73")
    bfround(72); bfround(73)
    e(f"v_add_f32 v73, {f2u(1e-5)}, v73"); bfround(73)
    e("v_sqrt_f32 v73, v73"); bfround(73)
    e("v_rcp_f32 v74, v73")
    for i in range(8): e(f"v_sub_f32 v{F+i}, v{F+i}, v72")
    for i in range(0, 8, 2): e(f"v_cvt_pk_bf16_f32 v{F+i+1}, v{F+i}, v{F+i+1}")
    for i in range(0, 8, 2): e(f"v_lshlrev_b32 v{F+i}, 16, v{F+i+1}\nv_and_b32 v{F+i+1}, 0xffff0000, v{F+i+1}")
    for i in range(8): e(f"v_mul_f32 v{F+8+i}, v{F+i}, v74")
    for i in range(8): e(f"v_fma_f32 v{F+i}, -v{F+8+i}, v73, v{F+i}")
    for i in range(8): e(f"v_fmac_f32 v{F+8+i}, v{F+i}, v74")
    for i in range(8): e(f"v_cvt_pk_bf16_f32 v{F+i}, v{F+8+i}, v{F+8+i}")
    e(f"""v_lshlrev_b32 v72, 5, v0
          ds_write_b128 v72, v[{F}:{F+3}] offset:{XN}
          ds_write_b128 v72, v[{F+4}:{F+7}] offset:{XN+16}
          v_mul_u32_u24 v73, 56, v2
          s_mul_i32 s56, s48, 448
          v_add_u32 v73, s56, v73
          s_waitcnt lgkmcnt(0)""")
    for i in range(7): e(f"ds_read_b64 v[{XA+2*i}:{XA+2*i+1}], v73 offset:{XN+8*i}")
    tags()
    e(f"""s_getreg_b32 s56, hwreg(HW_REG_XCC_ID, 0, 4)
          s_and_b32 s63, s97, 0xf0
          s_or_b32 s63, s63, s56
          s_waitcnt lgkmcnt(0)""")
    stamp(2)
    for i in range(15):
        if i < 14:
            a = (116, 120)[i & 1]
            for j in range(4): e(f"v_and_b32 v{a+j}, v{XA+i}, v{MK+j}")
        if i >= 1:
            p = i - 1; a = (116, 120)[p & 1]
            e(f"s_waitcnt vmcnt({13-p+(tlb > 0)})\nv_mfma_f32_16x16x32_bf16 v[8:11], v[{a}:{a+3}], v[{WQ+4*p}:{WQ+4*p+3}], " + ("0" if p == 0 else "v[8:11]"))
    e(f"""v_lshrrev_b32 v5, 4, v0
          v_lshlrev_b32 v72, 4, v5
          v_lshl_add_u32 v72, v3, 5, v72
          v_and_b32 v73, 40, v0
          v_mov_b32 v12, {OOB}
          v_cmp_eq_u32 vcc, 0, v73
          v_cndmask_b32 v72, v12, v72, vcc
          s_lshl_b32 s54, s28, 13
          s_add_u32 s54, s54, {QP}
          s_lshl_b32 s56, s48, 11
          s_add_u32 s56, s56, s54
          s_lshl_b32 s61, s49, 8
          s_add_u32 s56, s56, s61""")
    for r in range(4): e(f"v_mov_b32_dpp v{F+r}, v{8+r} row_ror:8 row_mask:0xf bank_mask:0xf")
    for r in range(4): e(f"v_permlane32_swap_b32 v{F+r}, v{F+4+r}")
    for r in range(4): e(f"v_add_f32 v{8+r}, v{8+r}, v{F+4+r}")
    for r in range(4): e(f"v_add_u32 v{8+r}, 0x80, v{8+r}")
    tag4(8, 245, "s63")
    e("buffer_store_dwordx4 v[8:11], v72, s[32:35], s56 offen sc1")
    stamp(3)
    if skew is not None: e(skew_store)
    sec("Q2", "L_Q2")
    e(f"""s_setprio 0
          s_lshl_b32 s54, s55, 11
          s_add_u32 s54, s54, {OP}
          v_lshl_add_u32 v6, v0, 7, s54
          s_lshr_b32 s48, s29, 3
          s_and_b32 s49, s29, 7
          s_lshl_b32 s60, s49, 6
          s_lshl_b32 s56, s48, 4
          s_add_u32 s60, s60, s56
          s_lshl_b32 s56, s28, 9
          s_add_u32 s60, s60, s56
          s_add_u32 s60, s60, {ML}
          s_mul_i32 s61, s52, 7168
          s_add_u32 s61, s61, {DP}
          s_lshl_b32 s56, s51, 10
          s_add_u32 s62, s61, s56
          s_sub_u32 s56, s62, {16*128}
          v_lshl_add_u32 v7, v0, 7, s56
          v_cmp_gt_u32 vcc, 16, v0
          v_cndmask_b32 v6, v7, v6, vcc
          s_lshl_b32 s63, s52, 11
          s_add_u32 s63, s63, {HH}
          s_lshl_b32 s56, s51, 8
          s_add_u32 s56, s56, s63
          v_writelane_b32 v6, s56, 24
          s_add_u32 s56, s56, 128
          v_writelane_b32 v6, s56, 25
          v_writelane_b32 v6, s60, 26
          s_cmp_lt_u32 s52, 28
          s_cselect_b32 s56, 0x03ff0000, 0
          s_or_b32 exec_lo, s56, 0x0400ffff
          s_mov_b32 exec_hi, 0
          {"" if int(pts) else "buffer_load_dword v13, v6, s[32:35], 0 offen sc1"}
          s_mov_b64 exec, -1
          v_cmp_eq_u32 vcc, 0, v0
          v_cndmask_b32 v14, v12, v0, vcc
          v_and_b32 v72, 1, v0
          v_lshlrev_b32 v72, 4, v72
          s_mov_b32 s57, {CEXP}
          v_and_b32 v3, 3, v0
          v_and_b32 v6, 1, v5
          v_lshlrev_b32 v6, 2, v6
          v_lshrrev_b32 v7, 1, v5
          v_lshl_add_u32 v6, v7, 1, v6
          v_mul_u32_u24 v6, 896, v6
          v_and_b32 v7, 15, v0
          v_lshl_add_u32 v6, v7, 3, v6
          s_mul_i32 s48, s100, 57344
          s_lshl_b32 s56, s51, 7
          s_add_u32 s48, s48, s56
          s_lshl_b32 s49, s51, 13
          s_lshl_b32 s56, s28, 10
          s_add_u32 s49, s49, s56
          s_lshl_b32 s56, s50, 8
          s_add_u32 s49, s49, s56
          s_add_u32 s49, s49, {CP}
          v_lshlrev_b32 v2, 2, v0""")
    qtag_reg(244, 3)
    e("v_bfe_u32 v15, v0, 2, 2")
    qtag_reg(15, 15)
    e("v_cmp_eq_u32 vcc, 0, v3\nv_cndmask_b32 v243, 0, v245, vcc")
    if int(pts) >= 2:
        assert dnpos not in ("K", "q")
        for r in range(4): e(f"v_not_b32 v{248+r}, {T0}")
        x = ("", "", "sc1", "")[int(pts)]
        e(f"""buffer_store_dwordx4 v[248:251], v1, s[32:35], s54 offen
              buffer_store_dwordx4 v[248:251], v1, s[32:35], s54 offen offset:1024
              buffer_store_dwordx4 v[248:251], v14, s[32:35], s60 offen
              s_cmp_ge_u32 s29, 28
              s_cbranch_scc1 L_nopre
              buffer_store_dword v248, v2, s[32:35], s49 offen {x}
              s_cmp_ge_u32 s52, 28
              s_cbranch_scc1 L_nopre
              buffer_store_dwordx4 v[248:251], v1, s[32:35], s62 offen
              s_lshl_b32 s56, s51, 8
              s_add_u32 s56, s56, s63
              buffer_store_dword v248, v2, s[32:35], s56 offen
              s_mul_i32 s54, s51, 7168
              s_add_u32 s54, s54, {EP}
              s_lshl_b32 s56, s52, 8
              s_add_u32 s54, s54, s56
              buffer_store_dword v248, v2, s[32:35], s54 offen {x}
              L_nopre:""")
    elif int(pts):
        def touch(r, n):
            for i in range(n): e(f"s_load_dwordx2 s[98:99], s[26:27], {r} offset:{128*i+60}")
        touch("s54", 16)
        e("s_andn2_b32 s56, s60, 127"); touch("s56", 1)
        e("s_cmp_ge_u32 s29, 28\ns_cbranch_scc1 L_nopre"); touch("s49", 2)
        e("s_cmp_ge_u32 s52, 28\ns_cbranch_scc1 L_nopre"); touch("s62", 8)
        e("s_lshl_b32 s56, s51, 8\ns_add_u32 s56, s56, s63"); touch("s56", 2)
        e(f"s_mul_i32 s54, s51, 7168\ns_add_u32 s54, s54, {EP}\ns_lshl_b32 s56, s52, 8\ns_add_u32 s54, s54, s56"); touch("s54", 2)
        e("L_nopre:")
    elif prec != "n" or pree != "n":
        e("""v_not_b32 v249, v15
             s_mul_i32 s54, s51, 7168
             s_add_u32 s54, s54, %d
             s_lshl_b32 s56, s52, 8
             s_add_u32 s54, s54, s56
             s_cmp_ge_u32 s29, 28
             s_cbranch_scc1 L_nopre""" % EP)
        if prec == "s": e("buffer_store_dword v249, v2, s[32:35], s49 offen sc1")
        if prec == "l": e("buffer_load_dword v250, v2, s[32:35], s49 offen sc1")
        e("s_cmp_ge_u32 s52, 28\ns_cbranch_scc1 L_nopre")
        if pree == "s": e("buffer_store_dword v249, v2, s[32:35], s54 offen sc1")
        if pree == "l": e("buffer_load_dword v250, v2, s[32:35], s54 offen sc1")
        e("L_nopre:")
    def load_dn(guard=True):
        skip = lab("nodn")
        if guard: e(f"s_cmp_ge_u32 s52, 28\ns_cbranch_scc1 {skip}")
        for i in range(8):
            for hi in range(2):
                d = DN + 2*(8*hi + i)
                e(f"buffer_load_dwordx2 v[{d}:{d+1}], v6, s[44:47], s48 offen offset:{896*hi} {wnt}")
            if i < 7: e("s_add_u32 s48, s48, 7168")
        e(f"{skip}:")
    if dnpos == "K": load_dn()
    e(f"s_barrier\nds_read_b128 v[24:27], v246 offset:{FLAGS}\ns_waitcnt lgkmcnt(0)")
    read_mode(24)
    if dnpos == "q": load_dn()
    if int(pts) >= 2: e("s_waitcnt vmcnt(0)")
    e("s_setprio 3\ns_barrier")
    stamp(4)
    e(f"""
          ds_read_b128 v[16:19], v72 offset:{MLW}
          ds_read_b128 v[20:23], v72 offset:{MLW+32}
          s_waitcnt lgkmcnt(0)
          v_max3_f32 v8, v16, v17, v18
          v_max_f32 v8, v8, v19""")
    for w in range(4): e(f"v_sub_f32 v{16+w}, v{16+w}, v8")
    for w in range(4): e(f"v_mul_f32 v{16+w}, s57, v{16+w}")
    for w in range(4): e(f"v_exp_f32 v{16+w}, v{16+w}")
    e("""v_mul_f32 v9, v16, v20
         v_fmac_f32 v9, v17, v21
         v_fmac_f32 v9, v18, v22
         v_fmac_f32 v9, v19, v23
         v_mov_b32_dpp v10, v8 quad_perm:[1,1,1,1] row_mask:0xf bank_mask:0xf
         v_mov_b32_dpp v11, v9 quad_perm:[1,1,1,1] row_mask:0xf bank_mask:0xf""")
    tag4(8, 245)
    mode_store(["buffer_store_dwordx4 v[8:11], v14, s[32:35], s60 offen"])
    stamp(5)
    e("s_cmp_ge_u32 s29, 28\ns_cbranch_scc1 L_end\ns_setprio 0")
    if dnpos == "p": load_dn()
    e("s_barrier")
    if dnpos == "h": e("s_barrier"); load_dn()
    else: e("s_barrier")
    e("s_setprio 3\ns_barrier")
    stamp(6)
    if dnpos == "B3": load_dn()
    for k in range(4): e(f"ds_read2st64_b32 v[{16+2*k}:{17+2*k}], v2 offset0:{RED//256+2*k} offset1:{RED//256+2*k+1}")
    e("""s_waitcnt lgkmcnt(2)
         v_pk_add_f32 v[16:17], v[16:17], v[18:19]
         s_waitcnt lgkmcnt(0)
         v_pk_add_f32 v[20:21], v[20:21], v[22:23]
         v_pk_add_f32 v[16:17], v[16:17], v[20:21]
         v_add_f32 v16, v16, v17
         v_bfi_b32 v16, v243, v15, v16
         buffer_store_dword v16, v2, s[32:35], s49 offen sc1""")
    stamp(7)
    e("s_setprio 0\ns_cmp_ge_u32 s52, 28\ns_cbranch_scc1 L_end")
    if dnpos == "B4": load_dn(False)
    if cack: e("s_waitcnt vmcnt(%d)\ns_barrier" % (16 if dnpos == "B4" else 0))
    if dnpos == "B5": load_dn(False)
    for r in range(4): e(f"v_and_b32 v{20+r}, {TAGS[r]}, v245\nv_mov_b32 v{84+r}, {'v244' if r == 0 else 0}")
    e(f"""s_add_u32 s60, s61, 4096
          s_mul_i32 s54, s51, 7168
          s_add_u32 s54, s54, {EP}
          s_lshl_b32 s56, s52, 8
          s_add_u32 s49, s54, s56
          v_cmp_gt_u32 vcc, 16, v0
          v_cndmask_b32 v4, v12, v1, vcc
          s_sub_u32 s50, s52, 4
          s_lshl_b32 s56, s50, 6
          s_add_u32 s54, s54, s56
          s_add_u32 s53, s54, 4096
          v_lshrrev_b32 v7, 2, v0
          v_lshlrev_b32 v7, 8, v7
          v_lshl_add_u32 v7, v3, 4, v7
          v_lshl_add_u32 v8, v3, 2, v5
          v_lshl_add_u32 v9, v8, 2, s56
          v_and_b32 v9, 0xff, v9
          v_lshlrev_b32 v8, 1, v8
          v_and_b32 v10, 12, v0
          v_cmp_eq_u32 vcc, 0, v10
          v_cndmask_b32 v8, v12, v8, vcc
          s_lshl_b32 s55, s51, 7
          s_lshl_b32 s56, s50, 5
          s_add_u32 s55, s55, s56""")
    L48 = (1 << 48) - 1
    poll_init(2, 4, {1: L48}); poll_init(7, 8)
    e("s_setprio 3\ns_barrier")
    stamp(8)
    hg = [("buffer_load_dwordx4 v[16:19], v1, s[32:35], s63 offen sc1", 16), ("buffer_load_dwordx4 v[20:23], v1, s[32:35], s63 offen offset:1024 sc1", 20)]
    for k in range(4): e(f"ds_read_b128 v[{24+4*k}:{27+4*k}], v1 offset:{RED2+1024*k}")
    e(f"{hg[0][0]}\ns_mov_b32 exec_hi, 0xffff\n{hg[1][0]}\ns_mov_b32 exec_hi, -1\ns_waitcnt lgkmcnt(2)")
    pk_add4(24, 24, 28)
    e("s_waitcnt lgkmcnt(0)")
    pk_add4(32, 32, 36); pk_add4(24, 24, 32)
    e("v_bfi_b32 v24, v245, v244, v24")
    mode_store(["buffer_store_dwordx4 v[24:27], v1, s[32:35], s62 offen"])
    dg = [(f"buffer_load_dwordx4 v[{44+4*p}:{47+4*p}], v1, s[32:35], {('s61','s60')[p>>2]} offen offset:{(p&3)*1024} sc1", 44 + 4*p) for p in range(7)]
    for t, b in dg: e(t)
    e(f"ds_read_b32 v13, v9 offset:{HL}")
    stamp(9)
    poll(hg, 4, issued=True, behind=8)
    for r in range(8): e(f"v_and_b32 v{16+r}, 0xffff0000, v{16+r}")
    e("""v_pk_add_f32 v[28:29], v[16:17], v[18:19]
         v_pk_mul_f32 v[30:31], v[16:17], v[16:17]
         v_pk_add_f32 v[28:29], v[28:29], v[20:21]
         v_pk_fma_f32 v[30:31], v[18:19], v[18:19], v[30:31]
         v_pk_add_f32 v[28:29], v[28:29], v[22:23]
         v_pk_fma_f32 v[30:31], v[20:21], v[20:21], v[30:31]
         v_add_f32 v40, v28, v29
         v_pk_fma_f32 v[30:31], v[22:23], v[22:23], v[30:31]
         v_add_f32 v41, v30, v31""")
    dpp_red("v_add_f32", [40, 41], r16)
    xrow("v_add_f32", [40, 41], [42, 43])
    e(f"""v_mul_f32 v40, {f2u(1/448)}, v40
          v_mul_f32 v41, {f2u(1/448)}, v41
          v_fma_f32 v41, -v40, v40, v41
          v_max_f32 v41, 0, v41""")
    bfround(40); bfround(41)
    e(f"v_add_f32 v41, {f2u(1e-5)}, v41"); bfround(41)
    e("v_sqrt_f32 v41, v41"); bfround(41)
    e("v_rcp_f32 v41, v41")
    stamp(10)
    poll(dg, 8, issued=True, quad=244)
    stamp(11)
    pk_add4(44, 44, 48); pk_add4(52, 52, 56); pk_add4(60, 60, 64)
    pk_add4(44, 44, 68); pk_add4(52, 52, 60); pk_add4(44, 44, 52)
    e("""v_permlane32_swap_b32 v44, v46
         v_permlane32_swap_b32 v45, v47
         v_fma_f32 v44, -v40, v46, v44
         v_fma_f32 v45, -v40, v47, v45
         v_mul_f32 v44, v44, v41
         v_mul_f32 v45, v45, v41
         v_mov_b32 v46, v44
         v_mov_b32_dpp v44, v45 row_ror:8 row_mask:0xf bank_mask:0xc
         v_mov_b32_dpp v45, v46 row_ror:8 row_mask:0xf bank_mask:0x3
         v_cvt_pk_bf16_f32 v45, v44, v45
         v_lshlrev_b32 v44, 16, v45
         v_and_b32 v45, 0xffff0000, v45""")
    k0 = -2.0 * 0.7978845608028654 * 1.4426950408889634
    e(f"""v_mul_f32 v46, v44, v44
          v_mul_f32 v46, {f2u(k0*0.044715)}, v46
          v_add_f32 v46, {f2u(k0)}, v46
          v_mul_f32 v46, v46, v44
          v_exp_f32 v46, v46
          v_add_f32 v46, 1.0, v46
          v_rcp_f32 v46, v46
          v_mul_f32 v46, v46, v44""")
    bfround(46)
    e("v_mul_f32 v46, v46, v45\nv_cvt_pk_bf16_f32 v46, v46, v46")
    for i in range(17):
        if i < 16:
            a = 116 + 2*(i & 3)
            for j in range(2): e(f"v_and_b32_dpp v{a+j}, v46, v{MK+j} row_newbcast:{i} row_mask:0xf bank_mask:0xf")
        if i >= 1:
            p = i - 1; ap = 116 + 2*(p & 3)
            e(f"v_mfma_f32_16x16x16_bf16 v[32:35], v[{ap}:{ap+1}], v[{DN+2*p}:{DN+2*p+1}], " + ("0" if p == 0 else "v[32:35]"))
    poll_init(2, 4, {1: L48})
    e("v_bfi_b32 v32, v245, v244, v32")
    e("buffer_store_dwordx4 v[32:35], v4, s[32:35], s49 offen sc1")
    stamp(12)
    e("s_cmp_gt_u32 s50, 3\ns_cbranch_scc1 L_end\ns_waitcnt lgkmcnt(0)\nv_and_b32 v13, 0xffff0000, v13")
    if eack: e("s_waitcnt vmcnt(0)")
    poll([("buffer_load_dwordx4 v[80:83], v7, s[32:35], s54 offen sc1", 80), ("buffer_load_dwordx4 v[84:87], v7, s[32:35], s53 offen sc1", 84)], 4, quad=244)
    stamp(13)
    pk_add4(80, 80, 84)
    trows(80)
    dpp_red("v_add_f32", [80], ["row_ror:4", "row_ror:8"])
    bfround(80)
    e(f"""v_add_f32 v80, v80, v13
          v_cvt_pk_bf16_f32 v80, v80, v80
          buffer_store_short v80, v8, s[40:43], s55 offen
          s_cmp_lg_u32 s2, 4
          s_cbranch_scc1 L_Eend
          v_mov_b32 v16, s31
          buffer_store_dword v16, v14, s[32:35], 0 offen sc1
          L_Eend:""")
    stamp(14)
    if amp is not None:
        e(f"""s_cmp_lg_u32 s2, 4
              s_cbranch_scc1 L_end
              s_memrealtime s[96:97]
              s_waitcnt lgkmcnt(0)
              s_sub_u32 s98, s{64+2*int(amp)}, s64
              s_lshl_b32 s98, s98, 3""")
        if skew is not None:
            e(f"""s_mov_b32 s56, {STAMP}
              buffer_load_dword v16, v246, s[32:35], s56 offen sc1
              buffer_load_dword v17, v246, s[32:35], s56 offen offset:{4*int(skew)} sc1
              s_waitcnt vmcnt(0)
              v_sub_u32 v16, v17, v16
              v_add_u32 v16, 100, v16
              v_readfirstlane_b32 s98, v16
              s_lshl_b32 s98, s98, 5""")
        e(f"""
              s_min_u32 s98, s98, 100000
              L_amp:
              s_memrealtime s[100:101]
              s_waitcnt lgkmcnt(0)
              s_sub_u32 s99, s100, s96
              s_cmp_lt_u32 s99, s98
              s_cbranch_scc1 L_amp""")
    finish()
    sec("A")
    for t in extra: e(t)
    sec("Q2")
    for far, back, ins in deferred:
        e(f"{far}:\ns_nop 7")
        for t in ins: e(t + " sc1")
        e(f"s_nop 1\ns_branch {back}")
    if stamps:
        e("L_stamps:\ns_waitcnt lgkmcnt(0)\ns_mov_b64 exec, -1\nv_mov_b32 v250, 0")
        for k in range(16): e(f"v_writelane_b32 v250, s{64+2*k}, {k}")
        e(f"""s_lshl_b32 s60, s2, 3
              s_add_u32 s60, s60, s30
              s_lshl_b32 s60, s60, 6
              s_add_u32 s60, s60, {STAMP}
              v_lshlrev_b32 v251, 2, v0
              s_mov_b64 exec, 0xffff
              buffer_store_dword v250, v251, s[32:35], s60 offen""")
    e("L_exit:\ns_endpgm")

    head = open("cdna_kernels/" + NAME + ".s.ref").read()
    head = head[:head.index("; @launch")]
    out = head + f"; @launch grid=(256,1,1) block=(320,1,1) lds={LDS_SIZE}\n"
    out += f""".amdgcn_target "amdgcn-amd-amdhsa--gfx950"
.text
.globl {NAME}_kernel
.p2align 12
.fill {int(pad)//4}, 4, 0xbf800000
.p2align 8
.type {NAME}_kernel,@function
{NAME}_kernel:
"""
    for name, al in (("A", 0), ("K1", 0), ("Q1", 12), ("K2", 0), ("Q2", 12)):
        if al: out += f".p2align {al}\n"
        out += "\n".join(secs[name]) + "\n"
    out += f""".section .rodata,"a"
.p2align 6
.amdhsa_kernel {NAME}_kernel
  .amdhsa_next_free_vgpr 256
  .amdhsa_next_free_sgpr 102
  .amdhsa_accum_offset 256
  .amdhsa_group_segment_fixed_size 0
  .amdhsa_kernarg_size 96
  .amdhsa_user_sgpr_count 2
  .amdhsa_user_sgpr_kernarg_segment_ptr 1
  .amdhsa_system_sgpr_workgroup_id_x 1
.end_amdhsa_kernel
"""
    return out

if __name__ == "__main__":
    kw = {}
    for a in sys.argv[2:]:
        k, v = a.split("=")
        kw[k] = {"True": True, "False": False}.get(v, v)
    open(sys.argv[1], "w").write(gen(**kw))
```

```python
import sys, struct, re
from emit import Emitter, Ins, need

NAME = "sequential_preLN__sliding_block_cached__geglu_ffn__decode"
def f2u(x): return struct.unpack("<I", struct.pack("<f", x))[0]

QP, ML, CP, EP, OP, HH, DP, STAMP, WS_SIZE = 0x10000, 0x20000, 0x120000, 0x140000, 0x40000, 0xC0000, 0xD0000, 0x1E0000, 0x200000
XN, XR, QS, EB, RED, RED2, FLAGS, MLW, HL, PR, LDS_SIZE = 0, 2048, 3072, 4096, 5120, 7168, 11264, 11520, 11776, 12288, 14336
OOB = 0x7ffffff0
PB = 0x160000
SPIN = 1 << 16
CEXP = f2u(1.4426950408889634 / 16.0)
T0, T1, T2 = "s31", "s96", "s97"
TAGS = (T0, T0, T1, T2)

def gen(amp=None, nt="nt", wnt=None, stamps=False, force_global=False, wopos="V", gupos="B1", dnpos="p",
        code_pf=True, eack=True, kpre=0, W=6, qa=3, lc=15, rot="gj", skew=None, cack=True, ctmap="u", pad=0xD00, ksplit=3, order="V1GV16MW", tlb=0, tmap=1, w0=0, qnt=None, opat=1, skipz=0, opsc=False, ct="30", et="1x", home="v", mlsc=False, gi="0123", sw=1):
    if wnt is None: wnt = nt
    BS = 16384
    if ct: cack, ct = ct[0] == 'a', ct.lstrip('a')
    kpre, W, qa = int(kpre), int(W), int(qa)
    lc = int(lc); nb = lc - 12
    def koff(st): return ((st >> nb) << (lc + 5)) | ((st & ((1 << nb) - 1)) << 12)
    if skew is not None: amp = 0
    e = Emitter()
    uid = [0]
    deferred = []
    extra = []
    secs = {"A": e.lines}
    def sec(name, jump=None):
        if jump: e(f"s_branch {jump}")
        e.lines = secs.setdefault(name, []); e.hist = []
        if jump: e(f"{jump}:")
    def lab(p): uid[0] += 1; return f"L_{p}{uid[0]}"
    def srd_hi(d, n): e(f"s_mov_b32 s{d+2}, {n}\ns_mov_b32 s{d+3}, 0x00020000")
    def srd_lo(d, b): e(f"s_mov_b64 s[{d}:{d+1}], s[{b}:{b+1}]")
    def srd(d, b, n): srd_lo(d, b); srd_hi(d, n)
    def stamp(k):
        if stamps or (amp is not None and k in (0, int(amp))): e(f"s_memrealtime s[{64+2*k}:{65+2*k}]")
    def finish():
        if stamps: e("s_branch L_stamps")
        else: e("s_endpgm")
    def mode_store(ins):
        far, back = lab("far"), lab("back")
        e(f"s_cmp_lg_u32 s59, 0\ns_cbranch_scc1 {far}")
        for t in ins: e(t)
        e(f"{back}:")
        deferred.append((far, back, ins))
    def tags():
        e(f"""s_add_u32 s31, s31, 0x9E3779B1
              s_lshr_b32 s96, s31, 8
              s_or_b32 s96, s96, 1
              s_xor_b32 s96, s96, s31
              s_lshr_b32 s97, s31, 16""")
    def tag4(b, ff, last=T2):
        for r in range(4): e(f"v_bfi_b32 v{b+r}, v{ff}, {(T0, T0, T1, last)[r]}, v{b+r}")
    def lane_tag(d, idx, t):
        e(f"""v_mov_b32 v{d}, {T0}
              v_mov_b32 v{t}, {T1}
              v_cmp_eq_u32 vcc, 2, v{idx}
              v_cndmask_b32 v{d}, v{d}, v{t}, vcc
              v_mov_b32 v{t}, {T2}
              v_cmp_eq_u32 vcc, 3, v{idx}
              v_cndmask_b32 v{d}, v{d}, v{t}, vcc
              v_and_b32 v{d}, 0xff, v{d}""")
    def masks(m, t0, t1):
        e(f"""v_and_b32 v{t0}, 1, v0
              v_lshlrev_b32 v{t0}, 4, v{t0}
              v_mov_b32 v{t1}, 0xffff
              v_lshlrev_b32 v{t1}, v{t0}, v{t1}
              v_bfe_u32 v{t0}, v0, 1, 2""")
        for j in range(4):
            e(f"v_cmp_eq_u32 vcc, {j}, v{t0}\nv_cndmask_b32 v{m+j}, 0, v{t1}, vcc")
    def dpp_red(op, vs, ctrls):
        for c in ctrls:
            for v in vs: e(f"{op}_dpp v{v}, v{v}, v{v} {c} row_mask:0xf bank_mask:0xf")
    def xrow(op, vs, tmps):
        for sw in ("v_permlane16_swap_b32", "v_permlane32_swap_b32"):
            for v, t in zip(vs, tmps): e(f"v_mov_b32 v{t}, v{v}")
            for v, t in zip(vs, tmps): e(f"{sw} v{v}, v{t}")
            for v, t in zip(vs, tmps): e(f"{op} v{v}, v{v}, v{t}")
    def bfround(v): e(f"v_cvt_pk_bf16_f32 v{v}, v{v}, v{v}\nv_and_b32 v{v}, 0xffff0000, v{v}")
    def trows(a):
        e(f"""v_permlane32_swap_b32 v{a}, v{a+2}
              v_permlane32_swap_b32 v{a+1}, v{a+3}
              v_add_f32 v{a}, v{a}, v{a+2}
              v_add_f32 v{a+1}, v{a+1}, v{a+3}
              v_permlane16_swap_b32 v{a}, v{a+1}
              v_add_f32 v{a}, v{a}, v{a+1}""")
    def pk_add4(d, a, b):
        e(f"v_pk_add_f32 v[{d}:{d+1}], v[{a}:{a+1}], v[{b}:{b+1}]\nv_pk_add_f32 v[{d+2}:{d+3}], v[{a+2}:{a+3}], v[{b+2}:{b+3}]")
    def check(b, m, t):
        e(f"""v_bitop3_b32 v{t}, v{b}, v{b+1}, {T0} bitop3:0x7e
              v_bitop3_b32 v{t}, v{b+2}, {T1}, v{t} bitop3:0xbe
              v_bitop3_b32 v{t}, v{b+3}, {T2}, v{t} bitop3:0xbe
              v_cmp_ne_u32_sdwa s[{m}:{m+1}], v{t}, v246 src0_sel:BYTE_0 src1_sel:DWORD""")
    def qtag_reg(d, idx):
        e(f"v_lshlrev_b32 v{d}, 3, v{idx}\nv_lshrrev_b32 v{d}, v{d}, {T0}\nv_and_b32 v{d}, 0xff, v{d}")
    def qclean(loads):
        for t, b in loads: e(f"v_and_b32 v{b}, 0xffffff00, v{b}")
    def poll_init(n, m0, init=None):
        for i in range(n):
            v = (init or {}).get(i)
            if v is None: e(f"s_mov_b64 s[{m0+2*i}:{m0+2*i+1}], -1")
            else: e(f"s_mov_b32 s{m0+2*i}, {v & 0xffffffff}\ns_mov_b32 s{m0+2*i+1}, {v >> 32}")
        e(f"s_mov_b32 s58, {SPIN}")
    def poll(loads, m0, issued=False, behind=0, quad=None, pre=None):
        n = len(loads)
        top, chk, done = lab("poll"), lab("chk"), lab("pdone")
        if issued: e(f"s_branch {chk}")
        e(f"{top}:\ns_sub_u32 s58, s58, 1\ns_cbranch_scc1 {done}")
        for i, (t, b) in enumerate(loads):
            sk = lab("sk")
            if int(skipz) and n > 2: e(f"s_wqm_b64 exec, s[{m0+2*i}:{m0+2*i+1}]\ns_cbranch_scc0 {sk}\n{t}\n{sk}:")
            else: e(f"s_wqm_b64 exec, s[{m0+2*i}:{m0+2*i+1}]\n{t}")
        e("s_mov_b64 exec, -1")
        if behind or (int(skipz) and n > 2): e("s_waitcnt vmcnt(0)")
        if issued: e(f"{chk}:")
        for i, (t, b) in enumerate(loads):
            e(f"s_waitcnt vmcnt({n-1-i+behind})")
            if quad: e(f"v_cmp_ne_u32_sdwa s[{m0+2*i}:{m0+2*i+1}], v{b}, v{quad} src0_sel:BYTE_0 src1_sel:DWORD")
            else: check(b, m0 + 2*i, 247 + (i & 1))
        if n == 1: e(f"s_cmp_lg_u64 s[{m0}:{m0+1}], 0")
        else:
            e(f"s_or_b64 vcc, s[{m0}:{m0+1}], s[{m0+2}:{m0+3}]")
            for i in range(2, n): e(f"s_or_b64 vcc, vcc, s[{m0+2*i}:{m0+2*i+1}]")
        e(f"s_cbranch_scc1 {top}\n{done}:")
        if pre: e(pre)
        if quad: qclean(loads)
    def poll_sum(load, acc, base, quad, ticks):
        D = len(ticks)
        top, done = lab("ps"), lab("psd")
        def issue_round(r):
            for i in range(2): e(f"s_mov_b64 exec, s[{4+2*i}:{5+2*i}]\n" + load(i, base + 8*r + 4*i))
            e("s_mov_b64 exec, -1")
        for r, t in enumerate(ticks):
            if t != "x": e(f"s_waitcnt vmcnt({int(t) + 2*r})")
            if acc == 16 and r < 2: stamp(14 + r)
            issue_round(r)
        e(f"{top}:")
        for r in range(D):
            for i in range(2):
                b, m = base + 8*r + 4*i, 4 + 2*i
                e(f"""s_waitcnt vmcnt({2*D-1-i})
                      v_cmp_ne_u32_sdwa vcc, v{b}, v{quad} src0_sel:BYTE_0 src1_sel:DWORD
                      v_and_b32 v{b}, 0xffffff00, v{b}
                      s_wqm_b64 vcc, vcc
                      s_andn2_b64 exec, s[{m}:{m+1}], vcc
                      s_and_b64 s[{m}:{m+1}], s[{m}:{m+1}], vcc""")
                pk_add4(acc, acc, b)
                e("s_mov_b64 exec, -1")
            e(f"s_or_b64 vcc, s[4:5], s[6:7]\ns_cbranch_scc0 {done}")
            issue_round(r)
        e(f"s_sub_u32 s58, s58, 1\ns_cbranch_scc0 {top}\n{done}:")
    def read_mode(t):
        e(f"v_or3_b32 v{t}, v{t}, v{t+1}, v{t+2}\nv_or_b32 v{t}, v{t}, v{t+3}\nv_readfirstlane_b32 s59, v{t}")
    def ffn_scalars():
        e("""s_mul_i32 s50, s29, 37
             s_lshr_b32 s50, s50, 8
             s_mul_i32 s51, s50, 7
             s_sub_u32 s51, s29, s51
             s_lshl_b32 s52, s50, 3
             s_add_u32 s52, s52, s28""")
        if int(tmap): e("s_mul_i32 s100, s28, 3\ns_min_u32 s101, s28, 4\ns_add_u32 s100, s100, s101\ns_add_u32 s100, s100, s50\ns_min_u32 s100, s100, 27")
        else: e("s_min_u32 s100, s52, 27")

    e(f"""s_cmp_ge_u32 s2, 256
          s_cbranch_scc1 L_exit
          s_load_dwordx16 s[4:19], s[0:1], 0
          s_load_dwordx8 s[20:27], s[0:1], 64""")
    stamp(0)
    e(f"""v_lshrrev_b32 v1, 6, v0
         v_and_b32 v0, 63, v0
         v_readfirstlane_b32 s30, v1
         s_and_b32 s28, s2, 7
         s_lshr_b32 s29, s2, 3
         s_lshl_b32 s55, s28, 5
         s_add_u32 s55, s55, s29
         s_cmp_lg_u32 s30, 4
         s_cbranch_scc1 L_K""")
    sec("K1")
    e("L_K:")

    KR, VR, QG, SC, MK, WO, GU, AF, GA, MG = 16, 80, 148, 156, 164, 168, 184, 200, 216, 224
    QB, PE = QG, KR + 16
    if code_pf:
        e(f"""s_getpc_b64 s[48:49]
              L_pc:
              s_lshl_b32 s56, s29, 2
              s_add_u32 s56, s56, s30
              s_lshl_b32 s56, s56, 7
              s_min_u32 s56, s56, L_exit-{NAME}_kernel
              s_sub_u32 s48, s48, L_pc-{NAME}_kernel
              s_subb_u32 s49, s49, 0
              v_mov_b32 v1, s56
              s_mov_b64 exec, 1
              global_load_dword v15, v1, s[48:49]
              s_mov_b64 exec, -1""")
    e(f"""s_lshl_b32 s53, s28, 23
         s_lshl_b32 s54, s29, {lc}
         s_add_u32 s53, s53, s54
         s_add_u32 s53, s53, 6291456""")
    e({"0": "s_mov_b32 s56, 0", "gj": "s_lshl_b32 s56, s28, 1\ns_xor_b32 s56, s56, s29\ns_and_b32 s56, s56, 15",
       "gj1": "s_lshl_b32 s56, s28, 1\ns_and_b32 s54, s29, 1\ns_or_b32 s56, s56, s54", "j": "s_and_b32 s56, s29, 15",
       "mul": "s_mul_i32 s56, s2, s2\ns_mul_i32 s56, s56, 0x9E3779B1\ns_lshr_b32 s56, s56, 28"}[rot])
    e(f"""s_lshr_b32 s54, s56, {nb}
          s_lshl_b32 s54, s54, {lc+5}
          s_or_b32 s53, s53, s54
          s_and_b32 s54, s56, {(1 << nb) - 1}
          s_lshl_b32 s54, s54, 12
          s_or_b32 s53, s53, s54
          v_bfe_u32 v9, v0, 3, 1
          v_lshlrev_b32 v1, 9, v9
          v_lshrrev_b32 v2, 4, v0
          v_lshl_add_u32 v1, v2, 7, v1
          v_and_b32 v10, 7, v0
          v_lshl_add_u32 v1, v10, 4, v1
          s_lshl_b32 s54, s30, 10
          s_add_u32 s98, s54, s53""")
    srd_hi(36, 67108864)
    stamp(15)
    e("s_waitcnt lgkmcnt(0)")
    srd_lo(36, 6)
    if kpre == 0: e("s_load_dword s31, s[26:27], 0\ns_barrier")
    stamp(13)

    pos, state = {}, {"n": 0, "done": -1}
    def arrived(i):
        if i > state["done"]:
            e(f"s_waitcnt vmcnt({state['n'] - 1 - i})"); state["done"] = i
    def issue(name, text):
        arrived(state["n"] - W)
        e(text); pos[name] = state["n"]; state["n"] += 1
    qg = [f"buffer_load_dwordx4 v[{QG}:{QG+3}], v4, s[32:35], s61 offen sc1", f"buffer_load_dwordx4 v[{QG+4}:{QG+7}], v4, s[32:35], s62 offen sc1"]
    mlg = f"buffer_load_dwordx4 v[{MG}:{MG+3}], v230, s[32:35], s3 offen sc1"
    def vop(i):
        t = f"buffer_load_dwordx4 v[{VR+4*i}:{VR+4*i+3}], v228, s[44:47], s54 offen offset:{2048*(i >> 4)} {nt}"
        t = f"s_xor_b32 s54, s99, {koff(min(i, 15))}\n" + t
        if i >= 15: t = "s_mov_b64 exec, s[22:23]\n" + t + "\ns_mov_b64 exec, -1"
        return (f"V{i}", t)
    wops = [(f"WO{m}", f"buffer_load_dwordx4 v[{WO+4*m}:{WO+4*m+3}], v11, s[40:43], s48 offen {wnt}\ns_add_u32 s48, s48, 7168") for m in range(4)]
    gops = [(f"GU{m}", f"global_load_dwordx4 v[{GU+4*m}:{GU+4*m+3}], v[{GA+2*m}:{GA+2*m+1}], off {wnt}") for m in range(4)]
    ops = [vop(i) for i in range(17)] + [("ML", mlg)]
    if wopos == "V": ops += wops
    if gupos == "V": ops += gops
    if wopos == "K": ops = wops + ops
    if gupos == "K": ops = gops + ops
    ops = ops[:qa] + [("G0", qg[0]), ("G1", qg[1])] + ops[qa:]
    if order:
        pool = {"V": [vop(i) for i in range(17)], "M": [("ML", mlg)], "W": list(wops), "U": list(gops), "G": [("G0", qg[0]), ("G1", qg[1])]}
        ops = []
        for c, n in re.findall(r"([A-Z])(\d*)", order):
            for _ in range(int(n) if n else len(pool[c])): ops.append(pool[c].pop(0))
        assert not any(pool[c] for c in "VMG") and bool(pool["U"]) == (gupos in ("B4", "B1"))
        gops, wlate = pool["U"], pool["W"]
    def next_op():
        if ops: issue(*ops.pop(0))

    w0 = int(w0) or W
    for i in range(16):
        if i == w0: arrived(0)
        issue(f"K{i}", f"s_xor_b32 s54, s98, {koff(i)}\nbuffer_load_dwordx4 v[{KR+4*i}:{KR+4*i+3}], v1, s[36:39], s54 offen {nt}")
        if i == kpre - 1: e("s_load_dword s31, s[26:27], 0\ns_barrier"); stamp(14)
        if i == w0 - 1:
            srd(32, 26, WS_SIZE); srd(40, 12, 4096*896); srd(44, 8, 67108864)
            ffn_scalars()
            masks(MK, 7, 8)
            e(f"""v_mov_b32 v246, 0
                  v_mov_b32 v244, 0xff
                  v_and_b32 v3, 3, v0
                  v_lshrrev_b32 v5, 5, v0
                  v_and_b32 v6, 31, v0
                  v_lshlrev_b32 v4, 11, v5
                  v_lshl_add_u32 v4, v6, 4, v4
                  s_lshl_b32 s61, s28, 13
                  s_lshl_b32 s62, s30, 9
                  s_add_u32 s61, s61, s62
                  s_add_u32 s61, s61, {QP}
                  s_add_u32 s62, s61, 4096
                  v_lshlrev_b32 v6, 3, v6
                  v_lshl_add_u32 v6, v5, 2, v6
                  s_lshl_b32 s56, s30, 8
                  v_add_u32 v6, s56, v6
                  v_xor_b32 v7, 64, v1
                  v_and_b32 v12, 15, v0
                  v_lshlrev_b32 v228, 9, v2
                  v_lshl_add_u32 v228, v12, 4, v228
                  s_and_b32 s57, s30, 1
                  s_lshr_b32 s60, s30, 1
                  s_lshl_b32 s56, s57, 8
                  s_add_u32 s99, s53, s56
                  s_lshl_b32 s56, s60, 11
                  s_add_u32 s99, s99, s56
                  v_lshlrev_b32 v229, 10, v5
                  v_and_b32 v13, 1, v2
                  v_lshl_add_u32 v229, v13, 8, v229
                  v_lshl_add_u32 v229, v12, 4, v229
                  s_lshl_b32 s53, s55, 11
                  s_lshl_b32 s56, s57, 9
                  s_add_u32 s53, s53, s56
                  s_add_u32 s53, s53, {OP}
                  s_lshl_b32 s56, s57, 10
                  v_lshl_add_u32 v238, v0, 4, s56
                  v_bfe_u32 v14, v0, 2, 1
                  v_lshl_add_u32 v239, v5, 1, v9
                  v_lshl_add_u32 v239, v14, 4, v239
                  v_lshl_add_u32 v239, v13, 5, v239
                  s_lshl_b32 s56, s30, 6
                  v_lshl_add_u32 v239, v239, 4, s56
                  s_lshl_b32 s56, s30, 2
                  v_lshl_add_u32 v240, v9, 4, s56
                  v_mov_b32 v243, s56
                  v_lshrrev_b32 v241, 3, v0
                  s_lshl_b32 s56, s60, 7
                  v_lshl_add_u32 v241, v241, 4, s56
                  v_lshlrev_b32 v242, 4, v9
                  v_lshl_add_u32 v14, v2, 1, v14
                  v_lshl_add_u32 v230, v14, 2, v3
                  v_lshlrev_b32 v230, 4, v230
                  v_lshlrev_b32 v231, 11, v14
                  v_lshl_add_u32 v231, v9, 6, v231
                  v_lshl_add_u32 v231, v3, 4, v231
                  s_lshl_b32 s3, s28, 9
                  s_add_u32 s3, s3, {ML}
                  v_lshlrev_b32 v232, 4, v13
                  v_lshl_add_u32 v232, v10, 5, v232
                  v_lshl_add_u32 v232, v9, 8, v232
                  s_lshl_b32 s56, s30, 9
                  v_add_u32 v232, s56, v232
                  v_lshl_add_u32 v11, v9, 5, v2
                  v_mul_u32_u24 v11, 896, v11
                  v_lshl_add_u32 v11, v10, 4, v11
                  s_lshl_b32 s48, s28, 9
                  s_lshl_b32 s56, s50, 7
                  s_add_u32 s48, s48, s56
                  s_lshl_b32 s56, s57, 6
                  s_add_u32 s48, s48, s56
                  s_lshl_b32 s56, s60, 2
                  s_add_u32 s48, s48, s56
                  s_mul_i32 s48, s48, 896
                  s_lshl_b32 s56, s51, 7
                  s_add_u32 s48, s48, s56
                  s_cmp_lt_u32 s29, 28
                  s_cselect_b32 s42, s42, 0
                  s_cselect_b32 s48, s48, 0
                  s_lshl_b32 s49, s51, 6
                  s_lshl_b32 s56, s30, 4
                  s_add_u32 s49, s49, s56
                  s_mul_i32 s63, s49, 3584
                  s_lshl_b32 s56, s100, 7
                  s_add_u32 s63, s63, s56
                  v_mul_u32_u24 v12, 3584, v2
                  v_lshl_add_u32 v12, v10, 4, v12
                  v_add_u32 v12, s63, v12
                  s_cmp_lt_u32 s52, 28
                  s_cselect_b32 s56, -1, 0
                  v_and_b32 v12, s56, v12
                  v_cmp_eq_u32 vcc, 0, v9
                  v_mov_b32 v13, s18
                  v_mov_b32 v14, s16
                  v_cndmask_b32 v13, v13, v14, vcc
                  v_mov_b32 v14, s19
                  v_mov_b32 v8, s17
                  v_cndmask_b32 v14, v14, v8, vcc
                  v_add_co_u32 v{GA}, vcc, v13, v12
                  v_addc_co_u32 v{GA+1}, vcc, 0, v14, vcc""")
            for m in range(1, 4):
                e(f"v_add_co_u32 v{GA+2*m}, vcc, 14336, v{GA+2*m-2}\nv_addc_co_u32 v{GA+2*m+1}, vcc, 0, v{GA+2*m-1}, vcc")
            e(f"""s_cmp_eq_u32 s60, 0
                  s_cselect_b64 s[22:23], -1, 0
                  v_lshl_add_u32 v233, v3, 2, v2
                  v_add_u32 v233, s49, v233
                  v_lshlrev_b32 v234, 2, v233
                  v_and_b32 v234, 0xff, v234
                  v_lshlrev_b32 v233, 1, v233
                  v_lshl_add_u32 v235, v2, 2, v3
                  v_add_u32 v235, s49, v235
                  v_lshlrev_b32 v235, 2, v235
                  v_and_b32 v13, 12, v0
                  v_cmp_eq_u32 vcc, 0, v13
                  v_mov_b32 v13, {OOB}
                  v_cndmask_b32 v235, v13, v235, vcc
                  v_lshrrev_b32 v236, 2, v0
                  v_lshlrev_b32 v236, 8, v236
                  v_lshl_add_u32 v236, v3, 4, v236
                  s_lshl_b32 s56, s30, 10
                  v_lshl_add_u32 v237, v0, 4, s56
                  s_mov_b32 s57, {CEXP}""")
        if i == W + 1:
            e("s_waitcnt lgkmcnt(0)")
            tags()
            e(f"""s_getreg_b32 s56, hwreg(HW_REG_XCC_ID, 0, 4)
                  s_and_b32 s63, s97, 0xf0
                  s_or_b32 s63, s63, s56
                  s_mov_b32 s58, {SPIN}""")
            lane_tag(8, 3, 13)
            qtag_reg(245, 3)
    stamp(1)
    while "G1" not in pos or state["n"] - W < pos["G1"]: next_op()
    arrived(pos["G1"])
    e("L_qpoll:")
    stamp(2)
    a = QG
    e(f"""v_bitop3_b32 v12, v{a}, v{a+1}, {T0} bitop3:0x7e
          v_bitop3_b32 v13, v{a+4}, v{a+5}, {T0} bitop3:0x7e
          v_bitop3_b32 v14, v{a+2}, v{a+6}, {T1} bitop3:0x7e
          v_bitop3_b32 v15, v{a+3}, v{a+7}, s63 bitop3:0x7e
          v_or3_b32 v12, v12, v13, v14
          v_and_b32 v13, 0xf0, v15
          v_or_b32 v12, v12, v13
          v_cmp_ne_u32_sdwa vcc, v12, v246 src0_sel:BYTE_0 src1_sel:DWORD
          s_cbranch_vccnz L_qretry
          L_qdone:
          v_and_b32 v15, 15, v15
          v_cmp_ne_u32 vcc, 0, v15""")
    extra.append("L_qretry:\ns_sub_u32 s58, s58, 1\ns_cbranch_scc1 L_qdone\n" + "\n".join(qg) + "\ns_waitcnt vmcnt(0)\ns_branch L_qpoll")
    next_op()
    for r in range(8): e(f"v_and_b32 v{a+r}, 0xffffff00, v{a+r}")
    e("s_cmp_eq_u64 vcc, 0\ns_cselect_b32 s56, %d, 1" % (1 if force_global else 0))
    for r in range(4): e(f"v_add_f32 v{a+r}, v{a+r}, v{a+4+r}")
    e(f"""v_mov_b32 v12, s56
          v_permlane32_swap_b32 v{a}, v{a+2}
          v_permlane32_swap_b32 v{a+1}, v{a+3}
          ds_write_b32 v243, v12 offset:{FLAGS}
          v_add_f32 v{a}, v{a}, v{a+2}
          v_add_f32 v{a+1}, v{a+1}, v{a+3}
          v_cvt_pk_bf16_f32 v{a}, v{a}, v{a+1}
          ds_write_b32 v6, v{a} offset:{QS}
          s_waitcnt lgkmcnt(0)
          s_barrier
          ds_read_b128 v[{QB}:{QB+3}], v1 offset:{QS}
          ds_read_b128 v[{QB+4}:{QB+7}], v7 offset:{QS}
          ds_read_b128 v[12:15], v246 offset:{FLAGS}
          ds_read_u16 v233, v233 offset:{XR}""")
    next_op()
    e("s_waitcnt lgkmcnt(0)")
    stamp(3)
    for m in list(range(0, 16, 2)) + list(range(1, 16, 2)):
        k, q = KR + 4*m, QB + 4*(m & 1)
        e(f"v_mfma_f32_16x16x32_bf16 v[{k}:{k+3}], v[{k}:{k+3}], v[{q}:{q+3}], 0")
    read_mode(12)
    e("v_lshlrev_b32 v233, 16, v233")
    for par in range(2):
        pat = (0xf0f00f0f, 0x0f0ff0f0)[par]
        e(f"s_mov_b32 exec_lo, {pat}\ns_mov_b32 exec_hi, {pat}")
        for r in range(4):
            for p in range(8):
                a = KR + 4*(2*p + par)
                if r == 0: e(f"v_mov_b32_dpp v{SC+p}, v{a} quad_perm:[0,0,0,0] row_mask:0xf bank_mask:0xf")
                else: e(f"v_add_f32_dpp v{SC+p}, v{a+r}, v{SC+p} quad_perm:[{r},{r},{r},{r}] row_mask:0xf bank_mask:0xf")
        e("s_mov_b64 exec, -1")
        if par == 0: next_op()
    Z = KR
    for u in range(4): e(f"v_permlane16_swap_b32 v{SC+2*u}, v{SC+2*u+1}")
    for u in range(4): e(f"v_add_f32_dpp v{Z+u}, v{SC+2*u+1}, v{SC+2*u} row_half_mirror row_mask:0xf bank_mask:0xf")
    for u in (0, 2): e(f"v_cvt_pk_bf16_f32 v{Z+u+1}, v{Z+u}, v{Z+u+1}")
    for u in (0, 2): e(f"v_lshlrev_b32 v{Z+u}, 16, v{Z+u+1}\nv_and_b32 v{Z+u+1}, 0xffff0000, v{Z+u+1}")
    e(f"v_max3_f32 v4, v{Z}, v{Z+1}, v{Z+2}\nv_max_f32 v4, v4, v{Z+3}")
    dpp_red("v_max_f32", [4], ["row_half_mirror"])
    xrow("v_max_f32", [4], [5])
    next_op()
    for u in range(4): e(f"v_sub_f32 v{Z+u}, v{Z+u}, v4")
    for u in range(4): e(f"v_mul_f32 v{Z+u}, s57, v{Z+u}")
    for u in range(4): e(f"v_exp_f32 v{Z+u}, v{Z+u}")
    e(f"v_add_f32 v5, v{Z}, v{Z+1}\nv_add_f32 v5, v5, v{Z+2}\nv_add_f32 v5, v5, v{Z+3}")
    dpp_red("v_add_f32", [5], ["row_half_mirror"])
    xrow("v_add_f32", [5], [6])
    e(f"""s_mov_b32 exec_lo, 0x11111111
          s_mov_b32 exec_hi, 0x11111111
          ds_write_b128 v239, v[{Z}:{Z+3}] offset:{EB}
          ds_write_b32 v240, v4 offset:{MLW}
          ds_write_b32 v240, v5 offset:{MLW+32}
          s_mov_b64 exec, -1
          s_waitcnt lgkmcnt(0)""")
    stamp(4)
    e(f"s_barrier\nds_read_b128 v[12:15], v242 offset:{MLW}")
    for mm in range(4): e(f"ds_read_b128 v[{PE+4*mm}:{PE+4*mm+3}], v241 offset:{EB+256*mm}")
    e(f"ds_read_b32 v{PE+16}, v241 offset:{EB+7*128+12}")
    next_op()
    e("s_waitcnt lgkmcnt(5)\nv_max3_f32 v4, v12, v13, v14\nv_max_f32 v4, v4, v15\nv_cmp_gt_u32 vcc, 32, v0")
    e("v_cndmask_b32 v12, v13, v12, vcc\nv_cndmask_b32 v13, v15, v14, vcc\nv_cndmask_b32 v12, v13, v12, s[22:23]")
    for w in range(2): e(f"v_sub_f32 v{12+w}, v{12+w}, v4")
    for w in range(2): e(f"v_mul_f32 v{12+w}, s57, v{12+w}")
    for w in range(2): e(f"v_exp_f32 v{12+w}, v{12+w}")
    e("s_waitcnt lgkmcnt(0)")
    for i in range(0, 16, 2): e(f"v_pk_mul_f32 v[{PE+i}:{PE+i+1}], v[{PE+i}:{PE+i+1}], v[12:13] op_sel:[0,0] op_sel_hi:[1,0]")
    e(f"v_mul_f32 v{PE+16}, v{PE+16}, v13")
    for i in range(17): e(f"v_cvt_pk_bf16_f32 v{PE+i}, v{PE+i}, v{PE+i}")
    stamp(5)
    def prep(i):
        p = PE + (4*(i & 3) + (i >> 2) if i < 16 else 16)
        for j in range(4): e(f"v_and_b32 v{AF+4*(i&3)+j}, v{p}, v{MK+j}")
    def pv(i):
        arrived(pos[f"V{i}"])
        a = AF + 4*(i & 3)
        e(f"v_mfma_f32_16x16x32_bf16 v[12:15], v[{a}:{a+3}], v[{VR+4*i}:{VR+4*i+3}], " + ("0" if i == 0 else "v[12:15]"))
    prep(0)
    since = 99
    for i in range(15):
        while ops and (since >= 5 or f"V{i}" not in pos or pos[f"V{i}"] > state["done"]):
            next_op(); since = 0
        prep(i + 1); pv(i); since += 1
        if i == int(ksplit): sec("K2", "L_K2"); e("s_nop 4")
    for name, t in ops:
        e(t); pos[name] = state["n"]; state["n"] += 1
    ops.clear()
    e(f"s_cmp_eq_u32 s60, 0\ns_cbranch_scc1 L_keep\nds_write_b128 v238, v[12:15] offset:{PR}\ns_waitcnt lgkmcnt(0)\ns_barrier\ns_branch L_joined\nL_keep:")
    saved = dict(state)
    prep(16); pv(15)
    e(f"s_barrier\nds_read_b128 v[4:7], v238 offset:{PR}")
    pv(16)
    e("s_waitcnt lgkmcnt(0)")
    pk_add4(12, 12, 4)
    e("v_bfi_b32 v12, v244, v245, v12")
    if opsc: e("buffer_store_dwordx4 v[12:15], v229, s[32:35], s53 offen sc1")
    else: mode_store(["buffer_store_dwordx4 v[12:15], v229, s[32:35], s53 offen"])
    e("L_joined:")
    state.update(saved)
    stamp(6)
    e(f"""s_cmp_ge_u32 s29, 28
          s_cbranch_scc1 L_end
          s_lshl_b32 s60, s28, 16
          s_lshl_b32 s56, s50, 9
          s_add_u32 s60, s60, s56
          s_lshl_b32 s56, s30, 7
          s_add_u32 s60, s60, s56
          s_add_u32 s60, s60, {OP}
          s_add_u32 s61, s60, 16384
          s_add_u32 s62, s60, 32768
          s_add_u32 s63, s60, 49152
          s_mov_b32 s58, {SPIN}
          s_barrier""")
    stamp(7)
    opg = [(f"buffer_load_dwordx4 v[{16+4*i}:{19+4*i}], v231, s[32:35], s{60+i} offen sc1", 16 + 4*i) for i in range(4)]
    for name, t in wlate:
        e(t); pos[name] = state["n"]; state["n"] += 1
    km, opat = state["n"] - 1 - pos["ML"], int(opat)
    def left(k, x=0):
        if k < len(wlate): e(f"s_waitcnt vmcnt({k+x})"); return
        k += x
        l1, l2 = lab("lf"), lab("lf")
        e(f"s_cmp_gt_u32 s30, 1\ns_cbranch_scc1 {l1}\ns_waitcnt vmcnt({k+1})\ns_branch {l2}\n{l1}:\ns_waitcnt vmcnt({k})\n{l2}:")
    if opat >= km:
        if opat < 20: left(opat)
        for t, b in opg: e(t)
        if opat > km: left(km, 4)
    else:
        e("s_mov_b32 s101, 0"); left(km)
    e("L_mlchk:")
    check(MG, 4, 247)
    e("s_cmp_lg_u64 s[4:5], 0\ns_cbranch_scc1 L_mlretry\nL_mldone:")
    extra2 = ["L_mlretry:\ns_sub_u32 s58, s58, 1\ns_cbranch_scc1 L_mldone\ns_mov_b32 s101, 1\n" + mlg + "\n" + "\n".join(t for t, b in opg) + "\ns_waitcnt vmcnt(4)\ns_branch L_mlchk"]
    e(f"""s_cmp_ge_u32 s50, 2
          s_cselect_b64 vcc, -1, 0
          v_cndmask_b32 v4, v{MG}, v{MG+2}, vcc
          v_cndmask_b32 v5, v{MG+1}, v{MG+3}, vcc
          v_and_b32 v4, 0xffff0000, v4
          v_and_b32 v5, 0xffffff00, v5
          v_mov_b32 v6, v4""")
    q8 = ["quad_perm:[1,0,3,2]", "quad_perm:[2,3,0,1]", "row_half_mirror"]
    dpp_red("v_max_f32", [6], q8); xrow("v_max_f32", [6], [7])
    e("v_sub_f32 v4, v4, v6\nv_mul_f32 v4, s57, v4\nv_exp_f32 v4, v4\nv_mul_f32 v6, v4, v5")
    dpp_red("v_add_f32", [6], q8); xrow("v_add_f32", [6], [7])
    e("v_rcp_f32 v6, v6\nv_mul_f32 v4, v4, v6")
    for i in range(4): e(f"v_mov_b32_dpp v{32+i}, v4 quad_perm:[{i},{i},{i},{i}] row_mask:0xf bank_mask:0xf")
    stamp(12)
    if opat < km:
        e("s_cmp_lg_u32 s101, 0\ns_cbranch_scc1 L_opsent")
        left(opat)
        for t, b in opg: e(t)
        e("L_opsent:")
    poll(opg, 4, issued=True, quad=245)
    stamp(8)
    def gu_at(k):
        if gupos == "B1":
            for (name, t), c in zip(gops, gi):
                if int(c) == k: e(t)
    if gupos == "B1": e("s_barrier")
    gu_at(0)
    for i in range(4):
        w, s = 32 + (i & 2), i & 1
        for p in (0, 2):
            if i == 0: e(f"v_pk_mul_f32 v[{36+p}:{37+p}], v[{16+p}:{17+p}], v[{w}:{w+1}] op_sel:[0,0] op_sel_hi:[1,0]")
            else: e(f"v_pk_fma_f32 v[{36+p}:{37+p}], v[{16+4*i+p}:{17+4*i+p}], v[{w}:{w+1}], v[{36+p}:{37+p}] op_sel:[0,{s},0] op_sel_hi:[1,{s},1]")
    gu_at(1)
    trows(36)
    gu_at(2)
    e("""v_add_f32_dpp v37, v36, v36 row_shr:4 row_mask:0xf bank_mask:0xa
         v_add_f32_dpp v37, v36, v36 row_shl:4 row_mask:0xf bank_mask:0x5
         v_cvt_pk_bf16_f32 v37, v37, v37""")
    gu_at(3)
    def gemv4(src, wbase, bank):
        for m in range(5):
            if m < 4:
                for j in range(4): e(f"v_and_b32_dpp v{AF+4*m+j}, v{src}, v{MK+j} quad_perm:[{m},{m},{m},{m}] row_mask:0xf bank_mask:{bank}")
            if m >= 1:
                p = m - 1
                e(f"v_mfma_f32_16x16x32_bf16 v[40:43], v[{AF+4*p}:{AF+4*p+3}], v[{wbase+4*p}:{wbase+4*p+3}], " + ("0" if p == 0 else "v[40:43]"))
    gemv4(37, WO, "0xf")
    gu_at(4)
    e(f"""s_mov_b32 exec_lo, 0x00ff00ff
          s_mov_b32 exec_hi, 0xff00ff00
          ds_write_b128 v232, v[40:43] offset:{RED}
          s_mov_b64 exec, -1
          s_waitcnt lgkmcnt(0)""")
    stamp(9)
    e(f"""s_barrier
          s_cmp_ge_u32 s52, 28
          s_cbranch_scc1 L_end
          v_mov_b32 v16, 0x3f803f80
          s_mul_i32 s60, s51, {BS}
          s_lshl_b32 s56, s30, 6
          s_add_u32 s60, s60, s56
          s_add_u32 s60, s60, {CP}""")
    if home == "v":
        e(f"""v_and_b32 v17, 0x100, v{MG}
              v_cmp_ne_u32 vcc, 0, v17
              s_bcnt1_i32_b64 s56, vcc
              s_cmp_lt_u32 s56, 26
              s_cselect_b32 s56, 8192, 0""")
    else: e(f"s_lshr_b32 s56, s28, 2\ns_xor_b32 s56, s56, {home}\ns_lshl_b32 s56, s56, 13")
    e(f"s_add_u32 s60, s60, s56\nv_mov_b32 v17, s56\nds_write_b32 v246, v17 offset:{FLAGS+16}")
    e(f"""s_add_u32 s61, s60, 4096
          s_lshl_b32 s62, s52, 11
          s_add_u32 s62, s62, {HH}
          s_mov_b32 s63, 0xffff0000""")
    for m in range(4):
        for j in range(4): e(f"v_and_b32 v{AF+4*m+j}, v16, v{MK+j}")
    if gupos == "B4":
        for name, t in gops: e(t)
    for r in range(4): e(f"v_and_b32 v{20+r}, {TAGS[r]}, v244")
    e("v_lshlrev_b32 v1, 4, v0")
    poll_init(2, 4)
    if cack: e("s_barrier")
    assert ct
    if ct:
        for r in range(4): e(f"v_mov_b32 v{16+r}, 0")
        poll_sum(lambda i, b: f"buffer_load_dwordx4 v[{b}:{b+3}], v236, s[32:35], s{60+i} offen sc1", 16, 48, 245, ct)
        stamp(10)
    else:
        poll([(f"buffer_load_dwordx4 v[{16+4*i}:{19+4*i}], v236, s[32:35], s{60+i} offen sc1", 16 + 4*i) for i in range(2)], 4, quad=245)
        stamp(10)
        pk_add4(16, 16, 20)
    trows(16)
    dpp_red("v_add_f32", [16], ["row_ror:4", "row_ror:8"])
    bfround(16)
    e("v_add_f32 v16, v16, v233\nv_cvt_pk_bf16_f32 v16, v16, v16\nv_and_or_b32 v17, v16, s63, v8")
    mode_store(["buffer_store_dword v17, v235, s[32:35], s62 offen"])
    e(f"ds_write_b32 v234, v17 offset:{HL}")
    gemv4(16, GU, "0x3")
    e(f"ds_write_b128 v237, v[40:43] offset:{RED2}\ns_waitcnt lgkmcnt(0)")
    stamp(11)
    e(f"s_barrier\ns_cmp_lg_u32 s30, {sw}\ns_cbranch_scc1 L_end")
    L48 = (1 << 48) - 1
    r16 = ["row_ror:8", "row_ror:4", "row_ror:2", "row_ror:1"]
    poll_init(2, 4, {1: L48})
    poll([("buffer_load_dwordx4 v[16:19], v1, s[32:35], s62 offen sc1", 16), ("buffer_load_dwordx4 v[20:23], v1, s[32:35], s62 offen offset:1024 sc1", 20)], 4)
    for r in range(8): e(f"v_and_b32 v{16+r}, 0xffff0000, v{16+r}")
    e("""v_pk_add_f32 v[28:29], v[16:17], v[18:19]
         v_pk_mul_f32 v[30:31], v[16:17], v[16:17]
         v_pk_add_f32 v[28:29], v[28:29], v[20:21]
         v_pk_fma_f32 v[30:31], v[18:19], v[18:19], v[30:31]
         v_pk_add_f32 v[28:29], v[28:29], v[22:23]
         v_pk_fma_f32 v[30:31], v[20:21], v[20:21], v[30:31]
         v_add_f32 v40, v28, v29
         v_pk_fma_f32 v[30:31], v[22:23], v[22:23], v[30:31]
         v_add_f32 v41, v30, v31""")
    dpp_red("v_add_f32", [40, 41], r16)
    xrow("v_add_f32", [40, 41], [42, 43])
    e(f"""v_mul_f32 v40, {f2u(1/448)}, v40
          v_mul_f32 v41, {f2u(1/448)}, v41
          v_fma_f32 v41, -v40, v40, v41
          v_max_f32 v41, 0, v41""")
    bfround(40); bfround(41)
    e(f"v_add_f32 v41, {f2u(1e-5)}, v41"); bfround(41)
    e("v_sqrt_f32 v41, v41"); bfround(41)
    e("v_rcp_f32 v41, v41")
    e(f"ds_write_b64 v246, v[40:41] offset:{FLAGS+24}\ns_waitcnt lgkmcnt(0)")
    stamp(13)
    e("s_barrier\nL_end:")
    finish()
    sec("K0")
    for t in extra2: e(t)

    WQ, F, XA, MK, DN = 16, 80, 96, 112, 128
    ctm = {"0": "s_lshr_b32 s48, s29, 3\ns_and_b32 s49, s29, 7", "1": "s_lshr_b32 s48, s29, 3\ns_add_u32 s49, s29, 1\ns_and_b32 s49, s49, 7",
           "t": "s_lshr_b32 s49, s29, 2\ns_and_b32 s48, s29, 3", "u": "s_lshr_b32 s49, s29, 2\ns_xor_b32 s49, s49, 4\ns_and_b32 s48, s29, 3"}[ctmap]
    sec("A")
    e(f"""s_setprio 3
          v_lshlrev_b32 v1, 4, v0
          v_lshrrev_b32 v2, 3, v0
          v_and_b32 v3, 7, v0
          v_mul_u32_u24 v4, {14*8192}, v2
          v_lshl_add_u32 v4, v3, 4, v4
          {ctm}
          s_mul_i32 s54, s48, {112*8192}
          s_lshl_b32 s56, s28, 10
          s_add_u32 s54, s54, s56
          s_lshl_b32 s56, s49, 7
          s_add_u32 s54, s54, s56""")
    srd_hi(40, 896); srd_hi(36, 448*8192)
    stamp(15)
    e("s_waitcnt lgkmcnt(0)")
    srd_lo(40, 4)
    e("buffer_load_dwordx4 v[8:11], v1, s[40:43], 0 offen")
    srd_lo(36, 10)
    for i in range(14):
        e(f"buffer_load_dwordx4 v[{WQ+4*i}:{WQ+4*i+3}], v4, s[36:39], s54 offen {wnt if qnt is None else qnt}")
        if i < 13: e("s_add_u32 s54, s54, 8192")
    e("s_load_dword s31, s[26:27], 0\ns_barrier")
    sec("Q1", "L_Q1")
    tlb = int(tlb)
    if tlb:
        e(f"""s_lshl_b32 s54, s28, 23
              s_add_u32 s54, s54, 6291456
              s_add_u32 s60, s8, s54
              s_addc_u32 s61, s9, 0
              s_mul_i32 s54, s28, {512*896}
              s_add_u32 s62, s12, s54
              s_addc_u32 s63, s13, 0
              s_add_u32 s56, s62, {512*896-128}
              s_addc_u32 s57, s63, 0
              v_mov_b32 v12, s60
              v_mov_b32 v13, s61""")
        for ln, r in enumerate((62, 56, 16, 18, 20, 22, 26)):
            e(f"v_writelane_b32 v12, s{r}, {ln+1}\nv_writelane_b32 v13, s{r+1}, {ln+1}")
        e("s_mov_b64 exec, 0xff\nglobal_load_dword v250, v[12:13], off\ns_mov_b64 exec, -1")
    srd(32, 26, WS_SIZE); srd(40, 22, 896); srd(44, 20, 1792*896)
    ffn_scalars()
    masks(MK, 72, 73)
    e("v_mov_b32 v246, 0\nv_mov_b32 v245, 0xff\ns_waitcnt vmcnt(%d)" % (14 + (tlb > 0)))
    skew_store = f"s_lshl_b32 s56, s2, 2\ns_add_u32 s56, s56, {STAMP}\nv_mov_b32 v13, s64\nbuffer_store_dword v13, v246, s[32:35], s56 offen sc1"
    stamp(1)
    e(f"ds_write_b128 v1, v[8:11] offset:{XR}")
    for i in range(4): e(f"v_lshlrev_b32 v{F+2*i}, 16, v{8+i}\nv_and_b32 v{F+2*i+1}, 0xffff0000, v{8+i}")
    e(f"v_add_f32 v72, v{F}, v{F+1}")
    for i in range(2, 8): e(f"v_add_f32 v72, v72, v{F+i}")
    r16 = ["row_ror:8", "row_ror:4", "row_ror:2", "row_ror:1"]
    dpp_red("v_add_f32", [72], r16)
    xrow("v_add_f32", [72], [73])
    e(f"v_mul_f32 v72, {f2u(1/448)}, v72\nv_mov_b32 v73, 0")
    for i in range(8): e(f"v_sub_f32 v74, v{F+i}, v72\nv_fmac_f32 v73, v74, v74")
    e("v_cmp_gt_u32 vcc, 56, v0\nv_cndmask_b32 v73, 0, v73, vcc")
    dpp_red("v_add_f32", [73], r16)
    xrow("v_add_f32", [73], [74])
    e(f"v_mul_f32 v73, {f2u(1/448)}, v73")
    bfround(72); bfround(73)
    e(f"v_add_f32 v73, {f2u(1e-5)}, v73"); bfround(73)
    e("v_sqrt_f32 v73, v73"); bfround(73)
    e("v_rcp_f32 v74, v73")
    for i in range(8): e(f"v_sub_f32 v{F+i}, v{F+i}, v72")
    for i in range(0, 8, 2): e(f"v_cvt_pk_bf16_f32 v{F+i+1}, v{F+i}, v{F+i+1}")
    for i in range(0, 8, 2): e(f"v_lshlrev_b32 v{F+i}, 16, v{F+i+1}\nv_and_b32 v{F+i+1}, 0xffff0000, v{F+i+1}")
    for i in range(8): e(f"v_mul_f32 v{F+8+i}, v{F+i}, v74")
    for i in range(8): e(f"v_fma_f32 v{F+i}, -v{F+8+i}, v73, v{F+i}")
    for i in range(8): e(f"v_fmac_f32 v{F+8+i}, v{F+i}, v74")
    for i in range(8): e(f"v_cvt_pk_bf16_f32 v{F+i}, v{F+8+i}, v{F+8+i}")
    e(f"""v_lshlrev_b32 v72, 5, v0
          ds_write_b128 v72, v[{F}:{F+3}] offset:{XN}
          ds_write_b128 v72, v[{F+4}:{F+7}] offset:{XN+16}
          v_mul_u32_u24 v73, 56, v2
          s_mul_i32 s56, s48, 448
          v_add_u32 v73, s56, v73
          s_waitcnt lgkmcnt(0)""")
    for i in range(7): e(f"ds_read_b64 v[{XA+2*i}:{XA+2*i+1}], v73 offset:{XN+8*i}")
    tags()
    e(f"""s_getreg_b32 s56, hwreg(HW_REG_XCC_ID, 0, 4)
          s_and_b32 s63, s97, 0xf0
          s_or_b32 s63, s63, s56
          s_waitcnt lgkmcnt(0)""")
    stamp(2)
    for i in range(15):
        if i < 14:
            a = (116, 120)[i & 1]
            for j in range(4): e(f"v_and_b32 v{a+j}, v{XA+i}, v{MK+j}")
        if i >= 1:
            p = i - 1; a = (116, 120)[p & 1]
            e(f"s_waitcnt vmcnt({13-p+(tlb > 0)})\nv_mfma_f32_16x16x32_bf16 v[8:11], v[{a}:{a+3}], v[{WQ+4*p}:{WQ+4*p+3}], " + ("0" if p == 0 else "v[8:11]"))
    e(f"""v_lshrrev_b32 v5, 4, v0
          v_lshlrev_b32 v72, 4, v5
          v_lshl_add_u32 v72, v3, 5, v72
          v_and_b32 v73, 40, v0
          v_mov_b32 v12, {OOB}
          v_cmp_eq_u32 vcc, 0, v73
          v_cndmask_b32 v72, v12, v72, vcc
          s_lshl_b32 s54, s28, 13
          s_add_u32 s54, s54, {QP}
          s_lshl_b32 s56, s48, 11
          s_add_u32 s56, s56, s54
          s_lshl_b32 s61, s49, 8
          s_add_u32 s56, s56, s61""")
    for r in range(4): e(f"v_mov_b32_dpp v{F+r}, v{8+r} row_ror:8 row_mask:0xf bank_mask:0xf")
    for r in range(4): e(f"v_permlane32_swap_b32 v{F+r}, v{F+4+r}")
    for r in range(4): e(f"v_add_f32 v{8+r}, v{8+r}, v{F+4+r}")
    for r in range(4): e(f"v_add_u32 v{8+r}, 0x80, v{8+r}")
    tag4(8, 245, "s63")
    e("buffer_store_dwordx4 v[8:11], v72, s[32:35], s56 offen sc1")
    stamp(3)
    if skew is not None: e(skew_store)
    e(f"""s_lshr_b32 s53, s2, 6
          s_lshl_b32 s53, s53, 14
          s_and_b32 s56, s2, 63
          s_lshl_b32 s56, s56, 7
          s_add_u32 s53, s53, s56
          s_add_u32 s53, s53, {PB}
          v_lshlrev_b32 v6, 10, v0
          v_and_b32 v6, 0x2000, v6
          v_lshl_add_u32 v6, v3, 4, v6""")
    for r in range(4): e(f"v_mov_b32 v{16+r}, 0x100")
    e("s_mov_b64 exec, 0xffff\nbuffer_store_dwordx4 v[16:19], v6, s[32:35], s53 offen sc1\ns_mov_b64 exec, -1")
    e(f"""s_setprio 0
          s_lshl_b32 s54, s55, 11
          s_add_u32 s54, s54, {OP}
          v_lshl_add_u32 v6, v0, 7, s54
          s_lshr_b32 s48, s29, 3
          s_and_b32 s49, s29, 7
          s_lshl_b32 s60, s49, 6
          s_lshl_b32 s56, s48, 4
          s_add_u32 s60, s60, s56
          s_lshl_b32 s56, s28, 9
          s_add_u32 s60, s60, s56
          s_add_u32 s60, s60, {ML}
          s_mul_i32 s61, s52, 7168
          s_add_u32 s61, s61, {DP}
          s_lshl_b32 s56, s51, 10
          s_add_u32 s62, s61, s56
          s_sub_u32 s56, s62, {16*128}
          v_lshl_add_u32 v7, v0, 7, s56
          v_cmp_gt_u32 vcc, 16, v0
          v_cndmask_b32 v6, v7, v6, vcc
          s_lshl_b32 s63, s52, 11
          s_add_u32 s63, s63, {HH}
          s_lshl_b32 s56, s51, 8
          s_add_u32 s56, s56, s63
          v_writelane_b32 v6, s56, 24
          s_add_u32 s56, s56, 128
          v_writelane_b32 v6, s56, 25
          v_writelane_b32 v6, s60, 26
          s_cmp_lt_u32 s52, 28
          s_cselect_b32 s56, 0x03ff0000, 0
          s_or_b32 exec_lo, s56, 0x0400ffff
          s_mov_b32 exec_hi, 0
          buffer_load_dword v13, v6, s[32:35], 0 offen sc1
          s_mov_b64 exec, -1
          v_cmp_eq_u32 vcc, 0, v0
          v_cndmask_b32 v14, v12, v0, vcc
          v_and_b32 v72, 1, v0
          v_lshlrev_b32 v72, 4, v72
          s_mov_b32 s57, {CEXP}
          v_and_b32 v3, 3, v0
          v_and_b32 v6, 1, v5
          v_lshlrev_b32 v6, 2, v6
          v_lshrrev_b32 v7, 1, v5
          v_lshl_add_u32 v6, v7, 1, v6
          v_mul_u32_u24 v6, 896, v6
          v_and_b32 v7, 15, v0
          v_lshl_add_u32 v6, v7, 3, v6
          s_mul_i32 s48, s100, 57344
          s_lshl_b32 s56, s51, 7
          s_add_u32 s48, s48, s56
          s_mul_i32 s49, s51, {BS}
          s_lshl_b32 s56, s28, 10
          s_add_u32 s49, s49, s56
          s_lshl_b32 s56, s50, 8
          s_add_u32 s49, s49, s56
          s_add_u32 s49, s49, {CP}
          v_lshlrev_b32 v2, 2, v0""")
    qtag_reg(244, 3)
    e("v_bfe_u32 v15, v0, 2, 2")
    qtag_reg(15, 15)
    e("v_cmp_eq_u32 vcc, 0, v3\nv_cndmask_b32 v243, 0, v245, vcc")
    e(f"""s_mul_i32 s54, s51, {BS}
          s_add_u32 s54, s54, {EP}
          s_lshl_b32 s56, s52, 8
          s_add_u32 s54, s54, s56
          v_lshlrev_b32 v249, 7, v0
          v_lshlrev_b32 v250, 12, v0
          v_and_b32 v249, 0x80, v249
          v_and_b32 v250, 0x2000, v250
          v_or_b32 v249, v249, v250
          s_cmp_ge_u32 s29, 28
          s_cbranch_scc1 L_nopre
          s_mov_b64 exec, 15
          buffer_load_dword v250, v249, s[32:35], s49 offen sc1
          s_cmp_ge_u32 s52, 28
          s_cbranch_scc1 L_nopre
          buffer_load_dword v250, v249, s[32:35], s54 offen sc1
          L_nopre:
          s_mov_b64 exec, -1""")
    def load_dn(guard=True):
        skip = lab("nodn")
        if guard: e(f"s_cmp_ge_u32 s52, 28\ns_cbranch_scc1 {skip}")
        for i in range(8):
            for hi in range(2):
                d = DN + 2*(8*hi + i)
                e(f"buffer_load_dwordx2 v[{d}:{d+1}], v6, s[44:47], s48 offen offset:{896*hi} {wnt}")
            if i < 7: e("s_add_u32 s48, s48, 7168")
        e(f"{skip}:")
    if dnpos == "K": load_dn()
    e("""s_waitcnt vmcnt(0)
         s_mov_b32 s99, 0
         s_load_dword s98, s[26:27], s53 offset:0
         s_load_dword s99, s[26:27], s53 offset:8192
         s_waitcnt lgkmcnt(1)
         s_andn2_b32 s101, 0x100, s99""")
    sec("Q2", "L_Q2")
    sec("Q3", "L_Q3")
    e(f"s_barrier\nds_read_b128 v[24:27], v246 offset:{FLAGS}\ns_waitcnt lgkmcnt(0)")
    read_mode(24)
    if dnpos == "q": load_dn()
    e("s_setprio 3\ns_barrier")
    stamp(4)
    e(f"""
          ds_read_b128 v[16:19], v72 offset:{MLW}
          ds_read_b128 v[20:23], v72 offset:{MLW+32}
          s_waitcnt lgkmcnt(0)
          v_max3_f32 v8, v16, v17, v18
          v_max_f32 v8, v8, v19""")
    for w in range(4): e(f"v_sub_f32 v{16+w}, v{16+w}, v8")
    for w in range(4): e(f"v_mul_f32 v{16+w}, s57, v{16+w}")
    for w in range(4): e(f"v_exp_f32 v{16+w}, v{16+w}")
    e("""v_mul_f32 v9, v16, v20
         v_fmac_f32 v9, v17, v21
         v_fmac_f32 v9, v18, v22
         v_fmac_f32 v9, v19, v23
         v_mov_b32_dpp v10, v8 quad_perm:[1,1,1,1] row_mask:0xf bank_mask:0xf
         v_mov_b32_dpp v11, v9 quad_perm:[1,1,1,1] row_mask:0xf bank_mask:0xf""")
    e("v_or_b32 v8, s101, v8")
    tag4(8, 245)
    if mlsc: e("buffer_store_dwordx4 v[8:11], v14, s[32:35], s60 offen sc1")
    else: mode_store(["buffer_store_dwordx4 v[8:11], v14, s[32:35], s60 offen"])
    stamp(5)
    e("s_cmp_ge_u32 s29, 28\ns_cbranch_scc1 L_end\ns_setprio 0")
    if dnpos == "p": load_dn()
    e("s_add_u32 s53, s49, 8192")
    e("s_barrier")
    if dnpos == "h": e("s_barrier"); load_dn()
    else: e("s_barrier")
    if gupos == "B1": e("s_barrier")
    e("s_setprio 3\ns_barrier")
    stamp(6)
    if dnpos == "B3": load_dn()
    for k in range(4): e(f"ds_read2st64_b32 v[{16+2*k}:{17+2*k}], v2 offset0:{RED//256+2*k} offset1:{RED//256+2*k+1}")
    e("""s_waitcnt lgkmcnt(2)
         v_pk_add_f32 v[16:17], v[16:17], v[18:19]
         s_waitcnt lgkmcnt(0)
         v_pk_add_f32 v[20:21], v[20:21], v[22:23]
         v_pk_add_f32 v[16:17], v[16:17], v[20:21]
         v_add_f32 v16, v16, v17
         v_bfi_b32 v16, v243, v15, v16
         buffer_store_dword v16, v2, s[32:35], s49 offen sc1
         buffer_store_dword v16, v2, s[32:35], s53 offen sc1""")
    stamp(7)
    e("s_setprio 0\ns_cmp_ge_u32 s52, 28\ns_cbranch_scc1 L_end")
    if dnpos == "B4": load_dn(False)
    if cack: e("s_waitcnt vmcnt(%d)\ns_barrier" % (16 if dnpos == "B4" else 0))
    if dnpos == "B5": load_dn(False)
    for r in range(4): e(f"v_mov_b32 v{84+r}, {'v244' if r == 0 else 0}")
    DS = (20, 21, 22, 23, 24, 25)
    for p in range(6):
        e(f"s_add_u32 s56, s51, {p+1}\ns_sub_u32 s60, s56, 7\ns_cselect_b32 s56, s56, s60\ns_lshl_b32 s56, s56, 10\ns_add_u32 s{DS[p]}, s56, s61")
    e(f"""
          s_mul_i32 s54, s51, {BS}
          s_add_u32 s54, s54, {EP}
          s_lshl_b32 s56, s52, 8
          s_add_u32 s49, s54, s56
          v_cmp_gt_u32 vcc, 16, v0
          v_cndmask_b32 v4, v12, v1, vcc
          s_sub_u32 s50, s52, 4
          s_lshl_b32 s56, s50, 6
          s_add_u32 s54, s54, s56
          s_add_u32 s53, s54, 4096
          v_lshrrev_b32 v7, 2, v0
          v_lshlrev_b32 v7, 8, v7
          v_lshl_add_u32 v7, v3, 4, v7
          v_lshl_add_u32 v8, v3, 2, v5
          v_lshl_add_u32 v9, v8, 2, s56
          v_and_b32 v9, 0xff, v9
          v_lshlrev_b32 v8, 1, v8
          v_and_b32 v10, 12, v0
          v_cmp_eq_u32 vcc, 0, v10
          v_cndmask_b32 v8, v12, v8, vcc
          s_lshl_b32 s55, s51, 7
          s_lshl_b32 s56, s50, 5
          s_add_u32 s55, s55, s56""")
    L48 = (1 << 48) - 1
    e(f"s_mov_b32 s58, {SPIN}")
    e("s_setprio 3\ns_barrier")
    stamp(8)
    for k in range(4): e(f"ds_read_b128 v[{24+4*k}:{27+4*k}], v1 offset:{RED2+1024*k}")
    e("s_waitcnt lgkmcnt(2)")
    pk_add4(24, 24, 28)
    e("s_waitcnt lgkmcnt(0)")
    pk_add4(32, 32, 36); pk_add4(24, 24, 32)
    e("v_bfi_b32 v24, v245, v244, v24")
    mode_store(["buffer_store_dwordx4 v[24:27], v1, s[32:35], s62 offen"])
    stamp(9)
    dg = [(f"buffer_load_dwordx4 v[{44+4*p}:{47+4*p}], v1, s[32:35], s{DS[p]} offen sc1", 44 + 4*p) for p in range(6)]
    for t, b in dg: e(t)
    e(f"""ds_read_b32 v13, v9 offset:{HL}
          ds_read_b32 v11, v246 offset:{FLAGS+16}
          v_and_b32 v24, 0xffffff00, v24
          s_waitcnt lgkmcnt(0)
          v_and_b32 v13, 0xffff0000, v13
          v_add_u32 v7, v7, v11
          v_add_u32 v4, v4, v11
          v_xor_b32 v10, 0x2000, v4""")
    stamp(10)
    poll(dg, 8, issued=True, quad=244, pre=f"s_barrier\nds_read_b64 v[40:41], v246 offset:{FLAGS+24}")
    stamp(11)
    pk_add4(44, 44, 48); pk_add4(52, 52, 56); pk_add4(60, 60, 64)
    pk_add4(44, 44, 24); pk_add4(52, 52, 60); pk_add4(44, 44, 52)
    e("s_waitcnt lgkmcnt(0)")
    e("""v_permlane32_swap_b32 v44, v46
         v_permlane32_swap_b32 v45, v47
         v_fma_f32 v44, -v40, v46, v44
         v_fma_f32 v45, -v40, v47, v45
         v_mul_f32 v44, v44, v41
         v_mul_f32 v45, v45, v41
         v_mov_b32 v46, v44
         v_mov_b32_dpp v44, v45 row_ror:8 row_mask:0xf bank_mask:0xc
         v_mov_b32_dpp v45, v46 row_ror:8 row_mask:0xf bank_mask:0x3
         v_cvt_pk_bf16_f32 v45, v44, v45
         v_lshlrev_b32 v44, 16, v45
         v_and_b32 v45, 0xffff0000, v45""")
    k0 = -2.0 * 0.7978845608028654 * 1.4426950408889634
    e(f"""v_mul_f32 v46, v44, v44
          v_mul_f32 v46, {f2u(k0*0.044715)}, v46
          v_add_f32 v46, {f2u(k0)}, v46
          v_mul_f32 v46, v46, v44
          v_exp_f32 v46, v46
          v_add_f32 v46, 1.0, v46
          v_rcp_f32 v46, v46
          v_mul_f32 v46, v46, v44""")
    bfround(46)
    e("v_mul_f32 v46, v46, v45\nv_cvt_pk_bf16_f32 v46, v46, v46")
    for i in range(17):
        if i < 16:
            a = 116 + 2*(i & 3)
            for j in range(2): e(f"v_and_b32_dpp v{a+j}, v46, v{MK+j} row_newbcast:{i} row_mask:0xf bank_mask:0xf")
        if i >= 1:
            p = i - 1; ap = 116 + 2*(p & 3)
            e(f"v_mfma_f32_16x16x16_bf16 v[32:35], v[{ap}:{ap+1}], v[{DN+2*p}:{DN+2*p+1}], " + ("0" if p == 0 else "v[32:35]"))
    poll_init(2, 4, {1: L48})
    e("v_bfi_b32 v32, v245, v244, v32")
    e("buffer_store_dwordx4 v[32:35], v4, s[32:35], s49 offen sc1")
    e("buffer_store_dwordx4 v[32:35], v10, s[32:35], s49 offen sc1")
    stamp(12)
    e("s_cmp_gt_u32 s50, 3\ns_cbranch_scc1 L_end")
    if et:
        for r in range(4): e(f"v_mov_b32 v{80+r}, 0")
        poll_sum(lambda i, b: f"buffer_load_dwordx4 v[{b}:{b+3}], v7, s[32:35], {('s54', 's53')[i]} offen sc1", 80, 160, 244, et)
        stamp(13)
    else:
        if eack: e("s_waitcnt vmcnt(%d)" % (1 if eack == "1" else 0))
        poll([("buffer_load_dwordx4 v[80:83], v7, s[32:35], s54 offen sc1", 80), ("buffer_load_dwordx4 v[84:87], v7, s[32:35], s53 offen sc1", 84)], 4, quad=244)
        stamp(13)
        pk_add4(80, 80, 84)
    trows(80)
    dpp_red("v_add_f32", [80], ["row_ror:4", "row_ror:8"])
    bfround(80)
    e(f"""v_add_f32 v80, v80, v13
          v_cvt_pk_bf16_f32 v80, v80, v80
          buffer_store_short v80, v8, s[40:43], s55 offen
          s_cmp_lg_u32 s2, 4
          s_cbranch_scc1 L_Eend
          v_mov_b32 v16, s31
          buffer_store_dword v16, v14, s[32:35], 0 offen sc1
          L_Eend:""")
    stamp(14)
    if amp is not None:
        e(f"""s_cmp_lg_u32 s2, 4
              s_cbranch_scc1 L_end
              s_memrealtime s[96:97]
              s_waitcnt lgkmcnt(0)
              s_sub_u32 s98, s{64+2*int(amp)}, s64
              s_lshl_b32 s98, s98, 3""")
        if skew is not None:
            e(f"""s_mov_b32 s56, {STAMP}
              buffer_load_dword v16, v246, s[32:35], s56 offen sc1
              buffer_load_dword v17, v246, s[32:35], s56 offen offset:{4*int(skew)} sc1
              s_waitcnt vmcnt(0)
              v_sub_u32 v16, v17, v16
              v_add_u32 v16, 100, v16
              v_readfirstlane_b32 s98, v16
              s_lshl_b32 s98, s98, 5""")
        e(f"""
              s_min_u32 s98, s98, 100000
              L_amp:
              s_memrealtime s[100:101]
              s_waitcnt lgkmcnt(0)
              s_sub_u32 s99, s100, s96
              s_cmp_lt_u32 s99, s98
              s_cbranch_scc1 L_amp""")
    finish()
    sec("A")
    for t in extra: e(t)
    sec("Q3")
    for far, back, ins in deferred:
        e(f"{far}:\ns_nop 7")
        for t in ins: e(t + " sc1")
        e(f"s_nop 1\ns_branch {back}")
    if stamps:
        e("L_stamps:\ns_waitcnt lgkmcnt(0)\ns_mov_b64 exec, -1\nv_mov_b32 v250, 0")
        for k in range(16): e(f"v_writelane_b32 v250, s{64+2*k}, {k}")
        e(f"""s_lshl_b32 s60, s2, 3
              s_add_u32 s60, s60, s30
              s_lshl_b32 s60, s60, 6
              s_add_u32 s60, s60, {STAMP}
              v_lshlrev_b32 v251, 2, v0
              s_mov_b64 exec, 0xffff
              buffer_store_dword v250, v251, s[32:35], s60 offen""")
    e("L_exit:\ns_endpgm")

    head = open("cdna_kernels/" + NAME + ".s.ref").read()
    head = head[:head.index("; @launch")]
    out = head + f"; @launch grid=(256,1,1) block=(320,1,1) lds={LDS_SIZE}\n"
    out += f""".amdgcn_target "amdgcn-amd-amdhsa--gfx950"
.text
.globl {NAME}_kernel
.p2align 12
.fill {int(pad)//4}, 4, 0xbf800000
.p2align 8
.type {NAME}_kernel,@function
{NAME}_kernel:
"""
    for name, al in (("A", 0), ("K1", 0), ("Q1", 12), ("Q2", 12), ("K0", 0), ("K2", 0), ("Q3", 12)):
        if al: out += f".p2align {al}\n"
        out += "\n".join(secs[name]) + "\n"
    out += f""".section .rodata,"a"
.p2align 6
.amdhsa_kernel {NAME}_kernel
  .amdhsa_next_free_vgpr 256
  .amdhsa_next_free_sgpr 102
  .amdhsa_accum_offset 256
  .amdhsa_group_segment_fixed_size 0
  .amdhsa_kernarg_size 96
  .amdhsa_user_sgpr_count 2
  .amdhsa_user_sgpr_kernarg_segment_ptr 1
  .amdhsa_system_sgpr_workgroup_id_x 1
.end_amdhsa_kernel
"""
    return out

if __name__ == "__main__":
    kw = {}
    for a in sys.argv[2:]:
        k, v = a.split("=")
        kw[k] = {"True": True, "False": False}.get(v, v)
    open(sys.argv[1], "w").write(gen(**kw))
```

```python
import sys, struct, re
from emit import Emitter, Ins, need

NAME = "sequential_preLN__sliding_block_cached__geglu_ffn__decode"
def f2u(x): return struct.unpack("<I", struct.pack("<f", x))[0]

QP, ML, CP, EP, OP, HH, DP, STAMP, WS_SIZE = 0x10000, 0x20000, 0x120000, 0x140000, 0x40000, 0xC0000, 0xD0000, 0x1E0000, 0x200000
XN, XR, QS, EB, RED, RED2, FLAGS, MLW, HL, PR, LDS_SIZE = 0, 2048, 3072, 4096, 5120, 7168, 11264, 11520, 11776, 12288, 14336
OOB = 0x7ffffff0
PB = 0x160000
SPIN = 1 << 16
CEXP = f2u(1.4426950408889634 / 16.0)
T0, T1, T2 = "s31", "s96", "s97"
TAGS = (T0, T0, T1, T2)

def gen(amp=None, nt="nt", wnt=None, stamps=False, force_global=False, wopos="V", gupos="B1", dnpos="p",
        code_pf=True, eack=True, kpre=0, W=6, qa=3, lc=15, rot="gj", skew=None, cack=True, ctmap="u", pad=0xD00, ksplit=3, order="V1GV16MW", tlb=0, tmap=1, w0=0, qnt=None, opat=1, skipz=0, opsc=False, ct="30", et="1x", home="v", mlsc=False, gi="0123", sw=1, dirty=0):
    if wnt is None: wnt = nt
    BS = 16384
    if ct: cack, ct = ct[0] == 'a', ct.lstrip('a')
    kpre, W, qa = int(kpre), int(W), int(qa)
    lc = int(lc); nb = lc - 12
    def koff(st): return ((st >> nb) << (lc + 5)) | ((st & ((1 << nb) - 1)) << 12)
    if skew is not None: amp = 0
    e = Emitter()
    uid = [0]
    deferred = []
    extra = []
    secs = {"A": e.lines}
    def sec(name, jump=None):
        if jump: e(f"s_branch {jump}")
        e.lines = secs.setdefault(name, []); e.hist = []
        if jump: e(f"{jump}:")
    def lab(p): uid[0] += 1; return f"L_{p}{uid[0]}"
    def srd_hi(d, n): e(f"s_mov_b32 s{d+2}, {n}\ns_mov_b32 s{d+3}, 0x00020000")
    def srd_lo(d, b): e(f"s_mov_b64 s[{d}:{d+1}], s[{b}:{b+1}]")
    def srd(d, b, n): srd_lo(d, b); srd_hi(d, n)
    def stamp(k):
        if stamps or (amp is not None and k in (0, int(amp))): e(f"s_memrealtime s[{64+2*k}:{65+2*k}]")
    def finish():
        if stamps: e("s_branch L_stamps")
        else: e("s_endpgm")
    def mode_store(ins):
        far, back = lab("far"), lab("back")
        e(f"s_cmp_lg_u32 s59, 0\ns_cbranch_scc1 {far}")
        for t in ins: e(t)
        e(f"{back}:")
        deferred.append((far, back, ins))
    def tags():
        e(f"""s_add_u32 s31, s31, 0x9E3779B1
              s_lshr_b32 s96, s31, 8
              s_or_b32 s96, s96, 1
              s_xor_b32 s96, s96, s31
              s_lshr_b32 s97, s31, 16""")
    def tag4(b, ff, last=T2):
        for r in range(4): e(f"v_bfi_b32 v{b+r}, v{ff}, {(T0, T0, T1, last)[r]}, v{b+r}")
    def lane_tag(d, idx, t):
        e(f"""v_mov_b32 v{d}, {T0}
              v_mov_b32 v{t}, {T1}
              v_cmp_eq_u32 vcc, 2, v{idx}
              v_cndmask_b32 v{d}, v{d}, v{t}, vcc
              v_mov_b32 v{t}, {T2}
              v_cmp_eq_u32 vcc, 3, v{idx}
              v_cndmask_b32 v{d}, v{d}, v{t}, vcc
              v_and_b32 v{d}, 0xff, v{d}""")
    def masks(m, t0, t1):
        e(f"""v_and_b32 v{t0}, 1, v0
              v_lshlrev_b32 v{t0}, 4, v{t0}
              v_mov_b32 v{t1}, 0xffff
              v_lshlrev_b32 v{t1}, v{t0}, v{t1}
              v_bfe_u32 v{t0}, v0, 1, 2""")
        for j in range(4):
            e(f"v_cmp_eq_u32 vcc, {j}, v{t0}\nv_cndmask_b32 v{m+j}, 0, v{t1}, vcc")
    def dpp_red(op, vs, ctrls):
        for c in ctrls:
            for v in vs: e(f"{op}_dpp v{v}, v{v}, v{v} {c} row_mask:0xf bank_mask:0xf")
    def xrow(op, vs, tmps):
        for sw in ("v_permlane16_swap_b32", "v_permlane32_swap_b32"):
            for v, t in zip(vs, tmps): e(f"v_mov_b32 v{t}, v{v}")
            for v, t in zip(vs, tmps): e(f"{sw} v{v}, v{t}")
            for v, t in zip(vs, tmps): e(f"{op} v{v}, v{v}, v{t}")
    def bfround(v): e(f"v_cvt_pk_bf16_f32 v{v}, v{v}, v{v}\nv_and_b32 v{v}, 0xffff0000, v{v}")
    def trows(a):
        e(f"""v_permlane32_swap_b32 v{a}, v{a+2}
              v_permlane32_swap_b32 v{a+1}, v{a+3}
              v_add_f32 v{a}, v{a}, v{a+2}
              v_add_f32 v{a+1}, v{a+1}, v{a+3}
              v_permlane16_swap_b32 v{a}, v{a+1}
              v_add_f32 v{a}, v{a}, v{a+1}""")
    def pk_add4(d, a, b):
        e(f"v_pk_add_f32 v[{d}:{d+1}], v[{a}:{a+1}], v[{b}:{b+1}]\nv_pk_add_f32 v[{d+2}:{d+3}], v[{a+2}:{a+3}], v[{b+2}:{b+3}]")
    def check(b, m, t):
        e(f"""v_bitop3_b32 v{t}, v{b}, v{b+1}, {T0} bitop3:0x7e
              v_bitop3_b32 v{t}, v{b+2}, {T1}, v{t} bitop3:0xbe
              v_bitop3_b32 v{t}, v{b+3}, {T2}, v{t} bitop3:0xbe
              v_cmp_ne_u32_sdwa s[{m}:{m+1}], v{t}, v246 src0_sel:BYTE_0 src1_sel:DWORD""")
    def qtag_reg(d, idx):
        e(f"v_lshlrev_b32 v{d}, 3, v{idx}\nv_lshrrev_b32 v{d}, v{d}, {T0}\nv_and_b32 v{d}, 0xff, v{d}")
    def qclean(loads):
        for t, b in loads: e(f"v_and_b32 v{b}, 0xffffff00, v{b}")
    def poll_init(n, m0, init=None):
        for i in range(n):
            v = (init or {}).get(i)
            if v is None: e(f"s_mov_b64 s[{m0+2*i}:{m0+2*i+1}], -1")
            else: e(f"s_mov_b32 s{m0+2*i}, {v & 0xffffffff}\ns_mov_b32 s{m0+2*i+1}, {v >> 32}")
        e(f"s_mov_b32 s58, {SPIN}")
    def poll(loads, m0, issued=False, behind=0, quad=None, pre=None):
        n = len(loads)
        top, chk, done = lab("poll"), lab("chk"), lab("pdone")
        if issued: e(f"s_branch {chk}")
        e(f"{top}:\ns_sub_u32 s58, s58, 1\ns_cbranch_scc1 {done}")
        for i, (t, b) in enumerate(loads):
            sk = lab("sk")
            if int(skipz) and n > 2: e(f"s_wqm_b64 exec, s[{m0+2*i}:{m0+2*i+1}]\ns_cbranch_scc0 {sk}\n{t}\n{sk}:")
            else: e(f"s_wqm_b64 exec, s[{m0+2*i}:{m0+2*i+1}]\n{t}")
        e("s_mov_b64 exec, -1")
        if behind or (int(skipz) and n > 2): e("s_waitcnt vmcnt(0)")
        if issued: e(f"{chk}:")
        for i, (t, b) in enumerate(loads):
            e(f"s_waitcnt vmcnt({n-1-i+behind})")
            if quad: e(f"v_cmp_ne_u32_sdwa s[{m0+2*i}:{m0+2*i+1}], v{b}, v{quad} src0_sel:BYTE_0 src1_sel:DWORD")
            else: check(b, m0 + 2*i, 247 + (i & 1))
        if n == 1: e(f"s_cmp_lg_u64 s[{m0}:{m0+1}], 0")
        else:
            e(f"s_or_b64 vcc, s[{m0}:{m0+1}], s[{m0+2}:{m0+3}]")
            for i in range(2, n): e(f"s_or_b64 vcc, vcc, s[{m0+2*i}:{m0+2*i+1}]")
        e(f"s_cbranch_scc1 {top}\n{done}:")
        if pre: e(pre)
        if quad: qclean(loads)
    def poll_sum(load, acc, base, quad, ticks):
        D = len(ticks)
        top, done = lab("ps"), lab("psd")
        def issue_round(r):
            for i in range(2): e(f"s_mov_b64 exec, s[{4+2*i}:{5+2*i}]\n" + load(i, base + 8*r + 4*i))
            e("s_mov_b64 exec, -1")
        for r, t in enumerate(ticks):
            if t != "x": e(f"s_waitcnt vmcnt({int(t) + 2*r})")
            if acc == 16 and r < 2: stamp(14 + r)
            issue_round(r)
        e(f"{top}:")
        for r in range(D):
            for i in range(2):
                b, m = base + 8*r + 4*i, 4 + 2*i
                e(f"""s_waitcnt vmcnt({2*D-1-i})
                      v_cmp_ne_u32_sdwa vcc, v{b}, v{quad} src0_sel:BYTE_0 src1_sel:DWORD
                      v_and_b32 v{b}, 0xffffff00, v{b}
                      s_wqm_b64 vcc, vcc
                      s_andn2_b64 exec, s[{m}:{m+1}], vcc
                      s_and_b64 s[{m}:{m+1}], s[{m}:{m+1}], vcc""")
                pk_add4(acc, acc, b)
                e("s_mov_b64 exec, -1")
            e(f"s_or_b64 vcc, s[4:5], s[6:7]\ns_cbranch_scc0 {done}")
            issue_round(r)
        e(f"s_sub_u32 s58, s58, 1\ns_cbranch_scc0 {top}\n{done}:")
    def read_mode(t):
        e(f"v_or3_b32 v{t}, v{t}, v{t+1}, v{t+2}\nv_or_b32 v{t}, v{t}, v{t+3}\nv_readfirstlane_b32 s59, v{t}")
    def ffn_scalars():
        e("""s_mul_i32 s50, s29, 37
             s_lshr_b32 s50, s50, 8
             s_mul_i32 s51, s50, 7
             s_sub_u32 s51, s29, s51
             s_lshl_b32 s52, s50, 3
             s_add_u32 s52, s52, s28""")
        if int(tmap): e("s_mul_i32 s100, s28, 3\ns_min_u32 s101, s28, 4\ns_add_u32 s100, s100, s101\ns_add_u32 s100, s100, s50\ns_min_u32 s100, s100, 27")
        else: e("s_min_u32 s100, s52, 27")

    e(f"""s_cmp_ge_u32 s2, 256
          s_cbranch_scc1 L_exit
          s_load_dwordx16 s[4:19], s[0:1], 0
          s_load_dwordx8 s[20:27], s[0:1], 64""")
    stamp(0)
    e(f"""v_lshrrev_b32 v1, 6, v0
         v_and_b32 v0, 63, v0
         v_readfirstlane_b32 s30, v1
         s_and_b32 s28, s2, 7
         s_lshr_b32 s29, s2, 3
         s_lshl_b32 s55, s28, 5
         s_add_u32 s55, s55, s29
         s_cmp_lg_u32 s30, 4
         s_cbranch_scc1 L_K""")
    sec("K1")
    e("L_K:")

    KR, VR, QG, SC, MK, WO, GU, AF, GA, MG = 16, 80, 148, 156, 164, 168, 184, 200, 216, 224
    QB, PE = QG, KR + 16
    if code_pf:
        e(f"""s_getpc_b64 s[48:49]
              L_pc:
              s_lshl_b32 s56, s29, 2
              s_add_u32 s56, s56, s30
              s_lshl_b32 s56, s56, 7
              s_min_u32 s56, s56, L_exit-{NAME}_kernel
              s_sub_u32 s48, s48, L_pc-{NAME}_kernel
              s_subb_u32 s49, s49, 0
              v_mov_b32 v1, s56
              s_mov_b64 exec, 1
              global_load_dword v15, v1, s[48:49]
              s_mov_b64 exec, -1""")
    e(f"""s_lshl_b32 s53, s28, 23
         s_lshl_b32 s54, s29, {lc}
         s_add_u32 s53, s53, s54
         s_add_u32 s53, s53, 6291456""")
    e({"0": "s_mov_b32 s56, 0", "gj": "s_lshl_b32 s56, s28, 1\ns_xor_b32 s56, s56, s29\ns_and_b32 s56, s56, 15",
       "gj1": "s_lshl_b32 s56, s28, 1\ns_and_b32 s54, s29, 1\ns_or_b32 s56, s56, s54", "j": "s_and_b32 s56, s29, 15",
       "mul": "s_mul_i32 s56, s2, s2\ns_mul_i32 s56, s56, 0x9E3779B1\ns_lshr_b32 s56, s56, 28"}[rot])
    e(f"""s_lshr_b32 s54, s56, {nb}
          s_lshl_b32 s54, s54, {lc+5}
          s_or_b32 s53, s53, s54
          s_and_b32 s54, s56, {(1 << nb) - 1}
          s_lshl_b32 s54, s54, 12
          s_or_b32 s53, s53, s54
          v_bfe_u32 v9, v0, 3, 1
          v_lshlrev_b32 v1, 9, v9
          v_lshrrev_b32 v2, 4, v0
          v_lshl_add_u32 v1, v2, 7, v1
          v_and_b32 v10, 7, v0
          v_lshl_add_u32 v1, v10, 4, v1
          s_lshl_b32 s54, s30, 10
          s_add_u32 s98, s54, s53""")
    srd_hi(36, 67108864)
    stamp(15)
    e("s_waitcnt lgkmcnt(0)")
    srd_lo(36, 6)
    if kpre == 0: e("s_load_dword s31, s[26:27], 0\ns_barrier")
    stamp(13)

    pos, state = {}, {"n": 0, "done": -1}
    def arrived(i):
        if i > state["done"]:
            e(f"s_waitcnt vmcnt({state['n'] - 1 - i})"); state["done"] = i
    def issue(name, text):
        arrived(state["n"] - W)
        e(text); pos[name] = state["n"]; state["n"] += 1
    qg = [f"buffer_load_dwordx4 v[{QG}:{QG+3}], v4, s[32:35], s61 offen sc1", f"buffer_load_dwordx4 v[{QG+4}:{QG+7}], v4, s[32:35], s62 offen sc1"]
    mlg = f"buffer_load_dwordx4 v[{MG}:{MG+3}], v230, s[32:35], s3 offen sc1"
    def vop(i):
        t = f"buffer_load_dwordx4 v[{VR+4*i}:{VR+4*i+3}], v228, s[44:47], s54 offen offset:{2048*(i >> 4)} {nt}"
        t = f"s_xor_b32 s54, s99, {koff(min(i, 15))}\n" + t
        if i >= 15: t = "s_mov_b64 exec, s[22:23]\n" + t + "\ns_mov_b64 exec, -1"
        return (f"V{i}", t)
    wops = [(f"WO{m}", f"buffer_load_dwordx4 v[{WO+4*m}:{WO+4*m+3}], v11, s[40:43], s48 offen {wnt}\ns_add_u32 s48, s48, 7168") for m in range(4)]
    gops = [(f"GU{m}", f"global_load_dwordx4 v[{GU+4*m}:{GU+4*m+3}], v[{GA+2*m}:{GA+2*m+1}], off {wnt}") for m in range(4)]
    ops = [vop(i) for i in range(17)] + [("ML", mlg)]
    if wopos == "V": ops += wops
    if gupos == "V": ops += gops
    if wopos == "K": ops = wops + ops
    if gupos == "K": ops = gops + ops
    ops = ops[:qa] + [("G0", qg[0]), ("G1", qg[1])] + ops[qa:]
    if order:
        pool = {"V": [vop(i) for i in range(17)], "M": [("ML", mlg)], "W": list(wops), "U": list(gops), "G": [("G0", qg[0]), ("G1", qg[1])]}
        ops = []
        for c, n in re.findall(r"([A-Z])(\d*)", order):
            for _ in range(int(n) if n else len(pool[c])): ops.append(pool[c].pop(0))
        assert not any(pool[c] for c in "VMG") and bool(pool["U"]) == (gupos in ("B4", "B1"))
        gops, wlate = pool["U"], pool["W"]
    def next_op():
        if ops: issue(*ops.pop(0))

    w0 = int(w0) or W
    for i in range(16):
        if i == w0: arrived(0)
        issue(f"K{i}", f"s_xor_b32 s54, s98, {koff(i)}\nbuffer_load_dwordx4 v[{KR+4*i}:{KR+4*i+3}], v1, s[36:39], s54 offen {nt}")
        if i == kpre - 1: e("s_load_dword s31, s[26:27], 0\ns_barrier"); stamp(14)
        if i == w0 - 1:
            srd(32, 26, WS_SIZE); srd(40, 12, 4096*896); srd(44, 8, 67108864)
            ffn_scalars()
            masks(MK, 7, 8)
            e(f"""v_mov_b32 v246, 0
                  v_mov_b32 v244, 0xff
                  v_and_b32 v3, 3, v0
                  v_lshrrev_b32 v5, 5, v0
                  v_and_b32 v6, 31, v0
                  v_lshlrev_b32 v4, 11, v5
                  v_lshl_add_u32 v4, v6, 4, v4
                  s_lshl_b32 s61, s28, 13
                  s_lshl_b32 s62, s30, 9
                  s_add_u32 s61, s61, s62
                  s_add_u32 s61, s61, {QP}
                  s_add_u32 s62, s61, 4096
                  v_lshlrev_b32 v6, 3, v6
                  v_lshl_add_u32 v6, v5, 2, v6
                  s_lshl_b32 s56, s30, 8
                  v_add_u32 v6, s56, v6
                  v_xor_b32 v7, 64, v1
                  v_and_b32 v12, 15, v0
                  v_lshlrev_b32 v228, 9, v2
                  v_lshl_add_u32 v228, v12, 4, v228
                  s_and_b32 s57, s30, 1
                  s_lshr_b32 s60, s30, 1
                  s_lshl_b32 s56, s57, 8
                  s_add_u32 s99, s53, s56
                  s_lshl_b32 s56, s60, 11
                  s_add_u32 s99, s99, s56
                  v_lshlrev_b32 v229, 10, v5
                  v_and_b32 v13, 1, v2
                  v_lshl_add_u32 v229, v13, 8, v229
                  v_lshl_add_u32 v229, v12, 4, v229
                  s_lshl_b32 s53, s55, 11
                  s_lshl_b32 s56, s57, 9
                  s_add_u32 s53, s53, s56
                  s_add_u32 s53, s53, {OP}
                  s_lshl_b32 s56, s57, 10
                  v_lshl_add_u32 v238, v0, 4, s56
                  v_bfe_u32 v14, v0, 2, 1
                  v_lshl_add_u32 v239, v5, 1, v9
                  v_lshl_add_u32 v239, v14, 4, v239
                  v_lshl_add_u32 v239, v13, 5, v239
                  s_lshl_b32 s56, s30, 6
                  v_lshl_add_u32 v239, v239, 4, s56
                  s_lshl_b32 s56, s30, 2
                  v_lshl_add_u32 v240, v9, 4, s56
                  v_mov_b32 v243, s56
                  v_lshrrev_b32 v241, 3, v0
                  s_lshl_b32 s56, s60, 7
                  v_lshl_add_u32 v241, v241, 4, s56
                  v_lshlrev_b32 v242, 4, v9
                  v_lshl_add_u32 v14, v2, 1, v14
                  v_lshl_add_u32 v230, v14, 2, v3
                  v_lshlrev_b32 v230, 4, v230
                  v_lshlrev_b32 v231, 11, v14
                  v_lshl_add_u32 v231, v9, 6, v231
                  v_lshl_add_u32 v231, v3, 4, v231
                  s_lshl_b32 s3, s28, 9
                  s_add_u32 s3, s3, {ML}
                  v_lshlrev_b32 v232, 4, v13
                  v_lshl_add_u32 v232, v10, 5, v232
                  v_lshl_add_u32 v232, v9, 8, v232
                  s_lshl_b32 s56, s30, 9
                  v_add_u32 v232, s56, v232
                  v_lshl_add_u32 v11, v9, 5, v2
                  v_mul_u32_u24 v11, 896, v11
                  v_lshl_add_u32 v11, v10, 4, v11
                  s_lshl_b32 s48, s28, 9
                  s_lshl_b32 s56, s50, 7
                  s_add_u32 s48, s48, s56
                  s_lshl_b32 s56, s57, 6
                  s_add_u32 s48, s48, s56
                  s_lshl_b32 s56, s60, 2
                  s_add_u32 s48, s48, s56
                  s_mul_i32 s48, s48, 896
                  s_lshl_b32 s56, s51, 7
                  s_add_u32 s48, s48, s56
                  s_cmp_lt_u32 s29, 28
                  s_cselect_b32 s42, s42, 0
                  s_cselect_b32 s48, s48, 0
                  s_lshl_b32 s49, s51, 6
                  s_lshl_b32 s56, s30, 4
                  s_add_u32 s49, s49, s56
                  s_mul_i32 s63, s49, 3584
                  s_lshl_b32 s56, s100, 7
                  s_add_u32 s63, s63, s56
                  v_mul_u32_u24 v12, 3584, v2
                  v_lshl_add_u32 v12, v10, 4, v12
                  v_add_u32 v12, s63, v12
                  s_cmp_lt_u32 s52, 28
                  s_cselect_b32 s56, -1, 0
                  v_and_b32 v12, s56, v12
                  v_cmp_eq_u32 vcc, 0, v9
                  v_mov_b32 v13, s18
                  v_mov_b32 v14, s16
                  v_cndmask_b32 v13, v13, v14, vcc
                  v_mov_b32 v14, s19
                  v_mov_b32 v8, s17
                  v_cndmask_b32 v14, v14, v8, vcc
                  v_add_co_u32 v{GA}, vcc, v13, v12
                  v_addc_co_u32 v{GA+1}, vcc, 0, v14, vcc""")
            for m in range(1, 4):
                e(f"v_add_co_u32 v{GA+2*m}, vcc, 14336, v{GA+2*m-2}\nv_addc_co_u32 v{GA+2*m+1}, vcc, 0, v{GA+2*m-1}, vcc")
            e(f"""s_cmp_eq_u32 s60, 0
                  s_cselect_b64 s[22:23], -1, 0
                  v_lshl_add_u32 v233, v3, 2, v2
                  v_add_u32 v233, s49, v233
                  v_lshlrev_b32 v234, 2, v233
                  v_and_b32 v234, 0xff, v234
                  v_lshlrev_b32 v233, 1, v233
                  v_lshl_add_u32 v235, v2, 2, v3
                  v_add_u32 v235, s49, v235
                  v_lshlrev_b32 v235, 2, v235
                  v_and_b32 v13, 12, v0
                  v_cmp_eq_u32 vcc, 0, v13
                  v_mov_b32 v13, {OOB}
                  v_cndmask_b32 v235, v13, v235, vcc
                  v_lshrrev_b32 v236, 2, v0
                  v_lshlrev_b32 v236, 8, v236
                  v_lshl_add_u32 v236, v3, 4, v236
                  s_lshl_b32 s56, s30, 10
                  v_lshl_add_u32 v237, v0, 4, s56
                  s_mov_b32 s57, {CEXP}""")
        if i == W + 1:
            e("s_waitcnt lgkmcnt(0)")
            tags()
            e(f"""s_getreg_b32 s56, hwreg(HW_REG_XCC_ID, 0, 4)
                  s_and_b32 s63, s97, 0xf0
                  s_or_b32 s63, s63, s56
                  s_mov_b32 s58, {SPIN}""")
            lane_tag(8, 3, 13)
            qtag_reg(245, 3)
    stamp(1)
    while "G1" not in pos or state["n"] - W < pos["G1"]: next_op()
    arrived(pos["G1"])
    e("L_qpoll:")
    stamp(2)
    a = QG
    e(f"""v_bitop3_b32 v12, v{a}, v{a+1}, {T0} bitop3:0x7e
          v_bitop3_b32 v13, v{a+4}, v{a+5}, {T0} bitop3:0x7e
          v_bitop3_b32 v14, v{a+2}, v{a+6}, {T1} bitop3:0x7e
          v_bitop3_b32 v15, v{a+3}, v{a+7}, s63 bitop3:0x7e
          v_or3_b32 v12, v12, v13, v14
          v_and_b32 v13, 0xf0, v15
          v_or_b32 v12, v12, v13
          v_cmp_ne_u32_sdwa vcc, v12, v246 src0_sel:BYTE_0 src1_sel:DWORD
          s_cbranch_vccnz L_qretry
          L_qdone:
          v_and_b32 v15, 15, v15
          v_cmp_ne_u32 vcc, 0, v15""")
    extra.append("L_qretry:\ns_sub_u32 s58, s58, 1\ns_cbranch_scc1 L_qdone\n" + "\n".join(qg) + "\ns_waitcnt vmcnt(0)\ns_branch L_qpoll")
    next_op()
    for r in range(8): e(f"v_and_b32 v{a+r}, 0xffffff00, v{a+r}")
    e("s_cmp_eq_u64 vcc, 0\ns_cselect_b32 s56, %d, 1" % (1 if force_global else 0))
    for r in range(4): e(f"v_add_f32 v{a+r}, v{a+r}, v{a+4+r}")
    e(f"""v_mov_b32 v12, s56
          v_permlane32_swap_b32 v{a}, v{a+2}
          v_permlane32_swap_b32 v{a+1}, v{a+3}
          ds_write_b32 v243, v12 offset:{FLAGS}
          v_add_f32 v{a}, v{a}, v{a+2}
          v_add_f32 v{a+1}, v{a+1}, v{a+3}
          v_cvt_pk_bf16_f32 v{a}, v{a}, v{a+1}
          ds_write_b32 v6, v{a} offset:{QS}
          s_waitcnt lgkmcnt(0)
          s_barrier
          ds_read_b128 v[{QB}:{QB+3}], v1 offset:{QS}
          ds_read_b128 v[{QB+4}:{QB+7}], v7 offset:{QS}
          ds_read_b128 v[12:15], v246 offset:{FLAGS}
          ds_read_u16 v233, v233 offset:{XR}""")
    next_op()
    e("s_waitcnt lgkmcnt(0)")
    stamp(3)
    for m in list(range(0, 16, 2)) + list(range(1, 16, 2)):
        k, q = KR + 4*m, QB + 4*(m & 1)
        e(f"v_mfma_f32_16x16x32_bf16 v[{k}:{k+3}], v[{k}:{k+3}], v[{q}:{q+3}], 0")
    read_mode(12)
    e("v_lshlrev_b32 v233, 16, v233")
    for par in range(2):
        pat = (0xf0f00f0f, 0x0f0ff0f0)[par]
        e(f"s_mov_b32 exec_lo, {pat}\ns_mov_b32 exec_hi, {pat}")
        for r in range(4):
            for p in range(8):
                a = KR + 4*(2*p + par)
                if r == 0: e(f"v_mov_b32_dpp v{SC+p}, v{a} quad_perm:[0,0,0,0] row_mask:0xf bank_mask:0xf")
                else: e(f"v_add_f32_dpp v{SC+p}, v{a+r}, v{SC+p} quad_perm:[{r},{r},{r},{r}] row_mask:0xf bank_mask:0xf")
        e("s_mov_b64 exec, -1")
        if par == 0: next_op()
    Z = KR
    for u in range(4): e(f"v_permlane16_swap_b32 v{SC+2*u}, v{SC+2*u+1}")
    for u in range(4): e(f"v_add_f32_dpp v{Z+u}, v{SC+2*u+1}, v{SC+2*u} row_half_mirror row_mask:0xf bank_mask:0xf")
    for u in (0, 2): e(f"v_cvt_pk_bf16_f32 v{Z+u+1}, v{Z+u}, v{Z+u+1}")
    for u in (0, 2): e(f"v_lshlrev_b32 v{Z+u}, 16, v{Z+u+1}\nv_and_b32 v{Z+u+1}, 0xffff0000, v{Z+u+1}")
    e(f"v_max3_f32 v4, v{Z}, v{Z+1}, v{Z+2}\nv_max_f32 v4, v4, v{Z+3}")
    dpp_red("v_max_f32", [4], ["row_half_mirror"])
    xrow("v_max_f32", [4], [5])
    next_op()
    for u in range(4): e(f"v_sub_f32 v{Z+u}, v{Z+u}, v4")
    for u in range(4): e(f"v_mul_f32 v{Z+u}, s57, v{Z+u}")
    for u in range(4): e(f"v_exp_f32 v{Z+u}, v{Z+u}")
    e(f"v_add_f32 v5, v{Z}, v{Z+1}\nv_add_f32 v5, v5, v{Z+2}\nv_add_f32 v5, v5, v{Z+3}")
    dpp_red("v_add_f32", [5], ["row_half_mirror"])
    xrow("v_add_f32", [5], [6])
    e(f"""s_mov_b32 exec_lo, 0x11111111
          s_mov_b32 exec_hi, 0x11111111
          ds_write_b128 v239, v[{Z}:{Z+3}] offset:{EB}
          ds_write_b32 v240, v4 offset:{MLW}
          ds_write_b32 v240, v5 offset:{MLW+32}
          s_mov_b64 exec, -1
          s_waitcnt lgkmcnt(0)""")
    stamp(4)
    e(f"s_barrier\nds_read_b128 v[12:15], v242 offset:{MLW}")
    for mm in range(4): e(f"ds_read_b128 v[{PE+4*mm}:{PE+4*mm+3}], v241 offset:{EB+256*mm}")
    e(f"ds_read_b32 v{PE+16}, v241 offset:{EB+7*128+12}")
    next_op()
    e("s_waitcnt lgkmcnt(5)\nv_max3_f32 v4, v12, v13, v14\nv_max_f32 v4, v4, v15\nv_cmp_gt_u32 vcc, 32, v0")
    e("v_cndmask_b32 v12, v13, v12, vcc\nv_cndmask_b32 v13, v15, v14, vcc\nv_cndmask_b32 v12, v13, v12, s[22:23]")
    for w in range(2): e(f"v_sub_f32 v{12+w}, v{12+w}, v4")
    for w in range(2): e(f"v_mul_f32 v{12+w}, s57, v{12+w}")
    for w in range(2): e(f"v_exp_f32 v{12+w}, v{12+w}")
    e("s_waitcnt lgkmcnt(0)")
    for i in range(0, 16, 2): e(f"v_pk_mul_f32 v[{PE+i}:{PE+i+1}], v[{PE+i}:{PE+i+1}], v[12:13] op_sel:[0,0] op_sel_hi:[1,0]")
    e(f"v_mul_f32 v{PE+16}, v{PE+16}, v13")
    for i in range(17): e(f"v_cvt_pk_bf16_f32 v{PE+i}, v{PE+i}, v{PE+i}")
    stamp(5)
    def prep(i):
        p = PE + (4*(i & 3) + (i >> 2) if i < 16 else 16)
        for j in range(4): e(f"v_and_b32 v{AF+4*(i&3)+j}, v{p}, v{MK+j}")
    def pv(i):
        arrived(pos[f"V{i}"])
        a = AF + 4*(i & 3)
        e(f"v_mfma_f32_16x16x32_bf16 v[12:15], v[{a}:{a+3}], v[{VR+4*i}:{VR+4*i+3}], " + ("0" if i == 0 else "v[12:15]"))
    prep(0)
    since = 99
    for i in range(15):
        while ops and (since >= 5 or f"V{i}" not in pos or pos[f"V{i}"] > state["done"]):
            next_op(); since = 0
        prep(i + 1); pv(i); since += 1
        if i == int(ksplit): sec("K2", "L_K2"); e("s_nop 4")
    for name, t in ops:
        e(t); pos[name] = state["n"]; state["n"] += 1
    ops.clear()
    e(f"s_cmp_eq_u32 s60, 0\ns_cbranch_scc1 L_keep\nds_write_b128 v238, v[12:15] offset:{PR}\ns_waitcnt lgkmcnt(0)\ns_barrier\ns_branch L_joined\nL_keep:")
    saved = dict(state)
    prep(16); pv(15)
    e(f"s_barrier\nds_read_b128 v[4:7], v238 offset:{PR}")
    pv(16)
    e("s_waitcnt lgkmcnt(0)")
    pk_add4(12, 12, 4)
    e("v_bfi_b32 v12, v244, v245, v12")
    if opsc: e("buffer_store_dwordx4 v[12:15], v229, s[32:35], s53 offen sc1")
    else: mode_store(["buffer_store_dwordx4 v[12:15], v229, s[32:35], s53 offen"])
    e("L_joined:")
    state.update(saved)
    stamp(6)
    e(f"""s_cmp_ge_u32 s29, 28
          s_cbranch_scc1 {"L_dirty" if int(dirty) else "L_end"}
          s_lshl_b32 s60, s28, 16
          s_lshl_b32 s56, s50, 9
          s_add_u32 s60, s60, s56
          s_lshl_b32 s56, s30, 7
          s_add_u32 s60, s60, s56
          s_add_u32 s60, s60, {OP}
          s_add_u32 s61, s60, 16384
          s_add_u32 s62, s60, 32768
          s_add_u32 s63, s60, 49152
          s_mov_b32 s58, {SPIN}
          s_barrier""")
    stamp(7)
    opg = [(f"buffer_load_dwordx4 v[{16+4*i}:{19+4*i}], v231, s[32:35], s{60+i} offen sc1", 16 + 4*i) for i in range(4)]
    for name, t in wlate:
        e(t); pos[name] = state["n"]; state["n"] += 1
    km, opat = state["n"] - 1 - pos["ML"], int(opat)
    def left(k, x=0):
        if k < len(wlate): e(f"s_waitcnt vmcnt({k+x})"); return
        k += x
        l1, l2 = lab("lf"), lab("lf")
        e(f"s_cmp_gt_u32 s30, 1\ns_cbranch_scc1 {l1}\ns_waitcnt vmcnt({k+1})\ns_branch {l2}\n{l1}:\ns_waitcnt vmcnt({k})\n{l2}:")
    if opat >= km:
        if opat < 20: left(opat)
        for t, b in opg: e(t)
        if opat > km: left(km, 4)
    else:
        e("s_mov_b32 s101, 0"); left(km)
    e("L_mlchk:")
    check(MG, 4, 247)
    e("s_cmp_lg_u64 s[4:5], 0\ns_cbranch_scc1 L_mlretry\nL_mldone:")
    extra2 = ["L_mlretry:\ns_sub_u32 s58, s58, 1\ns_cbranch_scc1 L_mldone\ns_mov_b32 s101, 1\n" + mlg + "\n" + "\n".join(t for t, b in opg) + "\ns_waitcnt vmcnt(4)\ns_branch L_mlchk"]
    e(f"""s_cmp_ge_u32 s50, 2
          s_cselect_b64 vcc, -1, 0
          v_cndmask_b32 v4, v{MG}, v{MG+2}, vcc
          v_cndmask_b32 v5, v{MG+1}, v{MG+3}, vcc
          v_and_b32 v4, 0xffff0000, v4
          v_and_b32 v5, 0xffffff00, v5
          v_mov_b32 v6, v4""")
    q8 = ["quad_perm:[1,0,3,2]", "quad_perm:[2,3,0,1]", "row_half_mirror"]
    dpp_red("v_max_f32", [6], q8); xrow("v_max_f32", [6], [7])
    e("v_sub_f32 v4, v4, v6\nv_mul_f32 v4, s57, v4\nv_exp_f32 v4, v4\nv_mul_f32 v6, v4, v5")
    dpp_red("v_add_f32", [6], q8); xrow("v_add_f32", [6], [7])
    e("v_rcp_f32 v6, v6\nv_mul_f32 v4, v4, v6")
    for i in range(4): e(f"v_mov_b32_dpp v{32+i}, v4 quad_perm:[{i},{i},{i},{i}] row_mask:0xf bank_mask:0xf")
    stamp(12)
    if opat < km:
        e("s_cmp_lg_u32 s101, 0\ns_cbranch_scc1 L_opsent")
        left(opat)
        for t, b in opg: e(t)
        e("L_opsent:")
    poll(opg, 4, issued=True, quad=245)
    stamp(8)
    def gu_at(k):
        if gupos == "B1":
            for (name, t), c in zip(gops, gi):
                if int(c) == k: e(t)
    if gupos == "B1": e("s_barrier")
    gu_at(0)
    for i in range(4):
        w, s = 32 + (i & 2), i & 1
        for p in (0, 2):
            if i == 0: e(f"v_pk_mul_f32 v[{36+p}:{37+p}], v[{16+p}:{17+p}], v[{w}:{w+1}] op_sel:[0,0] op_sel_hi:[1,0]")
            else: e(f"v_pk_fma_f32 v[{36+p}:{37+p}], v[{16+4*i+p}:{17+4*i+p}], v[{w}:{w+1}], v[{36+p}:{37+p}] op_sel:[0,{s},0] op_sel_hi:[1,{s},1]")
    gu_at(1)
    trows(36)
    gu_at(2)
    e("""v_add_f32_dpp v37, v36, v36 row_shr:4 row_mask:0xf bank_mask:0xa
         v_add_f32_dpp v37, v36, v36 row_shl:4 row_mask:0xf bank_mask:0x5
         v_cvt_pk_bf16_f32 v37, v37, v37""")
    gu_at(3)
    def gemv4(src, wbase, bank):
        for m in range(5):
            if m < 4:
                for j in range(4): e(f"v_and_b32_dpp v{AF+4*m+j}, v{src}, v{MK+j} quad_perm:[{m},{m},{m},{m}] row_mask:0xf bank_mask:{bank}")
            if m >= 1:
                p = m - 1
                e(f"v_mfma_f32_16x16x32_bf16 v[40:43], v[{AF+4*p}:{AF+4*p+3}], v[{wbase+4*p}:{wbase+4*p+3}], " + ("0" if p == 0 else "v[40:43]"))
    gemv4(37, WO, "0xf")
    gu_at(4)
    e(f"""s_mov_b32 exec_lo, 0x00ff00ff
          s_mov_b32 exec_hi, 0xff00ff00
          ds_write_b128 v232, v[40:43] offset:{RED}
          s_mov_b64 exec, -1
          s_waitcnt lgkmcnt(0)""")
    stamp(9)
    e(f"""s_barrier
          s_cmp_ge_u32 s52, 28
          s_cbranch_scc1 L_end
          v_mov_b32 v16, 0x3f803f80
          s_mul_i32 s60, s51, {BS}
          s_lshl_b32 s56, s30, 6
          s_add_u32 s60, s60, s56
          s_add_u32 s60, s60, {CP}""")
    if home == "v":
        e(f"""v_and_b32 v17, 0x100, v{MG}
              v_cmp_ne_u32 vcc, 0, v17
              s_bcnt1_i32_b64 s56, vcc
              s_cmp_lt_u32 s56, 26
              s_cselect_b32 s56, 8192, 0""")
    else: e(f"s_lshr_b32 s56, s28, 2\ns_xor_b32 s56, s56, {home}\ns_lshl_b32 s56, s56, 13")
    e(f"s_add_u32 s60, s60, s56\nv_mov_b32 v17, s56\nds_write_b32 v246, v17 offset:{FLAGS+16}")
    e(f"""s_add_u32 s61, s60, 4096
          s_lshl_b32 s62, s52, 11
          s_add_u32 s62, s62, {HH}
          s_mov_b32 s63, 0xffff0000""")
    for m in range(4):
        for j in range(4): e(f"v_and_b32 v{AF+4*m+j}, v16, v{MK+j}")
    if gupos == "B4":
        for name, t in gops: e(t)
    for r in range(4): e(f"v_and_b32 v{20+r}, {TAGS[r]}, v244")
    e("v_lshlrev_b32 v1, 4, v0")
    poll_init(2, 4)
    if cack: e("s_barrier")
    assert ct
    if ct:
        for r in range(4): e(f"v_mov_b32 v{16+r}, 0")
        poll_sum(lambda i, b: f"buffer_load_dwordx4 v[{b}:{b+3}], v236, s[32:35], s{60+i} offen sc1", 16, 48, 245, ct)
        stamp(10)
    else:
        poll([(f"buffer_load_dwordx4 v[{16+4*i}:{19+4*i}], v236, s[32:35], s{60+i} offen sc1", 16 + 4*i) for i in range(2)], 4, quad=245)
        stamp(10)
        pk_add4(16, 16, 20)
    trows(16)
    dpp_red("v_add_f32", [16], ["row_ror:4", "row_ror:8"])
    bfround(16)
    e("v_add_f32 v16, v16, v233\nv_cvt_pk_bf16_f32 v16, v16, v16\nv_and_or_b32 v17, v16, s63, v8")
    mode_store(["buffer_store_dword v17, v235, s[32:35], s62 offen"])
    e(f"ds_write_b32 v234, v17 offset:{HL}")
    gemv4(16, GU, "0x3")
    e(f"ds_write_b128 v237, v[40:43] offset:{RED2}\ns_waitcnt lgkmcnt(0)")
    stamp(11)
    e(f"s_barrier\ns_cmp_lg_u32 s30, {sw}\ns_cbranch_scc1 L_end")
    L48 = (1 << 48) - 1
    r16 = ["row_ror:8", "row_ror:4", "row_ror:2", "row_ror:1"]
    poll_init(2, 4, {1: L48})
    poll([("buffer_load_dwordx4 v[16:19], v1, s[32:35], s62 offen sc1", 16), ("buffer_load_dwordx4 v[20:23], v1, s[32:35], s62 offen offset:1024 sc1", 20)], 4)
    for r in range(8): e(f"v_and_b32 v{16+r}, 0xffff0000, v{16+r}")
    e("""v_pk_add_f32 v[28:29], v[16:17], v[18:19]
         v_pk_mul_f32 v[30:31], v[16:17], v[16:17]
         v_pk_add_f32 v[28:29], v[28:29], v[20:21]
         v_pk_fma_f32 v[30:31], v[18:19], v[18:19], v[30:31]
         v_pk_add_f32 v[28:29], v[28:29], v[22:23]
         v_pk_fma_f32 v[30:31], v[20:21], v[20:21], v[30:31]
         v_add_f32 v40, v28, v29
         v_pk_fma_f32 v[30:31], v[22:23], v[22:23], v[30:31]
         v_add_f32 v41, v30, v31""")
    dpp_red("v_add_f32", [40, 41], r16)
    xrow("v_add_f32", [40, 41], [42, 43])
    e(f"""v_mul_f32 v40, {f2u(1/448)}, v40
          v_mul_f32 v41, {f2u(1/448)}, v41
          v_fma_f32 v41, -v40, v40, v41
          v_max_f32 v41, 0, v41""")
    bfround(40); bfround(41)
    e(f"v_add_f32 v41, {f2u(1e-5)}, v41"); bfround(41)
    e("v_sqrt_f32 v41, v41"); bfround(41)
    e("v_rcp_f32 v41, v41")
    e(f"ds_write_b64 v246, v[40:41] offset:{FLAGS+24}\ns_waitcnt lgkmcnt(0)")
    stamp(13)
    e("s_barrier\nL_end:")
    finish()
    sec("K0")
    for t in extra2: e(t)
    if int(dirty):
        sec("Q3x")
        e(f"""L_dirty:
              s_mov_b32 s34, 0x4000000
              s_lshl_b32 s56, s55, 2
              s_add_u32 s56, s56, s30
              s_mul_i32 s56, s56, {abs(int(dirty))*1024}
              s_add_u32 s56, s56, 0x400000
              s_mov_b32 s57, {abs(int(dirty))}
              v_lshlrev_b32 v1, 4, v0
              L_dloop:
              buffer_store_dwordx4 v[12:15], v1, s[32:35], s56 offen {"sc1" if int(dirty) < 0 else ""}
              s_add_u32 s56, s56, 1024
              s_sub_u32 s57, s57, 1
              s_cmp_lg_u32 s57, 0
              s_cbranch_scc1 L_dloop
              s_branch L_end""")

    WQ, F, XA, MK, DN = 16, 80, 96, 112, 128
    ctm = {"0": "s_lshr_b32 s48, s29, 3\ns_and_b32 s49, s29, 7", "1": "s_lshr_b32 s48, s29, 3\ns_add_u32 s49, s29, 1\ns_and_b32 s49, s49, 7",
           "t": "s_lshr_b32 s49, s29, 2\ns_and_b32 s48, s29, 3", "u": "s_lshr_b32 s49, s29, 2\ns_xor_b32 s49, s49, 4\ns_and_b32 s48, s29, 3"}[ctmap]
    sec("A")
    e(f"""s_setprio 3
          v_lshlrev_b32 v1, 4, v0
          v_lshrrev_b32 v2, 3, v0
          v_and_b32 v3, 7, v0
          v_mul_u32_u24 v4, {14*8192}, v2
          v_lshl_add_u32 v4, v3, 4, v4
          {ctm}
          s_mul_i32 s54, s48, {112*8192}
          s_lshl_b32 s56, s28, 10
          s_add_u32 s54, s54, s56
          s_lshl_b32 s56, s49, 7
          s_add_u32 s54, s54, s56""")
    srd_hi(40, 896); srd_hi(36, 448*8192)
    stamp(15)
    e("s_waitcnt lgkmcnt(0)")
    srd_lo(40, 4)
    e("buffer_load_dwordx4 v[8:11], v1, s[40:43], 0 offen")
    srd_lo(36, 10)
    for i in range(14):
        e(f"buffer_load_dwordx4 v[{WQ+4*i}:{WQ+4*i+3}], v4, s[36:39], s54 offen {wnt if qnt is None else qnt}")
        if i < 13: e("s_add_u32 s54, s54, 8192")
    e("s_load_dword s31, s[26:27], 0\ns_barrier")
    sec("Q1", "L_Q1")
    tlb = int(tlb)
    if tlb:
        e(f"""s_lshl_b32 s54, s28, 23
              s_add_u32 s54, s54, 6291456
              s_add_u32 s60, s8, s54
              s_addc_u32 s61, s9, 0
              s_mul_i32 s54, s28, {512*896}
              s_add_u32 s62, s12, s54
              s_addc_u32 s63, s13, 0
              s_add_u32 s56, s62, {512*896-128}
              s_addc_u32 s57, s63, 0
              v_mov_b32 v12, s60
              v_mov_b32 v13, s61""")
        for ln, r in enumerate((62, 56, 16, 18, 20, 22, 26)):
            e(f"v_writelane_b32 v12, s{r}, {ln+1}\nv_writelane_b32 v13, s{r+1}, {ln+1}")
        e("s_mov_b64 exec, 0xff\nglobal_load_dword v250, v[12:13], off\ns_mov_b64 exec, -1")
    srd(32, 26, WS_SIZE); srd(40, 22, 896); srd(44, 20, 1792*896)
    ffn_scalars()
    masks(MK, 72, 73)
    e("v_mov_b32 v246, 0\nv_mov_b32 v245, 0xff\ns_waitcnt vmcnt(%d)" % (14 + (tlb > 0)))
    skew_store = f"s_lshl_b32 s56, s2, 2\ns_add_u32 s56, s56, {STAMP}\nv_mov_b32 v13, s64\nbuffer_store_dword v13, v246, s[32:35], s56 offen sc1"
    stamp(1)
    e(f"ds_write_b128 v1, v[8:11] offset:{XR}")
    for i in range(4): e(f"v_lshlrev_b32 v{F+2*i}, 16, v{8+i}\nv_and_b32 v{F+2*i+1}, 0xffff0000, v{8+i}")
    e(f"v_add_f32 v72, v{F}, v{F+1}")
    for i in range(2, 8): e(f"v_add_f32 v72, v72, v{F+i}")
    r16 = ["row_ror:8", "row_ror:4", "row_ror:2", "row_ror:1"]
    dpp_red("v_add_f32", [72], r16)
    xrow("v_add_f32", [72], [73])
    e(f"v_mul_f32 v72, {f2u(1/448)}, v72\nv_mov_b32 v73, 0")
    for i in range(8): e(f"v_sub_f32 v74, v{F+i}, v72\nv_fmac_f32 v73, v74, v74")
    e("v_cmp_gt_u32 vcc, 56, v0\nv_cndmask_b32 v73, 0, v73, vcc")
    dpp_red("v_add_f32", [73], r16)
    xrow("v_add_f32", [73], [74])
    e(f"v_mul_f32 v73, {f2u(1/448)}, v73")
    bfround(72); bfround(73)
    e(f"v_add_f32 v73, {f2u(1e-5)}, v73"); bfround(73)
    e("v_sqrt_f32 v73, v73"); bfround(73)
    e("v_rcp_f32 v74, v73")
    for i in range(8): e(f"v_sub_f32 v{F+i}, v{F+i}, v72")
    for i in range(0, 8, 2): e(f"v_cvt_pk_bf16_f32 v{F+i+1}, v{F+i}, v{F+i+1}")
    for i in range(0, 8, 2): e(f"v_lshlrev_b32 v{F+i}, 16, v{F+i+1}\nv_and_b32 v{F+i+1}, 0xffff0000, v{F+i+1}")
    for i in range(8): e(f"v_mul_f32 v{F+8+i}, v{F+i}, v74")
    for i in range(8): e(f"v_fma_f32 v{F+i}, -v{F+8+i}, v73, v{F+i}")
    for i in range(8): e(f"v_fmac_f32 v{F+8+i}, v{F+i}, v74")
    for i in range(8): e(f"v_cvt_pk_bf16_f32 v{F+i}, v{F+8+i}, v{F+8+i}")
    e(f"""v_lshlrev_b32 v72, 5, v0
          ds_write_b128 v72, v[{F}:{F+3}] offset:{XN}
          ds_write_b128 v72, v[{F+4}:{F+7}] offset:{XN+16}
          v_mul_u32_u24 v73, 56, v2
          s_mul_i32 s56, s48, 448
          v_add_u32 v73, s56, v73
          s_waitcnt lgkmcnt(0)""")
    for i in range(7): e(f"ds_read_b64 v[{XA+2*i}:{XA+2*i+1}], v73 offset:{XN+8*i}")
    tags()
    e(f"""s_getreg_b32 s56, hwreg(HW_REG_XCC_ID, 0, 4)
          s_and_b32 s63, s97, 0xf0
          s_or_b32 s63, s63, s56
          s_waitcnt lgkmcnt(0)""")
    stamp(2)
    for i in range(15):
        if i < 14:
            a = (116, 120)[i & 1]
            for j in range(4): e(f"v_and_b32 v{a+j}, v{XA+i}, v{MK+j}")
        if i >= 1:
            p = i - 1; a = (116, 120)[p & 1]
            e(f"s_waitcnt vmcnt({13-p+(tlb > 0)})\nv_mfma_f32_16x16x32_bf16 v[8:11], v[{a}:{a+3}], v[{WQ+4*p}:{WQ+4*p+3}], " + ("0" if p == 0 else "v[8:11]"))
    e(f"""v_lshrrev_b32 v5, 4, v0
          v_lshlrev_b32 v72, 4, v5
          v_lshl_add_u32 v72, v3, 5, v72
          v_and_b32 v73, 40, v0
          v_mov_b32 v12, {OOB}
          v_cmp_eq_u32 vcc, 0, v73
          v_cndmask_b32 v72, v12, v72, vcc
          s_lshl_b32 s54, s28, 13
          s_add_u32 s54, s54, {QP}
          s_lshl_b32 s56, s48, 11
          s_add_u32 s56, s56, s54
          s_lshl_b32 s61, s49, 8
          s_add_u32 s56, s56, s61""")
    for r in range(4): e(f"v_mov_b32_dpp v{F+r}, v{8+r} row_ror:8 row_mask:0xf bank_mask:0xf")
    for r in range(4): e(f"v_permlane32_swap_b32 v{F+r}, v{F+4+r}")
    for r in range(4): e(f"v_add_f32 v{8+r}, v{8+r}, v{F+4+r}")
    for r in range(4): e(f"v_add_u32 v{8+r}, 0x80, v{8+r}")
    tag4(8, 245, "s63")
    e("buffer_store_dwordx4 v[8:11], v72, s[32:35], s56 offen sc1")
    stamp(3)
    if skew is not None: e(skew_store)
    e(f"""s_lshr_b32 s53, s2, 6
          s_lshl_b32 s53, s53, 14
          s_and_b32 s56, s2, 63
          s_lshl_b32 s56, s56, 7
          s_add_u32 s53, s53, s56
          s_add_u32 s53, s53, {PB}
          v_lshlrev_b32 v6, 10, v0
          v_and_b32 v6, 0x2000, v6
          v_lshl_add_u32 v6, v3, 4, v6""")
    for r in range(4): e(f"v_mov_b32 v{16+r}, 0x100")
    e("s_mov_b64 exec, 0xffff\nbuffer_store_dwordx4 v[16:19], v6, s[32:35], s53 offen sc1\ns_mov_b64 exec, -1")
    e(f"""s_setprio 0
          s_lshl_b32 s54, s55, 11
          s_add_u32 s54, s54, {OP}
          v_lshl_add_u32 v6, v0, 7, s54
          s_lshr_b32 s48, s29, 3
          s_and_b32 s49, s29, 7
          s_lshl_b32 s60, s49, 6
          s_lshl_b32 s56, s48, 4
          s_add_u32 s60, s60, s56
          s_lshl_b32 s56, s28, 9
          s_add_u32 s60, s60, s56
          s_add_u32 s60, s60, {ML}
          s_mul_i32 s61, s52, 7168
          s_add_u32 s61, s61, {DP}
          s_lshl_b32 s56, s51, 10
          s_add_u32 s62, s61, s56
          s_sub_u32 s56, s62, {16*128}
          v_lshl_add_u32 v7, v0, 7, s56
          v_cmp_gt_u32 vcc, 16, v0
          v_cndmask_b32 v6, v7, v6, vcc
          s_lshl_b32 s63, s52, 11
          s_add_u32 s63, s63, {HH}
          s_lshl_b32 s56, s51, 8
          s_add_u32 s56, s56, s63
          v_writelane_b32 v6, s56, 24
          s_add_u32 s56, s56, 128
          v_writelane_b32 v6, s56, 25
          v_writelane_b32 v6, s60, 26
          s_cmp_lt_u32 s52, 28
          s_cselect_b32 s56, 0x03ff0000, 0
          s_or_b32 exec_lo, s56, 0x0400ffff
          s_mov_b32 exec_hi, 0
          buffer_load_dword v13, v6, s[32:35], 0 offen sc1
          s_mov_b64 exec, -1
          v_cmp_eq_u32 vcc, 0, v0
          v_cndmask_b32 v14, v12, v0, vcc
          v_and_b32 v72, 1, v0
          v_lshlrev_b32 v72, 4, v72
          s_mov_b32 s57, {CEXP}
          v_and_b32 v3, 3, v0
          v_and_b32 v6, 1, v5
          v_lshlrev_b32 v6, 2, v6
          v_lshrrev_b32 v7, 1, v5
          v_lshl_add_u32 v6, v7, 1, v6
          v_mul_u32_u24 v6, 896, v6
          v_and_b32 v7, 15, v0
          v_lshl_add_u32 v6, v7, 3, v6
          s_mul_i32 s48, s100, 57344
          s_lshl_b32 s56, s51, 7
          s_add_u32 s48, s48, s56
          s_mul_i32 s49, s51, {BS}
          s_lshl_b32 s56, s28, 10
          s_add_u32 s49, s49, s56
          s_lshl_b32 s56, s50, 8
          s_add_u32 s49, s49, s56
          s_add_u32 s49, s49, {CP}
          v_lshlrev_b32 v2, 2, v0""")
    qtag_reg(244, 3)
    e("v_bfe_u32 v15, v0, 2, 2")
    qtag_reg(15, 15)
    e("v_cmp_eq_u32 vcc, 0, v3\nv_cndmask_b32 v243, 0, v245, vcc")
    e(f"""s_mul_i32 s54, s51, {BS}
          s_add_u32 s54, s54, {EP}
          s_lshl_b32 s56, s52, 8
          s_add_u32 s54, s54, s56
          v_lshlrev_b32 v249, 7, v0
          v_lshlrev_b32 v250, 12, v0
          v_and_b32 v249, 0x80, v249
          v_and_b32 v250, 0x2000, v250
          v_or_b32 v249, v249, v250
          s_cmp_ge_u32 s29, 28
          s_cbranch_scc1 L_nopre
          s_mov_b64 exec, 15
          buffer_load_dword v250, v249, s[32:35], s49 offen sc1
          s_cmp_ge_u32 s52, 28
          s_cbranch_scc1 L_nopre
          buffer_load_dword v250, v249, s[32:35], s54 offen sc1
          L_nopre:
          s_mov_b64 exec, -1""")
    def load_dn(guard=True):
        skip = lab("nodn")
        if guard: e(f"s_cmp_ge_u32 s52, 28\ns_cbranch_scc1 {skip}")
        for i in range(8):
            for hi in range(2):
                d = DN + 2*(8*hi + i)
                e(f"buffer_load_dwordx2 v[{d}:{d+1}], v6, s[44:47], s48 offen offset:{896*hi} {wnt}")
            if i < 7: e("s_add_u32 s48, s48, 7168")
        e(f"{skip}:")
    if dnpos == "K": load_dn()
    e("""s_waitcnt vmcnt(0)
         s_mov_b32 s99, 0
         s_load_dword s98, s[26:27], s53 offset:0
         s_load_dword s99, s[26:27], s53 offset:8192
         s_waitcnt lgkmcnt(1)
         s_andn2_b32 s101, 0x100, s99""")
    sec("Q2", "L_Q2")
    sec("Q3", "L_Q3")
    e(f"s_barrier\nds_read_b128 v[24:27], v246 offset:{FLAGS}\ns_waitcnt lgkmcnt(0)")
    read_mode(24)
    if dnpos == "q": load_dn()
    e("s_setprio 3\ns_barrier")
    stamp(4)
    e(f"""
          ds_read_b128 v[16:19], v72 offset:{MLW}
          ds_read_b128 v[20:23], v72 offset:{MLW+32}
          s_waitcnt lgkmcnt(0)
          v_max3_f32 v8, v16, v17, v18
          v_max_f32 v8, v8, v19""")
    for w in range(4): e(f"v_sub_f32 v{16+w}, v{16+w}, v8")
    for w in range(4): e(f"v_mul_f32 v{16+w}, s57, v{16+w}")
    for w in range(4): e(f"v_exp_f32 v{16+w}, v{16+w}")
    e("""v_mul_f32 v9, v16, v20
         v_fmac_f32 v9, v17, v21
         v_fmac_f32 v9, v18, v22
         v_fmac_f32 v9, v19, v23
         v_mov_b32_dpp v10, v8 quad_perm:[1,1,1,1] row_mask:0xf bank_mask:0xf
         v_mov_b32_dpp v11, v9 quad_perm:[1,1,1,1] row_mask:0xf bank_mask:0xf""")
    e("v_or_b32 v8, s101, v8")
    tag4(8, 245)
    if mlsc: e("buffer_store_dwordx4 v[8:11], v14, s[32:35], s60 offen sc1")
    else: mode_store(["buffer_store_dwordx4 v[8:11], v14, s[32:35], s60 offen"])
    stamp(5)
    e("s_cmp_ge_u32 s29, 28\ns_cbranch_scc1 L_end\ns_setprio 0")
    if dnpos == "p": load_dn()
    e("s_add_u32 s53, s49, 8192")
    e("s_barrier")
    if dnpos == "h": e("s_barrier"); load_dn()
    else: e("s_barrier")
    if gupos == "B1": e("s_barrier")
    e("s_setprio 3\ns_barrier")
    stamp(6)
    if dnpos == "B3": load_dn()
    for k in range(4): e(f"ds_read2st64_b32 v[{16+2*k}:{17+2*k}], v2 offset0:{RED//256+2*k} offset1:{RED//256+2*k+1}")
    e("""s_waitcnt lgkmcnt(2)
         v_pk_add_f32 v[16:17], v[16:17], v[18:19]
         s_waitcnt lgkmcnt(0)
         v_pk_add_f32 v[20:21], v[20:21], v[22:23]
         v_pk_add_f32 v[16:17], v[16:17], v[20:21]
         v_add_f32 v16, v16, v17
         v_bfi_b32 v16, v243, v15, v16
         buffer_store_dword v16, v2, s[32:35], s49 offen sc1
         buffer_store_dword v16, v2, s[32:35], s53 offen sc1""")
    stamp(7)
    e("s_setprio 0\ns_cmp_ge_u32 s52, 28\ns_cbranch_scc1 L_end")
    if dnpos == "B4": load_dn(False)
    if cack: e("s_waitcnt vmcnt(%d)\ns_barrier" % (16 if dnpos == "B4" else 0))
    if dnpos == "B5": load_dn(False)
    for r in range(4): e(f"v_mov_b32 v{84+r}, {'v244' if r == 0 else 0}")
    DS = (20, 21, 22, 23, 24, 25)
    for p in range(6):
        e(f"s_add_u32 s56, s51, {p+1}\ns_sub_u32 s60, s56, 7\ns_cselect_b32 s56, s56, s60\ns_lshl_b32 s56, s56, 10\ns_add_u32 s{DS[p]}, s56, s61")
    e(f"""
          s_mul_i32 s54, s51, {BS}
          s_add_u32 s54, s54, {EP}
          s_lshl_b32 s56, s52, 8
          s_add_u32 s49, s54, s56
          v_cmp_gt_u32 vcc, 16, v0
          v_cndmask_b32 v4, v12, v1, vcc
          s_sub_u32 s50, s52, 4
          s_lshl_b32 s56, s50, 6
          s_add_u32 s54, s54, s56
          s_add_u32 s53, s54, 4096
          v_lshrrev_b32 v7, 2, v0
          v_lshlrev_b32 v7, 8, v7
          v_lshl_add_u32 v7, v3, 4, v7
          v_lshl_add_u32 v8, v3, 2, v5
          v_lshl_add_u32 v9, v8, 2, s56
          v_and_b32 v9, 0xff, v9
          v_lshlrev_b32 v8, 1, v8
          v_and_b32 v10, 12, v0
          v_cmp_eq_u32 vcc, 0, v10
          v_cndmask_b32 v8, v12, v8, vcc
          s_lshl_b32 s55, s51, 7
          s_lshl_b32 s56, s50, 5
          s_add_u32 s55, s55, s56""")
    L48 = (1 << 48) - 1
    e(f"s_mov_b32 s58, {SPIN}")
    e("s_setprio 3\ns_barrier")
    stamp(8)
    for k in range(4): e(f"ds_read_b128 v[{24+4*k}:{27+4*k}], v1 offset:{RED2+1024*k}")
    e("s_waitcnt lgkmcnt(2)")
    pk_add4(24, 24, 28)
    e("s_waitcnt lgkmcnt(0)")
    pk_add4(32, 32, 36); pk_add4(24, 24, 32)
    e("v_bfi_b32 v24, v245, v244, v24")
    mode_store(["buffer_store_dwordx4 v[24:27], v1, s[32:35], s62 offen"])
    stamp(9)
    dg = [(f"buffer_load_dwordx4 v[{44+4*p}:{47+4*p}], v1, s[32:35], s{DS[p]} offen sc1", 44 + 4*p) for p in range(6)]
    for t, b in dg: e(t)
    e(f"""ds_read_b32 v13, v9 offset:{HL}
          ds_read_b32 v11, v246 offset:{FLAGS+16}
          v_and_b32 v24, 0xffffff00, v24
          s_waitcnt lgkmcnt(0)
          v_and_b32 v13, 0xffff0000, v13
          v_add_u32 v7, v7, v11
          v_add_u32 v4, v4, v11
          v_xor_b32 v10, 0x2000, v4""")
    stamp(10)
    poll(dg, 8, issued=True, quad=244, pre=f"s_barrier\nds_read_b64 v[40:41], v246 offset:{FLAGS+24}")
    stamp(11)
    pk_add4(44, 44, 48); pk_add4(52, 52, 56); pk_add4(60, 60, 64)
    pk_add4(44, 44, 24); pk_add4(52, 52, 60); pk_add4(44, 44, 52)
    e("s_waitcnt lgkmcnt(0)")
    e("""v_permlane32_swap_b32 v44, v46
         v_permlane32_swap_b32 v45, v47
         v_fma_f32 v44, -v40, v46, v44
         v_fma_f32 v45, -v40, v47, v45
         v_mul_f32 v44, v44, v41
         v_mul_f32 v45, v45, v41
         v_mov_b32 v46, v44
         v_mov_b32_dpp v44, v45 row_ror:8 row_mask:0xf bank_mask:0xc
         v_mov_b32_dpp v45, v46 row_ror:8 row_mask:0xf bank_mask:0x3
         v_cvt_pk_bf16_f32 v45, v44, v45
         v_lshlrev_b32 v44, 16, v45
         v_and_b32 v45, 0xffff0000, v45""")
    k0 = -2.0 * 0.7978845608028654 * 1.4426950408889634
    e(f"""v_mul_f32 v46, v44, v44
          v_mul_f32 v46, {f2u(k0*0.044715)}, v46
          v_add_f32 v46, {f2u(k0)}, v46
          v_mul_f32 v46, v46, v44
          v_exp_f32 v46, v46
          v_add_f32 v46, 1.0, v46
          v_rcp_f32 v46, v46
          v_mul_f32 v46, v46, v44""")
    bfround(46)
    e("v_mul_f32 v46, v46, v45\nv_cvt_pk_bf16_f32 v46, v46, v46")
    for i in range(17):
        if i < 16:
            a = 116 + 2*(i & 3)
            for j in range(2): e(f"v_and_b32_dpp v{a+j}, v46, v{MK+j} row_newbcast:{i} row_mask:0xf bank_mask:0xf")
        if i >= 1:
            p = i - 1; ap = 116 + 2*(p & 3)
            e(f"v_mfma_f32_16x16x16_bf16 v[32:35], v[{ap}:{ap+1}], v[{DN+2*p}:{DN+2*p+1}], " + ("0" if p == 0 else "v[32:35]"))
    poll_init(2, 4, {1: L48})
    e("v_bfi_b32 v32, v245, v244, v32")
    e("buffer_store_dwordx4 v[32:35], v4, s[32:35], s49 offen sc1")
    e("buffer_store_dwordx4 v[32:35], v10, s[32:35], s49 offen sc1")
    stamp(12)
    e("s_cmp_gt_u32 s50, 3\ns_cbranch_scc1 L_end")
    if et:
        for r in range(4): e(f"v_mov_b32 v{80+r}, 0")
        poll_sum(lambda i, b: f"buffer_load_dwordx4 v[{b}:{b+3}], v7, s[32:35], {('s54', 's53')[i]} offen sc1", 80, 160, 244, et)
        stamp(13)
    else:
        if eack: e("s_waitcnt vmcnt(%d)" % (1 if eack == "1" else 0))
        poll([("buffer_load_dwordx4 v[80:83], v7, s[32:35], s54 offen sc1", 80), ("buffer_load_dwordx4 v[84:87], v7, s[32:35], s53 offen sc1", 84)], 4, quad=244)
        stamp(13)
        pk_add4(80, 80, 84)
    trows(80)
    dpp_red("v_add_f32", [80], ["row_ror:4", "row_ror:8"])
    bfround(80)
    e(f"""v_add_f32 v80, v80, v13
          v_cvt_pk_bf16_f32 v80, v80, v80
          buffer_store_short v80, v8, s[40:43], s55 offen
          s_cmp_lg_u32 s2, 4
          s_cbranch_scc1 L_Eend
          v_mov_b32 v16, s31
          buffer_store_dword v16, v14, s[32:35], 0 offen sc1
          L_Eend:""")
    stamp(14)
    if amp is not None:
        e(f"""s_cmp_lg_u32 s2, 4
              s_cbranch_scc1 L_end
              s_memrealtime s[96:97]
              s_waitcnt lgkmcnt(0)
              s_sub_u32 s98, s{64+2*int(amp)}, s64
              s_lshl_b32 s98, s98, 3""")
        if skew is not None:
            e(f"""s_mov_b32 s56, {STAMP}
              buffer_load_dword v16, v246, s[32:35], s56 offen sc1
              buffer_load_dword v17, v246, s[32:35], s56 offen offset:{4*int(skew)} sc1
              s_waitcnt vmcnt(0)
              v_sub_u32 v16, v17, v16
              v_add_u32 v16, 100, v16
              v_readfirstlane_b32 s98, v16
              s_lshl_b32 s98, s98, 5""")
        e(f"""
              s_min_u32 s98, s98, 100000
              L_amp:
              s_memrealtime s[100:101]
              s_waitcnt lgkmcnt(0)
              s_sub_u32 s99, s100, s96
              s_cmp_lt_u32 s99, s98
              s_cbranch_scc1 L_amp""")
    finish()
    sec("A")
    for t in extra: e(t)
    sec("Q3")
    for far, back, ins in deferred:
        e(f"{far}:\ns_nop 7")
        for t in ins: e(t + " sc1")
        e(f"s_nop 1\ns_branch {back}")
    if stamps:
        e("L_stamps:\ns_waitcnt lgkmcnt(0)\ns_mov_b64 exec, -1\nv_mov_b32 v250, 0")
        for k in range(16): e(f"v_writelane_b32 v250, s{64+2*k}, {k}")
        e(f"""s_lshl_b32 s60, s2, 3
              s_add_u32 s60, s60, s30
              s_lshl_b32 s60, s60, 6
              s_add_u32 s60, s60, {STAMP}
              v_lshlrev_b32 v251, 2, v0
              s_mov_b64 exec, 0xffff
              buffer_store_dword v250, v251, s[32:35], s60 offen""")
    e("L_exit:\ns_endpgm")

    head = open("cdna_kernels/" + NAME + ".s.ref").read()
    head = head[:head.index("; @launch")]
    out = head + f"; @launch grid=(256,1,1) block=(320,1,1) lds={LDS_SIZE}\n"
    out += f""".amdgcn_target "amdgcn-amd-amdhsa--gfx950"
.text
.globl {NAME}_kernel
.p2align 12
.fill {int(pad)//4}, 4, 0xbf800000
.p2align 8
.type {NAME}_kernel,@function
{NAME}_kernel:
"""
    for name, al in (("A", 0), ("K1", 0), ("Q1", 12), ("Q2", 12), ("K0", 0), ("K2", 0), ("Q3x", 0), ("Q3", 12)):
        if name not in secs: continue
        if al: out += f".p2align {al}\n"
        out += "\n".join(secs[name]) + "\n"
    out += f""".section .rodata,"a"
.p2align 6
.amdhsa_kernel {NAME}_kernel
  .amdhsa_next_free_vgpr 256
  .amdhsa_next_free_sgpr 102
  .amdhsa_accum_offset 256
  .amdhsa_group_segment_fixed_size 0
  .amdhsa_kernarg_size 96
  .amdhsa_user_sgpr_count 2
  .amdhsa_user_sgpr_kernarg_segment_ptr 1
  .amdhsa_system_sgpr_workgroup_id_x 1
.end_amdhsa_kernel
"""
    return out

if __name__ == "__main__":
    kw = {}
    for a in sys.argv[2:]:
        k, v = a.split("=")
        kw[k] = {"True": True, "False": False}.get(v, v)
    open(sys.argv[1], "w").write(gen(**kw))
```

```python
import sys, struct, re
from emit import Emitter, Ins, need

NAME = "sequential_preLN__sliding_block_cached__geglu_ffn__decode"
def f2u(x): return struct.unpack("<I", struct.pack("<f", x))[0]

QP, ML, CP, EP, OP, HH, DP, STAMP, WS_SIZE = 0x10000, 0x20000, 0x120000, 0x140000, 0x40000, 0xC0000, 0xD0000, 0x1E0000, 0x200000
XN, XR, QS, EB, RED, RED2, FLAGS, MLW, HL, PR, LDS_SIZE = 0, 2048, 3072, 4096, 5120, 7168, 11264, 11520, 11776, 12288, 14336
OOB = 0x7ffffff0
PB = 0x160000
SPIN = 1 << 16
CEXP = f2u(1.4426950408889634 / 16.0)
T0, T1, T2 = "s31", "s96", "s97"
TAGS = (T0, T0, T1, T2)

def gen(amp=None, nt="nt", wnt=None, stamps=False, force_global=False, wopos="V", gupos="B1", dnpos="p",
        code_pf=True, eack=True, kpre=0, W=6, qa=3, lc=15, rot="gj", skew=None, cack=True, ctmap="u", pad=0xD00, ksplit=3, order="V1GV16MW", tlb=0, tmap=1, w0=0, qnt=None, opat=1, skipz=0, opsc=False, ct="30", et="10", home="v", mlsc=False, gi="0123", sw=1, dirty=0, wb=0, epo="C", osc="", Wq=0, W2=0, Ww=0, Wm=0, lst="", opre="p", clean=0, fin="t", wbt=0):
    clean = int(clean)
    if clean & 8: epo, osc = "Csc1", "sc1"
    if wnt is None: wnt = nt
    BS = 16384
    if ct: cack, ct = ct[0] == 'a', ct.lstrip('a')
    kpre, W, qa = int(kpre), int(W), int(qa)
    lc = int(lc); nb = lc - 12
    def koff(st): return ((st >> nb) << (lc + 5)) | ((st & ((1 << nb) - 1)) << 12)
    if skew is not None: amp = 0
    e = Emitter()
    uid = [0]
    deferred = []
    extra = []
    secs = {"A": e.lines}
    def sec(name, jump=None):
        if jump: e(f"s_branch {jump}")
        e.lines = secs.setdefault(name, []); e.hist = []
        if jump: e(f"{jump}:")
    def lab(p): uid[0] += 1; return f"L_{p}{uid[0]}"
    def srd_hi(d, n): e(f"s_mov_b32 s{d+2}, {n}\ns_mov_b32 s{d+3}, 0x00020000")
    def srd_lo(d, b): e(f"s_mov_b64 s[{d}:{d+1}], s[{b}:{b+1}]")
    def srd(d, b, n): srd_lo(d, b); srd_hi(d, n)
    def stamp(k):
        if stamps or (amp is not None and k in (0, int(amp))): e(f"s_memrealtime s[{64+2*k}:{65+2*k}]")
    def finish():
        if stamps: e("s_branch L_stamps")
        else: e("s_endpgm")
    def mode_store(ins):
        far, back = lab("far"), lab("back")
        e(f"s_cmp_lg_u32 s59, 0\ns_cbranch_scc1 {far}")
        for t in ins: e(t + " " + lst.replace("_", " "))
        e(f"{back}:")
        deferred.append((far, back, ins))
    def tags():
        e(f"""s_add_u32 s31, s31, 0x9E3779B1
              s_lshr_b32 s96, s31, 8
              s_or_b32 s96, s96, 1
              s_xor_b32 s96, s96, s31
              s_lshr_b32 s97, s31, 16""")
    def tag4(b, ff, last=T2):
        for r in range(4): e(f"v_bfi_b32 v{b+r}, v{ff}, {(T0, T0, T1, last)[r]}, v{b+r}")
    def lane_tag(d, idx, t):
        e(f"""v_mov_b32 v{d}, {T0}
              v_mov_b32 v{t}, {T1}
              v_cmp_eq_u32 vcc, 2, v{idx}
              v_cndmask_b32 v{d}, v{d}, v{t}, vcc
              v_mov_b32 v{t}, {T2}
              v_cmp_eq_u32 vcc, 3, v{idx}
              v_cndmask_b32 v{d}, v{d}, v{t}, vcc
              v_and_b32 v{d}, 0xff, v{d}""")
    def masks(m, t0, t1):
        e(f"""v_and_b32 v{t0}, 1, v0
              v_lshlrev_b32 v{t0}, 4, v{t0}
              v_mov_b32 v{t1}, 0xffff
              v_lshlrev_b32 v{t1}, v{t0}, v{t1}
              v_bfe_u32 v{t0}, v0, 1, 2""")
        for j in range(4):
            e(f"v_cmp_eq_u32 vcc, {j}, v{t0}\nv_cndmask_b32 v{m+j}, 0, v{t1}, vcc")
    def dpp_red(op, vs, ctrls):
        for c in ctrls:
            for v in vs: e(f"{op}_dpp v{v}, v{v}, v{v} {c} row_mask:0xf bank_mask:0xf")
    def xrow(op, vs, tmps):
        for sw in ("v_permlane16_swap_b32", "v_permlane32_swap_b32"):
            for v, t in zip(vs, tmps): e(f"v_mov_b32 v{t}, v{v}")
            for v, t in zip(vs, tmps): e(f"{sw} v{v}, v{t}")
            for v, t in zip(vs, tmps): e(f"{op} v{v}, v{v}, v{t}")
    def bfround(v): e(f"v_cvt_pk_bf16_f32 v{v}, v{v}, v{v}\nv_and_b32 v{v}, 0xffff0000, v{v}")
    def trows(a):
        e(f"""v_permlane32_swap_b32 v{a}, v{a+2}
              v_permlane32_swap_b32 v{a+1}, v{a+3}
              v_add_f32 v{a}, v{a}, v{a+2}
              v_add_f32 v{a+1}, v{a+1}, v{a+3}
              v_permlane16_swap_b32 v{a}, v{a+1}
              v_add_f32 v{a}, v{a}, v{a+1}""")
    def pk_add4(d, a, b):
        e(f"v_pk_add_f32 v[{d}:{d+1}], v[{a}:{a+1}], v[{b}:{b+1}]\nv_pk_add_f32 v[{d+2}:{d+3}], v[{a+2}:{a+3}], v[{b+2}:{b+3}]")
    def check(b, m, t):
        e(f"""v_bitop3_b32 v{t}, v{b}, v{b+1}, {T0} bitop3:0x7e
              v_bitop3_b32 v{t}, v{b+2}, {T1}, v{t} bitop3:0xbe
              v_bitop3_b32 v{t}, v{b+3}, {T2}, v{t} bitop3:0xbe
              v_cmp_ne_u32_sdwa s[{m}:{m+1}], v{t}, v246 src0_sel:BYTE_0 src1_sel:DWORD""")
    def qtag_reg(d, idx):
        e(f"v_lshlrev_b32 v{d}, 3, v{idx}\nv_lshrrev_b32 v{d}, v{d}, {T0}\nv_and_b32 v{d}, 0xff, v{d}")
    def qclean(loads):
        for t, b in loads: e(f"v_and_b32 v{b}, 0xffffff00, v{b}")
    def poll_init(n, m0, init=None):
        for i in range(n):
            v = (init or {}).get(i)
            if v is None: e(f"s_mov_b64 s[{m0+2*i}:{m0+2*i+1}], -1")
            else: e(f"s_mov_b32 s{m0+2*i}, {v & 0xffffffff}\ns_mov_b32 s{m0+2*i+1}, {v >> 32}")
        e(f"s_mov_b32 s58, {SPIN}")
    def poll(loads, m0, issued=False, behind=0, quad=None, pre=None):
        n = len(loads)
        top, chk, done = lab("poll"), lab("chk"), lab("pdone")
        if issued: e(f"s_branch {chk}")
        e(f"{top}:\ns_sub_u32 s58, s58, 1\ns_cbranch_scc1 {done}")
        for i, (t, b) in enumerate(loads):
            sk = lab("sk")
            if int(skipz) and n > 2: e(f"s_wqm_b64 exec, s[{m0+2*i}:{m0+2*i+1}]\ns_cbranch_scc0 {sk}\n{t}\n{sk}:")
            else: e(f"s_wqm_b64 exec, s[{m0+2*i}:{m0+2*i+1}]\n{t}")
        e("s_mov_b64 exec, -1")
        if behind or (int(skipz) and n > 2): e("s_waitcnt vmcnt(0)")
        if issued: e(f"{chk}:")
        for i, (t, b) in enumerate(loads):
            e(f"s_waitcnt vmcnt({n-1-i+behind})")
            if quad: e(f"v_cmp_ne_u32_sdwa s[{m0+2*i}:{m0+2*i+1}], v{b}, v{quad} src0_sel:BYTE_0 src1_sel:DWORD")
            else: check(b, m0 + 2*i, 247 + (i & 1))
        if n == 1: e(f"s_cmp_lg_u64 s[{m0}:{m0+1}], 0")
        else:
            e(f"s_or_b64 vcc, s[{m0}:{m0+1}], s[{m0+2}:{m0+3}]")
            for i in range(2, n): e(f"s_or_b64 vcc, vcc, s[{m0+2*i}:{m0+2*i+1}]")
        e(f"s_cbranch_scc1 {top}\n{done}:")
        if pre: e(pre)
        if quad: qclean(loads)
    def poll_sum(load, acc, base, quad, ticks):
        D = len(ticks)
        top, done = lab("ps"), lab("psd")
        def issue_round(r):
            for i in range(2): e(f"s_mov_b64 exec, s[{4+2*i}:{5+2*i}]\n" + load(i, base + 8*r + 4*i))
            e("s_mov_b64 exec, -1")
        for r, t in enumerate(ticks):
            if t != "x": e(f"s_waitcnt vmcnt({int(t) + 2*r})")
            if acc == 16 and r < 2: stamp(14 + r)
            issue_round(r)
        e(f"{top}:")
        for r in range(D):
            for i in range(2):
                b, m = base + 8*r + 4*i, 4 + 2*i
                e(f"""s_waitcnt vmcnt({2*D-1-i})
                      v_cmp_ne_u32_sdwa vcc, v{b}, v{quad} src0_sel:BYTE_0 src1_sel:DWORD
                      v_and_b32 v{b}, 0xffffff00, v{b}
                      s_wqm_b64 vcc, vcc
                      s_andn2_b64 exec, s[{m}:{m+1}], vcc
                      s_and_b64 s[{m}:{m+1}], s[{m}:{m+1}], vcc""")
                pk_add4(acc, acc, b)
                e("s_mov_b64 exec, -1")
            e(f"s_or_b64 vcc, s[4:5], s[6:7]\ns_cbranch_scc0 {done}")
            issue_round(r)
        e(f"s_sub_u32 s58, s58, 1\ns_cbranch_scc0 {top}\n{done}:")
    def read_mode(t):
        e(f"v_or3_b32 v{t}, v{t}, v{t+1}, v{t+2}\nv_or_b32 v{t}, v{t}, v{t+3}\nv_readfirstlane_b32 s59, v{t}")
    def ffn_scalars():
        e("""s_mul_i32 s50, s29, 37
             s_lshr_b32 s50, s50, 8
             s_mul_i32 s51, s50, 7
             s_sub_u32 s51, s29, s51
             s_lshl_b32 s52, s50, 3
             s_add_u32 s52, s52, s28""")
        if int(tmap): e("s_mul_i32 s100, s28, 3\ns_min_u32 s101, s28, 4\ns_add_u32 s100, s100, s101\ns_add_u32 s100, s100, s50\ns_min_u32 s100, s100, 27")
        else: e("s_min_u32 s100, s52, 27")

    e(f"""s_cmp_ge_u32 s2, 256
          s_cbranch_scc1 L_exit
          s_load_dwordx16 s[4:19], s[0:1], 0
          s_load_dwordx8 s[20:27], s[0:1], 64""")
    stamp(0)
    e(f"""v_lshrrev_b32 v1, 6, v0
         v_and_b32 v0, 63, v0
         v_readfirstlane_b32 s30, v1
         s_and_b32 s28, s2, 7
         s_lshr_b32 s29, s2, 3
         s_lshl_b32 s55, s28, 5
         s_add_u32 s55, s55, s29
         s_cmp_lg_u32 s30, 4
         s_cbranch_scc1 L_K""")
    sec("K1")
    e("L_K:")

    KR, VR, QG, SC, MK, WO, GU, AF, GA, MG = 16, 80, 148, 156, 164, 168, 184, 200, 216, 224
    QB, PE = QG, KR + 16
    if code_pf:
        e(f"""s_getpc_b64 s[48:49]
              L_pc:
              s_lshl_b32 s56, s29, 2
              s_add_u32 s56, s56, s30
              s_lshl_b32 s56, s56, 7
              s_min_u32 s56, s56, L_exit-{NAME}_kernel
              s_sub_u32 s48, s48, L_pc-{NAME}_kernel
              s_subb_u32 s49, s49, 0
              v_mov_b32 v1, s56
              s_mov_b64 exec, 1
              global_load_dword v15, v1, s[48:49]
              s_mov_b64 exec, -1""")
    e(f"""s_lshl_b32 s53, s28, 23
         s_lshl_b32 s54, s29, {lc}
         s_add_u32 s53, s53, s54
         s_add_u32 s53, s53, 6291456""")
    e({"0": "s_mov_b32 s56, 0", "gj": "s_lshl_b32 s56, s28, 1\ns_xor_b32 s56, s56, s29\ns_and_b32 s56, s56, 15",
       "gj1": "s_lshl_b32 s56, s28, 1\ns_and_b32 s54, s29, 1\ns_or_b32 s56, s56, s54", "j": "s_and_b32 s56, s29, 15",
       "mul": "s_mul_i32 s56, s2, s2\ns_mul_i32 s56, s56, 0x9E3779B1\ns_lshr_b32 s56, s56, 28"}[rot])
    e(f"""s_lshr_b32 s54, s56, {nb}
          s_lshl_b32 s54, s54, {lc+5}
          s_or_b32 s53, s53, s54
          s_and_b32 s54, s56, {(1 << nb) - 1}
          s_lshl_b32 s54, s54, 12
          s_or_b32 s53, s53, s54
          v_bfe_u32 v9, v0, 3, 1
          v_lshlrev_b32 v1, 9, v9
          v_lshrrev_b32 v2, 4, v0
          v_lshl_add_u32 v1, v2, 7, v1
          v_and_b32 v10, 7, v0
          v_lshl_add_u32 v1, v10, 4, v1
          s_lshl_b32 s54, s30, 10
          s_add_u32 s98, s54, s53""")
    srd_hi(36, 67108864)
    stamp(15)
    e("s_waitcnt lgkmcnt(0)")
    srd_lo(36, 6)
    if kpre == 0: e("s_load_dword s31, s[26:27], 0\ns_barrier")
    stamp(13)

    pos, state = {}, {"n": 0, "done": -1}
    def arrived(i):
        if i > state["done"]:
            e(f"s_waitcnt vmcnt({state['n'] - 1 - i})"); state["done"] = i
    win = [W]
    def wof(name):
        if int(Wm) and name == "ML": return int(Wm)
        return int(Ww) if int(Ww) and name[:2] in ("WO", "ML") else win[0]
    def issue(name, text):
        arrived(state["n"] - wof(name))
        e(text); pos[name] = state["n"]; state["n"] += 1
    qg = [f"buffer_load_dwordx4 v[{QG}:{QG+3}], v4, s[32:35], s61 offen sc1", f"buffer_load_dwordx4 v[{QG+4}:{QG+7}], v4, s[32:35], s62 offen sc1"]
    mlg = f"buffer_load_dwordx4 v[{MG}:{MG+3}], v230, s[32:35], s3 offen sc1"
    def vop(i):
        t = f"buffer_load_dwordx4 v[{VR+4*i}:{VR+4*i+3}], v228, s[44:47], s54 offen offset:{2048*(i >> 4)} {nt}"
        t = f"s_xor_b32 s54, s99, {koff(min(i, 15))}\n" + t
        if i >= 15: t = "s_mov_b64 exec, s[22:23]\n" + t + "\ns_mov_b64 exec, -1"
        return (f"V{i}", t)
    wops = [(f"WO{m}", f"buffer_load_dwordx4 v[{WO+4*m}:{WO+4*m+3}], v11, s[40:43], s48 offen {wnt}\ns_add_u32 s48, s48, 7168") for m in range(4)]
    gops = [(f"GU{m}", f"global_load_dwordx4 v[{GU+4*m}:{GU+4*m+3}], v[{GA+2*m}:{GA+2*m+1}], off {wnt}") for m in range(4)]
    ops = [vop(i) for i in range(17)] + [("ML", mlg)]
    if wopos == "V": ops += wops
    if gupos == "V": ops += gops
    if wopos == "K": ops = wops + ops
    if gupos == "K": ops = gops + ops
    ops = ops[:qa] + [("G0", qg[0]), ("G1", qg[1])] + ops[qa:]
    if order:
        pool = {"V": [vop(i) for i in range(17)], "M": [("ML", mlg)], "W": list(wops), "U": list(gops), "G": [("G0", qg[0]), ("G1", qg[1])]}
        ops = []
        for c, n in re.findall(r"([A-Z])(\d*)", order):
            for _ in range(int(n) if n else len(pool[c])): ops.append(pool[c].pop(0))
        assert not any(pool[c] for c in "VMG") and bool(pool["U"]) == (gupos in ("B4", "B1"))
        gops, wlate = pool["U"], pool["W"]
    def next_op():
        if ops: issue(*ops.pop(0))

    w0 = int(w0) or W
    for i in range(16):
        if i == w0: arrived(0)
        issue(f"K{i}", f"s_xor_b32 s54, s98, {koff(i)}\nbuffer_load_dwordx4 v[{KR+4*i}:{KR+4*i+3}], v1, s[36:39], s54 offen {nt}")
        if i == kpre - 1: e("s_load_dword s31, s[26:27], 0\ns_barrier"); stamp(14)
        if i == w0 - 1:
            srd(32, 26, WS_SIZE); srd(40, 12, 4096*896); srd(44, 8, 67108864)
            ffn_scalars()
            masks(MK, 7, 8)
            e(f"""v_mov_b32 v246, 0
                  v_mov_b32 v244, 0xff
                  v_and_b32 v3, 3, v0
                  v_lshrrev_b32 v5, 5, v0
                  v_and_b32 v6, 31, v0
                  v_lshlrev_b32 v4, 11, v5
                  v_lshl_add_u32 v4, v6, 4, v4
                  s_lshl_b32 s61, s28, 13
                  s_lshl_b32 s62, s30, 9
                  s_add_u32 s61, s61, s62
                  s_add_u32 s61, s61, {QP}
                  s_add_u32 s62, s61, 4096
                  v_lshlrev_b32 v6, 3, v6
                  v_lshl_add_u32 v6, v5, 2, v6
                  s_lshl_b32 s56, s30, 8
                  v_add_u32 v6, s56, v6
                  v_xor_b32 v7, 64, v1
                  v_and_b32 v12, 15, v0
                  v_lshlrev_b32 v228, 9, v2
                  v_lshl_add_u32 v228, v12, 4, v228
                  s_and_b32 s57, s30, 1
                  s_lshr_b32 s60, s30, 1
                  s_lshl_b32 s56, s57, 8
                  s_add_u32 s99, s53, s56
                  s_lshl_b32 s56, s60, 11
                  s_add_u32 s99, s99, s56
                  v_lshlrev_b32 v229, 10, v5
                  v_and_b32 v13, 1, v2
                  v_lshl_add_u32 v229, v13, 8, v229
                  v_lshl_add_u32 v229, v12, 4, v229
                  s_lshl_b32 s53, s55, 11
                  s_lshl_b32 s56, s57, 9
                  s_add_u32 s53, s53, s56
                  s_add_u32 s53, s53, {OP}
                  s_lshl_b32 s56, s57, 10
                  v_lshl_add_u32 v238, v0, 4, s56
                  v_bfe_u32 v14, v0, 2, 1
                  v_lshl_add_u32 v239, v5, 1, v9
                  v_lshl_add_u32 v239, v14, 4, v239
                  v_lshl_add_u32 v239, v13, 5, v239
                  s_lshl_b32 s56, s30, 6
                  v_lshl_add_u32 v239, v239, 4, s56
                  s_lshl_b32 s56, s30, 2
                  v_lshl_add_u32 v240, v9, 4, s56
                  v_mov_b32 v243, s56
                  v_lshrrev_b32 v241, 3, v0
                  s_lshl_b32 s56, s60, 7
                  v_lshl_add_u32 v241, v241, 4, s56
                  v_lshlrev_b32 v242, 4, v9
                  v_lshl_add_u32 v14, v2, 1, v14
                  v_lshl_add_u32 v230, v14, 2, v3
                  v_lshlrev_b32 v230, 4, v230
                  v_lshlrev_b32 v231, 11, v14
                  v_lshl_add_u32 v231, v9, 6, v231
                  v_lshl_add_u32 v231, v3, 4, v231
                  s_lshl_b32 s3, s28, 9
                  s_add_u32 s3, s3, {ML}
                  v_lshlrev_b32 v232, 4, v13
                  v_lshl_add_u32 v232, v10, 5, v232
                  v_lshl_add_u32 v232, v9, 8, v232
                  s_lshl_b32 s56, s30, 9
                  v_add_u32 v232, s56, v232
                  v_lshl_add_u32 v11, v9, 5, v2
                  v_mul_u32_u24 v11, 896, v11
                  v_lshl_add_u32 v11, v10, 4, v11
                  s_lshl_b32 s48, s28, 9
                  s_lshl_b32 s56, s50, 7
                  s_add_u32 s48, s48, s56
                  s_lshl_b32 s56, s57, 6
                  s_add_u32 s48, s48, s56
                  s_lshl_b32 s56, s60, 2
                  s_add_u32 s48, s48, s56
                  s_mul_i32 s48, s48, 896
                  s_lshl_b32 s56, s51, 7
                  s_add_u32 s48, s48, s56
                  s_cmp_lt_u32 s29, 28
                  s_cselect_b32 s42, s42, 0
                  s_cselect_b32 s48, s48, 0
                  s_lshl_b32 s49, s51, 6
                  s_lshl_b32 s56, s30, 4
                  s_add_u32 s49, s49, s56
                  s_mul_i32 s63, s49, 3584
                  s_lshl_b32 s56, s100, 7
                  s_add_u32 s63, s63, s56
                  v_mul_u32_u24 v12, 3584, v2
                  v_lshl_add_u32 v12, v10, 4, v12
                  v_add_u32 v12, s63, v12
                  s_cmp_lt_u32 s52, 28
                  s_cselect_b32 s56, -1, 0
                  v_and_b32 v12, s56, v12
                  v_cmp_eq_u32 vcc, 0, v9
                  v_mov_b32 v13, s18
                  v_mov_b32 v14, s16
                  v_cndmask_b32 v13, v13, v14, vcc
                  v_mov_b32 v14, s19
                  v_mov_b32 v8, s17
                  v_cndmask_b32 v14, v14, v8, vcc
                  v_add_co_u32 v{GA}, vcc, v13, v12
                  v_addc_co_u32 v{GA+1}, vcc, 0, v14, vcc""")
            for m in range(1, 4):
                e(f"v_add_co_u32 v{GA+2*m}, vcc, 14336, v{GA+2*m-2}\nv_addc_co_u32 v{GA+2*m+1}, vcc, 0, v{GA+2*m-1}, vcc")
            e(f"""s_cmp_eq_u32 s60, 0
                  s_cselect_b64 s[22:23], -1, 0
                  v_lshl_add_u32 v233, v3, 2, v2
                  v_add_u32 v233, s49, v233
                  v_lshlrev_b32 v234, 2, v233
                  v_and_b32 v234, 0xff, v234
                  v_lshlrev_b32 v233, 1, v233
                  v_lshl_add_u32 v235, v2, 2, v3
                  v_add_u32 v235, s49, v235
                  v_lshlrev_b32 v235, 2, v235
                  v_and_b32 v13, 12, v0
                  v_cmp_eq_u32 vcc, 0, v13
                  v_mov_b32 v13, {OOB}
                  v_cndmask_b32 v235, v13, v235, vcc
                  v_lshrrev_b32 v236, 2, v0
                  v_lshlrev_b32 v236, 8, v236
                  v_lshl_add_u32 v236, v3, 4, v236
                  s_lshl_b32 s56, s30, 10
                  v_lshl_add_u32 v237, v0, 4, s56
                  s_mov_b32 s57, {CEXP}""")
        if i == W + 1:
            e("s_waitcnt lgkmcnt(0)")
            tags()
            e(f"""s_getreg_b32 s56, hwreg(HW_REG_XCC_ID, 0, 4)
                  s_and_b32 s63, s97, 0xf0
                  s_or_b32 s63, s63, s56
                  s_mov_b32 s58, {SPIN}""")
            lane_tag(8, 3, 13)
            qtag_reg(245, 3)
    stamp(1)
    while "G1" not in pos: next_op()
    win[0] = int(Wq) or W
    while state["n"] - win[0] < pos["G1"]: next_op()
    arrived(pos["G1"])
    e("L_qpoll:")
    stamp(2)
    a = QG
    e(f"""v_bitop3_b32 v12, v{a}, v{a+1}, {T0} bitop3:0x7e
          v_bitop3_b32 v13, v{a+4}, v{a+5}, {T0} bitop3:0x7e
          v_bitop3_b32 v14, v{a+2}, v{a+6}, {T1} bitop3:0x7e
          v_bitop3_b32 v15, v{a+3}, v{a+7}, s63 bitop3:0x7e
          v_or3_b32 v12, v12, v13, v14
          v_and_b32 v13, 0xf0, v15
          v_or_b32 v12, v12, v13
          v_cmp_ne_u32_sdwa vcc, v12, v246 src0_sel:BYTE_0 src1_sel:DWORD
          s_cbranch_vccnz L_qretry
          L_qdone:
          v_and_b32 v15, 15, v15
          v_cmp_ne_u32 vcc, 0, v15""")
    extra.append("L_qretry:\ns_sub_u32 s58, s58, 1\ns_cbranch_scc1 L_qdone\n" + "\n".join(qg) + "\ns_waitcnt vmcnt(0)\ns_branch L_qpoll")
    next_op()
    for r in range(8): e(f"v_and_b32 v{a+r}, 0xffffff00, v{a+r}")
    e("s_cmp_eq_u64 vcc, 0\ns_cselect_b32 s56, %d, 1" % (1 if force_global else 0))
    for r in range(4): e(f"v_add_f32 v{a+r}, v{a+r}, v{a+4+r}")
    e(f"""v_mov_b32 v12, s56
          v_permlane32_swap_b32 v{a}, v{a+2}
          v_permlane32_swap_b32 v{a+1}, v{a+3}
          ds_write_b32 v243, v12 offset:{FLAGS}
          v_add_f32 v{a}, v{a}, v{a+2}
          v_add_f32 v{a+1}, v{a+1}, v{a+3}
          v_cvt_pk_bf16_f32 v{a}, v{a}, v{a+1}
          ds_write_b32 v6, v{a} offset:{QS}
          s_waitcnt lgkmcnt(0)
          s_barrier
          ds_read_b128 v[{QB}:{QB+3}], v1 offset:{QS}
          ds_read_b128 v[{QB+4}:{QB+7}], v7 offset:{QS}
          ds_read_b128 v[12:15], v246 offset:{FLAGS}
          ds_read_u16 v233, v233 offset:{XR}""")
    next_op()
    e("s_waitcnt lgkmcnt(0)")
    stamp(3)
    for m in list(range(0, 16, 2)) + list(range(1, 16, 2)):
        k, q = KR + 4*m, QB + 4*(m & 1)
        e(f"v_mfma_f32_16x16x32_bf16 v[{k}:{k+3}], v[{k}:{k+3}], v[{q}:{q+3}], 0")
    read_mode(12)
    e("v_lshlrev_b32 v233, 16, v233")
    for par in range(2):
        pat = (0xf0f00f0f, 0x0f0ff0f0)[par]
        e(f"s_mov_b32 exec_lo, {pat}\ns_mov_b32 exec_hi, {pat}")
        for r in range(4):
            for p in range(8):
                a = KR + 4*(2*p + par)
                if r == 0: e(f"v_mov_b32_dpp v{SC+p}, v{a} quad_perm:[0,0,0,0] row_mask:0xf bank_mask:0xf")
                else: e(f"v_add_f32_dpp v{SC+p}, v{a+r}, v{SC+p} quad_perm:[{r},{r},{r},{r}] row_mask:0xf bank_mask:0xf")
        e("s_mov_b64 exec, -1")
        if par == 0: next_op()
    Z = KR
    for u in range(4): e(f"v_permlane16_swap_b32 v{SC+2*u}, v{SC+2*u+1}")
    for u in range(4): e(f"v_add_f32_dpp v{Z+u}, v{SC+2*u+1}, v{SC+2*u} row_half_mirror row_mask:0xf bank_mask:0xf")
    for u in (0, 2): e(f"v_cvt_pk_bf16_f32 v{Z+u+1}, v{Z+u}, v{Z+u+1}")
    for u in (0, 2): e(f"v_lshlrev_b32 v{Z+u}, 16, v{Z+u+1}\nv_and_b32 v{Z+u+1}, 0xffff0000, v{Z+u+1}")
    e(f"v_max3_f32 v4, v{Z}, v{Z+1}, v{Z+2}\nv_max_f32 v4, v4, v{Z+3}")
    dpp_red("v_max_f32", [4], ["row_half_mirror"])
    xrow("v_max_f32", [4], [5])
    next_op()
    for u in range(4): e(f"v_sub_f32 v{Z+u}, v{Z+u}, v4")
    for u in range(4): e(f"v_mul_f32 v{Z+u}, s57, v{Z+u}")
    for u in range(4): e(f"v_exp_f32 v{Z+u}, v{Z+u}")
    e(f"v_add_f32 v5, v{Z}, v{Z+1}\nv_add_f32 v5, v5, v{Z+2}\nv_add_f32 v5, v5, v{Z+3}")
    dpp_red("v_add_f32", [5], ["row_half_mirror"])
    xrow("v_add_f32", [5], [6])
    e(f"""s_mov_b32 exec_lo, 0x11111111
          s_mov_b32 exec_hi, 0x11111111
          ds_write_b128 v239, v[{Z}:{Z+3}] offset:{EB}
          ds_write_b32 v240, v4 offset:{MLW}
          ds_write_b32 v240, v5 offset:{MLW+32}
          s_mov_b64 exec, -1
          s_waitcnt lgkmcnt(0)""")
    stamp(4)
    e(f"s_barrier\nds_read_b128 v[12:15], v242 offset:{MLW}")
    for mm in range(4): e(f"ds_read_b128 v[{PE+4*mm}:{PE+4*mm+3}], v241 offset:{EB+256*mm}")
    e(f"ds_read_b32 v{PE+16}, v241 offset:{EB+7*128+12}")
    next_op()
    e("s_waitcnt lgkmcnt(5)\nv_max3_f32 v4, v12, v13, v14\nv_max_f32 v4, v4, v15\nv_cmp_gt_u32 vcc, 32, v0")
    e("v_cndmask_b32 v12, v13, v12, vcc\nv_cndmask_b32 v13, v15, v14, vcc\nv_cndmask_b32 v12, v13, v12, s[22:23]")
    for w in range(2): e(f"v_sub_f32 v{12+w}, v{12+w}, v4")
    for w in range(2): e(f"v_mul_f32 v{12+w}, s57, v{12+w}")
    for w in range(2): e(f"v_exp_f32 v{12+w}, v{12+w}")
    e("s_waitcnt lgkmcnt(0)")
    for i in range(0, 16, 2): e(f"v_pk_mul_f32 v[{PE+i}:{PE+i+1}], v[{PE+i}:{PE+i+1}], v[12:13] op_sel:[0,0] op_sel_hi:[1,0]")
    e(f"v_mul_f32 v{PE+16}, v{PE+16}, v13")
    for i in range(17): e(f"v_cvt_pk_bf16_f32 v{PE+i}, v{PE+i}, v{PE+i}")
    stamp(5)
    def prep(i):
        p = PE + (4*(i & 3) + (i >> 2) if i < 16 else 16)
        for j in range(4): e(f"v_and_b32 v{AF+4*(i&3)+j}, v{p}, v{MK+j}")
    def pv(i):
        arrived(pos[f"V{i}"])
        a = AF + 4*(i & 3)
        e(f"v_mfma_f32_16x16x32_bf16 v[12:15], v[{a}:{a+3}], v[{VR+4*i}:{VR+4*i+3}], " + ("0" if i == 0 else "v[12:15]"))
    prep(0)
    if int(W2):
        win[0] = int(W2)
    since = 99
    for i in range(15):
        while not int(W2) and ops and (since >= 5 or f"V{i}" not in pos or pos[f"V{i}"] > state["done"]):
            next_op(); since = 0
        while int(W2) and ops and state["n"] - wof(ops[0][0]) <= max(state["done"], pos[f"V{i}"]): next_op()
        prep(i + 1); pv(i); since += 1
        if i == int(ksplit): sec("K2", "L_K2"); e("s_nop 4")
    for name, t in ops:
        e(t); pos[name] = state["n"]; state["n"] += 1
    ops.clear()
    e(f"s_cmp_eq_u32 s60, 0\ns_cbranch_scc1 L_keep\nds_write_b128 v238, v[12:15] offset:{PR}\ns_waitcnt lgkmcnt(0)\ns_barrier\ns_branch L_joined\nL_keep:")
    saved = dict(state)
    prep(16); pv(15)
    e(f"s_barrier\nds_read_b128 v[4:7], v238 offset:{PR}")
    pv(16)
    e("s_waitcnt lgkmcnt(0)")
    pk_add4(12, 12, 4)
    e("v_bfi_b32 v12, v244, v245, v12")
    if opsc: e("buffer_store_dwordx4 v[12:15], v229, s[32:35], s53 offen sc1")
    else: mode_store(["buffer_store_dwordx4 v[12:15], v229, s[32:35], s53 offen"])
    e("L_joined:")
    state.update(saved)
    stamp(6)
    e(f"""s_cmp_ge_u32 s29, {29 if int(wb) & 1 else 28}
          s_cbranch_scc1 {"L_dirty" if int(dirty) else "L_clean" if clean & 1 else "L_end"}
          s_lshl_b32 s60, s28, 16
          s_and_b32 s56, s50, 3
          s_lshl_b32 s56, s56, 9
          s_add_u32 s60, s60, s56
          s_lshl_b32 s56, s30, 7
          s_add_u32 s60, s60, s56
          s_add_u32 s60, s60, {OP}
          s_add_u32 s61, s60, 16384
          s_add_u32 s62, s60, 32768
          s_add_u32 s63, s60, 49152
          s_mov_b32 s58, {SPIN}
          s_barrier""")
    stamp(7)
    opg = [(f"buffer_load_dwordx4 v[{16+4*i}:{19+4*i}], v231, s[32:35], s{60+i} offen sc1", 16 + 4*i) for i in range(4)]
    for name, t in wlate:
        e(t); pos[name] = state["n"]; state["n"] += 1
    km, opat = state["n"] - 1 - pos["ML"], int(opat)
    def left(k, x=0):
        if k < len(wlate): e(f"s_waitcnt vmcnt({k+x})"); return
        k += x
        l1, l2 = lab("lf"), lab("lf")
        e(f"s_cmp_gt_u32 s30, 1\ns_cbranch_scc1 {l1}\ns_waitcnt vmcnt({k+1})\ns_branch {l2}\n{l1}:\ns_waitcnt vmcnt({k})\n{l2}:")
    if opat >= km:
        if opat < 20: left(opat)
        for t, b in opg: e(t)
        if opat > km: left(km, 4)
    else:
        e("s_mov_b32 s101, 0"); left(km)
    e("L_mlchk:")
    check(MG, 4, 247)
    e("s_cmp_lg_u64 s[4:5], 0\ns_cbranch_scc1 L_mlretry\nL_mldone:")
    extra2 = ["L_mlretry:\ns_sub_u32 s58, s58, 1\ns_cbranch_scc1 L_mldone\ns_mov_b32 s101, 1\n" + mlg + "\n" + "\n".join(t for t, b in opg) + "\ns_waitcnt vmcnt(4)\ns_branch L_mlchk"]
    e(f"""s_cmp_ge_u32 s50, 2
          s_cselect_b64 vcc, -1, 0
          v_cndmask_b32 v4, v{MG}, v{MG+2}, vcc
          v_cndmask_b32 v5, v{MG+1}, v{MG+3}, vcc
          v_and_b32 v4, 0xffff0000, v4
          v_and_b32 v5, 0xffffff00, v5
          v_mov_b32 v6, v4""")
    q8 = ["quad_perm:[1,0,3,2]", "quad_perm:[2,3,0,1]", "row_half_mirror"]
    dpp_red("v_max_f32", [6], q8); xrow("v_max_f32", [6], [7])
    e("v_sub_f32 v4, v4, v6\nv_mul_f32 v4, s57, v4\nv_exp_f32 v4, v4\nv_mul_f32 v6, v4, v5")
    dpp_red("v_add_f32", [6], q8); xrow("v_add_f32", [6], [7])
    e("v_rcp_f32 v6, v6\nv_mul_f32 v4, v4, v6")
    for i in range(4): e(f"v_mov_b32_dpp v{32+i}, v4 quad_perm:[{i},{i},{i},{i}] row_mask:0xf bank_mask:0xf")
    stamp(12)
    if opat < km:
        e("s_cmp_lg_u32 s101, 0\ns_cbranch_scc1 L_opsent")
        left(opat)
        for t, b in opg: e(t)
        e("L_opsent:")
    poll(opg, 4, issued=True, quad=245)
    stamp(8)
    def gu_at(k):
        if gupos == "B1":
            for (name, t), c in zip(gops, gi):
                if int(c) == k: e(t)
    if gupos == "B1": e("s_barrier")
    if int(wb) & 1:
        e("s_cmp_eq_u32 s29, 28\ns_cbranch_scc1 L_wb")
        extra2.append("L_wb:\ns_cmp_lg_u32 s30, 0\ns_cbranch_scc1 L_end\nbuffer_wbl2 sc1\ns_waitcnt vmcnt(0)\n" + ("s_memrealtime s[82:83]\n" if stamps else "") + "s_branch L_end")
    gu_at(0)
    for i in range(4):
        w, s = 32 + (i & 2), i & 1
        for p in (0, 2):
            if i == 0: e(f"v_pk_mul_f32 v[{36+p}:{37+p}], v[{16+p}:{17+p}], v[{w}:{w+1}] op_sel:[0,0] op_sel_hi:[1,0]")
            else: e(f"v_pk_fma_f32 v[{36+p}:{37+p}], v[{16+4*i+p}:{17+4*i+p}], v[{w}:{w+1}], v[{36+p}:{37+p}] op_sel:[0,{s},0] op_sel_hi:[1,{s},1]")
    gu_at(1)
    trows(36)
    gu_at(2)
    e("""v_add_f32_dpp v37, v36, v36 row_shr:4 row_mask:0xf bank_mask:0xa
         v_add_f32_dpp v37, v36, v36 row_shl:4 row_mask:0xf bank_mask:0x5
         v_cvt_pk_bf16_f32 v37, v37, v37""")
    gu_at(3)
    def gemv4(src, wbase, bank):
        for m in range(5):
            if m < 4:
                for j in range(4): e(f"v_and_b32_dpp v{AF+4*m+j}, v{src}, v{MK+j} quad_perm:[{m},{m},{m},{m}] row_mask:0xf bank_mask:{bank}")
            if m >= 1:
                p = m - 1
                e(f"v_mfma_f32_16x16x32_bf16 v[40:43], v[{AF+4*p}:{AF+4*p+3}], v[{wbase+4*p}:{wbase+4*p+3}], " + ("0" if p == 0 else "v[40:43]"))
    gemv4(37, WO, "0xf")
    gu_at(4)
    e(f"""s_mov_b32 exec_lo, 0x00ff00ff
          s_mov_b32 exec_hi, 0xff00ff00
          ds_write_b128 v232, v[40:43] offset:{RED}
          s_mov_b64 exec, -1
          s_waitcnt lgkmcnt(0)""")
    stamp(9)
    e(f"""s_barrier
          s_cmp_ge_u32 s52, 28
          s_cbranch_scc1 L_end
          v_mov_b32 v16, 0x3f803f80
          s_mul_i32 s60, s51, {BS}
          s_lshl_b32 s56, s30, 6
          s_add_u32 s60, s60, s56
          s_add_u32 s60, s60, {CP}""")
    if home == "v":
        e(f"""v_and_b32 v17, 0x100, v{MG}
              v_cmp_ne_u32 vcc, 0, v17
              s_bcnt1_i32_b64 s56, vcc
              s_cmp_lt_u32 s56, 26
              s_cselect_b32 s56, 8192, 0""")
    else: e(f"s_lshr_b32 s56, s28, 2\ns_xor_b32 s56, s56, {home}\ns_lshl_b32 s56, s56, 13")
    e(f"s_add_u32 s60, s60, s56\nv_mov_b32 v17, s56\nds_write_b32 v246, v17 offset:{FLAGS+16}")
    e(f"""s_add_u32 s61, s60, 4096
          s_lshl_b32 s62, s52, 11
          s_add_u32 s62, s62, {HH}
          s_mov_b32 s63, 0xffff0000""")
    for m in range(4):
        for j in range(4): e(f"v_and_b32 v{AF+4*m+j}, v16, v{MK+j}")
    if gupos == "B4":
        for name, t in gops: e(t)
    for r in range(4): e(f"v_and_b32 v{20+r}, {TAGS[r]}, v244")
    e("v_lshlrev_b32 v1, 4, v0")
    poll_init(2, 4)
    if cack: e("s_barrier")
    assert ct
    if ct:
        for r in range(4): e(f"v_mov_b32 v{16+r}, 0")
        poll_sum(lambda i, b: f"buffer_load_dwordx4 v[{b}:{b+3}], v236, s[32:35], s{60+i} offen sc1", 16, 48, 245, ct)
        stamp(10)
    else:
        poll([(f"buffer_load_dwordx4 v[{16+4*i}:{19+4*i}], v236, s[32:35], s{60+i} offen sc1", 16 + 4*i) for i in range(2)], 4, quad=245)
        stamp(10)
        pk_add4(16, 16, 20)
    trows(16)
    dpp_red("v_add_f32", [16], ["row_ror:4", "row_ror:8"])
    bfround(16)
    e("v_add_f32 v16, v16, v233\nv_cvt_pk_bf16_f32 v16, v16, v16\nv_and_or_b32 v17, v16, s63, v8")
    mode_store(["buffer_store_dword v17, v235, s[32:35], s62 offen"])
    e(f"ds_write_b32 v234, v17 offset:{HL}")
    gemv4(16, GU, "0x3")
    e(f"ds_write_b128 v237, v[40:43] offset:{RED2}\ns_waitcnt lgkmcnt(0)")
    stamp(11)
    e(f"s_barrier\ns_cmp_lg_u32 s30, {sw}\ns_cbranch_scc1 L_end")
    L48 = (1 << 48) - 1
    r16 = ["row_ror:8", "row_ror:4", "row_ror:2", "row_ror:1"]
    poll_init(2, 4, {1: L48})
    poll([("buffer_load_dwordx4 v[16:19], v1, s[32:35], s62 offen sc1", 16), ("buffer_load_dwordx4 v[20:23], v1, s[32:35], s62 offen offset:1024 sc1", 20)], 4)
    for r in range(8): e(f"v_and_b32 v{32+r}, 0xffff0000, v{16+r}")
    e("""v_pk_add_f32 v[28:29], v[32:33], v[34:35]
         v_pk_mul_f32 v[30:31], v[32:33], v[32:33]
         v_pk_add_f32 v[28:29], v[28:29], v[36:37]
         v_pk_fma_f32 v[30:31], v[34:35], v[34:35], v[30:31]
         v_pk_add_f32 v[28:29], v[28:29], v[38:39]
         v_pk_fma_f32 v[30:31], v[36:37], v[36:37], v[30:31]
         v_add_f32 v40, v28, v29
         v_pk_fma_f32 v[30:31], v[38:39], v[38:39], v[30:31]
         v_add_f32 v41, v30, v31""")
    dpp_red("v_add_f32", [40, 41], r16)
    xrow("v_add_f32", [40, 41], [42, 43])
    e(f"""v_mul_f32 v40, {f2u(1/448)}, v40
          v_mul_f32 v41, {f2u(1/448)}, v41
          v_fma_f32 v41, -v40, v40, v41
          v_max_f32 v41, 0, v41""")
    bfround(40); bfround(41)
    e(f"v_add_f32 v41, {f2u(1e-5)}, v41"); bfround(41)
    e("v_sqrt_f32 v41, v41"); bfround(41)
    e("v_rcp_f32 v41, v41")
    e(f"ds_write_b64 v246, v[40:41] offset:{FLAGS+24}\ns_waitcnt lgkmcnt(0)")
    stamp(13)
    e("s_barrier")
    if int(wb) & 6 == 6: e("s_cmp_lt_u32 s28, 4\ns_cbranch_scc1 L_nowb" if fin == "t" else f"s_cmp_lg_u32 s28, {fin}\ns_cbranch_scc1 L_nowb")
    if int(wb) & 2: e("s_cmp_lg_u32 s29, 7\ns_cbranch_scc1 L_nowb\nbuffer_wbl2 sc1\ns_waitcnt vmcnt(0)"); stamp(9); e("L_nowb:")
    if clean & 2:
        e("""s_cmp_lg_u32 s51, 0
             s_cbranch_scc1 L_end
             buffer_store_dwordx4 v[16:19], v1, s[32:35], s62 offen sc1
             s_mov_b32 exec_hi, 0xffff
             buffer_store_dwordx4 v[20:23], v1, s[32:35], s62 offen offset:1024 sc1""")
    if epo[0] == "C": e("s_cmp_lg_u32 s2, 0\ns_cbranch_scc1 L_end\nv_mov_b32 v16, s31\ns_mov_b64 exec, 1\nbuffer_store_dword v16, v246, s[32:35], 0 offen " + epo[1:])
    e("L_end:")
    finish()
    sec("K0")
    for t in extra2: e(t)
    if clean & 1:
        sec("Q3x")
        e(f"""L_clean:
              v_lshlrev_b32 v1, 4, v0
              v_mov_b32 v12, v245
              s_lshl_b32 s60, s28, 16
              s_and_b32 s56, s29, 3
              s_lshl_b32 s56, s56, 14
              s_add_u32 s60, s60, s56
              s_lshl_b32 s56, s30, 12
              s_add_u32 s60, s60, s56
              s_add_u32 s60, s60, {OP}
              s_cmp_lg_u32 s30, 0
              s_cbranch_scc1 L_clst
              v_lshlrev_b32 v2, 8, v0
              s_lshl_b32 s62, s28, 11
              s_add_u32 s62, s62, {HH}
              s_mov_b32 s58, {SPIN}
              s_mov_b64 exec, 0x7f
              L_clpoll:
              s_sub_u32 s58, s58, 1
              s_cbranch_scc1 L_clgo
              buffer_load_dwordx4 v[16:19], v2, s[32:35], s62 offen sc1
              s_waitcnt vmcnt(0)""")
        check(16, 4, 247)
        e(f"""s_cmp_lg_u64 s[4:5], 0
              s_cbranch_scc1 L_clpoll
              L_clgo:
              s_mov_b64 exec, -1
              s_cmp_lg_u32 s29, 28
              s_cbranch_scc1 L_clst
              buffer_store_dwordx4 v[{MG}:{MG+3}], v230, s[32:35], s3 offen sc1
              L_clst:
              s_barrier""")
        for i in range(4): e(f"buffer_store_dwordx4 v[12:15], v1, s[32:35], s60 offen offset:{1024*i} sc1")
        e("s_branch L_end")
    if int(dirty):
        sec("Q3x")
        e(f"""L_dirty:
              s_mov_b32 s34, 0x4000000
              s_lshl_b32 s56, s55, 2
              s_add_u32 s56, s56, s30
              s_mul_i32 s56, s56, {abs(int(dirty))*1024}
              s_add_u32 s56, s56, 0x400000
              s_mov_b32 s57, {abs(int(dirty))}
              v_lshlrev_b32 v1, 4, v0
              L_dloop:
              buffer_store_dwordx4 v[12:15], v1, s[32:35], s56 offen {"sc1" if int(dirty) < 0 else ""}
              s_add_u32 s56, s56, 1024
              s_sub_u32 s57, s57, 1
              s_cmp_lg_u32 s57, 0
              s_cbranch_scc1 L_dloop
              s_branch L_end""")

    WQ, F, XA, MK, DN = 16, 80, 96, 112, 128
    ctm = {"0": "s_lshr_b32 s48, s29, 3\ns_and_b32 s49, s29, 7", "1": "s_lshr_b32 s48, s29, 3\ns_add_u32 s49, s29, 1\ns_and_b32 s49, s49, 7",
           "t": "s_lshr_b32 s49, s29, 2\ns_and_b32 s48, s29, 3", "u": "s_lshr_b32 s49, s29, 2\ns_xor_b32 s49, s49, 4\ns_and_b32 s48, s29, 3"}[ctmap]
    sec("A")
    e(f"""s_setprio 3
          v_lshlrev_b32 v1, 4, v0
          v_lshrrev_b32 v2, 3, v0
          v_and_b32 v3, 7, v0
          v_mul_u32_u24 v4, {14*8192}, v2
          v_lshl_add_u32 v4, v3, 4, v4
          {ctm}
          s_mul_i32 s54, s48, {112*8192}
          s_lshl_b32 s56, s28, 10
          s_add_u32 s54, s54, s56
          s_lshl_b32 s56, s49, 7
          s_add_u32 s54, s54, s56""")
    srd_hi(40, 896); srd_hi(36, 448*8192)
    stamp(15)
    e("s_waitcnt lgkmcnt(0)")
    srd_lo(40, 4)
    e("buffer_load_dwordx4 v[8:11], v1, s[40:43], 0 offen")
    srd_lo(36, 10)
    for i in range(14):
        e(f"buffer_load_dwordx4 v[{WQ+4*i}:{WQ+4*i+3}], v4, s[36:39], s54 offen {wnt if qnt is None else qnt}")
        if i < 13: e("s_add_u32 s54, s54, 8192")
    e("s_load_dword s31, s[26:27], 0\ns_barrier")
    sec("Q1", "L_Q1")
    tlb = int(tlb)
    if tlb:
        e(f"""s_lshl_b32 s54, s28, 23
              s_add_u32 s54, s54, 6291456
              s_add_u32 s60, s8, s54
              s_addc_u32 s61, s9, 0
              s_mul_i32 s54, s28, {512*896}
              s_add_u32 s62, s12, s54
              s_addc_u32 s63, s13, 0
              s_add_u32 s56, s62, {512*896-128}
              s_addc_u32 s57, s63, 0
              v_mov_b32 v12, s60
              v_mov_b32 v13, s61""")
        for ln, r in enumerate((62, 56, 16, 18, 20, 22, 26)):
            e(f"v_writelane_b32 v12, s{r}, {ln+1}\nv_writelane_b32 v13, s{r+1}, {ln+1}")
        e("s_mov_b64 exec, 0xff\nglobal_load_dword v250, v[12:13], off\ns_mov_b64 exec, -1")
    srd(32, 26, WS_SIZE); srd(40, 22, 896); srd(44, 20, 1792*896)
    ffn_scalars()
    masks(MK, 72, 73)
    e("v_mov_b32 v246, 0\nv_mov_b32 v245, 0xff\ns_waitcnt vmcnt(%d)" % (14 + (tlb > 0)))
    skew_store = f"s_lshl_b32 s56, s2, 2\ns_add_u32 s56, s56, {STAMP}\nv_mov_b32 v13, s64\nbuffer_store_dword v13, v246, s[32:35], s56 offen sc1"
    stamp(1)
    e(f"ds_write_b128 v1, v[8:11] offset:{XR}")
    for i in range(4): e(f"v_lshlrev_b32 v{F+2*i}, 16, v{8+i}\nv_and_b32 v{F+2*i+1}, 0xffff0000, v{8+i}")
    e(f"v_add_f32 v72, v{F}, v{F+1}")
    for i in range(2, 8): e(f"v_add_f32 v72, v72, v{F+i}")
    r16 = ["row_ror:8", "row_ror:4", "row_ror:2", "row_ror:1"]
    dpp_red("v_add_f32", [72], r16)
    xrow("v_add_f32", [72], [73])
    e(f"v_mul_f32 v72, {f2u(1/448)}, v72\nv_mov_b32 v73, 0")
    for i in range(8): e(f"v_sub_f32 v74, v{F+i}, v72\nv_fmac_f32 v73, v74, v74")
    e("v_cmp_gt_u32 vcc, 56, v0\nv_cndmask_b32 v73, 0, v73, vcc")
    dpp_red("v_add_f32", [73], r16)
    xrow("v_add_f32", [73], [74])
    e(f"v_mul_f32 v73, {f2u(1/448)}, v73")
    bfround(72); bfround(73)
    e(f"v_add_f32 v73, {f2u(1e-5)}, v73"); bfround(73)
    e("v_sqrt_f32 v73, v73"); bfround(73)
    e("v_rcp_f32 v74, v73")
    for i in range(8): e(f"v_sub_f32 v{F+i}, v{F+i}, v72")
    for i in range(0, 8, 2): e(f"v_cvt_pk_bf16_f32 v{F+i+1}, v{F+i}, v{F+i+1}")
    for i in range(0, 8, 2): e(f"v_lshlrev_b32 v{F+i}, 16, v{F+i+1}\nv_and_b32 v{F+i+1}, 0xffff0000, v{F+i+1}")
    for i in range(8): e(f"v_mul_f32 v{F+8+i}, v{F+i}, v74")
    for i in range(8): e(f"v_fma_f32 v{F+i}, -v{F+8+i}, v73, v{F+i}")
    for i in range(8): e(f"v_fmac_f32 v{F+8+i}, v{F+i}, v74")
    for i in range(8): e(f"v_cvt_pk_bf16_f32 v{F+i}, v{F+8+i}, v{F+8+i}")
    e(f"""v_lshlrev_b32 v72, 5, v0
          ds_write_b128 v72, v[{F}:{F+3}] offset:{XN}
          ds_write_b128 v72, v[{F+4}:{F+7}] offset:{XN+16}
          v_mul_u32_u24 v73, 56, v2
          s_mul_i32 s56, s48, 448
          v_add_u32 v73, s56, v73
          s_waitcnt lgkmcnt(0)""")
    for i in range(7): e(f"ds_read_b64 v[{XA+2*i}:{XA+2*i+1}], v73 offset:{XN+8*i}")
    tags()
    e(f"""s_getreg_b32 s56, hwreg(HW_REG_XCC_ID, 0, 4)
          s_and_b32 s63, s97, 0xf0
          s_or_b32 s63, s63, s56
          s_waitcnt lgkmcnt(0)""")
    stamp(2)
    for i in range(15):
        if i < 14:
            a = (116, 120)[i & 1]
            for j in range(4): e(f"v_and_b32 v{a+j}, v{XA+i}, v{MK+j}")
        if i >= 1:
            p = i - 1; a = (116, 120)[p & 1]
            e(f"s_waitcnt vmcnt({13-p+(tlb > 0)})\nv_mfma_f32_16x16x32_bf16 v[8:11], v[{a}:{a+3}], v[{WQ+4*p}:{WQ+4*p+3}], " + ("0" if p == 0 else "v[8:11]"))
    e(f"""v_lshrrev_b32 v5, 4, v0
          v_lshlrev_b32 v72, 4, v5
          v_lshl_add_u32 v72, v3, 5, v72
          v_and_b32 v73, 40, v0
          v_mov_b32 v12, {OOB}
          v_cmp_eq_u32 vcc, 0, v73
          v_cndmask_b32 v72, v12, v72, vcc
          s_lshl_b32 s54, s28, 13
          s_add_u32 s54, s54, {QP}
          s_lshl_b32 s56, s48, 11
          s_add_u32 s56, s56, s54
          s_lshl_b32 s61, s49, 8
          s_add_u32 s56, s56, s61""")
    for r in range(4): e(f"v_mov_b32_dpp v{F+r}, v{8+r} row_ror:8 row_mask:0xf bank_mask:0xf")
    for r in range(4): e(f"v_permlane32_swap_b32 v{F+r}, v{F+4+r}")
    for r in range(4): e(f"v_add_f32 v{8+r}, v{8+r}, v{F+4+r}")
    for r in range(4): e(f"v_add_u32 v{8+r}, 0x80, v{8+r}")
    tag4(8, 245, "s63")
    e("buffer_store_dwordx4 v[8:11], v72, s[32:35], s56 offen sc1")
    stamp(3)
    if skew is not None: e(skew_store)
    e(f"""s_lshr_b32 s53, s2, 6
          s_lshl_b32 s53, s53, 14
          s_and_b32 s56, s2, 63
          s_lshl_b32 s56, s56, 7
          s_add_u32 s53, s53, s56
          s_add_u32 s53, s53, {PB}
          v_lshlrev_b32 v6, 10, v0
          v_and_b32 v6, 0x2000, v6
          v_lshl_add_u32 v6, v3, 4, v6""")
    for r in range(4): e(f"v_mov_b32 v{16+r}, 0x100")
    e("s_mov_b64 exec, 0xffff\nbuffer_store_dwordx4 v[16:19], v6, s[32:35], s53 offen sc1\ns_mov_b64 exec, -1")
    e(f"""s_setprio 0
          s_lshl_b32 s54, s55, 11
          s_add_u32 s54, s54, {OP}
          v_lshl_add_u32 v6, v0, 7, s54
          s_lshr_b32 s48, s29, 3
          s_and_b32 s49, s29, 7
          s_lshl_b32 s60, s49, 6
          s_lshl_b32 s56, s48, 4
          s_add_u32 s60, s60, s56
          s_lshl_b32 s56, s28, 9
          s_add_u32 s60, s60, s56
          s_add_u32 s60, s60, {ML}
          s_mul_i32 s61, s52, 7168
          s_add_u32 s61, s61, {DP}
          s_lshl_b32 s56, s51, 10
          s_add_u32 s62, s61, s56
          s_sub_u32 s56, s62, {16*128}
          v_lshl_add_u32 v7, v0, 7, s56
          v_cmp_gt_u32 vcc, 16, v0
          v_cndmask_b32 v6, v7, v6, vcc
          s_lshl_b32 s63, s52, 11
          s_add_u32 s63, s63, {HH}
          s_lshl_b32 s56, s51, 8
          s_add_u32 s56, s56, s63
          v_writelane_b32 v6, s56, 24
          s_add_u32 s56, s56, 128
          v_writelane_b32 v6, s56, 25
          v_writelane_b32 v6, s60, 26
          s_cmp_lt_u32 s52, 28
          s_cselect_b32 s56, 0x03ff0000, 0
          s_or_b32 exec_lo, s56, 0x0400ffff
          s_mov_b32 exec_hi, 0
          buffer_load_dword v13, v6, s[32:35], 0 offen sc1
          s_mov_b64 exec, -1
          v_cmp_eq_u32 vcc, 0, v0
          v_cndmask_b32 v14, v12, v0, vcc
          v_and_b32 v72, 1, v0
          v_lshlrev_b32 v72, 4, v72
          s_mov_b32 s57, {CEXP}
          v_and_b32 v3, 3, v0
          v_and_b32 v6, 1, v5
          v_lshlrev_b32 v6, 2, v6
          v_lshrrev_b32 v7, 1, v5
          v_lshl_add_u32 v6, v7, 1, v6
          v_mul_u32_u24 v6, 896, v6
          v_and_b32 v7, 15, v0
          v_lshl_add_u32 v6, v7, 3, v6
          s_mul_i32 s48, s100, 57344
          s_lshl_b32 s56, s51, 7
          s_add_u32 s48, s48, s56
          s_mul_i32 s49, s51, {BS}
          s_lshl_b32 s56, s28, 10
          s_add_u32 s49, s49, s56
          s_lshl_b32 s56, s50, 8
          s_add_u32 s49, s49, s56
          s_add_u32 s49, s49, {CP}
          v_lshlrev_b32 v2, 2, v0""")
    qtag_reg(244, 3)
    e("v_bfe_u32 v15, v0, 2, 2")
    qtag_reg(15, 15)
    e("v_cmp_eq_u32 vcc, 0, v3\nv_cndmask_b32 v243, 0, v245, vcc")
    e(f"""s_mul_i32 s54, s51, {BS}
          s_add_u32 s54, s54, {EP}
          s_lshl_b32 s56, s52, 8
          s_add_u32 s54, s54, s56
          v_lshlrev_b32 v249, 7, v0
          v_lshlrev_b32 v250, 12, v0
          v_and_b32 v249, 0x80, v249
          v_and_b32 v250, 0x2000, v250
          v_or_b32 v249, v249, v250
          s_cmp_ge_u32 s29, 28
          s_cbranch_scc1 L_nopre
          s_mov_b64 exec, 15
          buffer_load_dword v250, v249, s[32:35], s49 offen sc1
          s_cmp_ge_u32 s52, 28
          s_cbranch_scc1 L_nopre
          buffer_load_dword v250, v249, s[32:35], s54 offen sc1""")
    if opre: e(f"""s_lshr_b32 s56, s52, 2
          {"s_cmp_lg_u32 s56, 1" if fin == "t" else f"s_cmp_lg_u32 s28, {fin}"}
          s_cbranch_scc1 L_nopre
          s_lshl_b32 s56, s51, 7
          buffer_load_dword v250, v246, s[40:43], s56 offen {opre.replace("p", "")}""")
    e(f"""L_nopre:
          s_mov_b64 exec, -1""")
    def load_dn(guard=True, part=None):
        skip = lab("nodn")
        if guard: e(f"s_cmp_ge_u32 s52, 28\ns_cbranch_scc1 {skip}")
        for i in range(8) if part is None else range(4*part, 4*part + 4):
            for hi in range(2):
                d = DN + 2*(8*hi + i)
                e(f"buffer_load_dwordx2 v[{d}:{d+1}], v6, s[44:47], s48 offen offset:{896*hi} {wnt}")
            if i < 7: e("s_add_u32 s48, s48, 7168")
        e(f"{skip}:")
    if dnpos == "K": load_dn()
    e("""s_waitcnt vmcnt(0)
         s_mov_b32 s99, 0
         s_load_dword s98, s[26:27], s53 offset:0
         s_load_dword s99, s[26:27], s53 offset:8192
         s_waitcnt lgkmcnt(1)
         s_andn2_b32 s101, 0x100, s99""")
    sec("Q2", "L_Q2")
    sec("Q3", "L_Q3")
    e(f"s_barrier\nds_read_b128 v[24:27], v246 offset:{FLAGS}\ns_waitcnt lgkmcnt(0)")
    read_mode(24)
    if dnpos == "q": load_dn()
    e("s_setprio 3\ns_barrier")
    stamp(4)
    e(f"""
          ds_read_b128 v[16:19], v72 offset:{MLW}
          ds_read_b128 v[20:23], v72 offset:{MLW+32}
          s_waitcnt lgkmcnt(0)
          v_max3_f32 v8, v16, v17, v18
          v_max_f32 v8, v8, v19""")
    for w in range(4): e(f"v_sub_f32 v{16+w}, v{16+w}, v8")
    for w in range(4): e(f"v_mul_f32 v{16+w}, s57, v{16+w}")
    for w in range(4): e(f"v_exp_f32 v{16+w}, v{16+w}")
    e("""v_mul_f32 v9, v16, v20
         v_fmac_f32 v9, v17, v21
         v_fmac_f32 v9, v18, v22
         v_fmac_f32 v9, v19, v23
         v_mov_b32_dpp v10, v8 quad_perm:[1,1,1,1] row_mask:0xf bank_mask:0xf
         v_mov_b32_dpp v11, v9 quad_perm:[1,1,1,1] row_mask:0xf bank_mask:0xf""")
    e("v_or_b32 v8, s101, v8")
    tag4(8, 245)
    if mlsc: e("buffer_store_dwordx4 v[8:11], v14, s[32:35], s60 offen sc1")
    else: mode_store(["buffer_store_dwordx4 v[8:11], v14, s[32:35], s60 offen"])
    stamp(5)
    e("s_cmp_ge_u32 s29, 28\ns_cbranch_scc1 L_end\ns_setprio 0")
    if dnpos == "p": load_dn()
    if dnpos == "pB": load_dn(part=0)
    e("s_add_u32 s53, s49, 8192")
    e("s_barrier")
    if dnpos == "h": e("s_barrier"); load_dn()
    else: e("s_barrier")
    if gupos == "B1": e("s_barrier")
    if dnpos == "B1": load_dn()
    if dnpos == "pB": load_dn(part=1)
    e("s_setprio 3\ns_barrier")
    stamp(6)
    if dnpos == "B3": load_dn()
    for k in range(4): e(f"ds_read2st64_b32 v[{16+2*k}:{17+2*k}], v2 offset0:{RED//256+2*k} offset1:{RED//256+2*k+1}")
    e("""s_waitcnt lgkmcnt(2)
         v_pk_add_f32 v[16:17], v[16:17], v[18:19]
         s_waitcnt lgkmcnt(0)
         v_pk_add_f32 v[20:21], v[20:21], v[22:23]
         v_pk_add_f32 v[16:17], v[16:17], v[20:21]
         v_add_f32 v16, v16, v17
         v_bfi_b32 v16, v243, v15, v16
         buffer_store_dword v16, v2, s[32:35], s49 offen sc1
         buffer_store_dword v16, v2, s[32:35], s53 offen sc1""")
    stamp(7)
    e("s_setprio 0\ns_cmp_ge_u32 s52, 28\ns_cbranch_scc1 L_end")
    if dnpos == "B4": load_dn(False)
    if cack: e("s_waitcnt vmcnt(%d)\ns_barrier" % (16 if dnpos == "B4" else 0))
    if dnpos == "B5": load_dn(False)
    for r in range(4): e(f"v_mov_b32 v{84+r}, {'v244' if r == 0 else 0}")
    DS = (20, 21, 22, 23, 24, 25)
    for p in range(6):
        e(f"s_add_u32 s56, s51, {p+1}\ns_sub_u32 s60, s56, 7\ns_cselect_b32 s56, s56, s60\ns_lshl_b32 s56, s56, 10\ns_add_u32 s{DS[p]}, s56, s61")
    e(f"""
          s_mul_i32 s54, s51, {BS}
          s_add_u32 s54, s54, {EP}
          s_lshl_b32 s56, s52, 8
          s_add_u32 s49, s54, s56
          v_cmp_gt_u32 vcc, 16, v0
          v_cndmask_b32 v4, v12, v1, vcc
          {"s_sub_u32 s50, s52, 4" if fin == "t" else f"s_cmp_eq_u32 s28, {fin}" + chr(10) + "s_cselect_b32 s50, s50, 4"}
          s_lshl_b32 s56, s50, 6
          s_add_u32 s54, s54, s56
          s_add_u32 s53, s54, 4096
          v_lshrrev_b32 v7, 2, v0
          v_lshlrev_b32 v7, 8, v7
          v_lshl_add_u32 v7, v3, 4, v7
          v_lshl_add_u32 v8, v3, 2, v5
          v_lshl_add_u32 v9, v8, 2, s56
          v_and_b32 v9, 0xff, v9
          v_lshlrev_b32 v8, 1, v8
          v_and_b32 v10, 12, v0
          v_cmp_eq_u32 vcc, 0, v10
          v_cndmask_b32 v8, v12, v8, vcc
          s_lshl_b32 s55, s51, 7
          s_lshl_b32 s56, s50, 5
          s_add_u32 s55, s55, s56""")
    L48 = (1 << 48) - 1
    e(f"s_mov_b32 s58, {SPIN}")
    e("s_setprio 3\ns_barrier")
    stamp(8)
    for k in range(4): e(f"ds_read_b128 v[{24+4*k}:{27+4*k}], v1 offset:{RED2+1024*k}")
    e("s_waitcnt lgkmcnt(2)")
    pk_add4(24, 24, 28)
    e("s_waitcnt lgkmcnt(0)")
    pk_add4(32, 32, 36); pk_add4(24, 24, 32)
    e("v_bfi_b32 v24, v245, v244, v24")
    mode_store(["buffer_store_dwordx4 v[24:27], v1, s[32:35], s62 offen"])
    stamp(9)
    dg = [(f"buffer_load_dwordx4 v[{44+4*p}:{47+4*p}], v1, s[32:35], s{DS[p]} offen sc1", 44 + 4*p) for p in range(6)]
    for t, b in dg: e(t)
    e(f"""ds_read_b32 v13, v9 offset:{HL}
          ds_read_b32 v11, v246 offset:{FLAGS+16}
          v_and_b32 v24, 0xffffff00, v24
          s_waitcnt lgkmcnt(0)
          v_and_b32 v13, 0xffff0000, v13
          v_add_u32 v7, v7, v11
          v_add_u32 v4, v4, v11
          v_xor_b32 v10, 0x2000, v4""")
    stamp(10)
    poll(dg, 8, issued=True, quad=244, pre=f"s_barrier\nds_read_b64 v[40:41], v246 offset:{FLAGS+24}")
    stamp(11)
    pk_add4(44, 44, 48); pk_add4(52, 52, 56); pk_add4(60, 60, 64)
    pk_add4(44, 44, 24); pk_add4(52, 52, 60); pk_add4(44, 44, 52)
    e("s_waitcnt lgkmcnt(0)")
    e("""v_permlane32_swap_b32 v44, v46
         v_permlane32_swap_b32 v45, v47
         v_fma_f32 v44, -v40, v46, v44
         v_fma_f32 v45, -v40, v47, v45
         v_mul_f32 v44, v44, v41
         v_mul_f32 v45, v45, v41
         v_mov_b32 v46, v44
         v_mov_b32_dpp v44, v45 row_ror:8 row_mask:0xf bank_mask:0xc
         v_mov_b32_dpp v45, v46 row_ror:8 row_mask:0xf bank_mask:0x3
         v_cvt_pk_bf16_f32 v45, v44, v45
         v_lshlrev_b32 v44, 16, v45
         v_and_b32 v45, 0xffff0000, v45""")
    k0 = -2.0 * 0.7978845608028654 * 1.4426950408889634
    e(f"""v_mul_f32 v46, v44, v44
          v_mul_f32 v46, {f2u(k0*0.044715)}, v46
          v_add_f32 v46, {f2u(k0)}, v46
          v_mul_f32 v46, v46, v44
          v_exp_f32 v46, v46
          v_add_f32 v46, 1.0, v46
          v_rcp_f32 v46, v46
          v_mul_f32 v46, v46, v44""")
    bfround(46)
    e("v_mul_f32 v46, v46, v45\nv_cvt_pk_bf16_f32 v46, v46, v46")
    for i in range(17):
        if i < 16:
            a = 116 + 2*(i & 3)
            for j in range(2): e(f"v_and_b32_dpp v{a+j}, v46, v{MK+j} row_newbcast:{i} row_mask:0xf bank_mask:0xf")
        if i >= 1:
            p = i - 1; ap = 116 + 2*(p & 3)
            e(f"v_mfma_f32_16x16x16_bf16 v[32:35], v[{ap}:{ap+1}], v[{DN+2*p}:{DN+2*p+1}], " + ("0" if p == 0 else "v[32:35]"))
    poll_init(2, 4, {1: L48})
    e("v_bfi_b32 v32, v245, v244, v32")
    e("buffer_store_dwordx4 v[32:35], v4, s[32:35], s49 offen sc1")
    e("buffer_store_dwordx4 v[32:35], v10, s[32:35], s49 offen sc1")
    stamp(12)
    if int(wb) & 8: e(f"s_cmp_lg_u32 s2, {56 + int(fin)}\ns_cbranch_scc1 L_nowb8\nbuffer_wbl2 sc1\nL_nowb8:")
    e(f"s_cmp_gt_u32 s50, 3\ns_cbranch_scc1 {'L_wb4' if int(wb) & 4 else 'L_Eend'}")
    if et:
        for r in range(4): e(f"v_mov_b32 v{80+r}, 0")
        poll_sum(lambda i, b: f"buffer_load_dwordx4 v[{b}:{b+3}], v7, s[32:35], {('s54', 's53')[i]} offen sc1", 80, 160, 244, et)
        stamp(13)
    else:
        if eack: e("s_waitcnt vmcnt(%d)" % (1 if eack == "1" else 0))
        poll([("buffer_load_dwordx4 v[80:83], v7, s[32:35], s54 offen sc1", 80), ("buffer_load_dwordx4 v[84:87], v7, s[32:35], s53 offen sc1", 84)], 4, quad=244)
        stamp(13)
        pk_add4(80, 80, 84)
    trows(80)
    dpp_red("v_add_f32", [80], ["row_ror:4", "row_ror:8"])
    bfround(80)
    e(f"""v_add_f32 v80, v80, v13
          v_cvt_pk_bf16_f32 v80, v80, v80
          buffer_store_short v80, v8, s[40:43], s55 offen {osc}""")
    if epo[0] != "C":
        e(f"""s_cmp_lg_u32 s2, 4
          s_cbranch_scc1 L_Eend
          v_mov_b32 v16, s31
          buffer_store_dword v16, v14, s[32:35], 0 offen {"sc1" if epo == "s" else ""}""")
    e("L_Eend:")
    if clean & 4: e("v_or_b32 v24, v24, v244\nbuffer_store_dwordx4 v[24:27], v1, s[32:35], s62 offen sc1")
    stamp(14)
    if amp is not None:
        e(f"""s_cmp_lg_u32 s2, 4
              s_cbranch_scc1 L_end
              s_memrealtime s[96:97]
              s_waitcnt lgkmcnt(0)
              s_sub_u32 s98, s{64+2*int(amp)}, s64
              s_lshl_b32 s98, s98, 3""")
        if skew is not None:
            e(f"""s_mov_b32 s56, {STAMP}
              buffer_load_dword v16, v246, s[32:35], s56 offen sc1
              buffer_load_dword v17, v246, s[32:35], s56 offen offset:{4*int(skew)} sc1
              s_waitcnt vmcnt(0)
              v_sub_u32 v16, v17, v16
              v_add_u32 v16, 100, v16
              v_readfirstlane_b32 s98, v16
              s_lshl_b32 s98, s98, 5""")
        e(f"""
              s_min_u32 s98, s98, 100000
              L_amp:
              s_memrealtime s[100:101]
              s_waitcnt lgkmcnt(0)
              s_sub_u32 s99, s100, s96
              s_cmp_lt_u32 s99, s98
              s_cbranch_scc1 L_amp""")
    finish()
    if int(wb) & 4:
        e("L_wb4:\ns_cmp_lg_u32 s29, 7\ns_cbranch_scc1 L_Eend")
        if fin == "t": e("s_cmp_ge_u32 s28, 4\ns_cbranch_scc1 L_Eend")
        e(f"s_waitcnt vmcnt({wbt})\nbuffer_wbl2 sc1\ns_waitcnt vmcnt(0)\ns_branch L_Eend")
    sec("A")
    for t in extra: e(t)
    sec("Q3")
    for far, back, ins in deferred:
        e(f"{far}:\ns_nop 7")
        for t in ins: e(t + " sc1")
        e(f"s_nop 1\ns_branch {back}")
    if stamps:
        e("L_stamps:\ns_waitcnt lgkmcnt(0)\ns_mov_b64 exec, -1\nv_mov_b32 v250, 0")
        for k in range(16): e(f"v_writelane_b32 v250, s{64+2*k}, {k}")
        e(f"""s_lshl_b32 s60, s2, 3
              s_add_u32 s60, s60, s30
              s_lshl_b32 s60, s60, 6
              s_add_u32 s60, s60, {STAMP}
              v_lshlrev_b32 v251, 2, v0
              s_mov_b64 exec, 0xffff
              buffer_store_dword v250, v251, s[32:35], s60 offen""")
    e("L_exit:\ns_endpgm")

    head = open("cdna_kernels/" + NAME + ".s.ref").read()
    head = head[:head.index("; @launch")]
    out = head + f"; @launch grid=(256,1,1) block=(320,1,1) lds={LDS_SIZE}\n"
    out += f""".amdgcn_target "amdgcn-amd-amdhsa--gfx950"
.text
.globl {NAME}_kernel
.p2align 12
.fill {int(pad)//4}, 4, 0xbf800000
.p2align 8
.type {NAME}_kernel,@function
{NAME}_kernel:
"""
    for name, al in (("A", 0), ("K1", 0), ("Q1", 12), ("Q2", 12), ("K0", 0), ("K2", 0), ("Q3x", 0), ("Q3", 12)):
        if name not in secs: continue
        if al: out += f".p2align {al}\n"
        out += "\n".join(secs[name]) + "\n"
    out += f""".section .rodata,"a"
.p2align 6
.amdhsa_kernel {NAME}_kernel
  .amdhsa_next_free_vgpr 256
  .amdhsa_next_free_sgpr 102
  .amdhsa_accum_offset 256
  .amdhsa_group_segment_fixed_size 0
  .amdhsa_kernarg_size 96
  .amdhsa_user_sgpr_count 2
  .amdhsa_user_sgpr_kernarg_segment_ptr 1
  .amdhsa_system_sgpr_workgroup_id_x 1
.end_amdhsa_kernel
"""
    return out

if __name__ == "__main__":
    kw = {}
    for a in sys.argv[2:]:
        k, v = a.split("=")
        kw[k] = {"True": True, "False": False}.get(v, v)
    open(sys.argv[1], "w").write(gen(**kw))
```

```python
import sys, struct, re
from emit import Emitter, Ins, need

NAME = "sequential_preLN__sliding_block_cached__geglu_ffn__decode"
def f2u(x): return struct.unpack("<I", struct.pack("<f", x))[0]

QP, ML, CP, EP, OP, HH, DP, STAMP, WS_SIZE = 0x10000, 0x20000, 0x120000, 0x140000, 0x40000, 0xC0000, 0xD0000, 0x1E0000, 0x200000
XN, XR, QS, EB, RED, RED2, FLAGS, MLW, HL, PR, LDS_SIZE = 0, 2048, 3072, 4096, 5120, 7168, 11264, 11520, 11776, 12288, 14336
QC = 12032
OOB = 0x7ffffff0
PB = 0x160000
SPIN = 1 << 16
CEXP = f2u(1.4426950408889634 / 16.0)
T0, T1, T2 = "s31", "s96", "s97"
TAGS = (T0, T0, T1, T2)

def gen(amp=None, nt="nt", wnt=None, stamps=False, force_global=False, wopos="V", gupos="B1", dnpos="p",
        code_pf=True, eack=True, kpre=0, W=6, qa=3, lc=15, rot="gj", skew=None, cack=True, ctmap="u", pad=0xD00, ksplit=3, order="V1GV16MW", tlb=0, tmap=1, w0=8, qnt=None, opat=1, skipz=0, opsc=False, ct="30", et="10", home="v", mlsc=False, gi="0112", sw=1, dirty=0, wb=6, epo="C", osc="", Wq=6, W2=0, Ww=0, Wm=0, lst="", opre="p", clean=0, fin="2", wbt=0, dbg=0, mlo="A", gfree="", sp="11111n", dnt=1, dspec=1, ospec=1, hlate=2, sfl=0, qsc="", pst=2, pre=7, qpre=0, tlm="0xff", cld="sc1", eld="sc1", cst="sc1", est="sc1", wbf="sc1", wbj=7, t4g="0123"):
    dnt, dspec, ospec, hlate, sfl = int(dnt), int(dspec), int(ospec), int(hlate), int(sfl)
    clean = int(clean)
    if clean & 8: epo, osc = "Csc1", "sc1"
    if wnt is None: wnt = nt
    BS = 16384
    cld, eld, cst, est = (x.replace("_", " ") for x in (cld, eld, cst, est))
    if ct: cack, ct = ct[0] if ct[0] in "ab" else "", ct.lstrip("ab")
    kpre, W, qa = int(kpre), int(W), int(qa)
    lc = int(lc); nb = lc - 12
    def koff(st): return ((st >> nb) << (lc + 5)) | ((st & ((1 << nb) - 1)) << 12)
    if skew is not None: amp = 0
    e = Emitter()
    uid = [0]
    deferred = []
    extra = []
    secs = {"A": e.lines}
    def sec(name, jump=None):
        if jump: e(f"s_branch {jump}")
        e.lines = secs.setdefault(name, []); e.hist = []
        if jump: e(f"{jump}:")
    def lab(p): uid[0] += 1; return f"L_{p}{uid[0]}"
    def srd_hi(d, n): e(f"s_mov_b32 s{d+2}, {n}\ns_mov_b32 s{d+3}, 0x00020000")
    def srd_lo(d, b): e(f"s_mov_b64 s[{d}:{d+1}], s[{b}:{b+1}]")
    def srd(d, b, n): srd_lo(d, b); srd_hi(d, n)
    def stamp(k):
        if stamps or (amp is not None and k in (0, int(amp))): e(f"s_memrealtime s[{64+2*k}:{65+2*k}]")
    def finish():
        if stamps: e("s_branch L_stamps")
        else: e("s_endpgm")
    def mode_store(ins):
        far, back = lab("far"), lab("back")
        e(f"s_cmp_lg_u32 s59, 0\ns_cbranch_scc1 {far}")
        for t in ins: e(t + " " + lst.replace("_", " "))
        e(f"{back}:")
        deferred.append((far, back, ins))
    def tags():
        e(f"""s_add_u32 s31, s31, 0x9E3779B1
              s_lshr_b32 s96, s31, 8
              s_or_b32 s96, s96, 1
              s_xor_b32 s96, s96, s31
              s_lshr_b32 s97, s31, 16""")
    def tag4(b, ff, last=T2):
        for r in range(4): e(f"v_bfi_b32 v{b+r}, v{ff}, {(T0, T0, T1, last)[r]}, v{b+r}")
    def lane_tag(d, idx, t):
        e(f"""v_mov_b32 v{d}, {T0}
              v_mov_b32 v{t}, {T1}
              v_cmp_eq_u32 vcc, 2, v{idx}
              v_cndmask_b32 v{d}, v{d}, v{t}, vcc
              v_mov_b32 v{t}, {T2}
              v_cmp_eq_u32 vcc, 3, v{idx}
              v_cndmask_b32 v{d}, v{d}, v{t}, vcc
              v_and_b32 v{d}, 0xff, v{d}""")
    def masks(m, t0, t1):
        e(f"""v_and_b32 v{t0}, 1, v0
              v_lshlrev_b32 v{t0}, 4, v{t0}
              v_mov_b32 v{t1}, 0xffff
              v_lshlrev_b32 v{t1}, v{t0}, v{t1}
              v_bfe_u32 v{t0}, v0, 1, 2""")
        for j in range(4):
            e(f"v_cmp_eq_u32 vcc, {j}, v{t0}\nv_cndmask_b32 v{m+j}, 0, v{t1}, vcc")
    def dpp_red(op, vs, ctrls):
        for c in ctrls:
            for v in vs: e(f"{op}_dpp v{v}, v{v}, v{v} {c} row_mask:0xf bank_mask:0xf")
    def xrow(op, vs, tmps):
        for sw in ("v_permlane16_swap_b32", "v_permlane32_swap_b32"):
            for v, t in zip(vs, tmps): e(f"v_mov_b32 v{t}, v{v}")
            for v, t in zip(vs, tmps): e(f"{sw} v{v}, v{t}")
            for v, t in zip(vs, tmps): e(f"{op} v{v}, v{v}, v{t}")
    def bfround(v): e(f"v_cvt_pk_bf16_f32 v{v}, v{v}, v{v}\nv_and_b32 v{v}, 0xffff0000, v{v}")
    def trows(a):
        e(f"""v_permlane32_swap_b32 v{a}, v{a+2}
              v_permlane32_swap_b32 v{a+1}, v{a+3}
              v_add_f32 v{a}, v{a}, v{a+2}
              v_add_f32 v{a+1}, v{a+1}, v{a+3}
              v_permlane16_swap_b32 v{a}, v{a+1}
              v_add_f32 v{a}, v{a}, v{a+1}""")
    def pk_add4(d, a, b):
        e(f"v_pk_add_f32 v[{d}:{d+1}], v[{a}:{a+1}], v[{b}:{b+1}]\nv_pk_add_f32 v[{d+2}:{d+3}], v[{a+2}:{a+3}], v[{b+2}:{b+3}]")
    def check(b, m, t):
        e(f"""v_bitop3_b32 v{t}, v{b}, v{b+1}, {T0} bitop3:0x7e
              v_bitop3_b32 v{t}, v{b+2}, {T1}, v{t} bitop3:0xbe
              v_bitop3_b32 v{t}, v{b+3}, {T2}, v{t} bitop3:0xbe
              v_cmp_ne_u32_sdwa s[{m}:{m+1}], v{t}, v246 src0_sel:BYTE_0 src1_sel:DWORD""")
    def qtag_reg(d, idx):
        e(f"v_lshlrev_b32 v{d}, 3, v{idx}\nv_lshrrev_b32 v{d}, v{d}, {T0}\nv_and_b32 v{d}, 0xff, v{d}")
    def qclean(loads):
        for t, b in loads: e(f"v_and_b32 v{b}, 0xffffff00, v{b}")
    def poll_init(n, m0, init=None):
        for i in range(n):
            v = (init or {}).get(i)
            if v is None: e(f"s_mov_b64 s[{m0+2*i}:{m0+2*i+1}], -1")
            else: e(f"s_mov_b32 s{m0+2*i}, {v & 0xffffffff}\ns_mov_b32 s{m0+2*i+1}, {v >> 32}")
        e(f"s_mov_b32 s58, {SPIN}")
    def poll(loads, m0, issued=False, behind=0, quad=None, pre=None, spec=None):
        n = len(loads)
        top, chk, done = lab("poll"), lab("chk"), lab("pdone")
        if issued: e(f"s_branch {chk}")
        e(f"{top}:\ns_sub_u32 s58, s58, 1\ns_cbranch_scc1 {done}")
        for i, (t, b) in enumerate(loads):
            sk = lab("sk")
            if int(skipz) and n > 2: e(f"s_wqm_b64 exec, s[{m0+2*i}:{m0+2*i+1}]\ns_cbranch_scc0 {sk}\n{t}\n{sk}:")
            else: e(f"s_wqm_b64 exec, s[{m0+2*i}:{m0+2*i+1}]\n{t}")
        e("s_mov_b64 exec, -1")
        if behind or (int(skipz) and n > 2): e("s_waitcnt vmcnt(0)")
        if issued: e(f"{chk}:")
        for i, (t, b) in enumerate(loads):
            e(f"s_waitcnt vmcnt({n-1-i+behind})")
            if quad: e(f"v_cmp_ne_u32_sdwa s[{m0+2*i}:{m0+2*i+1}], v{b}, v{quad} src0_sel:BYTE_0 src1_sel:DWORD")
            else: check(b, m0 + 2*i, 247 + (i & 1))
            if spec:
                if i < n - 1: spec(i, b)
                if i == 1: e(f"s_or_b64 vcc, s[{m0}:{m0+1}], s[{m0+2}:{m0+3}]")
                if i > 1: e(f"s_or_b64 vcc, vcc, s[{m0+2*i}:{m0+2*i+1}]")
        if spec: pass
        elif n == 1: e(f"s_cmp_lg_u64 s[{m0}:{m0+1}], 0")
        else:
            e(f"s_or_b64 vcc, s[{m0}:{m0+1}], s[{m0+2}:{m0+3}]")
            for i in range(2, n): e(f"s_or_b64 vcc, vcc, s[{m0+2*i}:{m0+2*i+1}]")
        e(f"s_cbranch_scc1 {top}\n{done}:")
        if pre: e(pre)
        if spec: spec(n - 1, loads[-1][1])
        elif quad: qclean(loads)
    def poll_sum(load, acc, base, quad, ticks):
        once = ticks.index("/") if "/" in ticks else 0
        ticks = ticks.replace("/", "")
        D = len(ticks)
        top, done = lab("ps"), lab("psd")
        def issue_round(r):
            for i in range(2): e(f"s_mov_b64 exec, s[{4+2*i}:{5+2*i}]\n" + load(i, base + 8*r + 4*i))
            e("s_mov_b64 exec, -1")
        for r, t in enumerate(ticks):
            if t != "x": e(f"s_waitcnt vmcnt({int(t) + 2*r})")
            if acc == 16 and r < 2: stamp(14 + r)
            issue_round(r)
        for r in range(D):
            if r == once: e(f"{top}:")
            for i in range(2):
                b, m = base + 8*r + 4*i, 4 + 2*i
                e(f"""s_waitcnt vmcnt({2*(D - min(r, once))-1-i})
                      v_cmp_ne_u32_sdwa vcc, v{b}, v{quad} src0_sel:BYTE_0 src1_sel:DWORD
                      v_and_b32 v{b}, 0xffffff00, v{b}
                      s_wqm_b64 vcc, vcc
                      s_andn2_b64 exec, s[{m}:{m+1}], vcc
                      s_and_b64 s[{m}:{m+1}], s[{m}:{m+1}], vcc""")
                pk_add4(acc, acc, b)
                e("s_mov_b64 exec, -1")
            e(f"s_or_b64 vcc, s[4:5], s[6:7]\ns_cbranch_scc0 {done}")
            if r >= once: issue_round(r)
        e(f"s_sub_u32 s58, s58, 1\ns_cbranch_scc0 {top}\n{done}:")
    def read_mode(t):
        e(f"v_or3_b32 v{t}, v{t}, v{t+1}, v{t+2}\nv_or_b32 v{t}, v{t}, v{t+3}\nv_readfirstlane_b32 s59, v{t}")
    def ffn_scalars():
        order4 = [int(c) for c in t4g] + [g for g in range(8) if str(g) not in t4g]
        table = sum(order4.index(g) << (4*g) for g in range(8))
        assert fin == "t" or fin in t4g
        e(f"""s_mul_i32 s50, s29, 37
             s_lshr_b32 s50, s50, 8
             s_mul_i32 s51, s50, 7
             s_sub_u32 s51, s29, s51
             s_lshl_b32 s101, s28, 2
             s_lshr_b32 s101, {table}, s101
             s_and_b32 s101, s101, 7
             s_lshl_b32 s52, s50, 3
             s_add_u32 s52, s52, s101""")
        if int(tmap): e("s_mul_i32 s100, s101, 3\ns_min_u32 s101, s101, 4\ns_add_u32 s100, s100, s101\ns_add_u32 s100, s100, s50\ns_min_u32 s100, s100, 27")
        else: e("s_min_u32 s100, s52, 27")

    ctm = {"0": "s_lshr_b32 s48, s29, 3\ns_and_b32 s49, s29, 7", "1": "s_lshr_b32 s48, s29, 3\ns_add_u32 s49, s29, 1\ns_and_b32 s49, s49, 7",
           "t": "s_lshr_b32 s49, s29, 2\ns_and_b32 s48, s29, 3", "u": "s_lshr_b32 s49, s29, 2\ns_xor_b32 s49, s49, 4\ns_and_b32 s48, s29, 3"}[ctmap]
    e(f"""s_cmp_ge_u32 s2, 256
          s_cbranch_scc1 L_exit
          s_load_dwordx16 s[4:19], s[0:1], 0
          s_load_dwordx8 s[20:27], s[0:1], 64""")
    stamp(0)
    e(f"""v_lshrrev_b32 v1, 6, v0
         v_and_b32 v0, 63, v0
         v_readfirstlane_b32 s30, v1
         s_and_b32 s28, s2, 7
         s_lshr_b32 s29, s2, 3
         s_lshl_b32 s55, s28, 5
         s_add_u32 s55, s55, s29
         s_cmp_lg_u32 s30, 4
         s_cbranch_scc1 L_K""")
    sec("K1")
    e("L_K:")

    KR, VR, QG, SC, MK, WO, GU, AF, GA, MG = 16, 80, 148, 156, 164, 168, 184, 200, 216, 224
    QB, PE = QG, KR + 16
    if code_pf:
        e(f"""s_getpc_b64 s[48:49]
              L_pc:
              s_lshl_b32 s56, s29, 2
              s_add_u32 s56, s56, s30
              s_lshl_b32 s56, s56, 7
              s_min_u32 s56, s56, L_exit-{NAME}_kernel
              s_sub_u32 s48, s48, L_pc-{NAME}_kernel
              s_subb_u32 s49, s49, 0
              v_mov_b32 v1, s56
              s_mov_b64 exec, 1
              global_load_dword v15, v1, s[48:49]
              s_mov_b64 exec, -1""")
    e(f"""s_lshl_b32 s53, s28, 23
         s_lshl_b32 s54, s29, {lc}
         s_add_u32 s53, s53, s54
         s_add_u32 s53, s53, 6291456""")
    e({"0": "s_mov_b32 s56, 0", "gj": "s_lshl_b32 s56, s28, 1\ns_xor_b32 s56, s56, s29\ns_and_b32 s56, s56, 15",
       "gj1": "s_lshl_b32 s56, s28, 1\ns_and_b32 s54, s29, 1\ns_or_b32 s56, s56, s54", "j": "s_and_b32 s56, s29, 15",
       "mul": "s_mul_i32 s56, s2, s2\ns_mul_i32 s56, s56, 0x9E3779B1\ns_lshr_b32 s56, s56, 28"}[rot])
    e(f"""s_lshr_b32 s54, s56, {nb}
          s_lshl_b32 s54, s54, {lc+5}
          s_or_b32 s53, s53, s54
          s_and_b32 s54, s56, {(1 << nb) - 1}
          s_lshl_b32 s54, s54, 12
          s_or_b32 s53, s53, s54
          v_bfe_u32 v9, v0, 3, 1
          v_lshlrev_b32 v1, 9, v9
          v_lshrrev_b32 v2, 4, v0
          v_lshl_add_u32 v1, v2, 7, v1
          v_and_b32 v10, 7, v0
          v_lshl_add_u32 v1, v10, 4, v1
          s_lshl_b32 s54, s30, 10
          s_add_u32 s98, s54, s53""")
    srd_hi(36, 67108864)
    stamp(15)
    e("s_waitcnt lgkmcnt(0)")
    srd_lo(36, 6)
    if kpre == 0: e("s_load_dword s31, s[26:27], 0\ns_barrier")
    stamp(13)

    pos, state = {}, {"n": 0, "done": -1}
    def arrived(i):
        if i > state["done"]:
            e(f"s_waitcnt vmcnt({state['n'] - 1 - i})"); state["done"] = i
    win = [W]
    def wof(name):
        if int(Wm) and name == "ML": return int(Wm)
        return int(Ww) if int(Ww) and name[:2] in ("WO", "ML") else win[0]
    far = []
    def gate(name):
        if name[0] in gfree: return -1
        w = wof(name)
        return far[-w] if len(far) >= w else -1
    def issue(name, text):
        arrived(gate(name))
        if name[0] not in gfree: far.append(state["n"])
        e(text); pos[name] = state["n"]; state["n"] += 1
    qg = [f"buffer_load_dwordx4 v[{QG}:{QG+3}], v4, s[32:35], s61 offen sc1", f"buffer_load_dwordx4 v[{QG+4}:{QG+7}], v4, s[32:35], s62 offen sc1"]
    mlg = f"buffer_load_dwordx4 v[{MG}:{MG+3}], v230, s[32:35], s3 offen sc1"
    def vop(i):
        t = f"buffer_load_dwordx4 v[{VR+4*i}:{VR+4*i+3}], v228, s[44:47], s54 offen offset:{2048*(i >> 4)} {nt}"
        t = f"s_xor_b32 s54, s99, {koff(min(i, 15))}\n" + t
        if i >= 15: t = "s_mov_b64 exec, s[22:23]\n" + t + "\ns_mov_b64 exec, -1"
        return (f"V{i}", t)
    wops = [(f"WO{m}", f"buffer_load_dwordx4 v[{WO+4*m}:{WO+4*m+3}], v11, s[40:43], s48 offen {wnt}\ns_add_u32 s48, s48, 7168") for m in range(4)]
    gops = [(f"GU{m}", f"global_load_dwordx4 v[{GU+4*m}:{GU+4*m+3}], v[{GA+2*m}:{GA+2*m+1}], off {wnt}") for m in range(4)]
    ops = [vop(i) for i in range(17)] + [("ML", mlg)]
    if wopos == "V": ops += wops
    if gupos == "V": ops += gops
    if wopos == "K": ops = wops + ops
    if gupos == "K": ops = gops + ops
    ops = ops[:qa] + [("G0", qg[0]), ("G1", qg[1])] + ops[qa:]
    if order:
        pool = {"V": [vop(i) for i in range(17)], "M": [("ML", mlg)], "W": list(wops), "U": list(gops), "G": [("G0", qg[0]), ("G1", qg[1])]}
        ops = []
        for c, n in re.findall(r"([A-Z])(\d*)", order):
            for _ in range(int(n) if n else len(pool[c])): ops.append(pool[c].pop(0))
        assert not any(pool[c] for c in "VMG") and bool(pool["U"]) == (gupos in ("B4", "B1"))
        gops, wlate = pool["U"], pool["W"]
    def next_op():
        if ops: issue(*ops.pop(0))
    spi = [0]
    def score_op():
        for _ in range(int(sp[spi[0]])):
            if sp[-1] == "w": next_op()
            else:
                w = win[0]; win[0] = 99; next_op(); win[0] = w
        spi[0] += 1

    w0 = int(w0) or W
    for i in range(16):
        if i == w0: arrived(0)
        win[0] = 99 if i < w0 else W
        issue(f"K{i}", f"s_xor_b32 s54, s98, {koff(i)}\nbuffer_load_dwordx4 v[{KR+4*i}:{KR+4*i+3}], v1, s[36:39], s54 offen {nt}")
        if i == kpre - 1: e("s_load_dword s31, s[26:27], 0\ns_barrier"); stamp(14)
        if i == w0 - 1:
            srd(32, 26, WS_SIZE); srd(40, 12, 4096*896); srd(44, 8, 67108864)
            ffn_scalars()
            masks(MK, 7, 8)
            e(f"""v_mov_b32 v246, 0
                  v_mov_b32 v244, 0xff
                  v_and_b32 v3, 3, v0
                  v_lshrrev_b32 v5, 5, v0
                  v_and_b32 v6, 31, v0
                  v_lshlrev_b32 v4, 11, v5
                  v_lshl_add_u32 v4, v6, 4, v4
                  s_lshl_b32 s61, s28, 13
                  s_lshl_b32 s62, s30, 9
                  s_add_u32 s61, s61, s62
                  s_add_u32 s61, s61, {QP}
                  s_add_u32 s62, s61, 4096
                  v_lshlrev_b32 v6, 3, v6
                  v_lshl_add_u32 v6, v5, 2, v6
                  s_lshl_b32 s56, s30, 8
                  v_add_u32 v6, s56, v6
                  v_xor_b32 v7, 64, v1
                  v_and_b32 v12, 15, v0
                  v_lshlrev_b32 v228, 9, v2
                  v_lshl_add_u32 v228, v12, 4, v228
                  s_and_b32 s57, s30, 1
                  s_lshr_b32 s60, s30, 1
                  s_lshl_b32 s56, s57, 8
                  s_add_u32 s99, s53, s56
                  s_lshl_b32 s56, s60, 11
                  s_add_u32 s99, s99, s56
                  v_lshlrev_b32 v229, 10, v5
                  v_and_b32 v13, 1, v2
                  v_lshl_add_u32 v229, v13, 8, v229
                  v_lshl_add_u32 v229, v12, 4, v229
                  s_lshl_b32 s53, s55, 11
                  s_lshl_b32 s56, s57, 9
                  s_add_u32 s53, s53, s56
                  s_add_u32 s53, s53, {OP}
                  s_lshl_b32 s56, s57, 10
                  v_lshl_add_u32 v238, v0, 4, s56
                  v_bfe_u32 v14, v0, 2, 1
                  v_lshl_add_u32 v239, v5, 1, v9
                  v_lshl_add_u32 v239, v14, 4, v239
                  v_lshl_add_u32 v239, v13, 5, v239
                  s_lshl_b32 s56, s30, 6
                  v_lshl_add_u32 v239, v239, 4, s56
                  s_lshl_b32 s56, s30, 2
                  v_lshl_add_u32 v240, v9, 4, s56
                  v_mov_b32 v243, s56
                  v_lshrrev_b32 v241, 3, v0
                  s_lshl_b32 s56, s60, 7
                  v_lshl_add_u32 v241, v241, 4, s56
                  v_lshlrev_b32 v242, 4, v9
                  v_lshl_add_u32 v14, v2, 1, v14
                  v_lshl_add_u32 v230, v14, 2, v3
                  v_lshlrev_b32 v230, 4, v230
                  v_lshlrev_b32 v231, 11, v14
                  v_lshl_add_u32 v231, v9, 6, v231
                  v_lshl_add_u32 v231, v3, 4, v231
                  s_lshl_b32 s3, s28, 9
                  s_add_u32 s3, s3, {ML}
                  v_lshlrev_b32 v232, 4, v13
                  v_lshl_add_u32 v232, v10, 5, v232
                  v_lshl_add_u32 v232, v9, 8, v232
                  s_lshl_b32 s56, s30, 9
                  v_add_u32 v232, s56, v232
                  v_lshl_add_u32 v11, v9, 5, v2
                  v_mul_u32_u24 v11, 896, v11
                  v_lshl_add_u32 v11, v10, 4, v11
                  s_lshl_b32 s48, s28, 9
                  s_lshl_b32 s56, s50, 7
                  s_add_u32 s48, s48, s56
                  s_lshl_b32 s56, s57, 6
                  s_add_u32 s48, s48, s56
                  s_lshl_b32 s56, s60, 2
                  s_add_u32 s48, s48, s56
                  s_mul_i32 s48, s48, 896
                  s_lshl_b32 s56, s51, 7
                  s_add_u32 s48, s48, s56
                  s_cmp_lt_u32 s29, 28
                  s_cselect_b32 s42, s42, 0
                  s_cselect_b32 s48, s48, 0
                  s_lshl_b32 s49, s51, 6
                  s_lshl_b32 s56, s30, 4
                  s_add_u32 s49, s49, s56
                  s_mul_i32 s63, s49, 3584
                  s_lshl_b32 s56, s100, 7
                  s_add_u32 s63, s63, s56
                  v_mul_u32_u24 v12, 3584, v2
                  v_lshl_add_u32 v12, v10, 4, v12
                  v_add_u32 v12, s63, v12
                  s_cmp_lt_u32 s52, 28
                  s_cselect_b32 s56, -1, 0
                  v_and_b32 v12, s56, v12
                  v_cmp_eq_u32 vcc, 0, v9
                  v_mov_b32 v13, s18
                  v_mov_b32 v14, s16
                  v_cndmask_b32 v13, v13, v14, vcc
                  v_mov_b32 v14, s19
                  v_mov_b32 v8, s17
                  v_cndmask_b32 v14, v14, v8, vcc
                  v_add_co_u32 v{GA}, vcc, v13, v12
                  v_addc_co_u32 v{GA+1}, vcc, 0, v14, vcc""")
            for m in range(1, 4):
                e(f"v_add_co_u32 v{GA+2*m}, vcc, 14336, v{GA+2*m-2}\nv_addc_co_u32 v{GA+2*m+1}, vcc, 0, v{GA+2*m-1}, vcc")
            e(f"""s_cmp_eq_u32 s60, 0
                  s_cselect_b64 s[22:23], -1, 0
                  v_lshl_add_u32 v233, v3, 2, v2
                  v_add_u32 v233, s49, v233
                  v_lshlrev_b32 v234, 2, v233
                  v_and_b32 v234, 0xff, v234
                  v_lshlrev_b32 v233, 1, v233
                  v_lshl_add_u32 v235, v2, 2, v3
                  v_add_u32 v235, s49, v235
                  v_lshlrev_b32 v235, 2, v235
                  v_and_b32 v13, 12, v0
                  v_cmp_eq_u32 vcc, 0, v13
                  v_mov_b32 v13, {OOB}
                  v_cndmask_b32 v235, v13, v235, vcc
                  v_lshrrev_b32 v236, 2, v0
                  v_lshlrev_b32 v236, 8, v236
                  v_lshl_add_u32 v236, v3, 4, v236
                  s_lshl_b32 s56, s30, 10
                  v_lshl_add_u32 v237, v0, 4, s56
                  s_mov_b32 s57, {CEXP}""")
        if i == max(W, w0) + 1:
            e("s_waitcnt lgkmcnt(0)")
            tags()
            e(f"""s_getreg_b32 s56, hwreg(HW_REG_XCC_ID, 0, 4)
                  s_and_b32 s63, s97, 0xf0
                  s_or_b32 s63, s63, s56
                  s_mov_b32 s58, {SPIN}""")
            qtag_reg(8, 2)
            e("v_cmp_eq_u32 vcc, 0, v3\nv_cndmask_b32 v8, 0, v8, vcc")
            qtag_reg(245, 3)
    stamp(1)
    while "G1" not in pos: next_op()
    win[0] = int(Wq) or W
    while gate(ops[0][0]) < pos["G1"]: next_op()
    arrived(pos["G1"])
    e("L_qpoll:")
    stamp(2)
    a = QG
    e(f"""v_bitop3_b32 v12, v{a}, v{a+1}, {T0} bitop3:0x7e
          v_bitop3_b32 v13, v{a+4}, v{a+5}, {T0} bitop3:0x7e
          v_bitop3_b32 v14, v{a+2}, v{a+6}, {T1} bitop3:0x7e
          v_bitop3_b32 v15, v{a+3}, v{a+7}, s63 bitop3:0x7e
          v_or3_b32 v12, v12, v13, v14
          v_and_b32 v13, 0xf0, v15
          v_or_b32 v12, v12, v13
          v_cmp_ne_u32_sdwa vcc, v12, v246 src0_sel:BYTE_0 src1_sel:DWORD
          s_cbranch_vccnz L_qretry
          L_qdone:
          v_and_b32 v15, 15, v15
          v_cmp_ne_u32 vcc, 0, v15""")
    extra.append("L_qretry:\ns_sub_u32 s58, s58, 1\ns_cbranch_scc1 L_qdone\n" + ("" if qsc else "s_and_b32 s56, s58, 3\ns_cbranch_scc0 L_qpub\nL_qback:\n") + "\n".join(qg) + "\ns_waitcnt vmcnt(0)\ns_branch L_qpoll")
    score_op()
    for r in range(8): e(f"v_and_b32 v{a+r}, 0xffffff00, v{a+r}")
    e("s_cmp_eq_u64 vcc, 0\ns_cselect_b32 s56, %d, 1" % (1 if force_global else 0))
    for r in range(4): e(f"v_add_f32 v{a+r}, v{a+r}, v{a+4+r}")
    e(f"""v_mov_b32 v12, s56
          v_permlane32_swap_b32 v{a}, v{a+2}
          v_permlane32_swap_b32 v{a+1}, v{a+3}
          ds_write_b32 v243, v12 offset:{FLAGS}
          v_add_f32 v{a}, v{a}, v{a+2}
          v_add_f32 v{a+1}, v{a+1}, v{a+3}
          v_cvt_pk_bf16_f32 v{a}, v{a}, v{a+1}
          ds_write_b32 v6, v{a} offset:{QS}
          s_waitcnt lgkmcnt(0)
          s_barrier
          ds_read_b128 v[{QB}:{QB+3}], v1 offset:{QS}
          ds_read_b128 v[{QB+4}:{QB+7}], v7 offset:{QS}
          ds_read_b128 v[12:15], v246 offset:{FLAGS}
          ds_read_u16 v233, v233 offset:{XR}""")
    score_op()
    e("s_waitcnt lgkmcnt(0)")
    stamp(3)
    for m in list(range(0, 16, 2)) + list(range(1, 16, 2)):
        k, q = KR + 4*m, QB + 4*(m & 1)
        e(f"v_mfma_f32_16x16x32_bf16 v[{k}:{k+3}], v[{k}:{k+3}], v[{q}:{q+3}], 0")
    read_mode(12)
    e("v_lshlrev_b32 v233, 16, v233")
    for par in range(2):
        pat = (0xf0f00f0f, 0x0f0ff0f0)[par]
        e(f"s_mov_b32 exec_lo, {pat}\ns_mov_b32 exec_hi, {pat}")
        for r in range(4):
            for p in range(8):
                a = KR + 4*(2*p + par)
                if r == 0: e(f"v_mov_b32_dpp v{SC+p}, v{a} quad_perm:[0,0,0,0] row_mask:0xf bank_mask:0xf")
                else: e(f"v_add_f32_dpp v{SC+p}, v{a+r}, v{SC+p} quad_perm:[{r},{r},{r},{r}] row_mask:0xf bank_mask:0xf")
        e("s_mov_b64 exec, -1")
        if par == 0: score_op()
    Z = KR
    for u in range(4): e(f"v_permlane16_swap_b32 v{SC+2*u}, v{SC+2*u+1}")
    for u in range(4): e(f"v_add_f32_dpp v{Z+u}, v{SC+2*u+1}, v{SC+2*u} row_half_mirror row_mask:0xf bank_mask:0xf")
    for u in (0, 2): e(f"v_cvt_pk_bf16_f32 v{Z+u+1}, v{Z+u}, v{Z+u+1}")
    for u in (0, 2): e(f"v_lshlrev_b32 v{Z+u}, 16, v{Z+u+1}\nv_and_b32 v{Z+u+1}, 0xffff0000, v{Z+u+1}")
    e(f"v_max3_f32 v4, v{Z}, v{Z+1}, v{Z+2}\nv_max_f32 v4, v4, v{Z+3}")
    dpp_red("v_max_f32", [4], ["row_half_mirror"])
    xrow("v_max_f32", [4], [5])
    score_op()
    for u in range(4): e(f"v_sub_f32 v{Z+u}, v{Z+u}, v4")
    for u in range(4): e(f"v_mul_f32 v{Z+u}, s57, v{Z+u}")
    for u in range(4): e(f"v_exp_f32 v{Z+u}, v{Z+u}")
    e(f"v_add_f32 v5, v{Z}, v{Z+1}\nv_add_f32 v5, v5, v{Z+2}\nv_add_f32 v5, v5, v{Z+3}")
    dpp_red("v_add_f32", [5], ["row_half_mirror"])
    xrow("v_add_f32", [5], [6])
    e(f"""s_mov_b32 exec_lo, 0x11111111
          s_mov_b32 exec_hi, 0x11111111
          ds_write_b128 v239, v[{Z}:{Z+3}] offset:{EB}
          ds_write_b32 v240, v4 offset:{MLW}
          ds_write_b32 v240, v5 offset:{MLW+32}
          s_mov_b64 exec, -1
          s_waitcnt lgkmcnt(0)""")
    stamp(4)
    e(f"s_barrier\nds_read_b128 v[12:15], v242 offset:{MLW}")
    for mm in range(4): e(f"ds_read_b128 v[{PE+4*mm}:{PE+4*mm+3}], v241 offset:{EB+256*mm}")
    e(f"ds_read_b32 v{PE+16}, v241 offset:{EB+7*128+12}")
    score_op()
    e("s_waitcnt lgkmcnt(5)\nv_max3_f32 v4, v12, v13, v14\nv_max_f32 v4, v4, v15\nv_cmp_gt_u32 vcc, 32, v0")
    e("v_cndmask_b32 v12, v13, v12, vcc\nv_cndmask_b32 v13, v15, v14, vcc\nv_cndmask_b32 v12, v13, v12, s[22:23]")
    for w in range(2): e(f"v_sub_f32 v{12+w}, v{12+w}, v4")
    for w in range(2): e(f"v_mul_f32 v{12+w}, s57, v{12+w}")
    for w in range(2): e(f"v_exp_f32 v{12+w}, v{12+w}")
    e("s_waitcnt lgkmcnt(0)")
    for i in range(0, 16, 2): e(f"v_pk_mul_f32 v[{PE+i}:{PE+i+1}], v[{PE+i}:{PE+i+1}], v[12:13] op_sel:[0,0] op_sel_hi:[1,0]")
    e(f"v_mul_f32 v{PE+16}, v{PE+16}, v13")
    for i in range(17): e(f"v_cvt_pk_bf16_f32 v{PE+i}, v{PE+i}, v{PE+i}")
    stamp(5)
    def prep(i):
        p = PE + (4*(i & 3) + (i >> 2) if i < 16 else 16)
        for j in range(4): e(f"v_and_b32 v{AF+4*(i&3)+j}, v{p}, v{MK+j}")
    def pv(i):
        arrived(pos[f"V{i}"])
        a = AF + 4*(i & 3)
        e(f"v_mfma_f32_16x16x32_bf16 v[12:15], v[{a}:{a+3}], v[{VR+4*i}:{VR+4*i+3}], " + ("0" if i == 0 else "v[12:15]"))
    prep(0)
    if int(W2):
        win[0] = int(W2)
    since = 99
    for i in range(15):
        while not int(W2) and ops and (since >= 5 or f"V{i}" not in pos or pos[f"V{i}"] > state["done"]):
            next_op(); since = 0
        while int(W2) and ops and gate(ops[0][0]) <= max(state["done"], pos[f"V{i}"]): next_op()
        prep(i + 1); pv(i); since += 1
        if i == int(ksplit): sec("K2", "L_K2"); e("s_nop 4")
    for name, t in ops:
        e(t); pos[name] = state["n"]; state["n"] += 1
    ops.clear()
    e(f"s_cmp_eq_u32 s60, 0\ns_cbranch_scc1 L_keep\nds_write_b128 v238, v[12:15] offset:{PR}\ns_waitcnt lgkmcnt(0)\ns_barrier\ns_branch L_joined\nL_keep:")
    saved = dict(state)
    prep(16); pv(15)
    e(f"s_barrier\nds_read_b128 v[4:7], v238 offset:{PR}")
    pv(16)
    e("s_waitcnt lgkmcnt(0)")
    pk_add4(12, 12, 4)
    e("v_bfi_b32 v12, v244, v245, v12")
    if opsc: e("buffer_store_dwordx4 v[12:15], v229, s[32:35], s53 offen sc1")
    else: mode_store(["buffer_store_dwordx4 v[12:15], v229, s[32:35], s53 offen"])
    e("L_joined:")
    state.update(saved)
    stamp(6)
    e(f"""s_cmp_ge_u32 s29, {29 if int(wb) & 1 else 28}
          s_cbranch_scc1 {"L_dirty" if int(dirty) else "L_clean" if clean & 1 else "L_end"}
          s_lshl_b32 s60, s28, 16
          s_and_b32 s56, s50, 3
          s_lshl_b32 s56, s56, 9
          s_add_u32 s60, s60, s56
          s_lshl_b32 s56, s30, 7
          s_add_u32 s60, s60, s56
          s_add_u32 s60, s60, {OP}
          s_add_u32 s61, s60, 16384
          s_add_u32 s62, s60, 32768
          s_add_u32 s63, s60, 49152
          s_mov_b32 s58, {SPIN}
          s_barrier""")
    stamp(7)
    opg = [(f"buffer_load_dwordx4 v[{16+4*i}:{19+4*i}], v231, s[32:35], s{60+i} offen sc1", 16 + 4*i) for i in range(4)]
    for name, t in wlate:
        e(t); pos[name] = state["n"]; state["n"] += 1
    km, opat = state["n"] - 1 - pos["ML"], int(opat)
    def left(k, x=0):
        if k < len(wlate): e(f"s_waitcnt vmcnt({k+x})"); return
        k += x
        l1, l2 = lab("lf"), lab("lf")
        e(f"s_cmp_gt_u32 s30, 1\ns_cbranch_scc1 {l1}\ns_waitcnt vmcnt({k+1})\ns_branch {l2}\n{l1}:\ns_waitcnt vmcnt({k})\n{l2}:")
    chk_text = lambda: "\n".join((f"v_bitop3_b32 v247, v{MG}, v{MG+1}, {T0} bitop3:0x7e", f"v_bitop3_b32 v247, v{MG+2}, {T1}, v247 bitop3:0xbe",
        f"v_bitop3_b32 v247, v{MG+3}, {T2}, v247 bitop3:0xbe", "v_cmp_ne_u32_sdwa s[4:5], v247, v246 src0_sel:BYTE_0 src1_sel:DWORD", "s_cmp_lg_u64 s[4:5], 0"))
    again = "L_mlretry:\ns_sub_u32 s58, s58, 1\ns_cbranch_scc1 L_mlgo\n" + mlg + "\ns_waitcnt vmcnt(0)\n" + chk_text() + "\ns_cbranch_scc1 L_mlretry\nL_mlgo:\n"
    if mlo == "B":
        left(km)
        e(chk_text() + "\ns_cbranch_scc1 L_mlretry")
        if opat < km: left(opat)
        if int(dbg): stamp(1)
        e("L_opgo:")
        for t, b in opg: e(t)
        extra2 = [again + "s_branch L_opgo"]
        opat = km
    elif mlo == "A":
        e("s_mov_b32 s101, 0"); left(km)
        e(chk_text() + "\ns_cbranch_scc1 L_mlretry\nL_mldone:")
        extra2 = [again + "s_mov_b32 s101, 1\n" + "\n".join(t for t, b in opg) + "\ns_branch L_mldone"]
        assert opat < km
    else:
        if opat >= km:
            if opat < 20: left(opat)
            for t, b in opg: e(t)
            if opat > km: left(km, 4)
        else:
            e("s_mov_b32 s101, 0"); left(km)
        e("L_mlchk:")
        check(MG, 4, 247)
        e("s_cmp_lg_u64 s[4:5], 0\ns_cbranch_scc1 L_mlretry\nL_mldone:")
        extra2 = ["L_mlretry:\ns_sub_u32 s58, s58, 1\ns_cbranch_scc1 L_mldone\ns_mov_b32 s101, 1\n" + mlg + "\n" + "\n".join(t for t, b in opg) + "\ns_waitcnt vmcnt(4)\ns_branch L_mlchk"]
    e(f"""s_cmp_ge_u32 s50, 2
          s_cselect_b64 vcc, -1, 0
          v_cndmask_b32 v4, v{MG}, v{MG+2}, vcc
          v_cndmask_b32 v5, v{MG+1}, v{MG+3}, vcc
          v_and_b32 v4, 0xffff0000, v4
          v_and_b32 v5, 0xffffff00, v5
          v_mov_b32 v6, v4""")
    q8 = ["quad_perm:[1,0,3,2]", "quad_perm:[2,3,0,1]", "row_half_mirror"]
    dpp_red("v_max_f32", [6], q8); xrow("v_max_f32", [6], [7])
    e("v_sub_f32 v4, v4, v6\nv_mul_f32 v4, s57, v4\nv_exp_f32 v4, v4\nv_mul_f32 v6, v4, v5")
    dpp_red("v_add_f32", [6], q8); xrow("v_add_f32", [6], [7])
    e("v_rcp_f32 v6, v6\nv_mul_f32 v4, v4, v6")
    for i in range(4): e(f"v_mov_b32_dpp v{32+i}, v4 quad_perm:[{i},{i},{i},{i}] row_mask:0xf bank_mask:0xf")
    stamp(12)
    if opat < km:
        e("s_cmp_lg_u32 s101, 0\ns_cbranch_scc1 L_opsent")
        left(opat)
        if int(dbg): stamp(1)
        for t, b in opg: e(t)
        e("L_opsent:")
    if int(dbg): e("s_waitcnt vmcnt(4)"); stamp(3); e("s_waitcnt vmcnt(0)"); stamp(5)
    def op_acc(i, b):
        w, h = 32 + (i & 2), i & 1
        e(f"v_and_b32 v44, 0xffffff00, v{b}")
        if i == 0: e(f"v_pk_mul_f32 v[38:39], v[{b+2}:{b+3}], v[{w}:{w+1}] op_sel:[0,0] op_sel_hi:[1,0]\nv_mul_f32 v37, v{b+1}, v32\nv_mul_f32 v36, v44, v32")
        else: e(f"v_pk_fma_f32 v[38:39], v[{b+2}:{b+3}], v[{w}:{w+1}], v[38:39] op_sel:[0,{h},0] op_sel_hi:[1,{h},1]\nv_fmac_f32 v37, v{b+1}, v{32+i}\nv_fmac_f32 v36, v44, v{32+i}")
    if ospec:
        poll(opg, 4, issued=True, quad=245, spec=op_acc, pre=("s_memrealtime s[80:81]\n" if stamps else "") + "s_barrier\n" + "\n".join(t for (name, t), c in zip(gops, gi) if c == "0"))
        assert gupos == "B1" and not int(wb) & 1
    else:
        poll(opg, 4, issued=True, quad=245)
        stamp(8)
    if int(dbg): e(f"s_sub_u32 s68, {SPIN}, s58")
    def gu_at(k):
        if gupos == "B1":
            for (name, t), c in zip(gops, gi):
                if int(c) == k: e(t)
    if gupos == "B1" and not ospec: e("s_barrier")
    if int(wb) & 1:
        e("s_cmp_eq_u32 s29, 28\ns_cbranch_scc1 L_wb")
        extra2.append("L_wb:\ns_cmp_lg_u32 s30, 0\ns_cbranch_scc1 L_end\nbuffer_wbl2 sc1\ns_waitcnt vmcnt(0)\n" + ("s_memrealtime s[82:83]\n" if stamps else "") + "s_branch L_end")
    if not ospec: gu_at(0)
    for i in range(0 if ospec else 4):
        w, s = 32 + (i & 2), i & 1
        for p in (0, 2):
            if i == 0: e(f"v_pk_mul_f32 v[{36+p}:{37+p}], v[{16+p}:{17+p}], v[{w}:{w+1}] op_sel:[0,0] op_sel_hi:[1,0]")
            else: e(f"v_pk_fma_f32 v[{36+p}:{37+p}], v[{16+4*i+p}:{17+4*i+p}], v[{w}:{w+1}], v[{36+p}:{37+p}] op_sel:[0,{s},0] op_sel_hi:[1,{s},1]")
    gu_at(1)
    trows(36)
    gu_at(2)
    e("""v_add_f32_dpp v37, v36, v36 row_shr:4 row_mask:0xf bank_mask:0xa
         v_add_f32_dpp v37, v36, v36 row_shl:4 row_mask:0xf bank_mask:0x5
         v_cvt_pk_bf16_f32 v37, v37, v37""")
    gu_at(3)
    def gemv4(src, wbase, bank):
        for m in range(5):
            if m < 4:
                for j in range(4): e(f"v_and_b32_dpp v{AF+4*m+j}, v{src}, v{MK+j} quad_perm:[{m},{m},{m},{m}] row_mask:0xf bank_mask:{bank}")
            if m >= 1:
                p = m - 1
                e(f"v_mfma_f32_16x16x32_bf16 v[40:43], v[{AF+4*p}:{AF+4*p+3}], v[{wbase+4*p}:{wbase+4*p+3}], " + ("0" if p == 0 else "v[40:43]"))
    gemv4(37, WO, "0xf")
    gu_at(4)
    e(f"""s_mov_b32 exec_lo, 0x00ff00ff
          s_mov_b32 exec_hi, 0xff00ff00
          ds_write_b128 v232, v[40:43] offset:{RED}
          s_mov_b64 exec, -1
          s_waitcnt lgkmcnt(0)""")
    stamp(9)
    e(f"""s_barrier
          s_cmp_ge_u32 s52, 28
          s_cbranch_scc1 L_end
          v_mov_b32 v16, 0x3f803f80
          s_mul_i32 s60, s51, {BS}
          s_lshl_b32 s56, s30, 6
          s_add_u32 s60, s60, s56
          s_add_u32 s60, s60, {CP}""")
    if home == "v":
        e(f"""v_and_b32 v17, 0x100, v{MG}
              v_cmp_ne_u32 vcc, 0, v17
              s_bcnt1_i32_b64 s56, vcc
              s_cmp_lt_u32 s56, {4 if int(pst) == 2 else 26}
              s_cselect_b32 s56, 8192, 0""")
    else: e(f"s_lshr_b32 s56, s28, 2\ns_xor_b32 s56, s56, {home}\ns_lshl_b32 s56, s56, 13")
    e(f"s_add_u32 s60, s60, s56\nv_mov_b32 v17, s56\nds_write_b32 v246, v17 offset:{FLAGS+16}")
    e(f"""s_add_u32 s61, s60, 4096
          s_lshl_b32 s62, s52, 11
          s_add_u32 s62, s62, {HH}
          s_mov_b32 s63, 0xffff0000""")
    for m in range(4):
        for j in range(4): e(f"v_and_b32 v{AF+4*m+j}, v16, v{MK+j}")
    if gupos == "B4":
        for name, t in gops: e(t)
    for r in range(4): e(f"v_mov_b32 v{20+r}, {'v245' if r == 0 else 0}")
    e("v_lshlrev_b32 v1, 4, v0")
    poll_init(2, 4)
    if cack: e("s_barrier")
    assert ct
    if ct:
        for r in range(4): e(f"v_mov_b32 v{16+r}, 0")
        poll_sum(lambda i, b: f"buffer_load_dwordx4 v[{b}:{b+3}], v236, s[32:35], s{60+i} offen {cld}", 16, 48, 245, ct)
        stamp(10)
    else:
        poll([(f"buffer_load_dwordx4 v[{16+4*i}:{19+4*i}], v236, s[32:35], s{60+i} offen sc1", 16 + 4*i) for i in range(2)], 4, quad=245)
        stamp(10)
        pk_add4(16, 16, 20)
    trows(16)
    dpp_red("v_add_f32", [16], ["row_ror:4", "row_ror:8"])
    bfround(16)
    e("v_add_f32 v16, v16, v233\nv_cvt_pk_bf16_f32 v16, v16, v16\nv_and_or_b32 v17, v16, s63, v8")
    if hlate < 2: mode_store(["buffer_store_dword v17, v235, s[32:35], s62 offen"])
    if hlate < 1: e(f"ds_write_b32 v234, v17 offset:{HL}")
    gemv4(16, GU, "0x3")
    if hlate >= 2: mode_store(["buffer_store_dword v17, v235, s[32:35], s62 offen"])
    if hlate >= 1: e(f"ds_write_b32 v234, v17 offset:{HL}")
    e(f"ds_write_b128 v237, v[40:43] offset:{RED2}\ns_waitcnt lgkmcnt(0)")
    stamp(11)
    e(f"s_barrier\ns_cmp_lg_u32 s30, {sw}\ns_cbranch_scc1 L_end")
    L48 = (1 << 48) - 1
    r16 = ["row_ror:8", "row_ror:4", "row_ror:2", "row_ror:1"]
    poll_init(2, 4, {1: L48})
    assert not clean & 3
    poll([("buffer_load_dwordx4 v[16:19], v1, s[32:35], s62 offen sc1", 16), ("buffer_load_dwordx4 v[20:23], v1, s[32:35], s62 offen offset:1024 sc1", 20)], 4, quad=245)
    e("""v_pk_add_f32 v[28:29], v[18:19], v[22:23]
         v_pk_mul_f32 v[30:31], v[18:19], v[18:19]
         v_pk_add_f32 v[28:29], v[28:29], v[16:17]
         v_pk_fma_f32 v[30:31], v[22:23], v[22:23], v[30:31]
         v_pk_add_f32 v[28:29], v[28:29], v[20:21]
         v_pk_fma_f32 v[30:31], v[16:17], v[16:17], v[30:31]
         v_add_f32 v40, v28, v29
         v_pk_fma_f32 v[30:31], v[20:21], v[20:21], v[30:31]
         v_add_f32 v41, v30, v31
         v_permlane32_swap_b32 v40, v41
         v_add_f32 v40, v40, v41""")
    dpp_red("v_add_f32", [40], r16)
    e(f"""v_add_f32_dpp v40, v40, v40 row_bcast:15 row_mask:0xa bank_mask:0xf
          v_mul_f32 v40, {f2u(1/448)}, v40
          v_readlane_b32 s56, v40, 16
          s_brev_b64 exec, 1
          v_fma_f32 v41, -s56, s56, v40
          v_max_f32 v41, 0, v41
          v_cvt_pk_bf16_f32 v41, s56, v41
          v_lshlrev_b32 v40, 16, v41
          v_and_b32 v41, 0xffff0000, v41""")
    e(f"v_add_f32 v41, {f2u(1e-5)}, v41"); bfround(41)
    e("v_sqrt_f32 v41, v41"); bfround(41)
    e("v_rcp_f32 v41, v41")
    e(f"ds_write_b64 v246, v[40:41] offset:{FLAGS+24}\ns_waitcnt lgkmcnt(0)")
    stamp(13)
    if not sfl: e("s_barrier")
    if sfl: pass
    elif int(wb) & 6 == 6: e("s_cmp_lt_u32 s28, 4\ns_cbranch_scc1 L_nowb" if fin == "t" else f"s_cmp_lg_u32 s28, {fin}\ns_cbranch_scc1 L_nowb")
    if int(wb) & 2 and not sfl: e(f"s_cmp_lg_u32 s29, {wbj}\ns_cbranch_scc1 L_nowb\nbuffer_wbl2 sc1\ns_waitcnt vmcnt(0)"); stamp(9); e("L_nowb:")
    if clean & 2:
        e("""s_cmp_lg_u32 s51, 0
             s_cbranch_scc1 L_end
             buffer_store_dwordx4 v[16:19], v1, s[32:35], s62 offen sc1
             s_mov_b32 exec_hi, 0xffff
             buffer_store_dwordx4 v[20:23], v1, s[32:35], s62 offen offset:1024 sc1""")
    if epo[0] == "C" and not sfl: e("s_cmp_lg_u32 s2, 0\ns_cbranch_scc1 L_end\ns_mov_b64 exec, 1\nv_mov_b32 v16, s31\nbuffer_store_dword v16, v246, s[32:35], 0 offen " + epo[1:])
    e("L_end:")
    finish()
    sec("K0")
    for t in extra2: e(t)
    if not qsc:
        sec("Q3x")
        e(f"""L_qpub:
              v_lshlrev_b32 v204, 4, v0
              s_mov_b64 exec, 0xffff
              ds_read_b128 v[200:203], v204 offset:{QC}
              {ctm.replace("s48", "s54").replace("s49", "s56")}
              s_lshl_b32 s54, s54, 11
              s_lshl_b32 s56, s56, 8
              s_add_u32 s56, s56, s54
              s_lshl_b32 s54, s28, 13
              s_add_u32 s56, s56, s54
              s_add_u32 s56, s56, {QP}
              s_waitcnt lgkmcnt(0)
              v_bitop3_b32 v205, v200, v201, {T0} bitop3:0x7e
              v_bitop3_b32 v205, v202, {T1}, v205 bitop3:0xbe
              v_bitop3_b32 v205, v203, s63, v205 bitop3:0xbe
              v_cmp_eq_u32_sdwa vcc, v205, v246 src0_sel:BYTE_0 src1_sel:DWORD
              s_mov_b64 exec, vcc
              buffer_store_dwordx4 v[200:203], v204, s[32:35], s56 offen sc1
              s_mov_b64 exec, -1
              s_branch L_qback""")
    if clean & 1:
        sec("Q3x")
        e(f"""L_clean:
              v_lshlrev_b32 v1, 4, v0
              v_mov_b32 v12, v245
              s_lshl_b32 s60, s28, 16
              s_and_b32 s56, s29, 3
              s_lshl_b32 s56, s56, 14
              s_add_u32 s60, s60, s56
              s_lshl_b32 s56, s30, 12
              s_add_u32 s60, s60, s56
              s_add_u32 s60, s60, {OP}
              s_cmp_lg_u32 s30, 0
              s_cbranch_scc1 L_clst
              v_lshlrev_b32 v2, 8, v0
              s_lshl_b32 s62, s28, 11
              s_add_u32 s62, s62, {HH}
              s_mov_b32 s58, {SPIN}
              s_mov_b64 exec, 0x7f
              L_clpoll:
              s_sub_u32 s58, s58, 1
              s_cbranch_scc1 L_clgo
              buffer_load_dwordx4 v[16:19], v2, s[32:35], s62 offen sc1
              s_waitcnt vmcnt(0)""")
        check(16, 4, 247)
        e(f"""s_cmp_lg_u64 s[4:5], 0
              s_cbranch_scc1 L_clpoll
              L_clgo:
              s_mov_b64 exec, -1
              s_cmp_lg_u32 s29, 28
              s_cbranch_scc1 L_clst
              buffer_store_dwordx4 v[{MG}:{MG+3}], v230, s[32:35], s3 offen sc1
              L_clst:
              s_barrier""")
        for i in range(4): e(f"buffer_store_dwordx4 v[12:15], v1, s[32:35], s60 offen offset:{1024*i} sc1")
        e("s_branch L_end")
    if int(dirty):
        sec("Q3x")
        e(f"""L_dirty:
              s_mov_b32 s34, 0x4000000
              s_lshl_b32 s56, s55, 2
              s_add_u32 s56, s56, s30
              s_mul_i32 s56, s56, {abs(int(dirty))*1024}
              s_add_u32 s56, s56, 0x400000
              s_mov_b32 s57, {abs(int(dirty))}
              v_lshlrev_b32 v1, 4, v0
              L_dloop:
              buffer_store_dwordx4 v[12:15], v1, s[32:35], s56 offen {"sc1" if int(dirty) < 0 else ""}
              s_add_u32 s56, s56, 1024
              s_sub_u32 s57, s57, 1
              s_cmp_lg_u32 s57, 0
              s_cbranch_scc1 L_dloop
              s_branch L_end""")

    WQ, F, XA, MK, DN = 16, 80, 96, 112, 128
    sec("A")
    e(f"""s_setprio 3
          v_lshlrev_b32 v1, 4, v0
          v_lshrrev_b32 v2, 3, v0
          v_and_b32 v3, 7, v0
          v_mul_u32_u24 v4, {14*8192}, v2
          v_lshl_add_u32 v4, v3, 4, v4
          {ctm}
          s_mul_i32 s54, s48, {112*8192}
          s_lshl_b32 s56, s28, 10
          s_add_u32 s54, s54, s56
          s_lshl_b32 s56, s49, 7
          s_add_u32 s54, s54, s56""")
    if not qsc: e(f"v_mov_b32 v6, 0\nv_mov_b32 v7, 1\nds_write_b64 v1, v[6:7] offset:{QC}")
    srd_hi(40, 896); srd_hi(36, 448*8192)
    stamp(15)
    e("s_waitcnt lgkmcnt(0)")
    srd_lo(40, 4)
    e("buffer_load_dwordx4 v[8:11], v1, s[40:43], 0 offen")
    srd_lo(36, 10)
    for i in range(14):
        e(f"buffer_load_dwordx4 v[{WQ+4*i}:{WQ+4*i+3}], v4, s[36:39], s54 offen {wnt if qnt is None else qnt}")
        if i < 13: e("s_add_u32 s54, s54, 8192")
    e("s_load_dword s31, s[26:27], 0\ns_barrier")
    sec("Q1", "L_Q1")
    tlb = int(tlb)
    if tlb:
        e(f"""s_lshl_b32 s54, s28, 23
              s_add_u32 s54, s54, 6291456
              s_add_u32 s60, s8, s54
              s_addc_u32 s61, s9, 0
              s_mul_i32 s54, s28, {512*896}
              s_add_u32 s62, s12, s54
              s_addc_u32 s63, s13, 0
              s_add_u32 s56, s62, {512*896-128}
              s_addc_u32 s57, s63, 0
              v_mov_b32 v12, s60
              v_mov_b32 v13, s61""")
        for ln, r in enumerate((62, 56, 16, 18, 20, 22, 26)):
            e(f"v_writelane_b32 v12, s{r}, {ln+1}\nv_writelane_b32 v13, s{r+1}, {ln+1}")
        touch = f"s_mov_b64 exec, {tlm}\nglobal_load_dword v250, v[12:13], off\ns_mov_b64 exec, -1"
        if tlb == 1: e(touch)
    srd(32, 26, WS_SIZE); srd(40, 22, 896); srd(44, 20, 1792*896)
    if int(qpre):
        e(f"""s_lshl_b32 s54, s28, 13
              s_add_u32 s54, s54, {QP}
              s_lshl_b32 s56, s48, 11
              s_add_u32 s56, s56, s54
              s_lshl_b32 s61, s49, 8
              s_add_u32 s56, s56, s61
              v_lshlrev_b32 v12, 7, v0
              s_mov_b64 exec, 3
              buffer_load_dword v250, v12, s[32:35], s56 offen sc1
              s_mov_b64 exec, -1""")
    ffn_scalars()
    masks(MK, 72, 73)
    e("v_mov_b32 v246, 0\nv_mov_b32 v245, 0xff\ns_waitcnt vmcnt(%d)" % (14 + (tlb == 1) + int(qpre)))
    if tlb == 2: e(touch)
    tlb = (tlb > 0) + int(qpre)
    skew_store = f"s_lshl_b32 s56, s2, 2\ns_add_u32 s56, s56, {STAMP}\nv_mov_b32 v13, s64\nbuffer_store_dword v13, v246, s[32:35], s56 offen sc1"
    stamp(1)
    e(f"ds_write_b128 v1, v[8:11] offset:{XR}")
    for i in range(4): e(f"v_lshlrev_b32 v{F+2*i}, 16, v{8+i}\nv_and_b32 v{F+2*i+1}, 0xffff0000, v{8+i}")
    e(f"v_add_f32 v72, v{F}, v{F+1}")
    for i in range(2, 8): e(f"v_add_f32 v72, v72, v{F+i}")
    r16 = ["row_ror:8", "row_ror:4", "row_ror:2", "row_ror:1"]
    dpp_red("v_add_f32", [72], r16)
    xrow("v_add_f32", [72], [73])
    e(f"v_mul_f32 v72, {f2u(1/448)}, v72\nv_mov_b32 v73, 0")
    for i in range(8): e(f"v_sub_f32 v74, v{F+i}, v72\nv_fmac_f32 v73, v74, v74")
    e("v_cmp_gt_u32 vcc, 56, v0\nv_cndmask_b32 v73, 0, v73, vcc")
    dpp_red("v_add_f32", [73], r16)
    xrow("v_add_f32", [73], [74])
    e(f"v_mul_f32 v73, {f2u(1/448)}, v73")
    bfround(72); bfround(73)
    e(f"v_add_f32 v73, {f2u(1e-5)}, v73"); bfround(73)
    e("v_sqrt_f32 v73, v73"); bfround(73)
    e("v_rcp_f32 v74, v73")
    for i in range(8): e(f"v_sub_f32 v{F+i}, v{F+i}, v72")
    for i in range(0, 8, 2): e(f"v_cvt_pk_bf16_f32 v{F+i+1}, v{F+i}, v{F+i+1}")
    for i in range(0, 8, 2): e(f"v_lshlrev_b32 v{F+i}, 16, v{F+i+1}\nv_and_b32 v{F+i+1}, 0xffff0000, v{F+i+1}")
    for i in range(8): e(f"v_mul_f32 v{F+8+i}, v{F+i}, v74")
    for i in range(8): e(f"v_fma_f32 v{F+i}, -v{F+8+i}, v73, v{F+i}")
    for i in range(8): e(f"v_fmac_f32 v{F+8+i}, v{F+i}, v74")
    for i in range(8): e(f"v_cvt_pk_bf16_f32 v{F+i}, v{F+8+i}, v{F+8+i}")
    e(f"""v_lshlrev_b32 v72, 5, v0
          ds_write_b128 v72, v[{F}:{F+3}] offset:{XN}
          ds_write_b128 v72, v[{F+4}:{F+7}] offset:{XN+16}
          v_mul_u32_u24 v73, 56, v2
          s_mul_i32 s56, s48, 448
          v_add_u32 v73, s56, v73
          s_waitcnt lgkmcnt(0)""")
    for i in range(7): e(f"ds_read_b64 v[{XA+2*i}:{XA+2*i+1}], v73 offset:{XN+8*i}")
    tags()
    e(f"""s_getreg_b32 s56, hwreg(HW_REG_XCC_ID, 0, 4)
          s_and_b32 s63, s97, 0xf0
          s_or_b32 s63, s63, s56
          s_waitcnt lgkmcnt(0)""")
    stamp(2)
    for i in range(15):
        if i < 14:
            a = (116, 120)[i & 1]
            for j in range(4): e(f"v_and_b32 v{a+j}, v{XA+i}, v{MK+j}")
        if i >= 1:
            p = i - 1; a = (116, 120)[p & 1]
            e(f"s_waitcnt vmcnt({13-p+tlb})\nv_mfma_f32_16x16x32_bf16 v[8:11], v[{a}:{a+3}], v[{WQ+4*p}:{WQ+4*p+3}], " + ("0" if p == 0 else "v[8:11]"))
    e(f"""v_lshrrev_b32 v5, 4, v0
          v_lshlrev_b32 v72, 4, v5
          v_lshl_add_u32 v72, v3, 5, v72
          v_and_b32 v73, 40, v0
          v_mov_b32 v12, {OOB}
          v_cmp_eq_u32 vcc, 0, v73
          v_cndmask_b32 v72, v12, v72, vcc
          s_lshl_b32 s54, s28, 13
          s_add_u32 s54, s54, {QP}
          s_lshl_b32 s56, s48, 11
          s_add_u32 s56, s56, s54
          s_lshl_b32 s61, s49, 8
          s_add_u32 s56, s56, s61""")
    for r in range(4): e(f"v_mov_b32_dpp v{F+r}, v{8+r} row_ror:8 row_mask:0xf bank_mask:0xf")
    for r in range(4): e(f"v_permlane32_swap_b32 v{F+r}, v{F+4+r}")
    for r in range(4): e(f"v_add_f32 v{8+r}, v{8+r}, v{F+4+r}")
    for r in range(4): e(f"v_add_u32 v{8+r}, 0x80, v{8+r}")
    tag4(8, 245, "s63")
    e(f"buffer_store_dwordx4 v[8:11], v72, s[32:35], s56 offen {qsc}")
    if not qsc: e(f"s_mov_b32 s3, s56\nv_mov_b32 v71, v72\ns_mov_b64 exec, vcc\nds_write_b128 v72, v[8:11] offset:{QC}\ns_mov_b64 exec, -1")
    stamp(3)
    if skew is not None: e(skew_store)
    e(f"""s_lshr_b32 s53, s2, 6
          s_lshl_b32 s53, s53, 14
          s_and_b32 s56, s2, 63
          s_lshl_b32 s56, s56, 7
          s_add_u32 s53, s53, s56
          s_add_u32 s53, s53, {PB}
          v_lshlrev_b32 v6, 10, v0
          v_and_b32 v6, 0x2000, v6
          v_lshl_add_u32 v6, v3, 4, v6""")
    for r in range(4): e(f"v_mov_b32 v{16+r}, 0x100")
    if int(pst) == 2: e("s_cmp_lt_u32 s29, 28\ns_cbranch_scc1 L_noprobe")
    if int(pst): e("s_mov_b64 exec, 0xffff\nbuffer_store_dwordx4 v[16:19], v6, s[32:35], s53 offen sc1\ns_mov_b64 exec, -1")
    e("L_noprobe:")
    e(f"""s_setprio 0
          s_lshl_b32 s54, s55, 11
          s_add_u32 s54, s54, {OP}
          v_lshl_add_u32 v6, v0, 7, s54
          s_lshr_b32 s48, s29, 3
          s_and_b32 s49, s29, 7
          s_lshl_b32 s60, s49, 6
          s_lshl_b32 s56, s48, 4
          s_add_u32 s60, s60, s56
          s_lshl_b32 s56, s28, 9
          s_add_u32 s60, s60, s56
          s_add_u32 s60, s60, {ML}
          s_mul_i32 s61, s52, 7168
          s_add_u32 s61, s61, {DP}
          s_lshl_b32 s56, s51, 10
          s_add_u32 s62, s61, s56
          s_sub_u32 s56, s62, {16*128}
          v_lshl_add_u32 v7, v0, 7, s56
          v_cmp_gt_u32 vcc, 16, v0
          v_cndmask_b32 v6, v7, v6, vcc
          s_lshl_b32 s63, s52, 11
          s_add_u32 s63, s63, {HH}
          s_lshl_b32 s56, s51, 8
          s_add_u32 s56, s56, s63
          v_writelane_b32 v6, s56, 24
          s_add_u32 s56, s56, 128
          v_writelane_b32 v6, s56, 25
          v_writelane_b32 v6, s60, 26
          s_cmp_lt_u32 s52, 28
          s_cselect_b32 s56, 0x03ff0000, 0
          s_or_b32 exec_lo, s56, 0x0400ffff
          s_mov_b32 exec_hi, 0
          {"buffer_load_dword v13, v6, s[32:35], 0 offen sc1" if int(pre) & 1 else ""}
          s_mov_b64 exec, -1
          v_cmp_eq_u32 vcc, 0, v0
          v_cndmask_b32 v14, v12, v0, vcc
          v_and_b32 v72, 1, v0
          v_lshlrev_b32 v72, 4, v72
          s_mov_b32 s57, {CEXP}
          v_and_b32 v3, 3, v0
          v_and_b32 v6, 1, v5
          v_lshlrev_b32 v6, 2, v6
          v_lshrrev_b32 v7, 1, v5
          v_lshl_add_u32 v6, v7, 1, v6
          v_mul_u32_u24 v6, 896, v6
          v_and_b32 v7, 15, v0
          v_lshl_add_u32 v6, v7, 3, v6
          s_mul_i32 s48, s100, 57344
          s_lshl_b32 s56, s51, 7
          s_add_u32 s48, s48, s56
          s_mul_i32 s49, s51, {BS}
          s_lshl_b32 s56, s28, 10
          s_add_u32 s49, s49, s56
          s_lshl_b32 s56, s50, 8
          s_add_u32 s49, s49, s56
          s_add_u32 s49, s49, {CP}
          v_lshlrev_b32 v2, 2, v0""")
    qtag_reg(244, 3)
    e("v_bfe_u32 v15, v0, 2, 2")
    qtag_reg(15, 15)
    e("v_cmp_eq_u32 vcc, 0, v3\nv_cndmask_b32 v243, 0, v245, vcc")
    e(f"""s_mul_i32 s54, s51, {BS}
          s_add_u32 s54, s54, {EP}
          s_lshl_b32 s56, s52, 8
          s_add_u32 s54, s54, s56
          v_lshlrev_b32 v249, 7, v0
          v_lshlrev_b32 v250, 12, v0
          v_and_b32 v249, 0x80, v249
          v_and_b32 v250, 0x2000, v250
          v_or_b32 v249, v249, v250
          s_cmp_ge_u32 s29, 28
          s_cbranch_scc1 L_nopre
          s_mov_b64 exec, 15
          {"buffer_load_dword v250, v249, s[32:35], s49 offen sc1" if int(pre) & 2 else ""}
          s_cmp_ge_u32 s52, 28
          s_cbranch_scc1 L_nopre
          {"buffer_load_dword v250, v249, s[32:35], s54 offen sc1" if int(pre) & 4 else ""}""")
    if opre: e(f"""s_lshr_b32 s56, s52, 2
          {"s_cmp_lg_u32 s56, 1" if fin == "t" else f"s_cmp_lg_u32 s28, {fin}"}
          s_cbranch_scc1 L_nopre
          s_lshl_b32 s56, s51, 7
          buffer_load_dword v250, v246, s[40:43], s56 offen {opre.replace("p", "")}""")
    e(f"""L_nopre:
          s_mov_b64 exec, -1""")
    def load_dn(guard=True, part=None):
        skip = lab("nodn")
        if guard: e(f"s_cmp_ge_u32 s52, 28\ns_cbranch_scc1 {skip}")
        for i in range(8) if part is None else range(4*part, 4*part + 4):
            for hi in range(2):
                d = DN + 2*(8*hi + i)
                e(f"buffer_load_dwordx2 v[{d}:{d+1}], v6, s[44:47], s48 offen offset:{896*hi} {wnt}")
            if i < 7: e("s_add_u32 s48, s48, 7168")
        e(f"{skip}:")
    if dnpos == "K": load_dn()
    if int(pst) == 2: e("s_mov_b32 s101, 0\ns_cmp_lt_u32 s29, 28\ns_cbranch_scc1 L_Q2")
    e("""s_waitcnt vmcnt(0)
         s_mov_b32 s99, 0
         s_load_dword s98, s[26:27], s53 offset:0
         s_load_dword s99, s[26:27], s53 offset:8192
         s_waitcnt lgkmcnt(1)
         s_andn2_b32 s101, 0x100, s99""")
    sec("Q2", "L_Q2")
    sec("Q3", "L_Q3")
    e(f"s_barrier\nds_read_b128 v[24:27], v246 offset:{FLAGS}\ns_waitcnt lgkmcnt(0)")
    read_mode(24)
    if not qsc:
        e("s_cmp_lg_u32 s59, 0\ns_cbranch_scc1 L_qfar\nL_qnear:")
        deferred.append(("L_qfar", "L_qnear", ["buffer_store_dwordx4 v[8:11], v71, s[32:35], s3 offen"]))
    if dnpos == "q": load_dn()
    e("s_setprio 3\ns_barrier")
    stamp(4)
    e(f"""
          ds_read_b128 v[16:19], v72 offset:{MLW}
          ds_read_b128 v[20:23], v72 offset:{MLW+32}
          s_waitcnt lgkmcnt(0)
          v_max3_f32 v8, v16, v17, v18
          v_max_f32 v8, v8, v19""")
    for w in range(4): e(f"v_sub_f32 v{16+w}, v{16+w}, v8")
    for w in range(4): e(f"v_mul_f32 v{16+w}, s57, v{16+w}")
    for w in range(4): e(f"v_exp_f32 v{16+w}, v{16+w}")
    e("""v_mul_f32 v9, v16, v20
         v_fmac_f32 v9, v17, v21
         v_fmac_f32 v9, v18, v22
         v_fmac_f32 v9, v19, v23
         v_mov_b32_dpp v10, v8 quad_perm:[1,1,1,1] row_mask:0xf bank_mask:0xf
         v_mov_b32_dpp v11, v9 quad_perm:[1,1,1,1] row_mask:0xf bank_mask:0xf""")
    e("v_or_b32 v8, s101, v8")
    tag4(8, 245)
    if mlsc: e("buffer_store_dwordx4 v[8:11], v14, s[32:35], s60 offen sc1")
    else: mode_store(["buffer_store_dwordx4 v[8:11], v14, s[32:35], s60 offen"])
    stamp(5)
    e("s_cmp_ge_u32 s29, 28\ns_cbranch_scc1 L_end\ns_setprio 0")
    if dnpos == "p": load_dn()
    if dnpos == "pB": load_dn(part=0)
    e("s_add_u32 s53, s49, 8192")
    e("s_barrier")
    if dnpos == "h": e("s_barrier"); load_dn()
    else: e("s_barrier")
    if gupos == "B1": e("s_barrier")
    if dnpos == "B1": load_dn()
    if dnpos == "pB": load_dn(part=1)
    e("s_setprio 3\ns_barrier")
    stamp(6)
    if dnpos == "B3": load_dn()
    for k in range(4): e(f"ds_read2st64_b32 v[{16+2*k}:{17+2*k}], v2 offset0:{RED//256+2*k} offset1:{RED//256+2*k+1}")
    e(f"""s_waitcnt lgkmcnt(2)
         v_pk_add_f32 v[16:17], v[16:17], v[18:19]
         s_waitcnt lgkmcnt(0)
         v_pk_add_f32 v[20:21], v[20:21], v[22:23]
         v_pk_add_f32 v[16:17], v[16:17], v[20:21]
         v_add_f32 v16, v16, v17
         v_bfi_b32 v16, v243, v15, v16
         buffer_store_dword v16, v2, s[32:35], s49 offen {cst}
         buffer_store_dword v16, v2, s[32:35], s53 offen {cst}""")
    stamp(7)
    e("s_setprio 0\ns_cmp_ge_u32 s52, 28\ns_cbranch_scc1 L_end")
    if dnpos == "B4": load_dn(False)
    if cack == "b": e("s_barrier")
    elif cack: e("s_waitcnt vmcnt(%d)\ns_barrier" % (16 if dnpos == "B4" else 0))
    if dnpos == "B5": load_dn(False)
    for r in range(4): e(f"v_mov_b32 v{84+r}, {'v244' if r == 0 else 0}")
    DS = (20, 21, 22, 23, 24, 25)
    for p in range(6):
        e(f"s_add_u32 s56, s51, {p+1}\ns_sub_u32 s60, s56, 7\ns_cselect_b32 s56, s56, s60\ns_lshl_b32 s56, s56, 10\ns_add_u32 s{DS[p]}, s56, s61")
    e(f"""
          s_mul_i32 s54, s51, {BS}
          s_add_u32 s54, s54, {EP}
          s_lshl_b32 s56, s52, 8
          s_add_u32 s49, s54, s56
          v_cmp_gt_u32 vcc, 16, v0
          v_cndmask_b32 v4, v12, v1, vcc
          {"s_sub_u32 s50, s52, 4" if fin == "t" else f"s_cmp_eq_u32 s28, {fin}" + chr(10) + "s_cselect_b32 s50, s50, 4"}
          s_lshl_b32 s56, s50, 6
          s_add_u32 s54, s54, s56
          s_add_u32 s53, s54, 4096
          v_lshrrev_b32 v7, 2, v0
          v_lshlrev_b32 v7, 8, v7
          v_lshl_add_u32 v7, v3, 4, v7
          v_lshl_add_u32 v8, v3, 2, v5
          v_lshl_add_u32 v9, v8, 2, s56
          v_and_b32 v9, 0xff, v9
          v_lshlrev_b32 v8, 1, v8
          v_and_b32 v10, 12, v0
          v_cmp_eq_u32 vcc, 0, v10
          v_cndmask_b32 v8, v12, v8, vcc
          s_lshl_b32 s55, s51, 7
          s_lshl_b32 s56, s50, 5
          s_add_u32 s55, s55, s56""")
    L48 = (1 << 48) - 1
    DT = 192
    k0 = -2.0 * 0.7978845608028654 * 1.4426950408889634
    e(f"""v_bfe_u32 v70, v0, 3, 1
          v_mul_u32_u24 v68, 0x0606, v70
          v_mul_u32_u24 v69, 0x0202, v70
          v_lshlrev_b32 v68, 16, v68
          v_lshlrev_b32 v69, 16, v69
          v_add_u32 v68, 0x01000c0c, v68
          v_sub_u32 v69, 0x05040c0c, v69
          v_mov_b32 v70, {f2u(k0*0.044715)}""")
    if sfl: e(f"ds_write_b32 v246, v246 offset:{FLAGS+28}\ns_waitcnt lgkmcnt(0)")
    if dnt:
        assert dnpos in ("p", "q", "K", "pB", "B1", "B3")
        e("s_mov_b32 s56, 0x05040100\ns_mov_b32 s60, 0x07060302\ns_waitcnt vmcnt(2)")
        for c in range(4):
            for j in range(8):
                a = DN + 4*j + (c >> 1)
                e(f"v_perm_b32 v{DT+8*c+j}, v{a+2}, v{a}, s{(56, 60)[c & 1]}")
    e(f"s_mov_b32 s58, {SPIN}")
    e("s_setprio 3\ns_barrier")
    stamp(8)
    for k in range(4): e(f"ds_read_b128 v[{24+4*k}:{27+4*k}], v1 offset:{RED2+1024*k}")
    e("s_waitcnt lgkmcnt(2)")
    pk_add4(24, 24, 28)
    e("s_waitcnt lgkmcnt(0)")
    pk_add4(32, 32, 36); pk_add4(24, 24, 32)
    e("v_bfi_b32 v24, v245, v244, v24")
    mode_store(["buffer_store_dwordx4 v[24:27], v1, s[32:35], s62 offen"])
    stamp(9)
    dg = [(f"buffer_load_dwordx4 v[{44+4*p}:{47+4*p}], v1, s[32:35], s{DS[p]} offen sc1", 44 + 4*p) for p in range(6)]
    for t, b in dg: e(t)
    e(f"""ds_read_b32 v13, v9 offset:{HL}
          ds_read_b32 v11, v246 offset:{FLAGS+16}
          v_and_b32 v24, 0xffffff00, v24
          s_waitcnt lgkmcnt(0)
          v_and_b32 v13, 0xffff0000, v13
          v_add_u32 v7, v7, v11
          v_add_u32 v4, v4, v11
          v_xor_b32 v10, 0x2000, v4""")
    stamp(10)
    def d_acc(i, b):
        a, d = (24 if i == 0 else 28), (44 if i == 5 else 28)
        if sfl and i == 1: e(f"ds_read_b64 v[40:41], v246 offset:{FLAGS+24}")
        e(f"v_and_b32 v36, 0xffffff00, v{b}\nv_pk_add_f32 v[{d+2}:{d+3}], v[{a+2}:{a+3}], v[{b+2}:{b+3}]\nv_add_f32 v{d+1}, v{a+1}, v{b+1}\nv_add_f32 v{d}, v{a}, v36")
        if sfl and i == 4: e("s_waitcnt lgkmcnt(0)\nv_cmp_eq_u32 s[6:7], 0, v41")
    pre = "s_memrealtime s[86:87]\n" if stamps else ""
    if sfl:
        assert dspec
        pre += "s_cmp_lg_u64 s[6:7], 0\ns_cbranch_scc1 L_stwait\nL_stgot:\n"
        late = f"L_stwait:\ns_sub_u32 s58, s58, 1\ns_cbranch_scc1 L_stgot\nds_read_b64 v[40:41], v246 offset:{FLAGS+24}\ns_waitcnt lgkmcnt(0)\nv_cmp_eq_u32 vcc, 0, v41\ns_cbranch_vccnz L_stwait\ns_branch L_stgot"
        if int(wb) & 2:
            wbd = f"s_cmp_eq_u32 s2, {56 + int(fin)}\ns_cbranch_scc1 L_dowb\nL_nowb:"
            late += "\nL_dowb:\nbuffer_wbl2 sc1\ns_branch L_nowb"
    else: pre += f"s_barrier\nds_read_b64 v[40:41], v246 offset:{FLAGS+24}"
    poll(dg, 8, issued=True, quad=244, pre=pre, spec=d_acc if dspec else None)
    if sfl and int(wb) & 2: e(wbd)
    if not dspec:
        pk_add4(44, 44, 48); pk_add4(52, 52, 56); pk_add4(60, 60, 64)
        pk_add4(44, 44, 24); pk_add4(52, 52, 60); pk_add4(44, 44, 52)
    e("""v_permlane32_swap_b32 v45, v47
         v_permlane32_swap_b32 v44, v46""")
    if not sfl: e("s_waitcnt lgkmcnt(0)")
    e("""v_pk_fma_f32 v[44:45], v[46:47], v[40:41], v[44:45] op_sel:[0,0,0] op_sel_hi:[1,0,1] neg_lo:[0,1,0] neg_hi:[0,1,0]
         v_pk_mul_f32 v[44:45], v[44:45], v[40:41] op_sel:[0,1] op_sel_hi:[1,1]
         v_cvt_pk_bf16_f32 v45, v44, v45
         v_mov_b32_dpp v46, v45 row_ror:8 row_mask:0xf bank_mask:0xf
         v_perm_b32 v44, v46, v45, v68
         v_perm_b32 v45, v46, v45, v69""")
    e(f"""v_mul_f32 v46, v44, v44
          v_fmaak_f32 v46, v46, v70, {f2u(k0)}
          v_mul_f32 v46, v46, v44
          v_exp_f32 v46, v46
          v_add_f32 v46, 1.0, v46
          v_rcp_f32 v46, v46
          v_mul_f32 v46, v46, v44""")
    bfround(46)
    if dnt:
        e("v_mul_f32 v46, v46, v45")
        poll_init(2, 4, {1: L48})
        e("v_mov_b32_dpp v47, v46 quad_perm:[1,1,3,3] row_mask:0xf bank_mask:0xf\nv_cvt_pk_bf16_f32 v46, v46, v47")
        for j in range(8): e(f"v_mov_b32_dpp v{116+j}, v46 row_newbcast:{2*j} row_mask:0xf bank_mask:0xf")
        for h in range(2):
            for c in range(4):
                e(f"v_mfma_f32_16x16x32_bf16 v[{32+4*c}:{35+4*c}], v[{116+4*h}:{119+4*h}], v[{DT+8*c+4*h}:{DT+8*c+4*h+3}], " + ("0" if h == 0 else f"v[{32+4*c}:{35+4*c}]"))
        e("v_bfi_b32 v32, v245, v244, v32\nv_mov_b32 v33, v36\nv_pk_mov_b32 v[34:35], v[40:41], v[44:45] op_sel:[0,0]")
    else: e("v_mul_f32 v46, v46, v45\nv_cvt_pk_bf16_f32 v46, v46, v46")
    for i in range(0 if dnt else 17):
        if i < 16:
            a = 116 + 2*(i & 3)
            for j in range(2): e(f"v_and_b32_dpp v{a+j}, v46, v{MK+j} row_newbcast:{i} row_mask:0xf bank_mask:0xf")
        if i >= 1:
            p = i - 1; ap = 116 + 2*(p & 3)
            e(f"v_mfma_f32_16x16x16_bf16 v[32:35], v[{ap}:{ap+1}], v[{DN+2*p}:{DN+2*p+1}], " + ("0" if p == 0 else "v[32:35]"))
    if not dnt:
        poll_init(2, 4, {1: L48})
        e("v_bfi_b32 v32, v245, v244, v32")
    e(f"buffer_store_dwordx4 v[32:35], v4, s[32:35], s49 offen {est}")
    e(f"buffer_store_dwordx4 v[32:35], v10, s[32:35], s49 offen {est}")
    stamp(12)
    if int(wb) & 8: e(f"s_cmp_lg_u32 s2, {56 + int(fin)}\ns_cbranch_scc1 L_nowb8\nbuffer_wbl2 sc1\nL_nowb8:")
    e(f"s_cmp_gt_u32 s50, 3\ns_cbranch_scc1 {'L_wb4' if int(wb) & 4 or sfl else 'L_Eend'}")
    if et:
        for r in range(4): e(f"v_mov_b32 v{80+r}, 0")
        poll_sum(lambda i, b: f"buffer_load_dwordx4 v[{b}:{b+3}], v7, s[32:35], {('s54', 's53')[i]} offen {eld}", 80, 160, 244, et)
        stamp(13)
    else:
        if eack: e("s_waitcnt vmcnt(%d)" % (1 if eack == "1" else 0))
        poll([("buffer_load_dwordx4 v[80:83], v7, s[32:35], s54 offen sc1", 80), ("buffer_load_dwordx4 v[84:87], v7, s[32:35], s53 offen sc1", 84)], 4, quad=244)
        stamp(13)
        pk_add4(80, 80, 84)
    trows(80)
    dpp_red("v_add_f32", [80], ["row_ror:4", "row_ror:8"])
    bfround(80)
    e(f"""v_add_f32 v80, v80, v13
          v_cvt_pk_bf16_f32 v80, v80, v80
          buffer_store_short v80, v8, s[40:43], s55 offen {osc}""")
    if epo[0] != "C":
        e(f"""s_cmp_lg_u32 s2, 4
          s_cbranch_scc1 L_Eend
          v_mov_b32 v16, s31
          buffer_store_dword v16, v14, s[32:35], 0 offen {"sc1" if epo == "s" else ""}""")
    e("L_Eend:")
    if clean & 4: e("v_or_b32 v24, v24, v244\nbuffer_store_dwordx4 v[24:27], v1, s[32:35], s62 offen sc1")
    stamp(14)
    if amp is not None:
        e(f"""s_cmp_lg_u32 s2, 4
              s_cbranch_scc1 L_end
              s_memrealtime s[96:97]
              s_waitcnt lgkmcnt(0)
              s_sub_u32 s98, s{64+2*int(amp)}, s64
              s_lshl_b32 s98, s98, 3""")
        if skew is not None:
            e(f"""s_mov_b32 s56, {STAMP}
              buffer_load_dword v16, v246, s[32:35], s56 offen sc1
              buffer_load_dword v17, v246, s[32:35], s56 offen offset:{4*int(skew)} sc1
              s_waitcnt vmcnt(0)
              v_sub_u32 v16, v17, v16
              v_add_u32 v16, 100, v16
              v_readfirstlane_b32 s98, v16
              s_lshl_b32 s98, s98, 5""")
        e(f"""
              s_min_u32 s98, s98, 100000
              L_amp:
              s_memrealtime s[100:101]
              s_waitcnt lgkmcnt(0)
              s_sub_u32 s99, s100, s96
              s_cmp_lt_u32 s99, s98
              s_cbranch_scc1 L_amp""")
    finish()
    if sfl: e(late)
    if int(wb) & 4 or sfl: e("L_wb4:")
    if sfl:
        e(f"s_cmp_lg_u32 s2, {0 if fin != '0' else 1}\ns_cbranch_scc1 L_noepo\nv_mov_b32 v16, s31\nbuffer_store_dword v16, v14, s[32:35], 0 offen {epo[1:]}\nL_noepo:")
        if not int(wb) & 4: e("s_branch L_Eend")
    if int(wb) & 4:
        e("s_cmp_lg_u32 s29, 7\ns_cbranch_scc1 L_Eend")
        if fin == "t": e("s_cmp_ge_u32 s28, 4\ns_cbranch_scc1 L_Eend")
        e(f"s_waitcnt vmcnt({wbt})\nbuffer_wbl2 sc1\ns_waitcnt vmcnt(0)\ns_branch L_Eend")
    sec("A")
    for t in extra: e(t)
    sec("Q3")
    for far, back, ins in deferred:
        e(f"{far}:\ns_nop 7")
        for t in ins: e(t + " sc1")
        e(f"s_nop 1\ns_branch {back}")
    if stamps:
        e("L_stamps:\ns_waitcnt lgkmcnt(0)\ns_mov_b64 exec, -1\nv_mov_b32 v250, 0")
        for k in range(16): e(f"v_writelane_b32 v250, s{64+2*k}, {k}")
        e(f"""s_lshl_b32 s60, s2, 3
              s_add_u32 s60, s60, s30
              s_lshl_b32 s60, s60, 6
              s_add_u32 s60, s60, {STAMP}
              v_lshlrev_b32 v251, 2, v0
              s_mov_b64 exec, 0xffff
              buffer_store_dword v250, v251, s[32:35], s60 offen""")
    e("L_exit:\ns_endpgm")

    head = open("cdna_kernels/" + NAME + ".s.ref").read()
    head = head[:head.index("; @launch")]
    out = head + f"; @launch grid=(256,1,1) block=(320,1,1) lds={LDS_SIZE}\n"
    out += f""".amdgcn_target "amdgcn-amd-amdhsa--gfx950"
.text
.globl {NAME}_kernel
.p2align 12
.fill {int(pad)//4}, 4, 0xbf800000
.p2align 8
.type {NAME}_kernel,@function
{NAME}_kernel:
"""
    for name, al in (("A", 0), ("K1", 0), ("Q1", 12), ("Q2", 12), ("K0", 0), ("K2", 0), ("Q3x", 0), ("Q3", 12)):
        if name not in secs: continue
        if al: out += f".p2align {al}\n"
        out += "\n".join(secs[name]) + "\n"
    out = out.replace("buffer_wbl2 sc1", "buffer_wbl2 " + wbf.replace("_", " "))
    out += f""".section .rodata,"a"
.p2align 6
.amdhsa_kernel {NAME}_kernel
  .amdhsa_next_free_vgpr 256
  .amdhsa_next_free_sgpr 102
  .amdhsa_accum_offset 256
  .amdhsa_group_segment_fixed_size 0
  .amdhsa_kernarg_size 96
  .amdhsa_user_sgpr_count 2
  .amdhsa_user_sgpr_kernarg_segment_ptr 1
  .amdhsa_system_sgpr_workgroup_id_x 1
.end_amdhsa_kernel
"""
    return out

if __name__ == "__main__":
    kw = {}
    for a in sys.argv[2:]:
        k, v = a.split("=")
        kw[k] = {"True": True, "False": False}.get(v, v)
    open(sys.argv[1], "w").write(gen(**kw))
```

```python
import sys, struct, re
from emit import Emitter, Ins, need

NAME = "sequential_preLN__sliding_block_cached__geglu_ffn__decode"
def f2u(x): return struct.unpack("<I", struct.pack("<f", x))[0]

QP, ML, CP, EP, OP, HH, DP, STAMP, WS_SIZE = 0x10000, 0x20000, 0x120000, 0x140000, 0x40000, 0xC0000, 0xD0000, 0x1E0000, 0x200000
XN, XR, QS, EB, RED, RED2, FLAGS, MLW, HL, PR, LDS_SIZE = 0, 2048, 3072, 4096, 5120, 7168, 11264, 11520, 11776, 12288, 14336
QC = 12032
FL = 0x30000
OOB = 0x7ffffff0
PB = 0x160000
SPIN = 1 << 16
NL = "\n"
CEXP = f2u(1.4426950408889634 / 16.0)
T0, T1, T2 = "s31", "s96", "s97"
TAGS = (T0, T0, T1, T2)

def gen(amp=None, nt="nt", wnt=None, stamps=False, force_global=False, wopos="V", gupos="B1", dnpos="F",
        code_pf=True, eack=True, kpre=0, W=6, qa=3, lc=15, rot="gj", skew=None, cack=True, ctmap="u", pad=0xD00, ksplit=3, order="V1GV16MW", tlb=0, tmap=1, w0=8, qnt=None, opat=1, skipz=0, opsc=False, ct="30", et="10", home="v", mlsc=False, gi="0112", sw=1, dirty=0, wb=6, epo="C", osc="", Wq=6, W2=0, Ww=0, Wm=0, lst="", opre="p", clean=0, fin="6", wbt=0, dbg=0, mlo="A", gfree="", sp="11111n", dnt=1, dspec=1, ospec=1, hlate=3, sfl=0, qsc="", pst=2, pre=7, qpre=0, tlm="0xff", cld="sc1", eld="sc1", cst="sc1", est="sc1", wbf="sc1", wbj=7, t4g="4567", sfx=0, zb=1, fsh=6, cnt=0, dnpf=40, dtl=1, dnf=None, pfl=0, wfl=None, dr=0):
    dr = int(dr)
    if dnpf == "n": dnpf = None
    pfl = int(pfl)
    dtl = int(dtl)
    sfx, zb, fsh = int(sfx), int(zb), int(fsh)
    dnt, dspec, ospec, hlate, sfl = int(dnt), int(dspec), int(ospec), int(hlate), int(sfl)
    clean = int(clean)
    if clean & 8: epo, osc = "Csc1", "sc1"
    if wnt is None: wnt = nt
    BS = 16384
    cld, eld, cst, est = (x.replace("_", " ") for x in (cld, eld, cst, est))
    if ct: cack, ct = ct[0] if ct[0] in "ab" else "", ct.lstrip("ab")
    kpre, W, qa = int(kpre), int(W), int(qa)
    lc = int(lc); nb = lc - 12
    def koff(st): return ((st >> nb) << (lc + 5)) | ((st & ((1 << nb) - 1)) << 12)
    if skew is not None: amp = 0
    e = Emitter()
    uid = [0]
    deferred = []
    extra = []
    secs = {"A": e.lines}
    def sec(name, jump=None):
        if jump: e(f"s_branch {jump}")
        e.lines = secs.setdefault(name, []); e.hist = []
        if jump: e(f"{jump}:")
    def lab(p): uid[0] += 1; return f"L_{p}{uid[0]}"
    def srd_hi(d, n): e(f"s_mov_b32 s{d+2}, {n}\ns_mov_b32 s{d+3}, 0x00020000")
    def srd_lo(d, b): e(f"s_mov_b64 s[{d}:{d+1}], s[{b}:{b+1}]")
    def srd(d, b, n): srd_lo(d, b); srd_hi(d, n)
    def stamp(k):
        if stamps or (amp is not None and k in (0, int(amp))): e(f"s_memrealtime s[{64+2*k}:{65+2*k}]")
    def finish():
        if stamps: e("s_branch L_stamps")
        else: e("s_endpgm")
    def mode_store(ins):
        far, back = lab("far"), lab("back")
        e(f"s_cmp_lg_u32 s59, 0\ns_cbranch_scc1 {far}")
        for t in ins: e(t + " " + lst.replace("_", " "))
        e(f"{back}:")
        deferred.append((far, back, ins))
    def tags():
        e(f"""s_add_u32 s31, s31, 0x9E3779B1
              s_lshr_b32 s96, s31, 8
              s_or_b32 s96, s96, 1
              s_xor_b32 s96, s96, s31
              s_lshr_b32 s97, s31, 16""")
    def tag4(b, ff, last=T2):
        for r in range(4): e(f"v_bfi_b32 v{b+r}, v{ff}, {(T0, T0, T1, last)[r]}, v{b+r}")
    def lane_tag(d, idx, t):
        e(f"""v_mov_b32 v{d}, {T0}
              v_mov_b32 v{t}, {T1}
              v_cmp_eq_u32 vcc, 2, v{idx}
              v_cndmask_b32 v{d}, v{d}, v{t}, vcc
              v_mov_b32 v{t}, {T2}
              v_cmp_eq_u32 vcc, 3, v{idx}
              v_cndmask_b32 v{d}, v{d}, v{t}, vcc
              v_and_b32 v{d}, 0xff, v{d}""")
    def masks(m, t0, t1):
        e(f"""v_and_b32 v{t0}, 1, v0
              v_lshlrev_b32 v{t0}, 4, v{t0}
              v_mov_b32 v{t1}, 0xffff
              v_lshlrev_b32 v{t1}, v{t0}, v{t1}
              v_bfe_u32 v{t0}, v0, 1, 2""")
        for j in range(4):
            e(f"v_cmp_eq_u32 vcc, {j}, v{t0}\nv_cndmask_b32 v{m+j}, 0, v{t1}, vcc")
    def dpp_red(op, vs, ctrls):
        for c in ctrls:
            for v in vs: e(f"{op}_dpp v{v}, v{v}, v{v} {c} row_mask:0xf bank_mask:0xf")
    def xrow(op, vs, tmps):
        for sw in ("v_permlane16_swap_b32", "v_permlane32_swap_b32"):
            for v, t in zip(vs, tmps): e(f"v_mov_b32 v{t}, v{v}")
            for v, t in zip(vs, tmps): e(f"{sw} v{v}, v{t}")
            for v, t in zip(vs, tmps): e(f"{op} v{v}, v{v}, v{t}")
    def bfround(v): e(f"v_cvt_pk_bf16_f32 v{v}, v{v}, v{v}\nv_and_b32 v{v}, 0xffff0000, v{v}")
    def trows(a):
        e(f"""v_permlane32_swap_b32 v{a}, v{a+2}
              v_permlane32_swap_b32 v{a+1}, v{a+3}
              v_add_f32 v{a}, v{a}, v{a+2}
              v_add_f32 v{a+1}, v{a+1}, v{a+3}
              v_permlane16_swap_b32 v{a}, v{a+1}
              v_add_f32 v{a}, v{a}, v{a+1}""")
    def pk_add4(d, a, b):
        e(f"v_pk_add_f32 v[{d}:{d+1}], v[{a}:{a+1}], v[{b}:{b+1}]\nv_pk_add_f32 v[{d+2}:{d+3}], v[{a+2}:{a+3}], v[{b+2}:{b+3}]")
    def check(b, m, t):
        e(f"""v_bitop3_b32 v{t}, v{b}, v{b+1}, {T0} bitop3:0x7e
              v_bitop3_b32 v{t}, v{b+2}, {T1}, v{t} bitop3:0xbe
              v_bitop3_b32 v{t}, v{b+3}, {T2}, v{t} bitop3:0xbe
              v_cmp_ne_u32_sdwa s[{m}:{m+1}], v{t}, v246 src0_sel:BYTE_0 src1_sel:DWORD""")
    def qtag_reg(d, idx):
        e(f"v_lshlrev_b32 v{d}, 3, v{idx}\nv_lshrrev_b32 v{d}, v{d}, {T0}\nv_and_b32 v{d}, 0xff, v{d}")
    def qclean(loads):
        for t, b in loads: e(f"v_and_b32 v{b}, 0xffffff00, v{b}")
    def poll_init(n, m0, init=None):
        for i in range(n):
            v = (init or {}).get(i)
            if v is None: e(f"s_mov_b64 s[{m0+2*i}:{m0+2*i+1}], -1")
            else: e(f"s_mov_b32 s{m0+2*i}, {v & 0xffffffff}\ns_mov_b32 s{m0+2*i+1}, {v >> 32}")
        e(f"s_mov_b32 s58, {SPIN}")
    def poll(loads, m0, issued=False, behind=0, quad=None, pre=None, spec=None):
        n = len(loads)
        top, chk, done = lab("poll"), lab("chk"), lab("pdone")
        if issued: e(f"s_branch {chk}")
        e(f"{top}:\ns_sub_u32 s58, s58, 1\ns_cbranch_scc1 {done}")
        for i, (t, b) in enumerate(loads):
            sk = lab("sk")
            if int(skipz) and n > 2: e(f"s_wqm_b64 exec, s[{m0+2*i}:{m0+2*i+1}]\ns_cbranch_scc0 {sk}\n{t}\n{sk}:")
            else: e(f"s_wqm_b64 exec, s[{m0+2*i}:{m0+2*i+1}]\n{t}")
        e("s_mov_b64 exec, -1")
        if behind or (int(skipz) and n > 2): e("s_waitcnt vmcnt(0)")
        if issued: e(f"{chk}:")
        for i, (t, b) in enumerate(loads):
            e(f"s_waitcnt vmcnt({n-1-i+behind})")
            if quad: e(f"v_cmp_ne_u32_sdwa s[{m0+2*i}:{m0+2*i+1}], v{b}, v{quad} src0_sel:BYTE_0 src1_sel:DWORD")
            else: check(b, m0 + 2*i, 247 + (i & 1))
            if spec:
                if i < n - 1: spec(i, b)
                if i == 1: e(f"s_or_b64 vcc, s[{m0}:{m0+1}], s[{m0+2}:{m0+3}]")
                if i > 1: e(f"s_or_b64 vcc, vcc, s[{m0+2*i}:{m0+2*i+1}]")
        if spec: pass
        elif n == 1: e(f"s_cmp_lg_u64 s[{m0}:{m0+1}], 0")
        else:
            e(f"s_or_b64 vcc, s[{m0}:{m0+1}], s[{m0+2}:{m0+3}]")
            for i in range(2, n): e(f"s_or_b64 vcc, vcc, s[{m0+2*i}:{m0+2*i+1}]")
        e(f"s_cbranch_scc1 {top}\n{done}:")
        if pre: e(pre)
        if spec: spec(n - 1, loads[-1][1])
        elif quad: qclean(loads)
    def poll_sum(load, acc, base, quad, ticks):
        once = ticks.index("/") if "/" in ticks else 0
        ticks = ticks.replace("/", "")
        D = len(ticks)
        top, done = lab("ps"), lab("psd")
        def issue_round(r):
            for i in range(2): e(f"s_mov_b64 exec, s[{4+2*i}:{5+2*i}]\n" + load(i, base + 8*r + 4*i))
            e("s_mov_b64 exec, -1")
        for r, t in enumerate(ticks):
            if t != "x": e(f"s_waitcnt vmcnt({int(t) + 2*r})")
            if acc == 16 and r < 2: stamp(14 + r)
            issue_round(r)
            if acc == 16 and dnpos == f"T{r}": e("s_barrier")
        for r in range(D):
            if r == once: e(f"{top}:")
            for i in range(2):
                b, m = base + 8*r + 4*i, 4 + 2*i
                e(f"""s_waitcnt vmcnt({2*(D - min(r, once))-1-i})
                      v_cmp_ne_u32_sdwa vcc, v{b}, v{quad} src0_sel:BYTE_0 src1_sel:DWORD
                      v_and_b32 v{b}, 0xffffff00, v{b}
                      s_wqm_b64 vcc, vcc
                      s_andn2_b64 exec, s[{m}:{m+1}], vcc
                      s_and_b64 s[{m}:{m+1}], s[{m}:{m+1}], vcc""")
                pk_add4(acc, acc, b)
                e("s_mov_b64 exec, -1")
            e(f"s_or_b64 vcc, s[4:5], s[6:7]\ns_cbranch_scc0 {done}")
            if r >= once: issue_round(r)
        e(f"s_sub_u32 s58, s58, 1\ns_cbranch_scc0 {top}\n{done}:")
    def read_mode(t):
        e(f"v_or3_b32 v{t}, v{t}, v{t+1}, v{t+2}\nv_or_b32 v{t}, v{t}, v{t+3}\nv_readfirstlane_b32 s59, v{t}")
    def ffn_scalars():
        order4 = [int(c) for c in t4g] + [g for g in range(8) if str(g) not in t4g]
        table = sum(order4.index(g) << (4*g) for g in range(8))
        assert fin == "t" or fin in t4g
        e(f"""s_mul_i32 s50, s29, 37
             s_lshr_b32 s50, s50, 8
             s_mul_i32 s51, s50, 7
             s_sub_u32 s51, s29, s51
             s_lshl_b32 s101, s28, 2
             s_lshr_b32 s101, {table}, s101
             s_and_b32 s101, s101, 7
             s_lshl_b32 s52, s50, 3
             s_add_u32 s52, s52, s101""")
        if int(tmap): e("s_mul_i32 s100, s101, 3\ns_min_u32 s101, s101, 4\ns_add_u32 s100, s100, s101\ns_add_u32 s100, s100, s50\ns_min_u32 s100, s100, 27")
        else: e("s_min_u32 s100, s52, 27")

    ctm = {"0": "s_lshr_b32 s48, s29, 3\ns_and_b32 s49, s29, 7", "1": "s_lshr_b32 s48, s29, 3\ns_add_u32 s49, s29, 1\ns_and_b32 s49, s49, 7",
           "t": "s_lshr_b32 s49, s29, 2\ns_and_b32 s48, s29, 3", "u": "s_lshr_b32 s49, s29, 2\ns_xor_b32 s49, s49, 4\ns_and_b32 s48, s29, 3"}[ctmap]
    e(f"""s_cmp_ge_u32 s2, 256
          s_cbranch_scc1 L_exit
          s_load_dwordx16 s[4:19], s[0:1], 0
          s_load_dwordx8 s[20:27], s[0:1], 64""")
    stamp(0)
    e(f"""v_lshrrev_b32 v1, 6, v0
         v_and_b32 v0, 63, v0
         v_readfirstlane_b32 s30, v1
         s_and_b32 s28, s2, 7
         s_lshr_b32 s29, s2, 3
         s_lshl_b32 s55, s28, 5
         s_add_u32 s55, s55, s29
         s_cmp_lg_u32 s30, 4
         s_cbranch_scc1 L_K""")
    sec("K1")
    e("L_K:")

    KR, VR, QG, SC, MK, WO, GU, AF, GA, MG = 16, 80, 148, 156, 164, 168, 184, 200, 216, 224
    QB, PE = QG, KR + 16
    if code_pf:
        e(f"""s_getpc_b64 s[48:49]
              L_pc:
              s_lshl_b32 s56, s29, 2
              s_add_u32 s56, s56, s30
              s_lshl_b32 s56, s56, 7
              s_min_u32 s56, s56, L_exit-{NAME}_kernel
              s_sub_u32 s48, s48, L_pc-{NAME}_kernel
              s_subb_u32 s49, s49, 0
              v_mov_b32 v1, s56
              s_mov_b64 exec, 1
              global_load_dword v15, v1, s[48:49]
              s_mov_b64 exec, -1""")
    e(f"""s_lshl_b32 s53, s28, 23
         s_lshl_b32 s54, s29, {lc}
         s_add_u32 s53, s53, s54
         s_add_u32 s53, s53, 6291456""")
    e({"0": "s_mov_b32 s56, 0", "gj": "s_lshl_b32 s56, s28, 1\ns_xor_b32 s56, s56, s29\ns_and_b32 s56, s56, 15",
       "gj1": "s_lshl_b32 s56, s28, 1\ns_and_b32 s54, s29, 1\ns_or_b32 s56, s56, s54", "j": "s_and_b32 s56, s29, 15",
       "mul": "s_mul_i32 s56, s2, s2\ns_mul_i32 s56, s56, 0x9E3779B1\ns_lshr_b32 s56, s56, 28"}[rot])
    e(f"""s_lshr_b32 s54, s56, {nb}
          s_lshl_b32 s54, s54, {lc+5}
          s_or_b32 s53, s53, s54
          s_and_b32 s54, s56, {(1 << nb) - 1}
          s_lshl_b32 s54, s54, 12
          s_or_b32 s53, s53, s54
          v_bfe_u32 v9, v0, 3, 1
          v_lshlrev_b32 v1, 9, v9
          v_lshrrev_b32 v2, 4, v0
          v_lshl_add_u32 v1, v2, 7, v1
          v_and_b32 v10, 7, v0
          v_lshl_add_u32 v1, v10, 4, v1
          s_lshl_b32 s54, s30, 10
          s_add_u32 s98, s54, s53""")
    srd_hi(36, 67108864)
    stamp(15)
    e("s_waitcnt lgkmcnt(0)")
    srd_lo(36, 6)
    if kpre == 0: e("s_load_dword s31, s[26:27], 0\ns_barrier")
    stamp(13)

    pos, state = {}, {"n": 0, "done": -1}
    def arrived(i):
        if i > state["done"]:
            e(f"s_waitcnt vmcnt({state['n'] - 1 - i})"); state["done"] = i
    win = [W]
    def wof(name):
        if int(Wm) and name == "ML": return int(Wm)
        return int(Ww) if int(Ww) and name[:2] in ("WO", "ML") else win[0]
    far = []
    def gate(name):
        if name[0] in gfree: return -1
        w = wof(name)
        return far[-w] if len(far) >= w else -1
    def issue(name, text):
        arrived(gate(name))
        if name[0] not in gfree: far.append(state["n"])
        e(text); pos[name] = state["n"]; state["n"] += 1
    qg = [f"buffer_load_dwordx4 v[{QG}:{QG+3}], v4, s[32:35], s61 offen sc1", f"buffer_load_dwordx4 v[{QG+4}:{QG+7}], v4, s[32:35], s62 offen sc1"]
    mlg = f"buffer_load_dwordx4 v[{MG}:{MG+3}], v230, s[32:35], s3 offen sc1"
    def vop(i):
        t = f"buffer_load_dwordx4 v[{VR+4*i}:{VR+4*i+3}], v228, s[44:47], s54 offen offset:{2048*(i >> 4)} {nt}"
        t = f"s_xor_b32 s54, s99, {koff(min(i, 15))}\n" + t
        if i >= 15: t = "s_mov_b64 exec, s[22:23]\n" + t + "\ns_mov_b64 exec, -1"
        return (f"V{i}", t)
    wops = [(f"WO{m}", f"buffer_load_dwordx4 v[{WO+4*m}:{WO+4*m+3}], v11, s[40:43], s48 offen {wnt if wfl is None else wfl}\ns_add_u32 s48, s48, 7168") for m in range(4)]
    gops = [(f"GU{m}", f"global_load_dwordx4 v[{GU+4*m}:{GU+4*m+3}], v[{GA+2*m}:{GA+2*m+1}], off {wnt}") for m in range(4)]
    ops = [vop(i) for i in range(17)] + [("ML", mlg)]
    if wopos == "V": ops += wops
    if gupos == "V": ops += gops
    if wopos == "K": ops = wops + ops
    if gupos == "K": ops = gops + ops
    ops = ops[:qa] + [("G0", qg[0]), ("G1", qg[1])] + ops[qa:]
    if order:
        pool = {"V": [vop(i) for i in range(17)], "M": [("ML", mlg)], "W": list(wops), "U": list(gops), "G": [("G0", qg[0]), ("G1", qg[1])]}
        ops = []
        for c, n in re.findall(r"([A-Z])(\d*)", order):
            for _ in range(int(n) if n else len(pool[c])): ops.append(pool[c].pop(0))
        assert not any(pool[c] for c in "VMG") and bool(pool["U"]) == (gupos in ("B4", "B1"))
        gops, wlate = pool["U"], pool["W"]
    def next_op():
        if ops: issue(*ops.pop(0))
    spi = [0]
    def score_op():
        for _ in range(int(sp[spi[0]])):
            if sp[-1] == "w": next_op()
            else:
                w = win[0]; win[0] = 99; next_op(); win[0] = w
        spi[0] += 1

    w0 = int(w0) or W
    for i in range(16):
        if i == w0: arrived(0)
        win[0] = 99 if i < w0 else W
        issue(f"K{i}", f"s_xor_b32 s54, s98, {koff(i)}\nbuffer_load_dwordx4 v[{KR+4*i}:{KR+4*i+3}], v1, s[36:39], s54 offen {nt}")
        if i == kpre - 1: e("s_load_dword s31, s[26:27], 0\ns_barrier"); stamp(14)
        if i == w0 - 1:
            srd(32, 26, WS_SIZE); srd(40, 12, 4096*896); srd(44, 8, 67108864)
            ffn_scalars()
            masks(MK, 7, 8)
            e(f"""v_mov_b32 v246, 0
                  v_mov_b32 v244, 0xff
                  v_and_b32 v3, 3, v0
                  v_lshrrev_b32 v5, 5, v0
                  v_and_b32 v6, 31, v0
                  v_lshlrev_b32 v4, 11, v5
                  v_lshl_add_u32 v4, v6, 4, v4
                  s_lshl_b32 s61, s28, 13
                  s_lshl_b32 s62, s30, 9
                  s_add_u32 s61, s61, s62
                  s_add_u32 s61, s61, {QP}
                  s_add_u32 s62, s61, 4096
                  v_lshlrev_b32 v6, 3, v6
                  v_lshl_add_u32 v6, v5, 2, v6
                  s_lshl_b32 s56, s30, 8
                  v_add_u32 v6, s56, v6
                  v_xor_b32 v7, 64, v1
                  v_and_b32 v12, 15, v0
                  v_lshlrev_b32 v228, 9, v2
                  v_lshl_add_u32 v228, v12, 4, v228
                  s_and_b32 s57, s30, 1
                  s_lshr_b32 s60, s30, 1
                  s_lshl_b32 s56, s57, 8
                  s_add_u32 s99, s53, s56
                  s_lshl_b32 s56, s60, 11
                  s_add_u32 s99, s99, s56
                  v_lshlrev_b32 v229, 10, v5
                  v_and_b32 v13, 1, v2
                  v_lshl_add_u32 v229, v13, 8, v229
                  v_lshl_add_u32 v229, v12, 4, v229
                  s_lshl_b32 s53, s55, 11
                  s_lshl_b32 s56, s57, 9
                  s_add_u32 s53, s53, s56
                  s_add_u32 s53, s53, {OP}
                  s_lshl_b32 s56, s57, 10
                  v_lshl_add_u32 v238, v0, 4, s56
                  v_bfe_u32 v14, v0, 2, 1
                  v_lshl_add_u32 v239, v5, 1, v9
                  v_lshl_add_u32 v239, v14, 4, v239
                  v_lshl_add_u32 v239, v13, 5, v239
                  s_lshl_b32 s56, s30, 6
                  v_lshl_add_u32 v239, v239, 4, s56
                  s_lshl_b32 s56, s30, 2
                  v_lshl_add_u32 v240, v9, 4, s56
                  v_mov_b32 v243, s56
                  v_lshrrev_b32 v241, 3, v0
                  s_lshl_b32 s56, s60, 7
                  v_lshl_add_u32 v241, v241, 4, s56
                  v_lshlrev_b32 v242, 4, v9
                  v_lshl_add_u32 v14, v2, 1, v14
                  v_lshl_add_u32 v230, v14, 2, v3
                  v_lshlrev_b32 v230, 4, v230
                  v_lshlrev_b32 v231, 11, v14
                  v_lshl_add_u32 v231, v9, 6, v231
                  v_lshl_add_u32 v231, v3, 4, v231
                  s_lshl_b32 s3, s28, 9
                  s_add_u32 s3, s3, {ML}
                  v_lshlrev_b32 v232, 4, v13
                  v_lshl_add_u32 v232, v10, 5, v232
                  v_lshl_add_u32 v232, v9, 8, v232
                  s_lshl_b32 s56, s30, 9
                  v_add_u32 v232, s56, v232
                  v_lshl_add_u32 v11, v9, 5, v2
                  v_mul_u32_u24 v11, 896, v11
                  v_lshl_add_u32 v11, v10, 4, v11
                  s_lshl_b32 s48, s28, 9
                  s_lshl_b32 s56, s50, 7
                  s_add_u32 s48, s48, s56
                  s_lshl_b32 s56, s57, 6
                  s_add_u32 s48, s48, s56
                  s_lshl_b32 s56, s60, 2
                  s_add_u32 s48, s48, s56
                  s_mul_i32 s48, s48, 896
                  s_lshl_b32 s56, s51, 7
                  s_add_u32 s48, s48, s56
                  s_cmp_lt_u32 s29, 28
                  s_cselect_b32 s42, s42, 0
                  s_cselect_b32 s48, s48, 0
                  s_lshl_b32 s49, s51, 6
                  s_lshl_b32 s56, s30, 4
                  s_add_u32 s49, s49, s56
                  s_mul_i32 s63, s49, 3584
                  s_lshl_b32 s56, s100, 7
                  s_add_u32 s63, s63, s56
                  v_mul_u32_u24 v12, 3584, v2
                  v_lshl_add_u32 v12, v10, 4, v12
                  v_add_u32 v12, s63, v12
                  s_cmp_lt_u32 s52, 28
                  s_cselect_b32 s56, -1, 0
                  v_and_b32 v12, s56, v12
                  v_cmp_eq_u32 vcc, 0, v9
                  v_mov_b32 v13, s18
                  v_mov_b32 v14, s16
                  v_cndmask_b32 v13, v13, v14, vcc
                  v_mov_b32 v14, s19
                  v_mov_b32 v8, s17
                  v_cndmask_b32 v14, v14, v8, vcc
                  v_add_co_u32 v{GA}, vcc, v13, v12
                  v_addc_co_u32 v{GA+1}, vcc, 0, v14, vcc""")
            for m in range(1, 4):
                e(f"v_add_co_u32 v{GA+2*m}, vcc, 14336, v{GA+2*m-2}\nv_addc_co_u32 v{GA+2*m+1}, vcc, 0, v{GA+2*m-1}, vcc")
            e(f"""s_cmp_eq_u32 s60, 0
                  s_cselect_b64 s[22:23], -1, 0
                  v_lshl_add_u32 v233, v3, 2, v2
                  v_add_u32 v233, s49, v233
                  v_lshlrev_b32 v234, 2, v233
                  v_and_b32 v234, 0xff, v234
                  v_lshlrev_b32 v233, 1, v233
                  v_lshl_add_u32 v235, v2, 2, v3
                  v_add_u32 v235, s49, v235
                  v_lshlrev_b32 v235, 2, v235
                  v_and_b32 v13, 12, v0
                  v_cmp_eq_u32 vcc, 0, v13
                  v_mov_b32 v13, {OOB}
                  v_cndmask_b32 v235, v13, v235, vcc
                  v_lshrrev_b32 v236, 2, v0
                  v_lshlrev_b32 v236, 8, v236
                  v_lshl_add_u32 v236, v3, 4, v236
                  s_lshl_b32 s56, s30, 10
                  v_lshl_add_u32 v237, v0, 4, s56
                  s_mov_b32 s57, {CEXP}""")
        if i == max(W, w0) + 1:
            e("s_waitcnt lgkmcnt(0)")
            tags()
            e(f"""s_getreg_b32 s56, hwreg(HW_REG_XCC_ID, 0, 4)
                  s_and_b32 s63, s97, 0xf0
                  s_or_b32 s63, s63, s56
                  s_mov_b32 s58, {SPIN}""")
            qtag_reg(8, 2)
            e("v_cmp_eq_u32 vcc, 0, v3\nv_cndmask_b32 v8, 0, v8, vcc")
            qtag_reg(245, 3)
    stamp(1)
    while "G1" not in pos: next_op()
    win[0] = int(Wq) or W
    while gate(ops[0][0]) < pos["G1"]: next_op()
    arrived(pos["G1"])
    e("L_qpoll:")
    stamp(2)
    a = QG
    e(f"""v_bitop3_b32 v12, v{a}, v{a+1}, {T0} bitop3:0x7e
          v_bitop3_b32 v13, v{a+4}, v{a+5}, {T0} bitop3:0x7e
          v_bitop3_b32 v14, v{a+2}, v{a+6}, {T1} bitop3:0x7e
          v_bitop3_b32 v15, v{a+3}, v{a+7}, s63 bitop3:0x7e
          v_or3_b32 v12, v12, v13, v14
          v_and_b32 v13, 0xf0, v15
          v_or_b32 v12, v12, v13
          v_cmp_ne_u32_sdwa vcc, v12, v246 src0_sel:BYTE_0 src1_sel:DWORD
          s_cbranch_vccnz L_qretry
          L_qdone:
          v_and_b32 v15, 15, v15
          v_cmp_ne_u32 vcc, 0, v15""")
    extra.append("L_qretry:\ns_sub_u32 s58, s58, 1\ns_cbranch_scc1 L_qdone\n" + ("" if qsc else "s_and_b32 s56, s58, 3\ns_cbranch_scc0 L_qpub\nL_qback:\n") + "\n".join(qg) + "\ns_waitcnt vmcnt(0)\ns_branch L_qpoll")
    score_op()
    for r in range(8): e(f"v_and_b32 v{a+r}, 0xffffff00, v{a+r}")
    e("s_cmp_eq_u64 vcc, 0\ns_cselect_b32 s56, %d, 1" % (1 if force_global else 0))
    for r in range(4): e(f"v_add_f32 v{a+r}, v{a+r}, v{a+4+r}")
    e(f"""v_mov_b32 v12, s56
          v_permlane32_swap_b32 v{a}, v{a+2}
          v_permlane32_swap_b32 v{a+1}, v{a+3}
          ds_write_b32 v243, v12 offset:{FLAGS}
          v_add_f32 v{a}, v{a}, v{a+2}
          v_add_f32 v{a+1}, v{a+1}, v{a+3}
          v_cvt_pk_bf16_f32 v{a}, v{a}, v{a+1}
          ds_write_b32 v6, v{a} offset:{QS}
          s_waitcnt lgkmcnt(0)
          s_barrier
          ds_read_b128 v[{QB}:{QB+3}], v1 offset:{QS}
          ds_read_b128 v[{QB+4}:{QB+7}], v7 offset:{QS}
          ds_read_b128 v[12:15], v246 offset:{FLAGS}
          ds_read_u16 v233, v233 offset:{XR}""")
    score_op()
    e("s_waitcnt lgkmcnt(0)")
    stamp(3)
    for m in list(range(0, 16, 2)) + list(range(1, 16, 2)):
        k, q = KR + 4*m, QB + 4*(m & 1)
        e(f"v_mfma_f32_16x16x32_bf16 v[{k}:{k+3}], v[{k}:{k+3}], v[{q}:{q+3}], 0")
    read_mode(12)
    e("v_lshlrev_b32 v233, 16, v233")
    for par in range(2):
        pat = (0xf0f00f0f, 0x0f0ff0f0)[par]
        e(f"s_mov_b32 exec_lo, {pat}\ns_mov_b32 exec_hi, {pat}")
        for r in range(4):
            for p in range(8):
                a = KR + 4*(2*p + par)
                if r == 0: e(f"v_mov_b32_dpp v{SC+p}, v{a} quad_perm:[0,0,0,0] row_mask:0xf bank_mask:0xf")
                else: e(f"v_add_f32_dpp v{SC+p}, v{a+r}, v{SC+p} quad_perm:[{r},{r},{r},{r}] row_mask:0xf bank_mask:0xf")
        e("s_mov_b64 exec, -1")
        if par == 0: score_op()
    Z = KR
    for u in range(4): e(f"v_permlane16_swap_b32 v{SC+2*u}, v{SC+2*u+1}")
    for u in range(4): e(f"v_add_f32_dpp v{Z+u}, v{SC+2*u+1}, v{SC+2*u} row_half_mirror row_mask:0xf bank_mask:0xf")
    for u in (0, 2): e(f"v_cvt_pk_bf16_f32 v{Z+u+1}, v{Z+u}, v{Z+u+1}")
    for u in (0, 2): e(f"v_lshlrev_b32 v{Z+u}, 16, v{Z+u+1}\nv_and_b32 v{Z+u+1}, 0xffff0000, v{Z+u+1}")
    e(f"v_max3_f32 v4, v{Z}, v{Z+1}, v{Z+2}\nv_max_f32 v4, v4, v{Z+3}")
    dpp_red("v_max_f32", [4], ["row_half_mirror"])
    xrow("v_max_f32", [4], [5])
    score_op()
    for u in range(4): e(f"v_sub_f32 v{Z+u}, v{Z+u}, v4")
    for u in range(4): e(f"v_mul_f32 v{Z+u}, s57, v{Z+u}")
    for u in range(4): e(f"v_exp_f32 v{Z+u}, v{Z+u}")
    e(f"v_add_f32 v5, v{Z}, v{Z+1}\nv_add_f32 v5, v5, v{Z+2}\nv_add_f32 v5, v5, v{Z+3}")
    dpp_red("v_add_f32", [5], ["row_half_mirror"])
    xrow("v_add_f32", [5], [6])
    e(f"""s_mov_b32 exec_lo, 0x11111111
          s_mov_b32 exec_hi, 0x11111111
          ds_write_b128 v239, v[{Z}:{Z+3}] offset:{EB}
          ds_write_b32 v240, v4 offset:{MLW}
          ds_write_b32 v240, v5 offset:{MLW+32}
          s_mov_b64 exec, -1
          s_waitcnt lgkmcnt(0)""")
    stamp(4)
    e(f"s_barrier\nds_read_b128 v[12:15], v242 offset:{MLW}")
    for mm in range(4): e(f"ds_read_b128 v[{PE+4*mm}:{PE+4*mm+3}], v241 offset:{EB+256*mm}")
    e(f"ds_read_b32 v{PE+16}, v241 offset:{EB+7*128+12}")
    score_op()
    e("s_waitcnt lgkmcnt(5)\nv_max3_f32 v4, v12, v13, v14\nv_max_f32 v4, v4, v15\nv_cmp_gt_u32 vcc, 32, v0")
    e("v_cndmask_b32 v12, v13, v12, vcc\nv_cndmask_b32 v13, v15, v14, vcc\nv_cndmask_b32 v12, v13, v12, s[22:23]")
    for w in range(2): e(f"v_sub_f32 v{12+w}, v{12+w}, v4")
    for w in range(2): e(f"v_mul_f32 v{12+w}, s57, v{12+w}")
    for w in range(2): e(f"v_exp_f32 v{12+w}, v{12+w}")
    e("s_waitcnt lgkmcnt(0)")
    for i in range(0, 16, 2): e(f"v_pk_mul_f32 v[{PE+i}:{PE+i+1}], v[{PE+i}:{PE+i+1}], v[12:13] op_sel:[0,0] op_sel_hi:[1,0]")
    e(f"v_mul_f32 v{PE+16}, v{PE+16}, v13")
    for i in range(17): e(f"v_cvt_pk_bf16_f32 v{PE+i}, v{PE+i}, v{PE+i}")
    stamp(5)
    def prep(i):
        p = PE + (4*(i & 3) + (i >> 2) if i < 16 else 16)
        for j in range(4): e(f"v_and_b32 v{AF+4*(i&3)+j}, v{p}, v{MK+j}")
    def pv(i):
        arrived(pos[f"V{i}"])
        a = AF + 4*(i & 3)
        e(f"v_mfma_f32_16x16x32_bf16 v[12:15], v[{a}:{a+3}], v[{VR+4*i}:{VR+4*i+3}], " + ("0" if i == 0 else "v[12:15]"))
    prep(0)
    if int(W2):
        win[0] = int(W2)
    since = 99
    for i in range(15):
        while not int(W2) and ops and (since >= 5 or f"V{i}" not in pos or pos[f"V{i}"] > state["done"]):
            next_op(); since = 0
        while int(W2) and ops and gate(ops[0][0]) <= max(state["done"], pos[f"V{i}"]): next_op()
        prep(i + 1); pv(i); since += 1
        if i == int(ksplit):
            sec("K2", "L_K2"); e("s_nop 4")
            if pfl:
                assert "WO0" not in pos
                e("s_cmp_ge_u32 s29, 28\ns_cbranch_scc1 L_pfa\nL_pfb:")
            if sfx: e(f"v_lshlrev_b32 v249, {fsh}, v0\nv_mov_b32 v248, s31\ns_lshl_b32 s98, s28, 13\ns_and_b32 s56, s30, 1\ns_lshl_b32 s56, s56, 5\ns_add_u32 s98, s98, s56\ns_add_u32 s98, s98, s29\ns_add_u32 s98, s98, {FL}")
    for name, t in ops:
        e(t); pos[name] = state["n"]; state["n"] += 1
    ops.clear()
    e(f"s_cmp_eq_u32 s60, 0\ns_cbranch_scc1 L_keep\nds_write_b128 v238, v[12:15] offset:{PR}\ns_waitcnt lgkmcnt(0)\ns_barrier\ns_branch L_joined\nL_keep:")
    saved = dict(state)
    prep(16); pv(15)
    e(f"s_barrier\nds_read_b128 v[4:7], v238 offset:{PR}")
    pv(16)
    e("s_waitcnt lgkmcnt(0)")
    pk_add4(12, 12, 4)
    e("v_bfi_b32 v12, v244, v245, v12")
    if opsc: e("buffer_store_dwordx4 v[12:15], v229, s[32:35], s53 offen sc1")
    else: mode_store(["buffer_store_dwordx4 v[12:15], v229, s[32:35], s53 offen"])
    if sfx: e(f"s_mov_b64 exec, {(1 << sfx) - 1 if sfx < 64 else -1}\nbuffer_store_byte v248, v249, s[32:35], s98 offen\ns_mov_b64 exec, -1")
    e("L_joined:")
    state.update(saved)
    stamp(6)
    e(f"""s_cmp_ge_u32 s29, {29 if int(wb) & 1 else 28}
          s_cbranch_scc1 {"L_dirty" if int(dirty) else "L_clean" if clean & 1 else "L_end" if dnpf is None else "L_pf"}
          s_lshl_b32 s60, s28, 16
          s_and_b32 s56, s50, 3
          s_lshl_b32 s56, s56, 9
          s_add_u32 s60, s60, s56
          s_lshl_b32 s56, s30, 7
          s_add_u32 s60, s60, s56
          s_add_u32 s60, s60, {OP}
          s_add_u32 s61, s60, 16384
          s_add_u32 s62, s60, 32768
          s_add_u32 s63, s60, 49152
          s_mov_b32 s58, {SPIN}""")
    if not sfx: e("s_barrier"); stamp(7)
    opg = [(f"buffer_load_dwordx4 v[{16+4*i}:{19+4*i}], v231, s[32:35], s{60+i} offen sc1", 16 + 4*i) for i in range(4)]
    for name, t in wlate:
        e(t); pos[name] = state["n"]; state["n"] += 1
    km, opat = state["n"] - 1 - pos["ML"], int(opat)
    def left(k, x=0):
        if k < len(wlate): e(f"s_waitcnt vmcnt({k+x})"); return
        k += x
        l1, l2 = lab("lf"), lab("lf")
        e(f"s_cmp_gt_u32 s30, 1\ns_cbranch_scc1 {l1}\ns_waitcnt vmcnt({k+1+(sfx > 0)})\ns_branch {l2}\n{l1}:\ns_waitcnt vmcnt({k})\n{l2}:")
    chk_text = lambda: "\n".join((f"v_bitop3_b32 v247, v{MG}, v{MG+1}, {T0} bitop3:0x7e", f"v_bitop3_b32 v247, v{MG+2}, {T1}, v247 bitop3:0xbe",
        f"v_bitop3_b32 v247, v{MG+3}, {T2}, v247 bitop3:0xbe", "v_cmp_ne_u32_sdwa s[4:5], v247, v246 src0_sel:BYTE_0 src1_sel:DWORD", "s_cmp_lg_u64 s[4:5], 0"))
    again = "L_mlretry:\ns_sub_u32 s58, s58, 1\ns_cbranch_scc1 L_mlgo\n" + mlg + "\ns_waitcnt vmcnt(0)\n" + chk_text() + "\ns_cbranch_scc1 L_mlretry\nL_mlgo:\n"
    if sfx:
        left(km)
        e(chk_text() + "\ns_cbranch_scc1 L_mlretry\nL_mldone:")
        extra2 = [again + "s_branch L_mldone"]
        opat = km
    elif mlo == "B":
        left(km)
        e(chk_text() + "\ns_cbranch_scc1 L_mlretry")
        if opat < km: left(opat)
        if int(dbg): stamp(1)
        e("L_opgo:")
        for t, b in opg: e(t)
        extra2 = [again + "s_branch L_opgo"]
        opat = km
    elif mlo == "A":
        e("s_mov_b32 s101, 0"); left(km)
        e(chk_text() + "\ns_cbranch_scc1 L_mlretry\nL_mldone:")
        extra2 = [again + "s_mov_b32 s101, 1\n" + "\n".join(t for t, b in opg) + "\ns_branch L_mldone"]
        assert opat < km
    else:
        if opat >= km:
            if opat < 20: left(opat)
            for t, b in opg: e(t)
            if opat > km: left(km, 4)
        else:
            e("s_mov_b32 s101, 0"); left(km)
        e("L_mlchk:")
        check(MG, 4, 247)
        e("s_cmp_lg_u64 s[4:5], 0\ns_cbranch_scc1 L_mlretry\nL_mldone:")
        extra2 = ["L_mlretry:\ns_sub_u32 s58, s58, 1\ns_cbranch_scc1 L_mldone\ns_mov_b32 s101, 1\n" + mlg + "\n" + "\n".join(t for t, b in opg) + "\ns_waitcnt vmcnt(4)\ns_branch L_mlchk"]
    e(f"""s_cmp_ge_u32 s50, 2
          s_cselect_b64 vcc, -1, 0
          v_cndmask_b32 v4, v{MG}, v{MG+2}, vcc
          v_cndmask_b32 v5, v{MG+1}, v{MG+3}, vcc
          v_and_b32 v4, 0xffff0000, v4
          v_and_b32 v5, 0xffffff00, v5
          v_mov_b32 v6, v4""")
    q8 = ["quad_perm:[1,0,3,2]", "quad_perm:[2,3,0,1]", "row_half_mirror"]
    dpp_red("v_max_f32", [6], q8); xrow("v_max_f32", [6], [7])
    e("v_sub_f32 v4, v4, v6\nv_mul_f32 v4, s57, v4\nv_exp_f32 v4, v4\nv_mul_f32 v6, v4, v5")
    dpp_red("v_add_f32", [6], q8); xrow("v_add_f32", [6], [7])
    e("v_rcp_f32 v6, v6\nv_mul_f32 v4, v4, v6")
    for i in range(4): e(f"v_mov_b32_dpp v{32+i}, v4 quad_perm:[{i},{i},{i},{i}] row_mask:0xf bank_mask:0xf")
    stamp(12)
    if opat < km:
        e("s_cmp_lg_u32 s101, 0\ns_cbranch_scc1 L_opsent")
        left(opat)
        if int(dbg): stamp(1)
        for t, b in opg: e(t)
        e("L_opsent:")
    if int(dbg): e("s_waitcnt vmcnt(4)"); stamp(3); e("s_waitcnt vmcnt(0)"); stamp(5)
    def op_acc(i, b):
        w, h = 32 + (i & 2), i & 1
        e(f"v_and_b32 v44, 0xffffff00, v{b}")
        if i == 0: e(f"v_pk_mul_f32 v[38:39], v[{b+2}:{b+3}], v[{w}:{w+1}] op_sel:[0,0] op_sel_hi:[1,0]\nv_mul_f32 v37, v{b+1}, v32\nv_mul_f32 v36, v44, v32")
        else: e(f"v_pk_fma_f32 v[38:39], v[{b+2}:{b+3}], v[{w}:{w+1}], v[38:39] op_sel:[0,{h},0] op_sel_hi:[1,{h},1]\nv_fmac_f32 v37, v{b+1}, v{32+i}\nv_fmac_f32 v36, v44, v{32+i}")
    if sfx:
        e("s_barrier"); stamp(7)
        for t, b in opg: e(t)
        if "y" in gi: e("s_barrier")
        for (name, t), c in zip(gops, gi):
            if c == "y": e(t)
        if dnpos == "Y" and zb: e("s_barrier")
        poll(opg, 4, issued=True, behind=gi.count("y"), quad=245, spec=op_acc, pre=("s_memrealtime s[80:81]\n" if stamps else "") + ("" if "y" in gi else "s_barrier\n") + "\n".join(t for (name, t), c in zip(gops, gi) if c == "0"))
        assert gupos == "B1" and ospec and not int(wb) & 1
    elif ospec:
        poll(opg, 4, issued=True, quad=245, spec=op_acc, pre=("s_memrealtime s[80:81]\n" if stamps else "") + "s_barrier\n" + "\n".join(t for (name, t), c in zip(gops, gi) if c == "0"))
        assert gupos == "B1" and not int(wb) & 1
    else:
        poll(opg, 4, issued=True, quad=245)
        stamp(8)
    if int(dbg) or int(cnt) == 2: e(f"s_sub_u32 s68, {SPIN}, s58")
    def gu_at(k):
        if gupos == "B1":
            for (name, t), c in zip(gops, gi):
                if c == str(k): e(t)
    if gupos == "B1" and not ospec: e("s_barrier")
    if int(wb) & 1:
        e("s_cmp_eq_u32 s29, 28\ns_cbranch_scc1 L_wb")
        extra2.append("L_wb:\ns_cmp_lg_u32 s30, 0\ns_cbranch_scc1 L_end\nbuffer_wbl2 sc1\ns_waitcnt vmcnt(0)\n" + ("s_memrealtime s[82:83]\n" if stamps else "") + "s_branch L_end")
    if not ospec: gu_at(0)
    for i in range(0 if ospec else 4):
        w, s = 32 + (i & 2), i & 1
        for p in (0, 2):
            if i == 0: e(f"v_pk_mul_f32 v[{36+p}:{37+p}], v[{16+p}:{17+p}], v[{w}:{w+1}] op_sel:[0,0] op_sel_hi:[1,0]")
            else: e(f"v_pk_fma_f32 v[{36+p}:{37+p}], v[{16+4*i+p}:{17+4*i+p}], v[{w}:{w+1}], v[{36+p}:{37+p}] op_sel:[0,{s},0] op_sel_hi:[1,{s},1]")
    gu_at(1)
    trows(36)
    gu_at(2)
    e("""v_add_f32_dpp v37, v36, v36 row_shr:4 row_mask:0xf bank_mask:0xa
         v_add_f32_dpp v37, v36, v36 row_shl:4 row_mask:0xf bank_mask:0x5
         v_cvt_pk_bf16_f32 v37, v37, v37""")
    gu_at(3)
    def gemv4(src, wbase, bank):
        for m in range(5):
            if m < 4:
                for j in range(4): e(f"v_and_b32_dpp v{AF+4*m+j}, v{src}, v{MK+j} quad_perm:[{m},{m},{m},{m}] row_mask:0xf bank_mask:{bank}")
            if m >= 1:
                p = m - 1
                e(f"v_mfma_f32_16x16x32_bf16 v[40:43], v[{AF+4*p}:{AF+4*p+3}], v[{wbase+4*p}:{wbase+4*p+3}], " + ("0" if p == 0 else "v[40:43]"))
    gemv4(37, WO, "0xf")
    gu_at(4)
    e(f"""s_mov_b32 exec_lo, 0x00ff00ff
          s_mov_b32 exec_hi, 0xff00ff00
          ds_write_b128 v232, v[40:43] offset:{RED}
          s_mov_b64 exec, -1
          s_waitcnt lgkmcnt(0)""")
    stamp(9)
    e(f"""s_barrier
          s_cmp_ge_u32 s52, 28
          s_cbranch_scc1 L_end
          v_mov_b32 v16, 0x3f803f80
          s_mul_i32 s60, s51, {BS}
          s_lshl_b32 s56, s30, 6
          s_add_u32 s60, s60, s56
          s_add_u32 s60, s60, {CP}""")
    if home == "v":
        e(f"""v_and_b32 v17, 0x100, v{MG}
              v_cmp_ne_u32 vcc, 0, v17
              s_bcnt1_i32_b64 s56, vcc
              s_cmp_lt_u32 s56, {4 if int(pst) == 2 else 26}
              s_cselect_b32 s56, 8192, 0""")
    else: e(f"s_lshr_b32 s56, s28, 2\ns_xor_b32 s56, s56, {home}\ns_lshl_b32 s56, s56, 13")
    e(f"s_add_u32 s60, s60, s56\nv_mov_b32 v17, s56\nds_write_b32 v246, v17 offset:{FLAGS+16}")
    e(f"""s_add_u32 s61, s60, 4096
          s_lshl_b32 s62, s52, 11
          s_add_u32 s62, s62, {HH}
          s_mov_b32 s63, 0xffff0000""")
    for m in range(4):
        for j in range(4): e(f"v_and_b32 v{AF+4*m+j}, v16, v{MK+j}")
    if gupos == "B4":
        for name, t in gops: e(t)
    for r in range(4): e(f"v_mov_b32 v{20+r}, {'v245' if r == 0 else 0}")
    e("v_lshlrev_b32 v1, 4, v0")
    poll_init(2, 4)
    if cack: e("s_barrier")
    assert ct
    if ct:
        for r in range(4): e(f"v_mov_b32 v{16+r}, 0")
        poll_sum(lambda i, b: f"buffer_load_dwordx4 v[{b}:{b+3}], v236, s[32:35], s{60+i} offen {cld}", 16, 48, 245, ct)
        stamp(10)
        if dnpos == "C": e("s_barrier")
        if dnpos == "F": e(f"ds_write_b32 v246, v244 offset:{FLAGS+32}")
    else:
        poll([(f"buffer_load_dwordx4 v[{16+4*i}:{19+4*i}], v236, s[32:35], s{60+i} offen sc1", 16 + 4*i) for i in range(2)], 4, quad=245)
        stamp(10)
        pk_add4(16, 16, 20)
    trows(16)
    dpp_red("v_add_f32", [16], ["row_ror:4", "row_ror:8"])
    bfround(16)
    e("v_add_f32 v16, v16, v233\nv_cvt_pk_bf16_f32 v16, v16, v16\nv_and_or_b32 v17, v16, s63, v8")
    if hlate < 2: mode_store(["buffer_store_dword v17, v235, s[32:35], s62 offen"])
    if hlate < 1: e(f"ds_write_b32 v234, v17 offset:{HL}")
    gemv4(16, GU, "0x3")
    if hlate == 2: mode_store(["buffer_store_dword v17, v235, s[32:35], s62 offen"])
    if hlate >= 1: e(f"ds_write_b32 v234, v17 offset:{HL}")
    e(f"ds_write_b128 v237, v[40:43] offset:{RED2}")
    if hlate == 3: mode_store(["buffer_store_dword v17, v235, s[32:35], s62 offen"])
    e("s_waitcnt lgkmcnt(0)")
    stamp(11)
    e(f"s_barrier\ns_cmp_lg_u32 s30, {sw}\ns_cbranch_scc1 L_end")
    L48 = (1 << 48) - 1
    r16 = ["row_ror:8", "row_ror:4", "row_ror:2", "row_ror:1"]
    poll_init(2, 4, {1: L48})
    assert not clean & 3
    poll([("buffer_load_dwordx4 v[16:19], v1, s[32:35], s62 offen sc1", 16), ("buffer_load_dwordx4 v[20:23], v1, s[32:35], s62 offen offset:1024 sc1", 20)], 4, quad=245)
    e("""v_pk_add_f32 v[28:29], v[18:19], v[22:23]
         v_pk_mul_f32 v[30:31], v[18:19], v[18:19]
         v_pk_add_f32 v[28:29], v[28:29], v[16:17]
         v_pk_fma_f32 v[30:31], v[22:23], v[22:23], v[30:31]
         v_pk_add_f32 v[28:29], v[28:29], v[20:21]
         v_pk_fma_f32 v[30:31], v[16:17], v[16:17], v[30:31]
         v_add_f32 v40, v28, v29
         v_pk_fma_f32 v[30:31], v[20:21], v[20:21], v[30:31]
         v_add_f32 v41, v30, v31
         v_permlane32_swap_b32 v40, v41
         v_add_f32 v40, v40, v41""")
    dpp_red("v_add_f32", [40], r16)
    e(f"""v_add_f32_dpp v40, v40, v40 row_bcast:15 row_mask:0xa bank_mask:0xf
          v_mul_f32 v40, {f2u(1/448)}, v40
          v_readlane_b32 s56, v40, 16
          s_brev_b64 exec, 1
          v_fma_f32 v41, -s56, s56, v40
          v_max_f32 v41, 0, v41
          v_cvt_pk_bf16_f32 v41, s56, v41
          v_lshlrev_b32 v40, 16, v41
          v_and_b32 v41, 0xffff0000, v41""")
    e(f"v_add_f32 v41, {f2u(1e-5)}, v41"); bfround(41)
    e("v_sqrt_f32 v41, v41"); bfround(41)
    e("v_rcp_f32 v41, v41")
    e(f"ds_write_b64 v246, v[40:41] offset:{FLAGS+24}\ns_waitcnt lgkmcnt(0)")
    stamp(13)
    if not sfl: e("s_barrier")
    if sfl: pass
    elif int(wb) & 6 == 6: e("s_cmp_lt_u32 s28, 4\ns_cbranch_scc1 L_nowb" if fin == "t" else f"s_cmp_lg_u32 s28, {fin}\ns_cbranch_scc1 L_nowb")
    if int(wb) & 2 and not sfl: e(f"s_cmp_lg_u32 s29, {wbj}\ns_cbranch_scc1 L_nowb\nbuffer_wbl2 sc1\ns_waitcnt vmcnt(0)"); stamp(9); e("L_nowb:")
    if clean & 2:
        e("""s_cmp_lg_u32 s51, 0
             s_cbranch_scc1 L_end
             buffer_store_dwordx4 v[16:19], v1, s[32:35], s62 offen sc1
             s_mov_b32 exec_hi, 0xffff
             buffer_store_dwordx4 v[20:23], v1, s[32:35], s62 offen offset:1024 sc1""")
    if epo[0] == "C" and not sfl: e("s_cmp_lg_u32 s2, 0\ns_cbranch_scc1 L_end\ns_mov_b64 exec, 1\nv_mov_b32 v16, s31\nbuffer_store_dword v16, v246, s[32:35], 0 offen " + epo[1:])
    e("L_end:")
    finish()
    sec("K0")
    for t in extra2: e(t)
    if not qsc:
        sec("Q3x")
        e(f"""L_qpub:
              v_lshlrev_b32 v204, 4, v0
              s_mov_b64 exec, 0xffff
              ds_read_b128 v[200:203], v204 offset:{QC}
              {ctm.replace("s48", "s54").replace("s49", "s56")}
              s_lshl_b32 s54, s54, 11
              s_lshl_b32 s56, s56, 8
              s_add_u32 s56, s56, s54
              s_lshl_b32 s54, s28, 13
              s_add_u32 s56, s56, s54
              s_add_u32 s56, s56, {QP}
              s_waitcnt lgkmcnt(0)
              v_bitop3_b32 v205, v200, v201, {T0} bitop3:0x7e
              v_bitop3_b32 v205, v202, {T1}, v205 bitop3:0xbe
              v_bitop3_b32 v205, v203, s63, v205 bitop3:0xbe
              v_cmp_eq_u32_sdwa vcc, v205, v246 src0_sel:BYTE_0 src1_sel:DWORD
              s_mov_b64 exec, vcc
              buffer_store_dwordx4 v[200:203], v204, s[32:35], s56 offen sc1
              s_mov_b64 exec, -1
              s_branch L_qback""")
    if dnpf is not None:
        sec("Q3x")
        def slab(d, none):
            e(f"""s_sub_u32 s50, s29, 28
              s_and_b32 s56, s52, 7
              s_lshl_b32 s{d}, s50, 3
              s_add_u32 s{d}, s{d}, s56
              s_cmp_ge_u32 s{d}, 28
              s_cbranch_scc1 {none}
              s_mul_i32 s{d}, s56, 3
              s_min_u32 s56, s56, 4
              s_add_u32 s{d}, s{d}, s56
              s_add_u32 s{d}, s{d}, s50
              s_mul_i32 s{d}, s{d}, 57344""")
        if pfl:
            e("L_pfa:"); slab(48, "L_pfb")
            e(f"""s_mul_i32 s56, s30, {128*pfl}
              s_add_u32 s48, s48, s56
              v_lshrrev_b32 v11, 2, v0
              v_min_u32 v11, {pfl-1}, v11
              v_lshlrev_b32 v11, 7, v11""")
            srd(40, 20, 1792*896)
            e("s_branch L_pfb")
        e("L_pf:"); slab(60, "L_end")
        e(f"""s_mul_i32 s56, s30, 7168
              s_add_u32 s61, s60, s56
              s_add_u32 s60, s61, 28672
              s_add_u32 s61, s61, {512*pfl}
              v_lshlrev_b32 v1, 7, v0""")
        srd(44, 20, 1792*896)
        if int(dnpf):
            e(f"""s_cmp_lg_u32 s30, 0
              s_cbranch_scc1 L_pfgo
              v_and_b32 v2, 31, v0
              v_lshlrev_b32 v2, 11, v2
              v_lshrrev_b32 v3, 5, v0
              v_lshl_add_u32 v2, v3, 9, v2
              v_mov_b32 v6, s31
              s_lshl_b32 s62, s28, 16
              s_add_u32 s62, s62, {OP}
              s_mov_b32 s58, 64
              L_pfpoll:
              s_sub_u32 s58, s58, 1
              s_cbranch_scc1 L_pfgo
              buffer_load_dword v3, v2, s[32:35], s62 offen sc1
              s_waitcnt vmcnt(0)
              v_cmp_eq_u32_sdwa vcc, v3, v6 src0_sel:BYTE_0 src1_sel:BYTE_0
              s_bcnt1_i32_b64 s56, vcc
              s_cmp_lt_u32 s56, {int(dnpf)}
              s_cbranch_scc1 L_pfpoll
              L_pfgo:""")
        e("s_barrier"); stamp(7)
        m2 = (1 << (56 - 4*pfl)) - 1
        if m2: e(f"s_mov_b32 exec_lo, {m2 & 0xffffffff}\ns_mov_b32 exec_hi, {m2 >> 32}\nbuffer_load_dword v5, v1, s[44:47], s61 offen")
        e("s_mov_b32 exec_lo, -1\ns_mov_b32 exec_hi, 0xffffff\nbuffer_load_dword v4, v1, s[44:47], s60 offen\ns_waitcnt vmcnt(0)")
        stamp(8)
        e("s_branch L_end")
    if clean & 1:
        sec("Q3x")
        e(f"""L_clean:
              v_lshlrev_b32 v1, 4, v0
              v_mov_b32 v12, v245
              s_lshl_b32 s60, s28, 16
              s_and_b32 s56, s29, 3
              s_lshl_b32 s56, s56, 14
              s_add_u32 s60, s60, s56
              s_lshl_b32 s56, s30, 12
              s_add_u32 s60, s60, s56
              s_add_u32 s60, s60, {OP}
              s_cmp_lg_u32 s30, 0
              s_cbranch_scc1 L_clst
              v_lshlrev_b32 v2, 8, v0
              s_lshl_b32 s62, s28, 11
              s_add_u32 s62, s62, {HH}
              s_mov_b32 s58, {SPIN}
              s_mov_b64 exec, 0x7f
              L_clpoll:
              s_sub_u32 s58, s58, 1
              s_cbranch_scc1 L_clgo
              buffer_load_dwordx4 v[16:19], v2, s[32:35], s62 offen sc1
              s_waitcnt vmcnt(0)""")
        check(16, 4, 247)
        e(f"""s_cmp_lg_u64 s[4:5], 0
              s_cbranch_scc1 L_clpoll
              L_clgo:
              s_mov_b64 exec, -1
              s_cmp_lg_u32 s29, 28
              s_cbranch_scc1 L_clst
              buffer_store_dwordx4 v[{MG}:{MG+3}], v230, s[32:35], s3 offen sc1
              L_clst:
              s_barrier""")
        for i in range(4): e(f"buffer_store_dwordx4 v[12:15], v1, s[32:35], s60 offen offset:{1024*i} sc1")
        e("s_branch L_end")
    if int(dirty):
        sec("Q3x")
        e(f"""L_dirty:
              s_mov_b32 s34, 0x4000000
              s_lshl_b32 s56, s55, 2
              s_add_u32 s56, s56, s30
              s_mul_i32 s56, s56, {abs(int(dirty))*1024}
              s_add_u32 s56, s56, 0x400000
              s_mov_b32 s57, {abs(int(dirty))}
              v_lshlrev_b32 v1, 4, v0
              L_dloop:
              buffer_store_dwordx4 v[12:15], v1, s[32:35], s56 offen {"sc1" if int(dirty) < 0 else ""}
              s_add_u32 s56, s56, 1024
              s_sub_u32 s57, s57, 1
              s_cmp_lg_u32 s57, 0
              s_cbranch_scc1 L_dloop
              s_branch L_end""")

    WQ, F, XA, MK, DN = 16, 80, 96, 112, 128
    sec("A")
    e(f"""s_setprio 3
          v_lshlrev_b32 v1, 4, v0
          v_lshrrev_b32 v2, 3, v0
          v_and_b32 v3, 7, v0
          v_mul_u32_u24 v4, {14*8192}, v2
          v_lshl_add_u32 v4, v3, 4, v4
          {ctm}
          s_mul_i32 s54, s48, {112*8192}
          s_lshl_b32 s56, s28, 10
          s_add_u32 s54, s54, s56
          s_lshl_b32 s56, s49, 7
          s_add_u32 s54, s54, s56""")
    if not qsc: e(f"v_mov_b32 v6, 0\nv_mov_b32 v7, 1\nds_write_b64 v1, v[6:7] offset:{QC}")
    srd_hi(40, 896); srd_hi(36, 448*8192)
    stamp(15)
    e("s_waitcnt lgkmcnt(0)")
    srd_lo(40, 4)
    e("buffer_load_dwordx4 v[8:11], v1, s[40:43], 0 offen")
    srd_lo(36, 10)
    for i in range(14):
        e(f"buffer_load_dwordx4 v[{WQ+4*i}:{WQ+4*i+3}], v4, s[36:39], s54 offen {wnt if qnt is None else qnt}")
        if i < 13: e("s_add_u32 s54, s54, 8192")
    e("s_load_dword s31, s[26:27], 0\ns_barrier")
    sec("Q1", "L_Q1")
    tlb = int(tlb)
    if tlb:
        e(f"""s_lshl_b32 s54, s28, 23
              s_add_u32 s54, s54, 6291456
              s_add_u32 s60, s8, s54
              s_addc_u32 s61, s9, 0
              s_mul_i32 s54, s28, {512*896}
              s_add_u32 s62, s12, s54
              s_addc_u32 s63, s13, 0
              s_add_u32 s56, s62, {512*896-128}
              s_addc_u32 s57, s63, 0
              v_mov_b32 v12, s60
              v_mov_b32 v13, s61""")
        for ln, r in enumerate((62, 56, 16, 18, 20, 22, 26)):
            e(f"v_writelane_b32 v12, s{r}, {ln+1}\nv_writelane_b32 v13, s{r+1}, {ln+1}")
        touch = f"s_mov_b64 exec, {tlm}\nglobal_load_dword v250, v[12:13], off\ns_mov_b64 exec, -1"
        if tlb == 1: e(touch)
    srd(32, 26, WS_SIZE); srd(40, 22, 896); srd(44, 20, 1792*896)
    if int(qpre):
        e(f"""s_lshl_b32 s54, s28, 13
              s_add_u32 s54, s54, {QP}
              s_lshl_b32 s56, s48, 11
              s_add_u32 s56, s56, s54
              s_lshl_b32 s61, s49, 8
              s_add_u32 s56, s56, s61
              v_lshlrev_b32 v12, 7, v0
              s_mov_b64 exec, 3
              buffer_load_dword v250, v12, s[32:35], s56 offen sc1
              s_mov_b64 exec, -1""")
    ffn_scalars()
    masks(MK, 72, 73)
    e("v_mov_b32 v246, 0\nv_mov_b32 v245, 0xff\ns_waitcnt vmcnt(%d)" % (14 + (tlb == 1) + int(qpre)))
    if tlb == 2: e(touch)
    tlb = (tlb > 0) + int(qpre)
    skew_store = f"s_lshl_b32 s56, s2, 2\ns_add_u32 s56, s56, {STAMP}\nv_mov_b32 v13, s64\nbuffer_store_dword v13, v246, s[32:35], s56 offen sc1"
    stamp(1)
    e(f"ds_write_b128 v1, v[8:11] offset:{XR}")
    for i in range(4): e(f"v_lshlrev_b32 v{F+2*i}, 16, v{8+i}\nv_and_b32 v{F+2*i+1}, 0xffff0000, v{8+i}")
    e(f"v_add_f32 v72, v{F}, v{F+1}")
    for i in range(2, 8): e(f"v_add_f32 v72, v72, v{F+i}")
    r16 = ["row_ror:8", "row_ror:4", "row_ror:2", "row_ror:1"]
    dpp_red("v_add_f32", [72], r16)
    xrow("v_add_f32", [72], [73])
    e(f"v_mul_f32 v72, {f2u(1/448)}, v72\nv_mov_b32 v73, 0")
    for i in range(8): e(f"v_sub_f32 v74, v{F+i}, v72\nv_fmac_f32 v73, v74, v74")
    e("v_cmp_gt_u32 vcc, 56, v0\nv_cndmask_b32 v73, 0, v73, vcc")
    dpp_red("v_add_f32", [73], r16)
    xrow("v_add_f32", [73], [74])
    e(f"v_mul_f32 v73, {f2u(1/448)}, v73")
    bfround(72); bfround(73)
    e(f"v_add_f32 v73, {f2u(1e-5)}, v73"); bfround(73)
    e("v_sqrt_f32 v73, v73"); bfround(73)
    e("v_rcp_f32 v74, v73")
    for i in range(8): e(f"v_sub_f32 v{F+i}, v{F+i}, v72")
    for i in range(0, 8, 2): e(f"v_cvt_pk_bf16_f32 v{F+i+1}, v{F+i}, v{F+i+1}")
    for i in range(0, 8, 2): e(f"v_lshlrev_b32 v{F+i}, 16, v{F+i+1}\nv_and_b32 v{F+i+1}, 0xffff0000, v{F+i+1}")
    for i in range(8): e(f"v_mul_f32 v{F+8+i}, v{F+i}, v74")
    for i in range(8): e(f"v_fma_f32 v{F+i}, -v{F+8+i}, v73, v{F+i}")
    for i in range(8): e(f"v_fmac_f32 v{F+8+i}, v{F+i}, v74")
    for i in range(8): e(f"v_cvt_pk_bf16_f32 v{F+i}, v{F+8+i}, v{F+8+i}")
    e(f"""v_lshlrev_b32 v72, 5, v0
          ds_write_b128 v72, v[{F}:{F+3}] offset:{XN}
          ds_write_b128 v72, v[{F+4}:{F+7}] offset:{XN+16}
          v_mul_u32_u24 v73, 56, v2
          s_mul_i32 s56, s48, 448
          v_add_u32 v73, s56, v73
          s_waitcnt lgkmcnt(0)""")
    for i in range(7): e(f"ds_read_b64 v[{XA+2*i}:{XA+2*i+1}], v73 offset:{XN+8*i}")
    tags()
    e(f"""s_getreg_b32 s56, hwreg(HW_REG_XCC_ID, 0, 4)
          s_and_b32 s63, s97, 0xf0
          s_or_b32 s63, s63, s56
          s_waitcnt lgkmcnt(0)""")
    stamp(2)
    for i in range(15):
        if i < 14:
            a = (116, 120)[i & 1]
            for j in range(4): e(f"v_and_b32 v{a+j}, v{XA+i}, v{MK+j}")
        if i >= 1:
            p = i - 1; a = (116, 120)[p & 1]
            e(f"s_waitcnt vmcnt({13-p+tlb})\nv_mfma_f32_16x16x32_bf16 v[8:11], v[{a}:{a+3}], v[{WQ+4*p}:{WQ+4*p+3}], " + ("0" if p == 0 else "v[8:11]"))
    e(f"""v_lshrrev_b32 v5, 4, v0
          v_lshlrev_b32 v72, 4, v5
          v_lshl_add_u32 v72, v3, 5, v72
          v_and_b32 v73, 40, v0
          v_mov_b32 v12, {OOB}
          v_cmp_eq_u32 vcc, 0, v73
          v_cndmask_b32 v72, v12, v72, vcc
          s_lshl_b32 s54, s28, 13
          s_add_u32 s54, s54, {QP}
          s_lshl_b32 s56, s48, 11
          s_add_u32 s56, s56, s54
          s_lshl_b32 s61, s49, 8
          s_add_u32 s56, s56, s61""")
    for r in range(4): e(f"v_mov_b32_dpp v{F+r}, v{8+r} row_ror:8 row_mask:0xf bank_mask:0xf")
    for r in range(4): e(f"v_permlane32_swap_b32 v{F+r}, v{F+4+r}")
    for r in range(4): e(f"v_add_f32 v{8+r}, v{8+r}, v{F+4+r}")
    for r in range(4): e(f"v_add_u32 v{8+r}, 0x80, v{8+r}")
    tag4(8, 245, "s63")
    e(f"buffer_store_dwordx4 v[8:11], v72, s[32:35], s56 offen {qsc}")
    if not qsc: e(f"s_mov_b32 s3, s56\nv_mov_b32 v71, v72\ns_mov_b64 exec, vcc\nds_write_b128 v72, v[8:11] offset:{QC}\ns_mov_b64 exec, -1")
    stamp(3)
    if skew is not None: e(skew_store)
    e(f"""s_lshr_b32 s53, s2, 6
          s_lshl_b32 s53, s53, 14
          s_and_b32 s56, s2, 63
          s_lshl_b32 s56, s56, 7
          s_add_u32 s53, s53, s56
          s_add_u32 s53, s53, {PB}
          v_lshlrev_b32 v6, 10, v0
          v_and_b32 v6, 0x2000, v6
          v_lshl_add_u32 v6, v3, 4, v6""")
    for r in range(4): e(f"v_mov_b32 v{16+r}, 0x100")
    if int(pst) == 2: e("s_cmp_lt_u32 s29, 28\ns_cbranch_scc1 L_noprobe")
    if int(pst): e("s_mov_b64 exec, 0xffff\nbuffer_store_dwordx4 v[16:19], v6, s[32:35], s53 offen sc1\ns_mov_b64 exec, -1")
    e("L_noprobe:")
    e(f"""s_setprio 0
          s_lshl_b32 s54, s55, 11
          s_add_u32 s54, s54, {OP}
          v_lshl_add_u32 v6, v0, 7, s54
          s_lshr_b32 s48, s29, 3
          s_and_b32 s49, s29, 7
          s_lshl_b32 s60, s49, 6
          s_lshl_b32 s56, s48, 4
          s_add_u32 s60, s60, s56
          s_lshl_b32 s56, s28, 9
          s_add_u32 s60, s60, s56
          s_add_u32 s60, s60, {ML}
          s_mul_i32 s61, s52, 7168
          s_add_u32 s61, s61, {DP}
          s_lshl_b32 s56, s51, 10
          s_add_u32 s62, s61, s56
          s_sub_u32 s56, s62, {16*128}
          v_lshl_add_u32 v7, v0, 7, s56
          v_cmp_gt_u32 vcc, 16, v0
          v_cndmask_b32 v6, v7, v6, vcc
          s_lshl_b32 s63, s52, 11
          s_add_u32 s63, s63, {HH}
          s_lshl_b32 s56, s51, 8
          s_add_u32 s56, s56, s63
          v_writelane_b32 v6, s56, 24
          s_add_u32 s56, s56, 128
          v_writelane_b32 v6, s56, 25
          v_writelane_b32 v6, s60, 26
          {f"s_lshl_b32 s98, s28, 13{NL}s_and_b32 s56, s50, 1{NL}s_lshl_b32 s56, s56, 5{NL}s_add_u32 s98, s98, s56{NL}s_add_u32 s98, s98, {FL}{NL}s_lshl_b32 s56, s29, 7{NL}s_and_b32 s56, s56, {max((sfx << fsh) - 128, 0)}{NL}s_add_u32 s56, s56, s98{NL}v_writelane_b32 v6, s56, 27" if sfx else ""}
          s_cmp_lt_u32 s52, 28
          s_cselect_b32 s56, 0x03ff0000, 0
          s_or_b32 exec_lo, s56, {0x0c00ffff if sfx else 0x0400ffff}
          s_mov_b32 exec_hi, 0
          {"buffer_load_dword v13, v6, s[32:35], 0 offen sc1" if int(pre) & 1 else ""}
          s_mov_b64 exec, -1
          v_cmp_eq_u32 vcc, 0, v0
          v_cndmask_b32 v14, v12, v0, vcc
          v_and_b32 v72, 1, v0
          v_lshlrev_b32 v72, 4, v72
          s_mov_b32 s57, {CEXP}
          v_and_b32 v3, 3, v0
          v_and_b32 v6, 1, v5
          v_lshlrev_b32 v6, 2, v6
          v_lshrrev_b32 v7, 1, v5
          v_lshl_add_u32 v6, v7, 1, v6
          v_mul_u32_u24 v6, 896, v6
          v_and_b32 v7, 15, v0
          v_lshl_add_u32 v6, v7, 3, v6
          s_mul_i32 s48, s100, 57344
          s_lshl_b32 s56, s51, 7
          s_add_u32 s48, s48, s56
          s_mul_i32 s49, s51, {BS}
          s_lshl_b32 s56, s28, 10
          s_add_u32 s49, s49, s56
          s_lshl_b32 s56, s50, 8
          s_add_u32 s49, s49, s56
          s_add_u32 s49, s49, {CP}
          v_lshlrev_b32 v2, 2, v0""")
    qtag_reg(244, 3)
    e("v_bfe_u32 v15, v0, 2, 2")
    qtag_reg(15, 15)
    e("v_cmp_eq_u32 vcc, 0, v3\nv_cndmask_b32 v243, 0, v245, vcc")
    e(f"""s_mul_i32 s54, s51, {BS}
          s_add_u32 s54, s54, {EP}
          s_lshl_b32 s56, s52, 8
          s_add_u32 s54, s54, s56
          v_lshlrev_b32 v249, 7, v0
          v_lshlrev_b32 v250, 12, v0
          v_and_b32 v249, 0x80, v249
          v_and_b32 v250, 0x2000, v250
          v_or_b32 v249, v249, v250
          s_cmp_ge_u32 s29, 28
          s_cbranch_scc1 L_nopre
          s_mov_b64 exec, 15
          {"buffer_load_dword v250, v249, s[32:35], s49 offen sc1" if int(pre) & 2 else ""}
          s_cmp_ge_u32 s52, 28
          s_cbranch_scc1 L_nopre
          {"buffer_load_dword v250, v249, s[32:35], s54 offen sc1" if int(pre) & 4 else ""}""")
    if opre: e(f"""s_lshr_b32 s56, s52, 2
          {"s_cmp_lg_u32 s56, 1" if fin == "t" else f"s_cmp_lg_u32 s28, {fin}"}
          s_cbranch_scc1 L_nopre
          s_lshl_b32 s56, s51, 7
          buffer_load_dword v250, v246, s[40:43], s56 offen {opre.replace("p", "")}""")
    e(f"""L_nopre:
          s_mov_b64 exec, -1""")
    def load_dn(guard=True, part=None):
        skip = lab("nodn")
        if guard: e(f"s_cmp_ge_u32 s52, 28\ns_cbranch_scc1 {skip}")
        for i in range(8) if part is None else range(4*part, 4*part + 4):
            for hi in range(2):
                d = DN + 2*(8*hi + i)
                e(f"buffer_load_dwordx2 v[{d}:{d+1}], v6, s[44:47], s48 offen offset:{896*hi} {wnt if dnf is None else dnf}")
            if i < 7: e("s_add_u32 s48, s48, 7168")
        e(f"{skip}:")
    if dnpos == "K": load_dn()
    if int(pst) == 2: e("s_mov_b32 s101, 0\ns_cmp_lt_u32 s29, 28\ns_cbranch_scc1 L_Q2")
    e("""s_waitcnt vmcnt(0)
         s_mov_b32 s99, 0
         s_load_dword s98, s[26:27], s53 offset:0
         s_load_dword s99, s[26:27], s53 offset:8192
         s_waitcnt lgkmcnt(1)
         s_andn2_b32 s101, 0x100, s99""")
    sec("Q2", "L_Q2")
    sec("Q3", "L_Q3")
    e(f"s_barrier\nds_read_b128 v[24:27], v246 offset:{FLAGS}\ns_waitcnt lgkmcnt(0)")
    read_mode(24)
    if not qsc:
        e("s_cmp_lg_u32 s59, 0\ns_cbranch_scc1 L_qfar\nL_qnear:")
        deferred.append(("L_qfar", "L_qnear", ["buffer_store_dwordx4 v[8:11], v71, s[32:35], s3 offen"]))
    if dnpos == "q": load_dn()
    e("s_setprio 3\ns_barrier")
    stamp(4)
    e(f"""
          ds_read_b128 v[16:19], v72 offset:{MLW}
          ds_read_b128 v[20:23], v72 offset:{MLW+32}
          s_waitcnt lgkmcnt(0)
          v_max3_f32 v8, v16, v17, v18
          v_max_f32 v8, v8, v19""")
    for w in range(4): e(f"v_sub_f32 v{16+w}, v{16+w}, v8")
    for w in range(4): e(f"v_mul_f32 v{16+w}, s57, v{16+w}")
    for w in range(4): e(f"v_exp_f32 v{16+w}, v{16+w}")
    e("""v_mul_f32 v9, v16, v20
         v_fmac_f32 v9, v17, v21
         v_fmac_f32 v9, v18, v22
         v_fmac_f32 v9, v19, v23
         v_mov_b32_dpp v10, v8 quad_perm:[1,1,1,1] row_mask:0xf bank_mask:0xf
         v_mov_b32_dpp v11, v9 quad_perm:[1,1,1,1] row_mask:0xf bank_mask:0xf""")
    e("v_or_b32 v8, s101, v8")
    tag4(8, 245)
    if mlsc: e("buffer_store_dwordx4 v[8:11], v14, s[32:35], s60 offen sc1")
    else: mode_store(["buffer_store_dwordx4 v[8:11], v14, s[32:35], s60 offen"])
    stamp(5)
    e("s_cmp_ge_u32 s29, 28\ns_cbranch_scc1 L_end\ns_setprio 0")
    if dnpos == "p": load_dn()
    if dnpos == "F": e(f"ds_write_b32 v246, v246 offset:{FLAGS+32}\ns_waitcnt lgkmcnt(0)")
    if dnpos == "pB": load_dn(part=0)
    e("s_add_u32 s53, s49, 8192")
    if sfx: e(f"s_and_b32 s12, s31, 0xff\ns_mul_i32 s12, s12, 0x01010101\ns_mov_b32 s13, s12\ns_cmp_eq_u32 s59, 0\ns_cselect_b32 s58, {sfx if sfx > 1 else 256}, 0\ns_setprio 3")
    e("s_barrier")
    if sfx:
        e(f"""L_hint:
             s_sub_u32 s58, s58, 1
             s_cbranch_scc1 L_hinted
             s_load_dwordx8 s[4:11], s[26:27], s98 {"glc" if sfx == 1 else ""}
             s_waitcnt lgkmcnt(0)
             {f"s_add_u32 s98, s98, {1 << fsh}" if sfx > 1 else ""}
             s_xor_b64 s[4:5], s[4:5], s[12:13]
             s_xor_b64 s[6:7], s[6:7], s[12:13]
             s_xor_b64 s[8:9], s[8:9], s[12:13]
             s_xor_b64 s[10:11], s[10:11], s[12:13]
             s_or_b64 s[4:5], s[4:5], s[6:7]
             s_or_b64 s[8:9], s[8:9], s[10:11]
             s_or_b64 s[4:5], s[4:5], s[8:9]
             s_cbranch_scc1 L_hint
             L_hinted:""")
        if stamps and int(cnt): e(f"s_sub_u32 s66, {sfx if sfx > 1 else 256}, s58")
    if dnpos == "h": e("s_barrier"); load_dn()
    else: e("s_barrier")
    if gupos == "B1": e("s_barrier")
    if dnpos == "Y":
        if zb: e("s_barrier")
        e("s_setprio 0"); load_dn()
    if dnpos == "B1": load_dn()
    if dnpos == "pB": load_dn(part=1)
    e("s_setprio 3\ns_barrier")
    stamp(6)
    if dnpos == "B3": load_dn()
    for k in range(4): e(f"ds_read2st64_b32 v[{16+2*k}:{17+2*k}], v2 offset0:{RED//256+2*k} offset1:{RED//256+2*k+1}")
    e(f"""s_waitcnt lgkmcnt(2)
         v_pk_add_f32 v[16:17], v[16:17], v[18:19]
         s_waitcnt lgkmcnt(0)
         v_pk_add_f32 v[20:21], v[20:21], v[22:23]
         v_pk_add_f32 v[16:17], v[16:17], v[20:21]
         v_add_f32 v16, v16, v17
         v_bfi_b32 v16, v243, v15, v16
         buffer_store_dword v16, v2, s[32:35], s49 offen {cst}
         buffer_store_dword v16, v2, s[32:35], s53 offen {cst}""")
    stamp(7)
    e("s_setprio 0\ns_cmp_ge_u32 s52, 28\ns_cbranch_scc1 L_end")
    if dnpos == "B4": load_dn(False)
    if cack == "b": e("s_barrier")
    elif cack: e("s_waitcnt vmcnt(%d)\ns_barrier" % (16 if dnpos == "B4" else 0))
    if dnpos == "B5": load_dn(False)
    for r in range(4): e(f"v_mov_b32 v{84+r}, {'v244' if r == 0 else 0}")
    DS = (20, 21, 22, 23, 24, 25)
    for p in range(6):
        e(f"s_add_u32 s56, s51, {p+1}\ns_sub_u32 s60, s56, 7\ns_cselect_b32 s56, s56, s60\ns_lshl_b32 s56, s56, 10\ns_add_u32 s{DS[p]}, s56, s61")
    e(f"""
          s_mul_i32 s54, s51, {BS}
          s_add_u32 s54, s54, {EP}
          s_lshl_b32 s56, s52, 8
          s_add_u32 s49, s54, s56
          v_cmp_gt_u32 vcc, 16, v0
          v_cndmask_b32 v4, v12, v1, vcc
          {"s_sub_u32 s50, s52, 4" if fin == "t" else f"s_cmp_eq_u32 s28, {fin}" + chr(10) + "s_cselect_b32 s50, s50, 4"}
          s_lshl_b32 s56, s50, 6
          s_add_u32 s54, s54, s56
          s_add_u32 s53, s54, 4096
          v_lshrrev_b32 v7, 2, v0
          v_lshlrev_b32 v7, 8, v7
          v_lshl_add_u32 v7, v3, 4, v7
          v_lshl_add_u32 v8, v3, 2, v5
          v_lshl_add_u32 v9, v8, 2, s56
          v_and_b32 v9, 0xff, v9
          v_lshlrev_b32 v8, 1, v8
          v_and_b32 v10, 12, v0
          v_cmp_eq_u32 vcc, 0, v10
          v_cndmask_b32 v8, v12, v8, vcc
          s_lshl_b32 s55, s51, 7
          s_lshl_b32 s56, s50, 5
          s_add_u32 s55, s55, s56""")
    L48 = (1 << 48) - 1
    DT = 192
    k0 = -2.0 * 0.7978845608028654 * 1.4426950408889634
    e(f"""v_bfe_u32 v76, v0, 3, 1
          v_mul_u32_u24 v74, 0x0606, v76
          v_mul_u32_u24 v75, 0x0202, v76
          v_lshlrev_b32 v74, 16, v74
          v_lshlrev_b32 v75, 16, v75
          v_add_u32 v74, 0x01000c0c, v74
          v_sub_u32 v75, 0x05040c0c, v75
          v_mov_b32 v76, {f2u(k0*0.044715)}""")
    if sfl: e(f"ds_write_b32 v246, v246 offset:{FLAGS+28}\ns_waitcnt lgkmcnt(0)")
    def dn_perm(w, cs=range(4)):
        if w is not None: e(f"s_waitcnt vmcnt({w})")
        for c in cs:
            for j in range(8):
                a = DN + 4*j + (c >> 1)
                e(f"v_perm_b32 v{DT+8*c+j}, v{a+2}, v{a}, s{(56, 60)[c & 1]}")
    if dnt: e("s_mov_b32 s56, 0x05040100\ns_mov_b32 s60, 0x07060302")
    if dnpos in ("C", "T0", "T1"): e("s_barrier"); load_dn(False)
    if dnpos == "F":
        e(f"""s_mov_b32 s58, {SPIN*16}
              L_fwait:
              ds_read_b32 v11, v246 offset:{FLAGS+32}
              s_sub_u32 s58, s58, 1
              s_cbranch_scc1 L_fgo
              s_waitcnt lgkmcnt(0)
              v_cmp_eq_u32 vcc, 0, v11
              s_cbranch_vccnz L_fwait
              L_fgo:""")
        load_dn(False)
    if dnt and not dtl: dn_perm(0 if dnpos in ("B4", "B5", "C", "T0", "T1", "F") else 2)
    e(f"s_mov_b32 s58, {SPIN}")
    e("s_setprio 3\ns_barrier")
    stamp(8)
    for k in range(4): e(f"ds_read_b128 v[{24+4*k}:{27+4*k}], v1 offset:{RED2+1024*k}")
    e("s_waitcnt lgkmcnt(2)")
    pk_add4(24, 24, 28)
    e("s_waitcnt lgkmcnt(0)")
    pk_add4(32, 32, 36); pk_add4(24, 24, 32)
    e("v_bfi_b32 v24, v245, v244, v24")
    mode_store(["buffer_store_dwordx4 v[24:27], v1, s[32:35], s62 offen"])
    stamp(9)
    dset = lambda b: [(f"buffer_load_dwordx4 v[{b+4*p}:{b+4*p+3}], v1, s[32:35], s{DS[p]} offen sc1", b + 4*p) for p in range(6)]
    dsets = [dset(b) for b in (48, 88, 160)[:dr]]
    dg = dsets[0] if dr else dset(44)
    for t, b in dg: e(t)
    e(f"""ds_read_b32 v13, v9 offset:{HL}
          ds_read_b32 v11, v246 offset:{FLAGS+16}
          v_and_b32 v24, 0xffffff00, v24
          s_waitcnt lgkmcnt(0)
          v_and_b32 v13, 0xffff0000, v13
          v_add_u32 v7, v7, v11
          v_add_u32 v4, v4, v11
          v_xor_b32 v10, 0x2000, v4""")
    if dr:
        assert dnt and dtl and dspec and not sfl
        for r in range(1, dr):
            dn_perm(7 if r == 1 else None, range(4*(r-1)//(dr-1), 4*r//(dr-1)))
            for t, b in dsets[r]: e(t)
    elif dnt and dtl: dn_perm(7)
    stamp(10)
    def d_acc(i, b):
        a, d = (24 if i == 0 else 28), (44 if i == 5 else 28)
        if sfl and i == 1: e(f"ds_read_b64 v[40:41], v246 offset:{FLAGS+24}")
        e(f"v_and_b32 v36, 0xffffff00, v{b}\nv_pk_add_f32 v[{d+2}:{d+3}], v[{a+2}:{a+3}], v[{b+2}:{b+3}]\nv_add_f32 v{d+1}, v{a+1}, v{b+1}\nv_add_f32 v{d}, v{a}, v36")
        if sfl and i == 4: e("s_waitcnt lgkmcnt(0)\nv_cmp_eq_u32 s[6:7], 0, v41")
    pre = "s_memrealtime s[86:87]\n" if stamps else ""
    if sfl:
        assert dspec
        pre += "s_cmp_lg_u64 s[6:7], 0\ns_cbranch_scc1 L_stwait\nL_stgot:\n"
        late = f"L_stwait:\ns_sub_u32 s58, s58, 1\ns_cbranch_scc1 L_stgot\nds_read_b64 v[40:41], v246 offset:{FLAGS+24}\ns_waitcnt lgkmcnt(0)\nv_cmp_eq_u32 vcc, 0, v41\ns_cbranch_vccnz L_stwait\ns_branch L_stgot"
        if int(wb) & 2:
            wbd = f"s_cmp_eq_u32 s2, {56 + int(fin)}\ns_cbranch_scc1 L_dowb\nL_nowb:"
            late += "\nL_dowb:\nbuffer_wbl2 sc1\ns_branch L_nowb"
    else: pre += f"s_barrier\nds_read_b64 v[40:41], v246 offset:{FLAGS+24}"
    if dr:
        def dcheck(r):
            g = [b for t, b in dsets[r]]
            for p in range(6):
                e(f"s_waitcnt vmcnt({6*dr-1-p})")
                if p in (1, 3): e(f"v_bitop3_b32 v{37+(p >> 1)}, v{g[p-1]}, v{g[p]}, v244 bitop3:0x7e")
                if p == 4: e(f"v_bitop3_b32 v37, v{g[4]}, v244, v37 bitop3:0xbe\nv_or_b32 v37, v37, v38")
                if p == 5: e(f"v_bitop3_b32 v37, v{g[5]}, v244, v37 bitop3:0xbe\nv_cmp_ne_u32_sdwa vcc, v37, v246 src0_sel:BYTE_0 src1_sel:DWORD")
                else: d_acc(p, g[p])
        e("L_dtop:")
        dcheck(0)
        e("s_cbranch_vccnz L_dmore\nL_dx0:\n" + pre)
        d_acc(5, dsets[0][5][1])
        e("L_ddone:")
        def dmore():
            e("L_dmore:\ns_sub_u32 s58, s58, 1\ns_cbranch_scc1 L_dx0")
            for t, b in dsets[0]: e(t)
            for r in range(1, dr):
                dcheck(r)
                e(f"s_cbranch_vccnz L_dn{r}\n" + pre)
                d_acc(5, dsets[r][5][1])
                e(f"s_branch L_ddone\nL_dn{r}:")
                for t, b in dsets[r]: e(t)
            e("s_branch L_dtop")
    else: poll(dg, 8, issued=True, quad=244, pre=pre, spec=d_acc if dspec else None)
    if sfl and int(wb) & 2: e(wbd)
    if not dspec:
        pk_add4(44, 44, 48); pk_add4(52, 52, 56); pk_add4(60, 60, 64)
        pk_add4(44, 44, 24); pk_add4(52, 52, 60); pk_add4(44, 44, 52)
    e("""v_permlane32_swap_b32 v45, v47
         v_permlane32_swap_b32 v44, v46""")
    if not sfl: e("s_waitcnt lgkmcnt(0)")
    e("""v_pk_fma_f32 v[44:45], v[46:47], v[40:41], v[44:45] op_sel:[0,0,0] op_sel_hi:[1,0,1] neg_lo:[0,1,0] neg_hi:[0,1,0]
         v_pk_mul_f32 v[44:45], v[44:45], v[40:41] op_sel:[0,1] op_sel_hi:[1,1]
         v_cvt_pk_bf16_f32 v45, v44, v45
         v_mov_b32_dpp v46, v45 row_ror:8 row_mask:0xf bank_mask:0xf
         v_perm_b32 v44, v46, v45, v74
         v_perm_b32 v45, v46, v45, v75""")
    e(f"""v_mul_f32 v46, v44, v44
          v_fmaak_f32 v46, v46, v76, {f2u(k0)}
          v_mul_f32 v46, v46, v44
          v_exp_f32 v46, v46
          v_add_f32 v46, 1.0, v46
          v_rcp_f32 v46, v46
          v_mul_f32 v46, v46, v44""")
    bfround(46)
    if dnt:
        e("v_mul_f32 v46, v46, v45")
        poll_init(2, 4, {1: L48})
        e("v_mov_b32_dpp v47, v46 quad_perm:[1,1,3,3] row_mask:0xf bank_mask:0xf\nv_cvt_pk_bf16_f32 v46, v46, v47")
        for j in range(8): e(f"v_mov_b32_dpp v{116+j}, v46 row_newbcast:{2*j} row_mask:0xf bank_mask:0xf")
        for h in range(2):
            for c in range(4):
                e(f"v_mfma_f32_16x16x32_bf16 v[{32+4*c}:{35+4*c}], v[{116+4*h}:{119+4*h}], v[{DT+8*c+4*h}:{DT+8*c+4*h+3}], " + ("0" if h == 0 else f"v[{32+4*c}:{35+4*c}]"))
        e("v_bfi_b32 v32, v245, v244, v32\nv_mov_b32 v33, v36\nv_pk_mov_b32 v[34:35], v[40:41], v[44:45] op_sel:[0,0]")
    else: e("v_mul_f32 v46, v46, v45\nv_cvt_pk_bf16_f32 v46, v46, v46")
    for i in range(0 if dnt else 17):
        if i < 16:
            a = 116 + 2*(i & 3)
            for j in range(2): e(f"v_and_b32_dpp v{a+j}, v46, v{MK+j} row_newbcast:{i} row_mask:0xf bank_mask:0xf")
        if i >= 1:
            p = i - 1; ap = 116 + 2*(p & 3)
            e(f"v_mfma_f32_16x16x16_bf16 v[32:35], v[{ap}:{ap+1}], v[{DN+2*p}:{DN+2*p+1}], " + ("0" if p == 0 else "v[32:35]"))
    if not dnt:
        poll_init(2, 4, {1: L48})
        e("v_bfi_b32 v32, v245, v244, v32")
    e(f"buffer_store_dwordx4 v[32:35], v4, s[32:35], s49 offen {est}")
    e(f"buffer_store_dwordx4 v[32:35], v10, s[32:35], s49 offen {est}")
    stamp(12)
    if int(wb) & 8: e(f"s_cmp_lg_u32 s2, {56 + int(fin)}\ns_cbranch_scc1 L_nowb8\nbuffer_wbl2 sc1\nL_nowb8:")
    e(f"s_cmp_gt_u32 s50, 3\ns_cbranch_scc1 {'L_wb4' if int(wb) & 4 or sfl else 'L_Eend'}")
    if et:
        for r in range(4): e(f"v_mov_b32 v{80+r}, 0")
        poll_sum(lambda i, b: f"buffer_load_dwordx4 v[{b}:{b+3}], v7, s[32:35], {('s54', 's53')[i]} offen {eld}", 80, 160, 244, et)
        stamp(13)
    else:
        if eack: e("s_waitcnt vmcnt(%d)" % (1 if eack == "1" else 0))
        poll([("buffer_load_dwordx4 v[80:83], v7, s[32:35], s54 offen sc1", 80), ("buffer_load_dwordx4 v[84:87], v7, s[32:35], s53 offen sc1", 84)], 4, quad=244)
        stamp(13)
        pk_add4(80, 80, 84)
    trows(80)
    dpp_red("v_add_f32", [80], ["row_ror:4", "row_ror:8"])
    bfround(80)
    e(f"""v_add_f32 v80, v80, v13
          v_cvt_pk_bf16_f32 v80, v80, v80
          buffer_store_short v80, v8, s[40:43], s55 offen {osc}""")
    if epo[0] != "C":
        e(f"""s_cmp_lg_u32 s2, 4
          s_cbranch_scc1 L_Eend
          v_mov_b32 v16, s31
          buffer_store_dword v16, v14, s[32:35], 0 offen {"sc1" if epo == "s" else ""}""")
    e("L_Eend:")
    if clean & 4: e("v_or_b32 v24, v24, v244\nbuffer_store_dwordx4 v[24:27], v1, s[32:35], s62 offen sc1")
    stamp(14)
    if amp is not None:
        e(f"""s_cmp_lg_u32 s2, 4
              s_cbranch_scc1 L_end
              s_memrealtime s[96:97]
              s_waitcnt lgkmcnt(0)
              s_sub_u32 s98, s{64+2*int(amp)}, s64
              s_lshl_b32 s98, s98, 3""")
        if skew is not None:
            e(f"""s_mov_b32 s56, {STAMP}
              buffer_load_dword v16, v246, s[32:35], s56 offen sc1
              buffer_load_dword v17, v246, s[32:35], s56 offen offset:{4*int(skew)} sc1
              s_waitcnt vmcnt(0)
              v_sub_u32 v16, v17, v16
              v_add_u32 v16, 100, v16
              v_readfirstlane_b32 s98, v16
              s_lshl_b32 s98, s98, 5""")
        e(f"""
              s_min_u32 s98, s98, 100000
              L_amp:
              s_memrealtime s[100:101]
              s_waitcnt lgkmcnt(0)
              s_sub_u32 s99, s100, s96
              s_cmp_lt_u32 s99, s98
              s_cbranch_scc1 L_amp""")
    finish()
    if dr: dmore()
    if sfl: e(late)
    if int(wb) & 4 or sfl: e("L_wb4:")
    if sfl:
        e(f"s_cmp_lg_u32 s2, {0 if fin != '0' else 1}\ns_cbranch_scc1 L_noepo\nv_mov_b32 v16, s31\nbuffer_store_dword v16, v14, s[32:35], 0 offen {epo[1:]}\nL_noepo:")
        if not int(wb) & 4: e("s_branch L_Eend")
    if int(wb) & 4:
        e("s_cmp_lg_u32 s29, 7\ns_cbranch_scc1 L_Eend")
        if fin == "t": e("s_cmp_ge_u32 s28, 4\ns_cbranch_scc1 L_Eend")
        e(f"s_waitcnt vmcnt({wbt})\nbuffer_wbl2 sc1\ns_waitcnt vmcnt(0)\ns_branch L_Eend")
    sec("A")
    for t in extra: e(t)
    sec("Q3")
    for far, back, ins in deferred:
        e(f"{far}:\ns_nop 7")
        for t in ins: e(t + " sc1")
        e(f"s_nop 1\ns_branch {back}")
    if stamps:
        e("L_stamps:\ns_waitcnt lgkmcnt(0)\ns_mov_b64 exec, -1\nv_mov_b32 v250, 0")
        for k in range(16): e(f"v_writelane_b32 v250, s{64+2*k}, {k}")
        e(f"""s_lshl_b32 s60, s2, 3
              s_add_u32 s60, s60, s30
              s_lshl_b32 s60, s60, 6
              s_add_u32 s60, s60, {STAMP}
              v_lshlrev_b32 v251, 2, v0
              s_mov_b64 exec, 0xffff
              buffer_store_dword v250, v251, s[32:35], s60 offen""")
    e("L_exit:\ns_endpgm")

    head = open("cdna_kernels/" + NAME + ".s.ref").read()
    head = head[:head.index("; @launch")]
    out = head + f"; @launch grid=(256,1,1) block=(320,1,1) lds={LDS_SIZE}\n"
    out += f""".amdgcn_target "amdgcn-amd-amdhsa--gfx950"
.text
.globl {NAME}_kernel
.p2align 12
.fill {int(pad)//4}, 4, 0xbf800000
.p2align 8
.type {NAME}_kernel,@function
{NAME}_kernel:
"""
    for name, al in (("A", 0), ("K1", 0), ("Q1", 12), ("Q2", 12), ("K0", 0), ("K2", 0), ("Q3x", 0), ("Q3", 12)):
        if name not in secs: continue
        if al: out += f".p2align {al}\n"
        out += "\n".join(secs[name]) + "\n"
    out = out.replace("buffer_wbl2 sc1", "buffer_wbl2 " + wbf.replace("_", " "))
    out += f""".section .rodata,"a"
.p2align 6
.amdhsa_kernel {NAME}_kernel
  .amdhsa_next_free_vgpr 256
  .amdhsa_next_free_sgpr 102
  .amdhsa_accum_offset 256
  .amdhsa_group_segment_fixed_size 0
  .amdhsa_kernarg_size 96
  .amdhsa_user_sgpr_count 2
  .amdhsa_user_sgpr_kernarg_segment_ptr 1
  .amdhsa_system_sgpr_workgroup_id_x 1
.end_amdhsa_kernel
"""
    return out

if __name__ == "__main__":
    kw = {}
    for a in sys.argv[2:]:
        k, v = a.split("=")
        kw[k] = {"True": True, "False": False}.get(v, v)
    open(sys.argv[1], "w").write(gen(**kw))
```

```python
import sys, struct, re
from emit import Emitter, Ins, need

NAME = "sequential_preLN__sliding_block_cached__geglu_ffn__decode"
def f2u(x): return struct.unpack("<I", struct.pack("<f", x))[0]

QP, ML, CP, EP, OP, HH, DP, STAMP, WS_SIZE = 0x10000, 0x20000, 0x120000, 0x140000, 0x40000, 0xC0000, 0xD0000, 0x1E0000, 0x200000
XN, XR, QS, EB, RED, RED2, FLAGS, MLW, HL, PR, LDS_SIZE = 0, 2048, 3072, 4096, 5120, 7168, 11264, 11520, 11776, 12288, 14336
QC = 12032
FL = 0x30000
OOB = 0x7ffffff0
PB = 0x160000
SPIN = 1 << 16
NL = "\n"
CEXP = f2u(1.4426950408889634 / 16.0)
T0, T1, T2 = "s31", "s96", "s97"
TAGS = (T0, T0, T1, T2)

def gen(amp=None, nt="nt", wnt=None, stamps=False, force_global=False, wopos="V", gupos="B1", dnpos="F",
        code_pf=True, eack=True, kpre=0, W=6, qa=3, lc=15, rot="gj", skew=None, cack=True, ctmap="u", pad=0xD00, ksplit=3, order="V1GV16MW", tlb=0, tmap=1, w0=8, qnt=None, opat=1, skipz=0, opsc=False, ct="30", et="10", home="v", mlsc=False, gi="0112", sw=1, dirty=0, wb=6, epo="C", osc="", Wq=6, W2=0, Ww=0, Wm=0, lst="", opre="p", clean=0, fin="6", wbt=0, dbg=0, mlo="A", gfree="", sp="11111n", dnt=1, dspec=1, ospec=1, hlate=3, sfl=0, qsc="", pst=2, pre=7, qpre=0, tlm="0xff", cld="sc1", eld="sc1", cst="sc1", est="sc1", wbf="sc1", wbj=7, t4g="4567", sfx=0, zb=1, fsh=6, cnt=0, dnpf=40, dtl=1, dnf=None, pfl=0, wfl=None, dr=0, er=1, epb="0x140000", eps="0x40000", osr=0, pcdbg=0, su=None, st0=0, ck=0, ckw=0, ff=0, ffw=0, ffb=1, wbu=0, wbw=3, wbk4=31):
    ff, ffw, ffb = int(ff), int(ffw), int(ffb)
    ck = int(ck)
    osr = int(osr)
    er = int(er)
    EP, ES = int(epb, 0), int(eps, 0)
    assert EP + ES*(er-1) + 0x1C000 <= STAMP
    dr = int(dr)
    if dnpf == "n": dnpf = None
    pfl = int(pfl)
    dtl = int(dtl)
    sfx, zb, fsh = int(sfx), int(zb), int(fsh)
    dnt, dspec, ospec, hlate, sfl = int(dnt), int(dspec), int(ospec), int(hlate), int(sfl)
    clean = int(clean)
    if clean & 8: epo, osc = "Csc1", "sc1"
    if wnt is None: wnt = nt
    BS = 16384
    cld, eld, cst, est = (x.replace("_", " ") for x in (cld, eld, cst, est))
    if ct: cack, ct = ct[0] if ct[0] in "ab" else "", ct.lstrip("ab")
    kpre, W, qa = int(kpre), int(W), int(qa)
    lx = str(lc).endswith("x")
    lc = int(str(lc).rstrip("x")); nb = lc - 12
    def koff(st): return ((st >> nb) << (lc + 5)) | ((st & (7 if lx else (1 << nb) - 1)) << 12)
    if skew is not None: amp = 0
    e = Emitter()
    uid = [0]
    deferred = []
    extra = []
    secs = {"A": e.lines}
    def sec(name, jump=None):
        if jump: e(f"s_branch {jump}")
        e.lines = secs.setdefault(name, []); e.hist = []
        if jump: e(f"{jump}:")
    def lab(p): uid[0] += 1; return f"L_{p}{uid[0]}"
    def srd_hi(d, n): e(f"s_mov_b32 s{d+2}, {n}\ns_mov_b32 s{d+3}, 0x00020000")
    def srd_lo(d, b): e(f"s_mov_b64 s[{d}:{d+1}], s[{b}:{b+1}]")
    def srd(d, b, n): srd_lo(d, b); srd_hi(d, n)
    def stamp(k):
        if stamps or (amp is not None and k in (0, int(amp))): e(f"s_memrealtime s[{64+2*k}:{65+2*k}]")
    def finish():
        if stamps: e("s_branch L_stamps")
        else: e("s_endpgm")
    def mode_store(ins):
        far, back = lab("far"), lab("back")
        e(f"s_cmp_lg_u32 s59, 0\ns_cbranch_scc1 {far}")
        for t in ins: e(t + " " + lst.replace("_", " "))
        e(f"{back}:")
        deferred.append((far, back, ins))
    def tags():
        e(f"""s_add_u32 s31, s31, 0x9E3779B1
              s_lshr_b32 s96, s31, 8
              s_or_b32 s96, s96, 1
              s_xor_b32 s96, s96, s31
              s_lshr_b32 s97, s31, 16""")
    def tag4(b, ff, last=T2):
        for r in range(4): e(f"v_bfi_b32 v{b+r}, v{ff}, {(T0, T0, T1, last)[r]}, v{b+r}")
    def lane_tag(d, idx, t):
        e(f"""v_mov_b32 v{d}, {T0}
              v_mov_b32 v{t}, {T1}
              v_cmp_eq_u32 vcc, 2, v{idx}
              v_cndmask_b32 v{d}, v{d}, v{t}, vcc
              v_mov_b32 v{t}, {T2}
              v_cmp_eq_u32 vcc, 3, v{idx}
              v_cndmask_b32 v{d}, v{d}, v{t}, vcc
              v_and_b32 v{d}, 0xff, v{d}""")
    def masks(m, t0, t1):
        e(f"""v_and_b32 v{t0}, 1, v0
              v_lshlrev_b32 v{t0}, 4, v{t0}
              v_mov_b32 v{t1}, 0xffff
              v_lshlrev_b32 v{t1}, v{t0}, v{t1}
              v_bfe_u32 v{t0}, v0, 1, 2""")
        for j in range(4):
            e(f"v_cmp_eq_u32 vcc, {j}, v{t0}\nv_cndmask_b32 v{m+j}, 0, v{t1}, vcc")
    def dpp_red(op, vs, ctrls):
        for c in ctrls:
            for v in vs: e(f"{op}_dpp v{v}, v{v}, v{v} {c} row_mask:0xf bank_mask:0xf")
    def xrow(op, vs, tmps):
        for sw in ("v_permlane16_swap_b32", "v_permlane32_swap_b32"):
            for v, t in zip(vs, tmps): e(f"v_mov_b32 v{t}, v{v}")
            for v, t in zip(vs, tmps): e(f"{sw} v{v}, v{t}")
            for v, t in zip(vs, tmps): e(f"{op} v{v}, v{v}, v{t}")
    def bfround(v): e(f"v_cvt_pk_bf16_f32 v{v}, v{v}, v{v}\nv_and_b32 v{v}, 0xffff0000, v{v}")
    def trows(a):
        e(f"""v_permlane32_swap_b32 v{a}, v{a+2}
              v_permlane32_swap_b32 v{a+1}, v{a+3}
              v_add_f32 v{a}, v{a}, v{a+2}
              v_add_f32 v{a+1}, v{a+1}, v{a+3}
              v_permlane16_swap_b32 v{a}, v{a+1}
              v_add_f32 v{a}, v{a}, v{a+1}""")
    def pk_add4(d, a, b):
        e(f"v_pk_add_f32 v[{d}:{d+1}], v[{a}:{a+1}], v[{b}:{b+1}]\nv_pk_add_f32 v[{d+2}:{d+3}], v[{a+2}:{a+3}], v[{b+2}:{b+3}]")
    def check(b, m, t):
        e(f"""v_bitop3_b32 v{t}, v{b}, v{b+1}, {T0} bitop3:0x7e
              v_bitop3_b32 v{t}, v{b+2}, {T1}, v{t} bitop3:0xbe
              v_bitop3_b32 v{t}, v{b+3}, {T2}, v{t} bitop3:0xbe
              v_cmp_ne_u32_sdwa s[{m}:{m+1}], v{t}, v246 src0_sel:BYTE_0 src1_sel:DWORD""")
    def qtag_reg(d, idx):
        e(f"v_lshlrev_b32 v{d}, 3, v{idx}\nv_lshrrev_b32 v{d}, v{d}, {T0}\nv_and_b32 v{d}, 0xff, v{d}")
    def qclean(loads):
        for t, b in loads: e(f"v_and_b32 v{b}, 0xffffff00, v{b}")
    def poll_init(n, m0, init=None):
        for i in range(n):
            v = (init or {}).get(i)
            if v is None: e(f"s_mov_b64 s[{m0+2*i}:{m0+2*i+1}], -1")
            else: e(f"s_mov_b32 s{m0+2*i}, {v & 0xffffffff}\ns_mov_b32 s{m0+2*i+1}, {v >> 32}")
        e(f"s_mov_b32 s58, {SPIN}")
    def poll(loads, m0, issued=False, behind=0, quad=None, pre=None, spec=None, hook=None):
        n = len(loads)
        top, chk, done = lab("poll"), lab("chk"), lab("pdone")
        if issued: e(f"s_branch {chk}")
        e(f"{top}:\ns_sub_u32 s58, s58, 1\ns_cbranch_scc1 {done}")
        if hook: e(hook)
        for i, (t, b) in enumerate(loads):
            sk = lab("sk")
            if int(skipz) and n > 2: e(f"s_wqm_b64 exec, s[{m0+2*i}:{m0+2*i+1}]\ns_cbranch_scc0 {sk}\n{t}\n{sk}:")
            else: e(f"s_wqm_b64 exec, s[{m0+2*i}:{m0+2*i+1}]\n{t}")
        e("s_mov_b64 exec, -1")
        if behind or (int(skipz) and n > 2): e("s_waitcnt vmcnt(0)")
        if issued: e(f"{chk}:")
        for i, (t, b) in enumerate(loads):
            e(f"s_waitcnt vmcnt({n-1-i+behind})")
            if quad: e(f"v_cmp_ne_u32_sdwa s[{m0+2*i}:{m0+2*i+1}], v{b}, v{quad} src0_sel:BYTE_0 src1_sel:DWORD")
            else: check(b, m0 + 2*i, 247 + (i & 1))
            if spec:
                if i < n - 1: spec(i, b)
                if i == 1: e(f"s_or_b64 vcc, s[{m0}:{m0+1}], s[{m0+2}:{m0+3}]")
                if i > 1: e(f"s_or_b64 vcc, vcc, s[{m0+2*i}:{m0+2*i+1}]")
        if spec: pass
        elif n == 1: e(f"s_cmp_lg_u64 s[{m0}:{m0+1}], 0")
        else:
            e(f"s_or_b64 vcc, s[{m0}:{m0+1}], s[{m0+2}:{m0+3}]")
            for i in range(2, n): e(f"s_or_b64 vcc, vcc, s[{m0+2*i}:{m0+2*i+1}]")
        e(f"s_cbranch_scc1 {top}\n{done}:")
        if pre: e(pre)
        if spec: spec(n - 1, loads[-1][1])
        elif quad: qclean(loads)
    def poll_sum(load, acc, base, quad, ticks):
        once = ticks.index("/") if "/" in ticks else 0
        ticks = ticks.replace("/", "")
        D = len(ticks)
        top, done = lab("ps"), lab("psd")
        def issue_round(r):
            for i in range(2): e(f"s_mov_b64 exec, s[{4+2*i}:{5+2*i}]\n" + load(i, base + 8*r + 4*i))
            e("s_mov_b64 exec, -1")
            if acc == 80 and er > 1: e(f"s_add_u32 s54, s54, {ES}\ns_min_u32 s54, s54, s57\ns_add_u32 s53, s54, 4096")
        for r, t in enumerate(ticks):
            if t != "x": e(f"s_waitcnt vmcnt({int(t) + 2*r})")
            if acc == 16 and r < 2: stamp(14 + r)
            if acc == 80 and int(st0) == 2: stamp(6 + r); e("s_mov_b32 s66, 0")
            issue_round(r)
            if acc == 16 and dnpos == f"T{r}": e("s_barrier")
        for r in range(D):
            if r == once: e(f"{top}:")
            for i in range(2):
                b, m = base + 8*r + 4*i, 4 + 2*i
                e(f"""s_waitcnt vmcnt({2*(D - min(r, once))-1-i})
                      v_cmp_ne_u32_sdwa vcc, v{b}, v{quad} src0_sel:BYTE_0 src1_sel:DWORD
                      v_and_b32 v{b}, 0xffffff00, v{b}
                      s_wqm_b64 vcc, vcc
                      s_andn2_b64 exec, s[{m}:{m+1}], vcc
                      s_and_b64 s[{m}:{m+1}], s[{m}:{m+1}], vcc""")
                pk_add4(acc, acc, b)
                e("s_mov_b64 exec, -1")
            if acc == 80 and int(st0) == 2: e("s_add_u32 s66, s66, 1")
            e(f"s_or_b64 vcc, s[4:5], s[6:7]\ns_cbranch_scc0 {done}")
            if r >= once: issue_round(r)
        e(f"s_sub_u32 s58, s58, 1\ns_cbranch_scc0 {top}\n{done}:")
    def read_mode(t):
        e(f"v_or3_b32 v{t}, v{t}, v{t+1}, v{t+2}\nv_or_b32 v{t}, v{t}, v{t+3}\nv_readfirstlane_b32 s59, v{t}")
    def ffn_scalars():
        order4 = [int(c) for c in t4g] + [g for g in range(8) if str(g) not in t4g]
        if ff: order4 = [g for g in range(8) if str(g) != fin] + [int(fin)]
        table = sum(order4.index(g) << (4*g) for g in range(8))
        assert fin == "t" or fin in t4g or ff
        e(f"""s_mul_i32 s50, s29, 37
             s_lshr_b32 s50, s50, 8
             s_mul_i32 s51, s50, 7
             s_sub_u32 s51, s29, s51
             s_lshl_b32 s101, s28, 2
             s_lshr_b32 s101, {table}, s101
             s_and_b32 s101, s101, 7
             s_lshl_b32 s52, s50, 3
             s_add_u32 s52, s52, s101""")
        if ff: e("s_lshl_b32 s100, s101, 2\ns_add_u32 s100, s100, s50\ns_cmp_lt_u32 s29, 28\ns_cselect_b32 s52, s100, s52\ns_min_u32 s100, s100, 27")
        elif int(tmap): e("s_mul_i32 s100, s101, 3\ns_min_u32 s101, s101, 4\ns_add_u32 s100, s100, s101\ns_add_u32 s100, s100, s50\ns_min_u32 s100, s100, 27")
        else: e("s_min_u32 s100, s52, 27")

    ctm = {"0": "s_lshr_b32 s48, s29, 3\ns_and_b32 s49, s29, 7", "1": "s_lshr_b32 s48, s29, 3\ns_add_u32 s49, s29, 1\ns_and_b32 s49, s49, 7",
           "t": "s_lshr_b32 s49, s29, 2\ns_and_b32 s48, s29, 3", "u": "s_lshr_b32 s49, s29, 2\ns_xor_b32 s49, s49, 4\ns_and_b32 s48, s29, 3"}[ctmap]
    e(f"""s_cmp_ge_u32 s2, 256
          s_cbranch_scc1 L_exit
          s_load_dwordx16 s[4:19], s[0:1], 0
          s_load_dwordx8 s[20:27], s[0:1], 64""")
    stamp(0)
    e(f"""v_lshrrev_b32 v1, 6, v0
         v_and_b32 v0, 63, v0
         v_readfirstlane_b32 s30, v1
         s_and_b32 s28, s2, 7
         s_lshr_b32 s29, s2, 3
         s_lshl_b32 s55, s28, 5
         s_add_u32 s55, s55, s29
         s_cmp_lg_u32 s30, 4
         s_cbranch_scc1 L_K""")
    sec("K1")
    e("L_K:")

    KR, VR, QG, SC, MK, WO, GU, AF, GA, MG = 16, 80, 148, 156, 164, 168, 184, 200, 216, 224
    QB, PE = QG, KR + 16
    if code_pf:
        e(f"""s_getpc_b64 s[48:49]
              L_pc:
              s_lshl_b32 s56, s29, 2
              s_add_u32 s56, s56, s30
              s_lshl_b32 s56, s56, 7
              s_min_u32 s56, s56, L_exit-{NAME}_kernel
              s_sub_u32 s48, s48, L_pc-{NAME}_kernel
              s_subb_u32 s49, s49, 0
              v_mov_b32 v1, s56
              s_mov_b64 exec, 1
              global_load_dword v15, v1, s[48:49]
              s_mov_b64 exec, -1""")
    e(f"""s_lshl_b32 s53, s28, 23
         s_lshl_b32 s54, s29, {lc}
         s_add_u32 s53, s53, s54
         s_add_u32 s53, s53, 6291456""")
    e({"0": "s_mov_b32 s56, 0", "gj": "s_lshl_b32 s56, s28, 1\ns_xor_b32 s56, s56, s29\ns_and_b32 s56, s56, 15",
       "gj1": "s_lshl_b32 s56, s28, 1\ns_and_b32 s54, s29, 1\ns_or_b32 s56, s56, s54", "j": "s_and_b32 s56, s29, 15", "g": "s_lshl_b32 s56, s28, 1", "j7": "s_and_b32 s56, s29, 7", "g8": "s_and_b32 s56, s28, 1\ns_lshl_b32 s56, s56, 3",
       "mul": "s_mul_i32 s56, s2, s2\ns_mul_i32 s56, s56, 0x9E3779B1\ns_lshr_b32 s56, s56, 28"}[rot])
    e(f"""s_lshr_b32 s54, s56, {nb}
          s_lshl_b32 s54, s54, {lc+5}
          s_or_b32 s53, s53, s54
          s_and_b32 s54, s56, {7 if lx else (1 << nb) - 1}
          s_lshl_b32 s54, s54, 12
          s_{"xor" if lx else "or"}_b32 s53, s53, s54
          v_bfe_u32 v9, v0, 3, 1
          v_lshlrev_b32 v1, 9, v9
          v_lshrrev_b32 v2, 4, v0
          v_lshl_add_u32 v1, v2, 7, v1
          v_and_b32 v10, 7, v0
          v_lshl_add_u32 v1, v10, 4, v1
          s_lshl_b32 s54, s30, 10
          s_add_u32 s98, s54, s53""")
    srd_hi(36, 67108864)
    stamp(15)
    e("s_waitcnt lgkmcnt(0)")
    srd_lo(36, 6)
    if kpre == 0: e("s_load_dword s31, s[26:27], 0\ns_barrier")
    stamp(13)

    pos, state = {}, {"n": 0, "done": -1}
    def arrived(i):
        if i > state["done"]:
            e(f"s_waitcnt vmcnt({state['n'] - 1 - i})"); state["done"] = i
    win = [W]
    def wof(name):
        if int(Wm) and name == "ML": return int(Wm)
        return int(Ww) if int(Ww) and name[:2] in ("WO", "ML") else win[0]
    far = []
    def gate(name):
        if name[0] in gfree: return -1
        w = wof(name)
        return far[-w] if len(far) >= w else -1
    def issue(name, text):
        arrived(gate(name))
        if name[0] not in gfree: far.append(state["n"])
        e(text); pos[name] = state["n"]; state["n"] += 1
    qg = [f"buffer_load_dwordx4 v[{QG}:{QG+3}], v4, s[32:35], s61 offen sc1", f"buffer_load_dwordx4 v[{QG+4}:{QG+7}], v4, s[32:35], s62 offen sc1"]
    mlg = f"buffer_load_dwordx4 v[{MG}:{MG+3}], v230, s[32:35], s3 offen sc1"
    def vop(i):
        t = f"buffer_load_dwordx4 v[{VR+4*i}:{VR+4*i+3}], v228, s[44:47], s54 offen offset:{2048*(i >> 4)} {nt}"
        t = f"s_xor_b32 s54, s99, {koff(min(i, 15))}\n" + t
        if i >= 15: t = "s_mov_b64 exec, s[22:23]\n" + t + "\ns_mov_b64 exec, -1"
        return (f"V{i}", t)
    wops = [(f"WO{m}", f"buffer_load_dwordx4 v[{WO+4*m}:{WO+4*m+3}], v11, s[40:43], s48 offen {wnt if wfl is None else wfl}\ns_add_u32 s48, s48, 7168") for m in range(4)]
    gops = [(f"GU{m}", f"global_load_dwordx4 v[{GU+4*m}:{GU+4*m+3}], v[{GA+2*m}:{GA+2*m+1}], off {wnt}") for m in range(4)]
    ops = [vop(i) for i in range(17)] + [("ML", mlg)]
    if wopos == "V": ops += wops
    if gupos == "V": ops += gops
    if wopos == "K": ops = wops + ops
    if gupos == "K": ops = gops + ops
    ops = ops[:qa] + [("G0", qg[0]), ("G1", qg[1])] + ops[qa:]
    if order:
        pool = {"V": [vop(i) for i in range(17)], "M": [("ML", mlg)], "W": list(wops), "U": list(gops), "G": [("G0", qg[0]), ("G1", qg[1])]}
        ops = []
        for c, n in re.findall(r"([A-Z])(\d*)", order):
            for _ in range(int(n) if n else len(pool[c])): ops.append(pool[c].pop(0))
        assert not any(pool[c] for c in "VMG") and bool(pool["U"]) == (gupos in ("B4", "B1"))
        gops, wlate = pool["U"], pool["W"]
    def next_op():
        if ops: issue(*ops.pop(0))
    spi = [0]
    def score_op():
        for _ in range(int(sp[spi[0]])):
            if sp[-1] == "w": next_op()
            else:
                w = win[0]; win[0] = 99; next_op(); win[0] = w
        spi[0] += 1

    w0 = int(w0) or W
    su = w0 - 1 if su is None else int(su)
    for i in range(-1, 16):
        if i == w0: arrived(0)
        win[0] = 99 if i < w0 else W
        if i >= 0: issue(f"K{i}", f"s_xor_b32 s54, s98, {koff(i)}\nbuffer_load_dwordx4 v[{KR+4*i}:{KR+4*i+3}], v1, s[36:39], s54 offen {nt}")
        if i == kpre - 1 and kpre: e("s_load_dword s31, s[26:27], 0\ns_barrier"); stamp(14)
        if i == su:
            srd(32, 26, WS_SIZE); srd(40, 12, 4096*896); srd(44, 8, 67108864)
            ffn_scalars()
            masks(MK, 7, 8)
            e(f"""v_mov_b32 v246, 0
                  v_mov_b32 v244, 0xff
                  v_and_b32 v3, 3, v0
                  v_lshrrev_b32 v5, 5, v0
                  v_and_b32 v6, 31, v0
                  v_lshlrev_b32 v4, 11, v5
                  v_lshl_add_u32 v4, v6, 4, v4
                  s_lshl_b32 s61, s28, 13
                  s_lshl_b32 s62, s30, 9
                  s_add_u32 s61, s61, s62
                  s_add_u32 s61, s61, {QP}
                  s_add_u32 s62, s61, 4096
                  v_lshlrev_b32 v6, 3, v6
                  v_lshl_add_u32 v6, v5, 2, v6
                  s_lshl_b32 s56, s30, 8
                  v_add_u32 v6, s56, v6
                  v_xor_b32 v7, 64, v1
                  v_and_b32 v12, 15, v0
                  v_lshlrev_b32 v228, 9, v2
                  v_lshl_add_u32 v228, v12, 4, v228
                  s_and_b32 s57, s30, 1
                  s_lshr_b32 s60, s30, 1
                  s_lshl_b32 s56, s57, 8
                  s_add_u32 s99, s53, s56
                  s_lshl_b32 s56, s60, 11
                  s_add_u32 s99, s99, s56
                  v_lshlrev_b32 v229, 10, v5
                  v_and_b32 v13, 1, v2
                  v_lshl_add_u32 v229, v13, 8, v229
                  v_lshl_add_u32 v229, v12, 4, v229
                  s_lshl_b32 s53, s55, 11
                  s_lshl_b32 s56, s57, 9
                  s_add_u32 s53, s53, s56
                  s_add_u32 s53, s53, {OP}
                  s_lshl_b32 s56, s57, 10
                  v_lshl_add_u32 v238, v0, 4, s56
                  v_bfe_u32 v14, v0, 2, 1
                  v_lshl_add_u32 v239, v5, 1, v9
                  v_lshl_add_u32 v239, v14, 4, v239
                  v_lshl_add_u32 v239, v13, 5, v239
                  s_lshl_b32 s56, s30, 6
                  v_lshl_add_u32 v239, v239, 4, s56
                  s_lshl_b32 s56, s30, 2
                  v_lshl_add_u32 v240, v9, 4, s56
                  v_mov_b32 v243, s56
                  v_lshrrev_b32 v241, 3, v0
                  s_lshl_b32 s56, s60, 7
                  v_lshl_add_u32 v241, v241, 4, s56
                  v_lshlrev_b32 v242, 4, v9
                  v_lshl_add_u32 v14, v2, 1, v14
                  v_lshl_add_u32 v230, v14, 2, v3
                  v_lshlrev_b32 v230, 4, v230
                  v_lshlrev_b32 v231, 11, v14
                  v_lshl_add_u32 v231, v9, 6, v231
                  v_lshl_add_u32 v231, v3, 4, v231
                  s_lshl_b32 s3, s28, 9
                  s_add_u32 s3, s3, {ML}
                  v_lshlrev_b32 v232, 4, v13
                  v_lshl_add_u32 v232, v10, 5, v232
                  v_lshl_add_u32 v232, v9, 8, v232
                  s_lshl_b32 s56, s30, 9
                  v_add_u32 v232, s56, v232
                  v_lshl_add_u32 v11, v9, 5, v2
                  v_mul_u32_u24 v11, 896, v11
                  v_lshl_add_u32 v11, v10, 4, v11
                  s_lshl_b32 s48, s28, 9
                  s_lshl_b32 s56, s50, 7
                  s_add_u32 s48, s48, s56
                  s_lshl_b32 s56, s57, 6
                  s_add_u32 s48, s48, s56
                  s_lshl_b32 s56, s60, 2
                  s_add_u32 s48, s48, s56
                  s_mul_i32 s48, s48, 896
                  s_lshl_b32 s56, s51, 7
                  s_add_u32 s48, s48, s56
                  s_cmp_lt_u32 s29, 28
                  s_cselect_b32 s42, s42, 0
                  s_cselect_b32 s48, s48, 0
                  s_lshl_b32 s49, s51, 6
                  s_lshl_b32 s56, s30, 4
                  s_add_u32 s49, s49, s56
                  s_mul_i32 s63, s49, 3584
                  s_lshl_b32 s56, s100, 7
                  s_add_u32 s63, s63, s56
                  v_mul_u32_u24 v12, 3584, v2
                  v_lshl_add_u32 v12, v10, 4, v12
                  v_add_u32 v12, s63, v12
                  s_cmp_lt_u32 s52, 28
                  s_cselect_b32 s56, -1, 0
                  v_and_b32 v12, s56, v12
                  v_cmp_eq_u32 vcc, 0, v9
                  v_mov_b32 v13, s18
                  v_mov_b32 v14, s16
                  v_cndmask_b32 v13, v13, v14, vcc
                  v_mov_b32 v14, s19
                  v_mov_b32 v8, s17
                  v_cndmask_b32 v14, v14, v8, vcc
                  v_add_co_u32 v{GA}, vcc, v13, v12
                  v_addc_co_u32 v{GA+1}, vcc, 0, v14, vcc""")
            for m in range(1, 4):
                e(f"v_add_co_u32 v{GA+2*m}, vcc, 14336, v{GA+2*m-2}\nv_addc_co_u32 v{GA+2*m+1}, vcc, 0, v{GA+2*m-1}, vcc")
            e(f"""s_cmp_eq_u32 s60, 0
                  s_cselect_b64 s[22:23], -1, 0
                  v_lshl_add_u32 v233, v3, 2, v2
                  v_add_u32 v233, s49, v233
                  v_lshlrev_b32 v234, 2, v233
                  v_and_b32 v234, 0xff, v234
                  v_lshlrev_b32 v233, 1, v233
                  v_lshl_add_u32 v235, v2, 2, v3
                  v_add_u32 v235, s49, v235
                  v_lshlrev_b32 v235, 2, v235
                  v_and_b32 v13, 12, v0
                  v_cmp_eq_u32 vcc, 0, v13
                  v_mov_b32 v13, {OOB}
                  v_cndmask_b32 v235, v13, v235, vcc
                  v_lshrrev_b32 v236, 2, v0
                  v_lshlrev_b32 v236, 8, v236
                  v_lshl_add_u32 v236, v3, 4, v236
                  s_lshl_b32 s56, s30, 10
                  v_lshl_add_u32 v237, v0, 4, s56
                  s_mov_b32 s57, {CEXP}""")
        if i == max(W, w0) + 1:
            e("s_waitcnt lgkmcnt(0)")
            tags()
            e(f"""s_getreg_b32 s56, hwreg(HW_REG_XCC_ID, 0, 4)
                  s_and_b32 s63, s97, 0xf0
                  s_or_b32 s63, s63, s56
                  s_mov_b32 s58, {SPIN}""")
            qtag_reg(8, 2)
            e("v_cmp_eq_u32 vcc, 0, v3\nv_cndmask_b32 v8, 0, v8, vcc")
            qtag_reg(245, 3)
    stamp(1)
    while "G1" not in pos: next_op()
    win[0] = int(Wq) or W
    while gate(ops[0][0]) < pos["G1"]: next_op()
    arrived(pos["G1"])
    e("L_qpoll:")
    stamp(2)
    a = QG
    e(f"""v_bitop3_b32 v12, v{a}, v{a+1}, {T0} bitop3:0x7e
          v_bitop3_b32 v13, v{a+4}, v{a+5}, {T0} bitop3:0x7e
          v_bitop3_b32 v14, v{a+2}, v{a+6}, {T1} bitop3:0x7e
          v_bitop3_b32 v15, v{a+3}, v{a+7}, s63 bitop3:0x7e
          v_or3_b32 v12, v12, v13, v14
          v_and_b32 v13, 0xf0, v15
          v_or_b32 v12, v12, v13
          v_cmp_ne_u32_sdwa vcc, v12, v246 src0_sel:BYTE_0 src1_sel:DWORD
          s_cbranch_vccnz L_qretry
          L_qdone:
          v_and_b32 v15, 15, v15
          v_cmp_ne_u32 vcc, 0, v15""")
    extra.append("L_qretry:\ns_sub_u32 s58, s58, 1\ns_cbranch_scc1 L_qdone\n" + ("" if qsc else "s_and_b32 s56, s58, 3\ns_cbranch_scc0 L_qpub\nL_qback:\n") + "\n".join(qg) + "\ns_waitcnt vmcnt(0)\ns_branch L_qpoll")
    score_op()
    for r in range(8): e(f"v_and_b32 v{a+r}, 0xffffff00, v{a+r}")
    e("s_cmp_eq_u64 vcc, 0\ns_cselect_b32 s56, %d, 1" % (1 if force_global else 0))
    for r in range(4): e(f"v_add_f32 v{a+r}, v{a+r}, v{a+4+r}")
    e(f"""v_mov_b32 v12, s56
          v_permlane32_swap_b32 v{a}, v{a+2}
          v_permlane32_swap_b32 v{a+1}, v{a+3}
          ds_write_b32 v243, v12 offset:{FLAGS}
          v_add_f32 v{a}, v{a}, v{a+2}
          v_add_f32 v{a+1}, v{a+1}, v{a+3}
          v_cvt_pk_bf16_f32 v{a}, v{a}, v{a+1}
          ds_write_b32 v6, v{a} offset:{QS}
          s_waitcnt lgkmcnt(0)
          s_barrier
          ds_read_b128 v[{QB}:{QB+3}], v1 offset:{QS}
          ds_read_b128 v[{QB+4}:{QB+7}], v7 offset:{QS}
          ds_read_b128 v[12:15], v246 offset:{FLAGS}
          ds_read_u16 v233, v233 offset:{XR}""")
    score_op()
    e("s_waitcnt lgkmcnt(0)")
    stamp(3)
    for m in list(range(0, 16, 2)) + list(range(1, 16, 2)):
        k, q = KR + 4*m, QB + 4*(m & 1)
        e(f"v_mfma_f32_16x16x32_bf16 v[{k}:{k+3}], v[{k}:{k+3}], v[{q}:{q+3}], 0")
    read_mode(12)
    e("v_lshlrev_b32 v233, 16, v233")
    for par in range(2):
        pat = (0xf0f00f0f, 0x0f0ff0f0)[par]
        e(f"s_mov_b32 exec_lo, {pat}\ns_mov_b32 exec_hi, {pat}")
        for r in range(4):
            for p in range(8):
                a = KR + 4*(2*p + par)
                if r == 0: e(f"v_mov_b32_dpp v{SC+p}, v{a} quad_perm:[0,0,0,0] row_mask:0xf bank_mask:0xf")
                else: e(f"v_add_f32_dpp v{SC+p}, v{a+r}, v{SC+p} quad_perm:[{r},{r},{r},{r}] row_mask:0xf bank_mask:0xf")
        e("s_mov_b64 exec, -1")
        if par == 0: score_op()
    Z = KR
    for u in range(4): e(f"v_permlane16_swap_b32 v{SC+2*u}, v{SC+2*u+1}")
    for u in range(4): e(f"v_add_f32_dpp v{Z+u}, v{SC+2*u+1}, v{SC+2*u} row_half_mirror row_mask:0xf bank_mask:0xf")
    for u in (0, 2): e(f"v_cvt_pk_bf16_f32 v{Z+u+1}, v{Z+u}, v{Z+u+1}")
    for u in (0, 2): e(f"v_lshlrev_b32 v{Z+u}, 16, v{Z+u+1}\nv_and_b32 v{Z+u+1}, 0xffff0000, v{Z+u+1}")
    e(f"v_max3_f32 v4, v{Z}, v{Z+1}, v{Z+2}\nv_max_f32 v4, v4, v{Z+3}")
    dpp_red("v_max_f32", [4], ["row_half_mirror"])
    xrow("v_max_f32", [4], [5])
    score_op()
    for u in range(4): e(f"v_sub_f32 v{Z+u}, v{Z+u}, v4")
    for u in range(4): e(f"v_mul_f32 v{Z+u}, s57, v{Z+u}")
    for u in range(4): e(f"v_exp_f32 v{Z+u}, v{Z+u}")
    e(f"v_add_f32 v5, v{Z}, v{Z+1}\nv_add_f32 v5, v5, v{Z+2}\nv_add_f32 v5, v5, v{Z+3}")
    dpp_red("v_add_f32", [5], ["row_half_mirror"])
    xrow("v_add_f32", [5], [6])
    e(f"""s_mov_b32 exec_lo, 0x11111111
          s_mov_b32 exec_hi, 0x11111111
          ds_write_b128 v239, v[{Z}:{Z+3}] offset:{EB}
          ds_write_b32 v240, v4 offset:{MLW}
          ds_write_b32 v240, v5 offset:{MLW+32}
          s_mov_b64 exec, -1
          s_waitcnt lgkmcnt(0)""")
    stamp(4)
    e(f"s_barrier\nds_read_b128 v[12:15], v242 offset:{MLW}")
    for mm in range(4): e(f"ds_read_b128 v[{PE+4*mm}:{PE+4*mm+3}], v241 offset:{EB+256*mm}")
    e(f"ds_read_b32 v{PE+16}, v241 offset:{EB+7*128+12}")
    score_op()
    e("s_waitcnt lgkmcnt(5)\nv_max3_f32 v4, v12, v13, v14\nv_max_f32 v4, v4, v15\nv_cmp_gt_u32 vcc, 32, v0")
    e("v_cndmask_b32 v12, v13, v12, vcc\nv_cndmask_b32 v13, v15, v14, vcc\nv_cndmask_b32 v12, v13, v12, s[22:23]")
    for w in range(2): e(f"v_sub_f32 v{12+w}, v{12+w}, v4")
    for w in range(2): e(f"v_mul_f32 v{12+w}, s57, v{12+w}")
    for w in range(2): e(f"v_exp_f32 v{12+w}, v{12+w}")
    e("s_waitcnt lgkmcnt(0)")
    for i in range(0, 16, 2): e(f"v_pk_mul_f32 v[{PE+i}:{PE+i+1}], v[{PE+i}:{PE+i+1}], v[12:13] op_sel:[0,0] op_sel_hi:[1,0]")
    e(f"v_mul_f32 v{PE+16}, v{PE+16}, v13")
    for i in range(17): e(f"v_cvt_pk_bf16_f32 v{PE+i}, v{PE+i}, v{PE+i}")
    stamp(5)
    def prep(i):
        p = PE + (4*(i & 3) + (i >> 2) if i < 16 else 16)
        for j in range(4): e(f"v_and_b32 v{AF+4*(i&3)+j}, v{p}, v{MK+j}")
    def pv(i):
        arrived(pos[f"V{i}"])
        a = AF + 4*(i & 3)
        e(f"v_mfma_f32_16x16x32_bf16 v[12:15], v[{a}:{a+3}], v[{VR+4*i}:{VR+4*i+3}], " + ("0" if i == 0 else "v[12:15]"))
    prep(0)
    if int(W2):
        win[0] = int(W2)
    since = 99
    for i in range(15):
        while not int(W2) and ops and (since >= 5 or f"V{i}" not in pos or pos[f"V{i}"] > state["done"]):
            next_op(); since = 0
        while int(W2) and ops and gate(ops[0][0]) <= max(state["done"], pos[f"V{i}"]): next_op()
        prep(i + 1); pv(i); since += 1
        if i == int(ksplit):
            sec("K2", "L_K2"); e("s_nop 4")
            if pfl:
                assert "WO0" not in pos
                e("s_cmp_ge_u32 s29, 28\ns_cbranch_scc1 L_pfa\nL_pfb:")
            if sfx: e(f"v_lshlrev_b32 v249, {fsh}, v0\nv_mov_b32 v248, s31\ns_lshl_b32 s98, s28, 13\ns_and_b32 s56, s30, 1\ns_lshl_b32 s56, s56, 5\ns_add_u32 s98, s98, s56\ns_add_u32 s98, s98, s29\ns_add_u32 s98, s98, {FL}")
    for name, t in ops:
        e(t); pos[name] = state["n"]; state["n"] += 1
    ops.clear()
    e(f"s_cmp_eq_u32 s60, 0\ns_cbranch_scc1 L_keep\nds_write_b128 v238, v[12:15] offset:{PR}\ns_waitcnt lgkmcnt(0)\ns_barrier\ns_branch L_joined\nL_keep:")
    saved = dict(state)
    prep(16); pv(15)
    e(f"s_barrier\nds_read_b128 v[4:7], v238 offset:{PR}")
    pv(16)
    e("s_waitcnt lgkmcnt(0)")
    pk_add4(12, 12, 4)
    e("v_bfi_b32 v12, v244, v245, v12")
    if opsc: e("buffer_store_dwordx4 v[12:15], v229, s[32:35], s53 offen sc1")
    else: mode_store(["buffer_store_dwordx4 v[12:15], v229, s[32:35], s53 offen"])
    if sfx: e(f"s_mov_b64 exec, {(1 << sfx) - 1 if sfx < 64 else -1}\nbuffer_store_byte v248, v249, s[32:35], s98 offen\ns_mov_b64 exec, -1")
    e("L_joined:")
    state.update(saved)
    stamp(6)
    e(f"""s_cmp_ge_u32 s29, {29 if int(wb) & 1 else 28}
          s_cbranch_scc1 {"L_dirty" if int(dirty) else "L_clean" if clean & 1 else "L_end" if dnpf is None else "L_pf"}
          s_lshl_b32 s60, s28, 16
          s_and_b32 s56, s50, 3
          s_lshl_b32 s56, s56, 9
          s_add_u32 s60, s60, s56
          s_lshl_b32 s56, s30, 7
          s_add_u32 s60, s60, s56
          s_add_u32 s60, s60, {OP}
          s_add_u32 s61, s60, 16384
          s_add_u32 s62, s60, 32768
          s_add_u32 s63, s60, 49152
          s_mov_b32 s58, {SPIN}""")
    if not sfx: e("s_barrier"); stamp(7)
    opg = [(f"buffer_load_dwordx4 v[{16+4*i}:{19+4*i}], v231, s[32:35], s{60+i} offen sc1", 16 + 4*i) for i in range(4)]
    for name, t in wlate:
        e(t); pos[name] = state["n"]; state["n"] += 1
    km, opat = state["n"] - 1 - pos["ML"], int(opat)
    def left(k, x=0):
        if k < len(wlate): e(f"s_waitcnt vmcnt({k+x})"); return
        k += x
        l1, l2 = lab("lf"), lab("lf")
        e(f"s_cmp_gt_u32 s30, 1\ns_cbranch_scc1 {l1}\ns_waitcnt vmcnt({k+1+(sfx > 0)})\ns_branch {l2}\n{l1}:\ns_waitcnt vmcnt({k})\n{l2}:")
    chk_text = lambda: "\n".join((f"v_bitop3_b32 v247, v{MG}, v{MG+1}, {T0} bitop3:0x7e", f"v_bitop3_b32 v247, v{MG+2}, {T1}, v247 bitop3:0xbe",
        f"v_bitop3_b32 v247, v{MG+3}, {T2}, v247 bitop3:0xbe", "v_cmp_ne_u32_sdwa s[4:5], v247, v246 src0_sel:BYTE_0 src1_sel:DWORD", "s_cmp_lg_u64 s[4:5], 0"))
    again = "L_mlretry:\ns_sub_u32 s58, s58, 1\ns_cbranch_scc1 L_mlgo\n" + mlg + "\ns_waitcnt vmcnt(0)\n" + chk_text() + "\ns_cbranch_scc1 L_mlretry\nL_mlgo:\n"
    if sfx:
        left(km)
        e(chk_text() + "\ns_cbranch_scc1 L_mlretry\nL_mldone:")
        extra2 = [again + "s_branch L_mldone"]
        opat = km
    elif mlo == "B":
        left(km)
        e(chk_text() + "\ns_cbranch_scc1 L_mlretry")
        if opat < km: left(opat)
        if int(dbg): stamp(1)
        e("L_opgo:")
        for t, b in opg: e(t)
        extra2 = [again + "s_branch L_opgo"]
        opat = km
    elif mlo == "A":
        e("s_mov_b32 s101, 0"); left(km)
        e(chk_text() + "\ns_cbranch_scc1 L_mlretry\nL_mldone:")
        extra2 = [again + "s_mov_b32 s101, 1\n" + "\n".join(t for t, b in opg) + "\ns_branch L_mldone"]
        assert opat < km
    else:
        if opat >= km:
            if opat < 20: left(opat)
            for t, b in opg: e(t)
            if opat > km: left(km, 4)
        else:
            e("s_mov_b32 s101, 0"); left(km)
        e("L_mlchk:")
        check(MG, 4, 247)
        e("s_cmp_lg_u64 s[4:5], 0\ns_cbranch_scc1 L_mlretry\nL_mldone:")
        extra2 = ["L_mlretry:\ns_sub_u32 s58, s58, 1\ns_cbranch_scc1 L_mldone\ns_mov_b32 s101, 1\n" + mlg + "\n" + "\n".join(t for t, b in opg) + "\ns_waitcnt vmcnt(4)\ns_branch L_mlchk"]
    e(f"""s_cmp_ge_u32 s50, 2
          s_cselect_b64 vcc, -1, 0
          v_cndmask_b32 v4, v{MG}, v{MG+2}, vcc
          v_cndmask_b32 v5, v{MG+1}, v{MG+3}, vcc
          v_and_b32 v4, 0xffff0000, v4
          v_and_b32 v5, 0xffffff00, v5
          v_mov_b32 v6, v4""")
    q8 = ["quad_perm:[1,0,3,2]", "quad_perm:[2,3,0,1]", "row_half_mirror"]
    dpp_red("v_max_f32", [6], q8); xrow("v_max_f32", [6], [7])
    e("v_sub_f32 v4, v4, v6\nv_mul_f32 v4, s57, v4\nv_exp_f32 v4, v4\nv_mul_f32 v6, v4, v5")
    dpp_red("v_add_f32", [6], q8); xrow("v_add_f32", [6], [7])
    e("v_rcp_f32 v6, v6\nv_mul_f32 v4, v4, v6")
    for i in range(4): e(f"v_mov_b32_dpp v{32+i}, v4 quad_perm:[{i},{i},{i},{i}] row_mask:0xf bank_mask:0xf")
    stamp(12)
    if opat < km:
        e("s_cmp_lg_u32 s101, 0\ns_cbranch_scc1 L_opsent")
        left(opat)
        if int(dbg): stamp(1)
        for t, b in opg: e(t)
        e("L_opsent:")
    if int(dbg): e("s_waitcnt vmcnt(4)"); stamp(3); e("s_waitcnt vmcnt(0)"); stamp(5)
    def op_acc(i, b):
        w, h = 32 + (i & 2), i & 1
        e(f"v_and_b32 v44, 0xffffff00, v{b}")
        if i == 0: e(f"v_pk_mul_f32 v[38:39], v[{b+2}:{b+3}], v[{w}:{w+1}] op_sel:[0,0] op_sel_hi:[1,0]\nv_mul_f32 v37, v{b+1}, v32\nv_mul_f32 v36, v44, v32")
        else: e(f"v_pk_fma_f32 v[38:39], v[{b+2}:{b+3}], v[{w}:{w+1}], v[38:39] op_sel:[0,{h},0] op_sel_hi:[1,{h},1]\nv_fmac_f32 v37, v{b+1}, v{32+i}\nv_fmac_f32 v36, v44, v{32+i}")
    if sfx:
        e("s_barrier"); stamp(7)
        for t, b in opg: e(t)
        if "y" in gi: e("s_barrier")
        for (name, t), c in zip(gops, gi):
            if c == "y": e(t)
        if dnpos == "Y" and zb: e("s_barrier")
        poll(opg, 4, issued=True, behind=gi.count("y"), quad=245, spec=op_acc, pre=("s_memrealtime s[80:81]\n" if stamps else "") + ("" if "y" in gi else "s_barrier\n") + "\n".join(t for (name, t), c in zip(gops, gi) if c == "0"))
        assert gupos == "B1" and ospec and not int(wb) & 1
    elif ospec:
        opre_ = ("s_memrealtime s[80:81]\n" if stamps else "") + "s_barrier\n" + "\n".join(t for (name, t), c in zip(gops, gi) if c == "0")
        hook = None
        if osr:
            hook = "\n".join(f"s_wqm_b64 s[{4+2*i}:{5+2*i}], s[{4+2*i}:{5+2*i}]" for i in range(4)) + """
                s_or_b64 s[12:13], s[4:5], s[6:7]
                s_or_b64 s[14:15], s[8:9], s[10:11]
                s_and_b64 s[16:17], s[4:5], s[6:7]
                s_and_b64 s[18:19], s[8:9], s[10:11]
                s_and_b64 vcc, s[12:13], s[14:15]
                s_or_b64 s[16:17], s[16:17], s[18:19]
                s_or_b64 vcc, vcc, s[16:17]
                s_cbranch_scc0 L_one"""
            def one_mode():
                ld = lambda r: f"s_mov_b64 exec, s[12:13]\nbuffer_load_dwordx4 v[{48+4*r}:{51+4*r}], v45, s[32:35], s60 offen sc1"
                e("L_one:\ns_or_b64 s[12:13], s[12:13], s[14:15]\nv_mov_b32 v45, v231")
                for i in range(1, 4): e(f"s_mov_b64 exec, s[{4+2*i}:{5+2*i}]\nv_add_u32 v45, {16384*i}, v231")
                e(ld(0))
                e("s_mov_b64 exec, -1\nv_cndmask_b32 v46, v32, v33, s[6:7]\nv_cndmask_b32 v47, v34, v35, s[10:11]\nv_mov_b64 v[36:37], 0\nv_mov_b64 v[38:39], 0\nv_cndmask_b32 v46, v46, v47, s[14:15]")
                at = {2: (3,), 3: (1, 3), 4: (0, 2, 3), 5: (0, 1, 2, 3), 6: (0, 1, 2, 3, 3)}[osr]
                for i in range(4):
                    w, h, b = 32 + (i & 2), i & 1, 16 + 4*i
                    e(f"""s_andn2_b64 exec, -1, s[{4+2*i}:{5+2*i}]
                          v_and_b32 v44, 0xffffff00, v{b}
                          v_pk_fma_f32 v[38:39], v[{b+2}:{b+3}], v[{w}:{w+1}], v[38:39] op_sel:[0,{h},0] op_sel_hi:[1,{h},1]
                          v_fmac_f32 v37, v{b+1}, v{32+i}
                          v_fmac_f32 v36, v44, v{32+i}""")
                    for r, a in enumerate(at):
                        if a == i: e(ld(r + 1))
                e("L_onetop:")
                for r in range(osr):
                    b = 48 + 4*r
                    e(f"""s_waitcnt vmcnt({osr-1})
                          v_cmp_ne_u32_sdwa vcc, v{b}, v245 src0_sel:BYTE_0 src1_sel:DWORD
                          v_and_b32 v44, 0xffffff00, v{b}
                          s_wqm_b64 vcc, vcc
                          s_andn2_b64 exec, s[12:13], vcc
                          v_pk_fma_f32 v[38:39], v[{b+2}:{b+3}], v[46:47], v[38:39] op_sel:[0,0,0] op_sel_hi:[1,0,1]
                          v_fmac_f32 v37, v{b+1}, v46
                          v_fmac_f32 v36, v44, v46
                          s_and_b64 s[12:13], s[12:13], vcc
                          s_cbranch_scc0 L_oneout""")
                    e(ld(r))
                e("s_sub_u32 s58, s58, 1\ns_cbranch_scc0 L_onetop\nL_oneout:\ns_mov_b64 exec, -1\n" + opre_ + "\ns_branch L_opsum")
        poll(opg, 4, issued=True, quad=245, spec=op_acc, pre=opre_, hook=hook)
        if osr: e("L_opsum:")
        assert gupos == "B1" and not int(wb) & 1
    else:
        poll(opg, 4, issued=True, quad=245)
        stamp(8)
    if int(dbg) or int(cnt) == 2: e(f"s_sub_u32 s68, {SPIN}, s58")
    def gu_at(k):
        if gupos == "B1":
            for (name, t), c in zip(gops, gi):
                if c == str(k): e(t)
    if gupos == "B1" and not ospec: e("s_barrier")
    if int(wb) & 1:
        e("s_cmp_eq_u32 s29, 28\ns_cbranch_scc1 L_wb")
        extra2.append("L_wb:\ns_cmp_lg_u32 s30, 0\ns_cbranch_scc1 L_end\nbuffer_wbl2 sc1\ns_waitcnt vmcnt(0)\n" + ("s_memrealtime s[82:83]\n" if stamps else "") + "s_branch L_end")
    if not ospec: gu_at(0)
    for i in range(0 if ospec else 4):
        w, s = 32 + (i & 2), i & 1
        for p in (0, 2):
            if i == 0: e(f"v_pk_mul_f32 v[{36+p}:{37+p}], v[{16+p}:{17+p}], v[{w}:{w+1}] op_sel:[0,0] op_sel_hi:[1,0]")
            else: e(f"v_pk_fma_f32 v[{36+p}:{37+p}], v[{16+4*i+p}:{17+4*i+p}], v[{w}:{w+1}], v[{36+p}:{37+p}] op_sel:[0,{s},0] op_sel_hi:[1,{s},1]")
    gu_at(1)
    trows(36)
    gu_at(2)
    e("""v_add_f32_dpp v37, v36, v36 row_shr:4 row_mask:0xf bank_mask:0xa
         v_add_f32_dpp v37, v36, v36 row_shl:4 row_mask:0xf bank_mask:0x5
         v_cvt_pk_bf16_f32 v37, v37, v37""")
    gu_at(3)
    def gemv4(src, wbase, bank):
        for m in range(5):
            if m < 4:
                for j in range(4): e(f"v_and_b32_dpp v{AF+4*m+j}, v{src}, v{MK+j} quad_perm:[{m},{m},{m},{m}] row_mask:0xf bank_mask:{bank}")
            if m >= 1:
                p = m - 1
                e(f"v_mfma_f32_16x16x32_bf16 v[40:43], v[{AF+4*p}:{AF+4*p+3}], v[{wbase+4*p}:{wbase+4*p+3}], " + ("0" if p == 0 else "v[40:43]"))
    gemv4(37, WO, "0xf")
    gu_at(4)
    e(f"""s_mov_b32 exec_lo, 0x00ff00ff
          s_mov_b32 exec_hi, 0xff00ff00
          ds_write_b128 v232, v[40:43] offset:{RED}
          s_mov_b64 exec, -1
          s_waitcnt lgkmcnt(0)""")
    stamp(9)
    e(f"""s_barrier
          s_lshl_b32 s56, s30, 6
          s_cmp_ge_u32 s52, 28
          s_cbranch_scc1 {"L_fin03" if ff else "L_end"}
          L_finback:
          v_mov_b32 v16, 0x3f803f80
          s_mul_i32 s60, s51, {BS}
          s_add_u32 s60, s60, s56
          s_add_u32 s60, s60, {CP}""")
    if ff:
        assert int(sw) != 0 and not cack and int(wb) & 6 != 6 and hlate == 3 and dnpos == "F" and not sfl and fin != "0"
        extra2.append("L_fin03:\ns_cmp_lg_u32 s30, s50\ns_cbranch_scc1 L_end\n" + ("" if stamps else "s_mov_b32 s30, 0\n") + "v_mov_b32 v235, 0x40000000\n" + ("s_barrier\n" if ffb else "") + "s_branch L_finback")
    if home == "v":
        e(f"""v_and_b32 v17, 0x100, v{MG}
              v_cmp_ne_u32 vcc, 0, v17
              s_bcnt1_i32_b64 s56, vcc
              s_cmp_lt_u32 s56, {4 if int(pst) == 2 else 26}
              s_cselect_b32 s56, 8192, 0""")
    else: e(f"s_lshr_b32 s56, s28, 2\ns_xor_b32 s56, s56, {home}\ns_lshl_b32 s56, s56, 13")
    e(f"s_add_u32 s60, s60, s56\nv_mov_b32 v17, s56\nds_write_b32 v246, v17 offset:{FLAGS+16}")
    e(f"""s_add_u32 s61, s60, 4096
          s_lshl_b32 s62, s52, 11
          s_add_u32 s62, s62, {HH}
          s_mov_b32 s63, 0xffff0000""")
    for m in range(4):
        for j in range(4): e(f"v_and_b32 v{AF+4*m+j}, v16, v{MK+j}")
    if gupos == "B4":
        for name, t in gops: e(t)
    for r in range(4): e(f"v_mov_b32 v{20+r}, {'v245' if r == 0 else 0}")
    e("v_lshlrev_b32 v1, 4, v0")
    poll_init(2, 4)
    if cack: e("s_barrier")
    assert ct
    if ct:
        for r in range(4): e(f"v_mov_b32 v{16+r}, 0")
        poll_sum(lambda i, b: f"buffer_load_dwordx4 v[{b}:{b+3}], v236, s[32:35], s{60+i} offen {cld}", 16, 48, 245, ct)
        stamp(10)
        if dnpos == "C": e("s_barrier")
        if dnpos == "F": e(f"ds_write_b32 v246, v244 offset:{FLAGS+32}")
    else:
        poll([(f"buffer_load_dwordx4 v[{16+4*i}:{19+4*i}], v236, s[32:35], s{60+i} offen sc1", 16 + 4*i) for i in range(2)], 4, quad=245)
        stamp(10)
        pk_add4(16, 16, 20)
    trows(16)
    dpp_red("v_add_f32", [16], ["row_ror:4", "row_ror:8"])
    bfround(16)
    e("v_add_f32 v16, v16, v233\nv_cvt_pk_bf16_f32 v16, v16, v16\nv_and_or_b32 v17, v16, s63, v8")
    if hlate < 2: mode_store(["buffer_store_dword v17, v235, s[32:35], s62 offen"])
    if hlate < 1: e(f"ds_write_b32 v234, v17 offset:{HL}")
    gemv4(16, GU, "0x3")
    if hlate == 2: mode_store(["buffer_store_dword v17, v235, s[32:35], s62 offen"])
    if hlate >= 1: e(f"ds_write_b32 v234, v17 offset:{HL}")
    e(f"ds_write_b128 v237, v[40:43] offset:{RED2}")
    if hlate == 3: mode_store(["buffer_store_dword v17, v235, s[32:35], s62 offen"])
    e("s_waitcnt lgkmcnt(0)")
    stamp(11)
    e(f"s_barrier\ns_cmp_lg_u32 s30, {sw}\ns_cbranch_scc1 L_end")
    if ff and stamps: e("s_cmp_ge_u32 s52, 28\ns_cbranch_scc1 L_end")
    L48 = (1 << 48) - 1
    r16 = ["row_ror:8", "row_ror:4", "row_ror:2", "row_ror:1"]
    poll_init(2, 4, {1: L48})
    assert not clean & 3
    poll([("buffer_load_dwordx4 v[16:19], v1, s[32:35], s62 offen sc1", 16), ("buffer_load_dwordx4 v[20:23], v1, s[32:35], s62 offen offset:1024 sc1", 20)], 4, quad=245)
    e("""v_pk_add_f32 v[28:29], v[18:19], v[22:23]
         v_pk_mul_f32 v[30:31], v[18:19], v[18:19]
         v_pk_add_f32 v[28:29], v[28:29], v[16:17]
         v_pk_fma_f32 v[30:31], v[22:23], v[22:23], v[30:31]
         v_pk_add_f32 v[28:29], v[28:29], v[20:21]
         v_pk_fma_f32 v[30:31], v[16:17], v[16:17], v[30:31]
         v_add_f32 v40, v28, v29
         v_pk_fma_f32 v[30:31], v[20:21], v[20:21], v[30:31]
         v_add_f32 v41, v30, v31
         v_permlane32_swap_b32 v40, v41
         v_add_f32 v40, v40, v41""")
    dpp_red("v_add_f32", [40], r16)
    e(f"""v_add_f32_dpp v40, v40, v40 row_bcast:15 row_mask:0xa bank_mask:0xf
          v_mul_f32 v40, {f2u(1/448)}, v40
          v_readlane_b32 s56, v40, 16
          s_brev_b64 exec, 1
          v_fma_f32 v41, -s56, s56, v40
          v_max_f32 v41, 0, v41
          v_cvt_pk_bf16_f32 v41, s56, v41
          v_lshlrev_b32 v40, 16, v41
          v_and_b32 v41, 0xffff0000, v41""")
    e(f"v_add_f32 v41, {f2u(1e-5)}, v41"); bfround(41)
    e("v_sqrt_f32 v41, v41"); bfround(41)
    e("v_rcp_f32 v41, v41")
    e(f"ds_write_b64 v246, v[40:41] offset:{FLAGS+24}\ns_waitcnt lgkmcnt(0)")
    stamp(13)
    if not sfl: e("s_barrier")
    if sfl: pass
    elif int(wb) & 6 == 6: e("s_cmp_lt_u32 s28, 4\ns_cbranch_scc1 L_nowb" if fin == "t" else f"s_cmp_lg_u32 s28, {fin}\ns_cbranch_scc1 L_nowb")
    if int(wb) & 2 and not sfl: e(f"s_cmp_lg_u32 s29, {wbj}\ns_cbranch_scc1 L_nowb\nbuffer_wbl2 sc1" + ("\ns_waitcnt vmcnt(0)" if int(wbw) & 2 else "")); stamp(9); e("L_nowb:")
    if clean & 2:
        e("""s_cmp_lg_u32 s51, 0
             s_cbranch_scc1 L_end
             buffer_store_dwordx4 v[16:19], v1, s[32:35], s62 offen sc1
             s_mov_b32 exec_hi, 0xffff
             buffer_store_dwordx4 v[20:23], v1, s[32:35], s62 offen offset:1024 sc1""")
    if ck & 2:
        e(f"""s_mul_i32 s60, s52, 7168
              s_lshl_b32 s56, s51, 10
              s_add_u32 s60, s60, s56
              s_lshl_b32 s56, s51, 8
              s_add_u32 s62, s62, s56
              s_barrier""")
        for i in range(8): e(f"s_load_dword s4, s[26:27], s60 offset:{DP + 128*i} glc")
        for i in range(2): e(f"s_load_dword s4, s[26:27], s62 offset:{128*i} glc")
        e("s_waitcnt lgkmcnt(0)")
        stamp(9)
    if epo[0] == "C" and not sfl: e("s_cmp_lg_u32 s2, 0\ns_cbranch_scc1 L_end\ns_mov_b64 exec, 1\nv_mov_b32 v16, s31\nbuffer_store_dword v16, v246, s[32:35], 0 offen " + epo[1:])
    if int(pcdbg): e("s_getpc_b64 s[4:5]\nv_mov_b32 v16, s4\nv_mov_b32 v17, s5\nglobal_store_dwordx2 v246, v[16:17], s[24:25] sc1")
    e("L_end:")
    finish()
    if osr: one_mode()
    sec("K0")
    for t in extra2: e(t)
    if not qsc:
        sec("Q3y" if osr else "Q3x")
        e(f"""L_qpub:
              v_lshlrev_b32 v204, 4, v0
              s_mov_b64 exec, 0xffff
              ds_read_b128 v[200:203], v204 offset:{QC}
              {ctm.replace("s48", "s54").replace("s49", "s56")}
              s_lshl_b32 s54, s54, 11
              s_lshl_b32 s56, s56, 8
              s_add_u32 s56, s56, s54
              s_lshl_b32 s54, s28, 13
              s_add_u32 s56, s56, s54
              s_add_u32 s56, s56, {QP}
              s_waitcnt lgkmcnt(0)
              v_bitop3_b32 v205, v200, v201, {T0} bitop3:0x7e
              v_bitop3_b32 v205, v202, {T1}, v205 bitop3:0xbe
              v_bitop3_b32 v205, v203, s63, v205 bitop3:0xbe
              v_cmp_eq_u32_sdwa vcc, v205, v246 src0_sel:BYTE_0 src1_sel:DWORD
              s_mov_b64 exec, vcc
              buffer_store_dwordx4 v[200:203], v204, s[32:35], s56 offen sc1
              s_mov_b64 exec, -1
              s_branch L_qback""")
    if dnpf is not None:
        sec("Q3x")
        def slab(d, none):
            if ff:
                e(f"""s_and_b32 s56, s52, 7
                  s_lshl_b32 s56, s56, 2
                  s_add_u32 s56, s56, s29
                  s_sub_u32 s{d}, s56, 28
                  s_cmp_ge_u32 s{d}, 28
                  s_cbranch_scc1 {none}
                  s_mul_i32 s{d}, s{d}, 57344""")
                return
            e(f"""s_sub_u32 s50, s29, 28
              s_and_b32 s56, s52, 7
              s_lshl_b32 s{d}, s50, 3
              s_add_u32 s{d}, s{d}, s56
              s_cmp_ge_u32 s{d}, 28
              {"s_cselect_b32 s50, 0, s50" if none is None else "s_cbranch_scc1 " + none}
              s_mul_i32 s{d}, s56, 3
              s_min_u32 s56, s56, 4
              s_add_u32 s{d}, s{d}, s56
              s_add_u32 s{d}, s{d}, s50
              s_mul_i32 s{d}, s{d}, 57344""")
        if pfl:
            e("L_pfa:"); slab(48, "L_pfb")
            e(f"""s_mul_i32 s56, s30, {128*pfl}
              s_add_u32 s48, s48, s56
              v_lshrrev_b32 v11, 2, v0
              v_min_u32 v11, {pfl-1}, v11
              v_lshlrev_b32 v11, 7, v11""")
            srd(40, 20, 1792*896)
            e("s_branch L_pfb")
        e("L_pf:")
        if ck & 1:
            e(f"""s_lshl_b32 s63, s29, 2
                  s_add_u32 s63, s63, s30
                  s_and_b32 s63, s63, 15
                  s_lshl_b32 s56, s28, 4
                  s_add_u32 s63, s63, s56
                  s_lshl_b32 s56, s63, 9""")
            for i in range(4): e(f"s_load_dword s4, s[26:27], s56 offset:{QP + 128*i} glc")
            e("s_lshl_b32 s63, s63, 12\ns_lshl_b32 s49, s30, 7\ns_add_u32 s49, s49, s3\ns_waitcnt lgkmcnt(0)" if int(dnpf) == 0 else "s_lshl_b32 s63, s63, 12\ns_lshl_b32 s49, s30, 7\ns_add_u32 s49, s49, s3")
        slab(60, None if ck & 1 else "L_end")
        e(f"""s_mul_i32 s56, s30, 7168
              s_add_u32 s61, s60, s56
              s_add_u32 s60, s61, 28672
              s_add_u32 s61, s61, {512*pfl}
              v_lshlrev_b32 v1, 7, v0""")
        srd(44, 20, 1792*896)
        if int(dnpf):
            e(f"""s_cmp_lg_u32 s30, 0
              s_cbranch_scc1 L_pfgo
              v_and_b32 v2, 31, v0
              v_lshlrev_b32 v2, 11, v2
              v_lshrrev_b32 v3, 5, v0
              v_lshl_add_u32 v2, v3, 9, v2
              v_mov_b32 v6, s31
              s_lshl_b32 s62, s28, 16
              s_add_u32 s62, s62, {OP}
              s_mov_b32 s58, 64
              L_pfpoll:
              s_sub_u32 s58, s58, 1
              s_cbranch_scc1 L_pfgo
              buffer_load_dword v3, v2, s[32:35], s62 offen sc1
              s_waitcnt vmcnt(0)
              v_cmp_eq_u32_sdwa vcc, v3, v6 src0_sel:BYTE_0 src1_sel:BYTE_0
              s_bcnt1_i32_b64 s56, vcc
              s_cmp_lt_u32 s56, {int(dnpf)}
              s_cbranch_scc1 L_pfpoll
              L_pfgo:""")
        e("s_barrier"); stamp(7)
        m2 = (1 << (56 - 4*pfl)) - 1
        if m2: e(f"s_mov_b32 exec_lo, {m2 & 0xffffffff}\ns_mov_b32 exec_hi, {m2 >> 32}\nbuffer_load_dword v5, v1, s[44:47], s61 offen")
        e("s_mov_b32 exec_lo, -1\ns_mov_b32 exec_hi, 0xffffff\nbuffer_load_dword v4, v1, s[44:47], s60 offen\ns_waitcnt vmcnt(%d)" % int(ckw))
        stamp(8)
        if ck & 1:
            for i in range(32): e(f"s_load_dword s4, s[26:27], s63 offset:{OP + 128*i} glc")
            e("s_load_dword s4, s[26:27], s49 glc\ns_waitcnt vmcnt(0) lgkmcnt(0)")
            stamp(9)
        e("s_branch L_end")
    if clean & 1:
        sec("Q3x")
        e(f"""L_clean:
              v_lshlrev_b32 v1, 4, v0
              v_mov_b32 v12, v245
              s_lshl_b32 s60, s28, 16
              s_and_b32 s56, s29, 3
              s_lshl_b32 s56, s56, 14
              s_add_u32 s60, s60, s56
              s_lshl_b32 s56, s30, 12
              s_add_u32 s60, s60, s56
              s_add_u32 s60, s60, {OP}
              s_cmp_lg_u32 s30, 0
              s_cbranch_scc1 L_clst
              v_lshlrev_b32 v2, 8, v0
              s_lshl_b32 s62, s28, 11
              s_add_u32 s62, s62, {HH}
              s_mov_b32 s58, {SPIN}
              s_mov_b64 exec, 0x7f
              L_clpoll:
              s_sub_u32 s58, s58, 1
              s_cbranch_scc1 L_clgo
              buffer_load_dwordx4 v[16:19], v2, s[32:35], s62 offen sc1
              s_waitcnt vmcnt(0)""")
        check(16, 4, 247)
        e(f"""s_cmp_lg_u64 s[4:5], 0
              s_cbranch_scc1 L_clpoll
              L_clgo:
              s_mov_b64 exec, -1
              s_cmp_lg_u32 s29, 28
              s_cbranch_scc1 L_clst
              buffer_store_dwordx4 v[{MG}:{MG+3}], v230, s[32:35], s3 offen sc1
              L_clst:
              s_barrier""")
        for i in range(4): e(f"buffer_store_dwordx4 v[12:15], v1, s[32:35], s60 offen offset:{1024*i} sc1")
        e("s_branch L_end")
    if int(dirty):
        sec("Q3x")
        e(f"""L_dirty:
              s_mov_b32 s34, 0x4000000
              s_lshl_b32 s56, s55, 2
              s_add_u32 s56, s56, s30
              s_mul_i32 s56, s56, {abs(int(dirty))*1024}
              s_add_u32 s56, s56, 0x400000
              s_mov_b32 s57, {abs(int(dirty))}
              v_lshlrev_b32 v1, 4, v0
              L_dloop:
              buffer_store_dwordx4 v[12:15], v1, s[32:35], s56 offen {"sc1" if int(dirty) < 0 else ""}
              s_add_u32 s56, s56, 1024
              s_sub_u32 s57, s57, 1
              s_cmp_lg_u32 s57, 0
              s_cbranch_scc1 L_dloop
              s_branch L_end""")

    WQ, F, XA, MK, DN = 16, 80, 96, 112, 128
    sec("A")
    e(f"""s_setprio 3
          v_lshlrev_b32 v1, 4, v0
          v_lshrrev_b32 v2, 3, v0
          v_and_b32 v3, 7, v0
          v_mul_u32_u24 v4, {14*8192}, v2
          v_lshl_add_u32 v4, v3, 4, v4
          {ctm}
          s_mul_i32 s54, s48, {112*8192}
          s_lshl_b32 s56, s28, 10
          s_add_u32 s54, s54, s56
          s_lshl_b32 s56, s49, 7
          s_add_u32 s54, s54, s56""")
    if not qsc: e(f"v_mov_b32 v6, 0\nv_mov_b32 v7, 1\nds_write_b64 v1, v[6:7] offset:{QC}")
    srd_hi(40, 896); srd_hi(36, 448*8192)
    stamp(15)
    e("s_waitcnt lgkmcnt(0)")
    if int(st0) == 1: stamp(6)
    srd_lo(40, 4)
    e("buffer_load_dwordx4 v[8:11], v1, s[40:43], 0 offen")
    srd_lo(36, 10)
    for i in range(14):
        e(f"buffer_load_dwordx4 v[{WQ+4*i}:{WQ+4*i+3}], v4, s[36:39], s54 offen {wnt if qnt is None else qnt}")
        if i < 13: e("s_add_u32 s54, s54, 8192")
        if int(st0) == 1 and i in (4, 9, 13): stamp({4: 7, 9: 8, 13: 9}[i])
    e("s_load_dword s31, s[26:27], 0\ns_barrier")
    sec("Q1", "L_Q1")
    tlb = int(tlb)
    if tlb:
        e(f"""s_lshl_b32 s54, s28, 23
              s_add_u32 s54, s54, 6291456
              s_add_u32 s60, s8, s54
              s_addc_u32 s61, s9, 0
              s_mul_i32 s54, s28, {512*896}
              s_add_u32 s62, s12, s54
              s_addc_u32 s63, s13, 0
              s_add_u32 s56, s62, {512*896-128}
              s_addc_u32 s57, s63, 0
              v_mov_b32 v12, s60
              v_mov_b32 v13, s61""")
        for ln, r in enumerate((62, 56, 16, 18, 20, 22, 26)):
            e(f"v_writelane_b32 v12, s{r}, {ln+1}\nv_writelane_b32 v13, s{r+1}, {ln+1}")
        touch = f"s_mov_b64 exec, {tlm}\nglobal_load_dword v250, v[12:13], off\ns_mov_b64 exec, -1"
        if tlb == 1: e(touch)
    srd(32, 26, WS_SIZE); srd(40, 22, 896); srd(44, 20, 1792*896)
    if int(qpre):
        e(f"""s_lshl_b32 s54, s28, 13
              s_add_u32 s54, s54, {QP}
              s_lshl_b32 s56, s48, 11
              s_add_u32 s56, s56, s54
              s_lshl_b32 s61, s49, 8
              s_add_u32 s56, s56, s61
              v_lshlrev_b32 v12, 7, v0
              s_mov_b64 exec, 3
              buffer_load_dword v250, v12, s[32:35], s56 offen sc1
              s_mov_b64 exec, -1""")
    ffn_scalars()
    masks(MK, 72, 73)
    e("v_mov_b32 v246, 0\nv_mov_b32 v245, 0xff\ns_waitcnt vmcnt(%d)" % (14 + (tlb == 1) + int(qpre)))
    if tlb == 2: e(touch)
    tlb = (tlb > 0) + int(qpre)
    skew_store = f"s_lshl_b32 s56, s2, 2\ns_add_u32 s56, s56, {STAMP}\nv_mov_b32 v13, s64\nbuffer_store_dword v13, v246, s[32:35], s56 offen sc1"
    stamp(1)
    e(f"ds_write_b128 v1, v[8:11] offset:{XR}")
    for i in range(4): e(f"v_lshlrev_b32 v{F+2*i}, 16, v{8+i}\nv_and_b32 v{F+2*i+1}, 0xffff0000, v{8+i}")
    e(f"v_add_f32 v72, v{F}, v{F+1}")
    for i in range(2, 8): e(f"v_add_f32 v72, v72, v{F+i}")
    r16 = ["row_ror:8", "row_ror:4", "row_ror:2", "row_ror:1"]
    dpp_red("v_add_f32", [72], r16)
    xrow("v_add_f32", [72], [73])
    e(f"v_mul_f32 v72, {f2u(1/448)}, v72\nv_mov_b32 v73, 0")
    for i in range(8): e(f"v_sub_f32 v74, v{F+i}, v72\nv_fmac_f32 v73, v74, v74")
    e("v_cmp_gt_u32 vcc, 56, v0\nv_cndmask_b32 v73, 0, v73, vcc")
    dpp_red("v_add_f32", [73], r16)
    xrow("v_add_f32", [73], [74])
    e(f"v_mul_f32 v73, {f2u(1/448)}, v73")
    bfround(72); bfround(73)
    e(f"v_add_f32 v73, {f2u(1e-5)}, v73"); bfround(73)
    e("v_sqrt_f32 v73, v73"); bfround(73)
    e("v_rcp_f32 v74, v73")
    for i in range(8): e(f"v_sub_f32 v{F+i}, v{F+i}, v72")
    for i in range(0, 8, 2): e(f"v_cvt_pk_bf16_f32 v{F+i+1}, v{F+i}, v{F+i+1}")
    for i in range(0, 8, 2): e(f"v_lshlrev_b32 v{F+i}, 16, v{F+i+1}\nv_and_b32 v{F+i+1}, 0xffff0000, v{F+i+1}")
    for i in range(8): e(f"v_mul_f32 v{F+8+i}, v{F+i}, v74")
    for i in range(8): e(f"v_fma_f32 v{F+i}, -v{F+8+i}, v73, v{F+i}")
    for i in range(8): e(f"v_fmac_f32 v{F+8+i}, v{F+i}, v74")
    for i in range(8): e(f"v_cvt_pk_bf16_f32 v{F+i}, v{F+8+i}, v{F+8+i}")
    e(f"""v_lshlrev_b32 v72, 5, v0
          ds_write_b128 v72, v[{F}:{F+3}] offset:{XN}
          ds_write_b128 v72, v[{F+4}:{F+7}] offset:{XN+16}
          v_mul_u32_u24 v73, 56, v2
          s_mul_i32 s56, s48, 448
          v_add_u32 v73, s56, v73
          s_waitcnt lgkmcnt(0)""")
    for i in range(7): e(f"ds_read_b64 v[{XA+2*i}:{XA+2*i+1}], v73 offset:{XN+8*i}")
    tags()
    e(f"""s_getreg_b32 s56, hwreg(HW_REG_XCC_ID, 0, 4)
          s_and_b32 s63, s97, 0xf0
          s_or_b32 s63, s63, s56
          s_waitcnt lgkmcnt(0)""")
    stamp(2)
    for i in range(15):
        if i < 14:
            a = (116, 120)[i & 1]
            for j in range(4): e(f"v_and_b32 v{a+j}, v{XA+i}, v{MK+j}")
        if i >= 1:
            p = i - 1; a = (116, 120)[p & 1]
            e(f"s_waitcnt vmcnt({13-p+tlb})\nv_mfma_f32_16x16x32_bf16 v[8:11], v[{a}:{a+3}], v[{WQ+4*p}:{WQ+4*p+3}], " + ("0" if p == 0 else "v[8:11]"))
    e(f"""v_lshrrev_b32 v5, 4, v0
          v_lshlrev_b32 v72, 4, v5
          v_lshl_add_u32 v72, v3, 5, v72
          v_and_b32 v73, 40, v0
          v_mov_b32 v12, {OOB}
          v_cmp_eq_u32 vcc, 0, v73
          v_cndmask_b32 v72, v12, v72, vcc
          s_lshl_b32 s54, s28, 13
          s_add_u32 s54, s54, {QP}
          s_lshl_b32 s56, s48, 11
          s_add_u32 s56, s56, s54
          s_lshl_b32 s61, s49, 8
          s_add_u32 s56, s56, s61""")
    for r in range(4): e(f"v_mov_b32_dpp v{F+r}, v{8+r} row_ror:8 row_mask:0xf bank_mask:0xf")
    for r in range(4): e(f"v_permlane32_swap_b32 v{F+r}, v{F+4+r}")
    for r in range(4): e(f"v_add_f32 v{8+r}, v{8+r}, v{F+4+r}")
    for r in range(4): e(f"v_add_u32 v{8+r}, 0x80, v{8+r}")
    tag4(8, 245, "s63")
    e(f"buffer_store_dwordx4 v[8:11], v72, s[32:35], s56 offen {qsc}")
    if not qsc: e(f"s_mov_b32 s3, s56\nv_mov_b32 v71, v72\ns_mov_b64 exec, vcc\nds_write_b128 v72, v[8:11] offset:{QC}\ns_mov_b64 exec, -1")
    stamp(3)
    if skew is not None: e(skew_store)
    e(f"""s_lshr_b32 s53, s2, 6
          s_lshl_b32 s53, s53, 14
          s_and_b32 s56, s2, 63
          s_lshl_b32 s56, s56, 7
          s_add_u32 s53, s53, s56
          s_add_u32 s53, s53, {PB}
          v_lshlrev_b32 v6, 10, v0
          v_and_b32 v6, 0x2000, v6
          v_lshl_add_u32 v6, v3, 4, v6""")
    for r in range(4): e(f"v_mov_b32 v{16+r}, 0x100")
    if int(pst) == 2: e("s_cmp_lt_u32 s29, 28\ns_cbranch_scc1 L_noprobe")
    if int(pst): e("s_mov_b64 exec, 0xffff\nbuffer_store_dwordx4 v[16:19], v6, s[32:35], s53 offen sc1\ns_mov_b64 exec, -1")
    e("L_noprobe:")
    e(f"""s_setprio 0
          s_lshl_b32 s54, s55, 11
          s_add_u32 s54, s54, {OP}
          v_lshl_add_u32 v6, v0, 7, s54
          s_lshr_b32 s48, s29, 3
          s_and_b32 s49, s29, 7
          s_lshl_b32 s60, s49, 6
          s_lshl_b32 s56, s48, 4
          s_add_u32 s60, s60, s56
          s_lshl_b32 s56, s28, 9
          s_add_u32 s60, s60, s56
          s_add_u32 s60, s60, {ML}
          s_mul_i32 s61, s52, 7168
          s_add_u32 s61, s61, {DP}
          s_lshl_b32 s56, s51, 10
          s_add_u32 s62, s61, s56
          s_sub_u32 s56, s62, {16*128}
          v_lshl_add_u32 v7, v0, 7, s56
          v_cmp_gt_u32 vcc, 16, v0
          v_cndmask_b32 v6, v7, v6, vcc
          s_lshl_b32 s63, s52, 11
          s_add_u32 s63, s63, {HH}
          s_lshl_b32 s56, s51, 8
          s_add_u32 s56, s56, s63
          v_writelane_b32 v6, s56, 24
          s_add_u32 s56, s56, 128
          v_writelane_b32 v6, s56, 25
          v_writelane_b32 v6, s60, 26
          {f"s_lshl_b32 s98, s28, 13{NL}s_and_b32 s56, s50, 1{NL}s_lshl_b32 s56, s56, 5{NL}s_add_u32 s98, s98, s56{NL}s_add_u32 s98, s98, {FL}{NL}s_lshl_b32 s56, s29, 7{NL}s_and_b32 s56, s56, {max((sfx << fsh) - 128, 0)}{NL}s_add_u32 s56, s56, s98{NL}v_writelane_b32 v6, s56, 27" if sfx else ""}
          s_cmp_lt_u32 s52, 28
          s_cselect_b32 s56, 0x03ff0000, 0
          s_or_b32 exec_lo, s56, {0x0c00ffff if sfx else 0x0400ffff}
          s_mov_b32 exec_hi, 0
          {"buffer_load_dword v13, v6, s[32:35], 0 offen sc1" if int(pre) & 1 else ""}
          s_mov_b64 exec, -1
          v_cmp_eq_u32 vcc, 0, v0
          v_cndmask_b32 v14, v12, v0, vcc
          v_and_b32 v72, 1, v0
          v_lshlrev_b32 v72, 4, v72
          s_mov_b32 s57, {CEXP}
          v_and_b32 v3, 3, v0
          v_and_b32 v6, 1, v5
          v_lshlrev_b32 v6, 2, v6
          v_lshrrev_b32 v7, 1, v5
          v_lshl_add_u32 v6, v7, 1, v6
          v_mul_u32_u24 v6, 896, v6
          v_and_b32 v7, 15, v0
          v_lshl_add_u32 v6, v7, 3, v6
          s_mul_i32 s48, s100, 57344
          s_lshl_b32 s56, s51, 7
          s_add_u32 s48, s48, s56
          s_mul_i32 s49, s51, {BS}
          s_lshl_b32 s56, s28, 10
          s_add_u32 s49, s49, s56
          s_lshl_b32 s56, s50, 8
          s_add_u32 s49, s49, s56
          s_add_u32 s49, s49, {CP}
          v_lshlrev_b32 v2, 2, v0""")
    qtag_reg(244, 3)
    e("v_bfe_u32 v15, v0, 2, 2")
    qtag_reg(15, 15)
    e("v_cmp_eq_u32 vcc, 0, v3\nv_cndmask_b32 v243, 0, v245, vcc")
    e(f"""s_mul_i32 s54, s51, {BS}
          s_add_u32 s54, s54, {EP}
          s_lshl_b32 s56, s52, 8
          s_add_u32 s54, s54, s56
          v_lshlrev_b32 v249, 7, v0
          v_lshlrev_b32 v250, 12, v0
          v_and_b32 v249, 0x80, v249
          v_and_b32 v250, 0x2000, v250
          v_or_b32 v249, v249, v250
          s_cmp_ge_u32 s29, 28
          s_cbranch_scc1 L_nopre
          s_mov_b64 exec, 15
          {"buffer_load_dword v250, v249, s[32:35], s49 offen sc1" if int(pre) & 2 else ""}
          s_cmp_ge_u32 s52, 28
          s_cbranch_scc1 {"L_opre" if ff else "L_nopre"}
          {f"s_mov_b64 exec, {(1 << 4*er) - 1}{NL}v_lshrrev_b32 v251, 2, v0{NL}v_mul_u32_u24 v251, {ES}, v251{NL}v_add_u32 v249, v249, v251" if er > 1 else ""}
          {"buffer_load_dword v250, v249, s[32:35], s54 offen sc1" if int(pre) & 4 else ""}""")
    if opre: e(f"""s_lshr_b32 s56, s52, 2
          {"s_cmp_lg_u32 s56, 1" if fin == "t" else f"s_cmp_lg_u32 s28, {fin}"}
          s_cbranch_scc1 L_nopre
          L_opre:
          s_lshl_b32 s56, s51, 7
          buffer_load_dword v250, v246, s[40:43], s56 offen {opre.replace("p", "")}""")
    e(f"""L_nopre:
          s_mov_b64 exec, -1""")
    def load_dn(guard=True, part=None):
        skip = lab("nodn")
        if guard: e(f"s_cmp_ge_u32 s52, 28\ns_cbranch_scc1 {skip}")
        for i in range(8) if part is None else range(4*part, 4*part + 4):
            for hi in range(2):
                d = DN + 2*(8*hi + i)
                e(f"buffer_load_dwordx2 v[{d}:{d+1}], v6, s[44:47], s48 offen offset:{896*hi} {wnt if dnf is None else dnf}")
            if i < 7: e("s_add_u32 s48, s48, 7168")
        e(f"{skip}:")
    if dnpos == "K": load_dn()
    if int(pst) == 2: e("s_mov_b32 s101, 0\ns_cmp_lt_u32 s29, 28\ns_cbranch_scc1 L_Q2")
    e("""s_waitcnt vmcnt(0)
         s_mov_b32 s99, 0
         s_load_dword s98, s[26:27], s53 offset:0
         s_load_dword s99, s[26:27], s53 offset:8192
         s_waitcnt lgkmcnt(1)
         s_andn2_b32 s101, 0x100, s99""")
    sec("Q2", "L_Q2")
    sec("Q3", "L_Q3")
    e(f"s_barrier\nds_read_b128 v[24:27], v246 offset:{FLAGS}\ns_waitcnt lgkmcnt(0)")
    read_mode(24)
    if not qsc:
        e("s_cmp_lg_u32 s59, 0\ns_cbranch_scc1 L_qfar\nL_qnear:")
        deferred.append(("L_qfar", "L_qnear", ["buffer_store_dwordx4 v[8:11], v71, s[32:35], s3 offen"]))
    if dnpos == "q": load_dn()
    e("s_setprio 3\ns_barrier")
    stamp(4)
    e(f"""
          ds_read_b128 v[16:19], v72 offset:{MLW}
          ds_read_b128 v[20:23], v72 offset:{MLW+32}
          s_waitcnt lgkmcnt(0)
          v_max3_f32 v8, v16, v17, v18
          v_max_f32 v8, v8, v19""")
    for w in range(4): e(f"v_sub_f32 v{16+w}, v{16+w}, v8")
    for w in range(4): e(f"v_mul_f32 v{16+w}, s57, v{16+w}")
    for w in range(4): e(f"v_exp_f32 v{16+w}, v{16+w}")
    e("""v_mul_f32 v9, v16, v20
         v_fmac_f32 v9, v17, v21
         v_fmac_f32 v9, v18, v22
         v_fmac_f32 v9, v19, v23
         v_mov_b32_dpp v10, v8 quad_perm:[1,1,1,1] row_mask:0xf bank_mask:0xf
         v_mov_b32_dpp v11, v9 quad_perm:[1,1,1,1] row_mask:0xf bank_mask:0xf""")
    e("v_or_b32 v8, s101, v8")
    tag4(8, 245)
    if mlsc: e("buffer_store_dwordx4 v[8:11], v14, s[32:35], s60 offen sc1")
    else: mode_store(["buffer_store_dwordx4 v[8:11], v14, s[32:35], s60 offen"])
    stamp(5)
    e("s_cmp_ge_u32 s29, 28\ns_cbranch_scc1 L_end\ns_setprio 0")
    if dnpos == "p": load_dn()
    if dnpos == "F": e(f"ds_write_b32 v246, v246 offset:{FLAGS+32}\ns_waitcnt lgkmcnt(0)")
    if dnpos == "pB": load_dn(part=0)
    e("s_add_u32 s53, s49, 8192")
    if sfx: e(f"s_and_b32 s12, s31, 0xff\ns_mul_i32 s12, s12, 0x01010101\ns_mov_b32 s13, s12\ns_cmp_eq_u32 s59, 0\ns_cselect_b32 s58, {sfx if sfx > 1 else 256}, 0\ns_setprio 3")
    e("s_barrier")
    if sfx:
        e(f"""L_hint:
             s_sub_u32 s58, s58, 1
             s_cbranch_scc1 L_hinted
             s_load_dwordx8 s[4:11], s[26:27], s98 {"glc" if sfx == 1 else ""}
             s_waitcnt lgkmcnt(0)
             {f"s_add_u32 s98, s98, {1 << fsh}" if sfx > 1 else ""}
             s_xor_b64 s[4:5], s[4:5], s[12:13]
             s_xor_b64 s[6:7], s[6:7], s[12:13]
             s_xor_b64 s[8:9], s[8:9], s[12:13]
             s_xor_b64 s[10:11], s[10:11], s[12:13]
             s_or_b64 s[4:5], s[4:5], s[6:7]
             s_or_b64 s[8:9], s[8:9], s[10:11]
             s_or_b64 s[4:5], s[4:5], s[8:9]
             s_cbranch_scc1 L_hint
             L_hinted:""")
        if stamps and int(cnt): e(f"s_sub_u32 s66, {sfx if sfx > 1 else 256}, s58")
    if dnpos == "h": e("s_barrier"); load_dn()
    else: e("s_barrier")
    if gupos == "B1": e("s_barrier")
    if dnpos == "Y":
        if zb: e("s_barrier")
        e("s_setprio 0"); load_dn()
    if dnpos == "B1": load_dn()
    if dnpos == "pB": load_dn(part=1)
    e("s_setprio 3\ns_barrier")
    stamp(6)
    if dnpos == "B3": load_dn()
    for k in range(4): e(f"ds_read2st64_b32 v[{16+2*k}:{17+2*k}], v2 offset0:{RED//256+2*k} offset1:{RED//256+2*k+1}")
    e(f"""s_waitcnt lgkmcnt(2)
         v_pk_add_f32 v[16:17], v[16:17], v[18:19]
         s_waitcnt lgkmcnt(0)
         v_pk_add_f32 v[20:21], v[20:21], v[22:23]
         v_pk_add_f32 v[16:17], v[16:17], v[20:21]
         v_add_f32 v16, v16, v17
         v_bfi_b32 v16, v243, v15, v16
         buffer_store_dword v16, v2, s[32:35], s49 offen {cst}
         buffer_store_dword v16, v2, s[32:35], s53 offen {cst}""")
    stamp(7)
    e("s_setprio 0" if ff else "s_setprio 0\ns_cmp_ge_u32 s52, 28\ns_cbranch_scc1 L_end")
    if dnpos == "B4": load_dn(False)
    if cack == "b": e("s_barrier")
    elif cack: e("s_waitcnt vmcnt(%d)\ns_barrier" % (16 if dnpos == "B4" else 0))
    if dnpos == "B5": load_dn(False)
    for r in range(4): e(f"v_mov_b32 v{84+r}, {'v244' if r == 0 else 0}")
    DS = (20, 21, 22, 23, 24, 25)
    for p in range(6):
        e(f"s_add_u32 s56, s51, {p+1}\ns_sub_u32 s60, s56, 7\ns_cselect_b32 s56, s56, s60\ns_lshl_b32 s56, s56, 10\ns_add_u32 s{DS[p]}, s56, s61")
    e(f"""
          s_mul_i32 s54, s51, {BS}
          s_add_u32 s54, s54, {EP}
          s_lshl_b32 s56, s52, 8
          s_add_u32 s49, s54, s56
          v_cmp_gt_u32 vcc, {16*er}, v0
          {f"v_mul_u32_u24 v4, {ES-256}, v5{NL}v_add_u32 v4, v4, v1{NL}v_cndmask_b32 v4, v12, v4, vcc" if er > 1 else "v_cndmask_b32 v4, v12, v1, vcc"}
          {"s_sub_u32 s50, s52, 4" if fin == "t" else f"s_cmp_eq_u32 s28, {fin}" + chr(10) + "s_cselect_b32 s50, s50, 4"}
          s_lshl_b32 s56, s50, 6
          s_add_u32 s54, s54, s56
          s_add_u32 s53, s54, 4096
          {f"s_add_u32 s57, s54, {ES*(er-1)}" if er > 1 else ""}
          v_lshrrev_b32 v7, 2, v0
          v_lshlrev_b32 v7, 8, v7
          v_lshl_add_u32 v7, v3, 4, v7
          v_lshl_add_u32 v8, v3, 2, v5
          v_lshl_add_u32 v9, v8, 2, s56
          v_and_b32 v9, 0xff, v9
          v_lshlrev_b32 v8, 1, v8
          v_and_b32 v10, 12, v0
          v_cmp_eq_u32 vcc, 0, v10
          v_cndmask_b32 v8, v12, v8, vcc
          s_lshl_b32 s55, s51, 7
          s_lshl_b32 s56, s50, 5
          s_add_u32 s55, s55, s56""")
    L48 = (1 << 48) - 1
    if ff: e("s_cmp_ge_u32 s52, 28\ns_cbranch_scc1 L_fin4")
    DT = 192
    k0 = -2.0 * 0.7978845608028654 * 1.4426950408889634
    e(f"""v_bfe_u32 v76, v0, 3, 1
          v_mul_u32_u24 v74, 0x0606, v76
          v_mul_u32_u24 v75, 0x0202, v76
          v_lshlrev_b32 v74, 16, v74
          v_lshlrev_b32 v75, 16, v75
          v_add_u32 v74, 0x01000c0c, v74
          v_sub_u32 v75, 0x05040c0c, v75
          v_mov_b32 v76, {f2u(k0*0.044715)}""")
    if sfl: e(f"ds_write_b32 v246, v246 offset:{FLAGS+28}\ns_waitcnt lgkmcnt(0)")
    def dn_perm(w, cs=range(4)):
        if w is not None: e(f"s_waitcnt vmcnt({w})")
        for c in cs:
            for j in range(8):
                a = DN + 4*j + (c >> 1)
                e(f"v_perm_b32 v{DT+8*c+j}, v{a+2}, v{a}, s{(56, 60)[c & 1]}")
    if dnt: e("s_mov_b32 s56, 0x05040100\ns_mov_b32 s60, 0x07060302")
    if dnpos in ("C", "T0", "T1"): e("s_barrier"); load_dn(False)
    if int(wb) & 16: e(f"s_cmp_lg_u32 s29, {wbj}\ns_cbranch_scc1 L_nowb16\ns_waitcnt vmcnt({wbu})\nbuffer_wbl2 sc1\nL_nowb16:")
    if dnpos == "F":
        e(f"""s_mov_b32 s58, {SPIN*16}
              L_fwait:
              ds_read_b32 v11, v246 offset:{FLAGS+32}
              s_sub_u32 s58, s58, 1
              s_cbranch_scc1 L_fgo
              s_waitcnt lgkmcnt(0)
              v_cmp_eq_u32 vcc, 0, v11
              s_cbranch_vccnz L_fwait
              L_fgo:""")
        load_dn(False)
    if dnt and not dtl: dn_perm(0 if dnpos in ("B4", "B5", "C", "T0", "T1", "F") else 2)
    e(f"s_mov_b32 s58, {SPIN}")
    e("s_setprio 3\ns_barrier")
    stamp(8)
    for k in range(4): e(f"ds_read_b128 v[{24+4*k}:{27+4*k}], v1 offset:{RED2+1024*k}")
    e("s_waitcnt lgkmcnt(2)")
    pk_add4(24, 24, 28)
    e("s_waitcnt lgkmcnt(0)")
    pk_add4(32, 32, 36); pk_add4(24, 24, 32)
    e("v_bfi_b32 v24, v245, v244, v24")
    mode_store(["buffer_store_dwordx4 v[24:27], v1, s[32:35], s62 offen"])
    stamp(9)
    dset = lambda b: [(f"buffer_load_dwordx4 v[{b+4*p}:{b+4*p+3}], v1, s[32:35], s{DS[p]} offen sc1", b + 4*p) for p in range(6)]
    dsets = [dset(b) for b in (48, 88, 160)[:dr]]
    dg = dsets[0] if dr else dset(44)
    for t, b in dg: e(t)
    e(f"""ds_read_b32 v13, v9 offset:{HL}
          ds_read_b32 v11, v246 offset:{FLAGS+16}
          v_and_b32 v24, 0xffffff00, v24
          s_waitcnt lgkmcnt(0)
          v_and_b32 v13, 0xffff0000, v13
          v_add_u32 v7, v7, v11
          v_add_u32 v4, v4, v11
          v_xor_b32 v10, 0x2000, v4""")
    if dr:
        assert dnt and dtl and dspec and not sfl
        for r in range(1, dr):
            dn_perm(7 if r == 1 else None, range(4*(r-1)//(dr-1), 4*r//(dr-1)))
            for t, b in dsets[r]: e(t)
    elif dnt and dtl: dn_perm(7)
    stamp(10)
    def d_acc(i, b):
        a, d = (24 if i == 0 else 28), (44 if i == 5 else 28)
        if sfl and i == 1: e(f"ds_read_b64 v[40:41], v246 offset:{FLAGS+24}")
        e(f"v_and_b32 v36, 0xffffff00, v{b}\nv_pk_add_f32 v[{d+2}:{d+3}], v[{a+2}:{a+3}], v[{b+2}:{b+3}]\nv_add_f32 v{d+1}, v{a+1}, v{b+1}\nv_add_f32 v{d}, v{a}, v36")
        if sfl and i == 4: e("s_waitcnt lgkmcnt(0)\nv_cmp_eq_u32 s[6:7], 0, v41")
    pre = "s_memrealtime s[86:87]\n" if stamps else ""
    if sfl:
        assert dspec
        pre += "s_cmp_lg_u64 s[6:7], 0\ns_cbranch_scc1 L_stwait\nL_stgot:\n"
        late = f"L_stwait:\ns_sub_u32 s58, s58, 1\ns_cbranch_scc1 L_stgot\nds_read_b64 v[40:41], v246 offset:{FLAGS+24}\ns_waitcnt lgkmcnt(0)\nv_cmp_eq_u32 vcc, 0, v41\ns_cbranch_vccnz L_stwait\ns_branch L_stgot"
        if int(wb) & 2:
            wbd = f"s_cmp_eq_u32 s2, {56 + int(fin)}\ns_cbranch_scc1 L_dowb\nL_nowb:"
            late += "\nL_dowb:\nbuffer_wbl2 sc1\ns_branch L_nowb"
    else: pre += f"s_barrier\nds_read_b64 v[40:41], v246 offset:{FLAGS+24}"
    if dr:
        def dcheck(r):
            g = [b for t, b in dsets[r]]
            for p in range(6):
                e(f"s_waitcnt vmcnt({6*dr-1-p})")
                if p in (1, 3): e(f"v_bitop3_b32 v{37+(p >> 1)}, v{g[p-1]}, v{g[p]}, v244 bitop3:0x7e")
                if p == 4: e(f"v_bitop3_b32 v37, v{g[4]}, v244, v37 bitop3:0xbe\nv_or_b32 v37, v37, v38")
                if p == 5: e(f"v_bitop3_b32 v37, v{g[5]}, v244, v37 bitop3:0xbe\nv_cmp_ne_u32_sdwa vcc, v37, v246 src0_sel:BYTE_0 src1_sel:DWORD")
                else: d_acc(p, g[p])
        e("L_dtop:")
        dcheck(0)
        e("s_cbranch_vccnz L_dmore\nL_dx0:\n" + pre)
        d_acc(5, dsets[0][5][1])
        e("L_ddone:")
        def dmore():
            e("L_dmore:\ns_sub_u32 s58, s58, 1\ns_cbranch_scc1 L_dx0")
            for t, b in dsets[0]: e(t)
            for r in range(1, dr):
                dcheck(r)
                e(f"s_cbranch_vccnz L_dn{r}\n" + pre)
                d_acc(5, dsets[r][5][1])
                e(f"s_branch L_ddone\nL_dn{r}:")
                for t, b in dsets[r]: e(t)
            e("s_branch L_dtop")
    else: poll(dg, 8, issued=True, quad=244, pre=pre, spec=d_acc if dspec else None)
    if sfl and int(wb) & 2: e(wbd)
    if not dspec:
        pk_add4(44, 44, 48); pk_add4(52, 52, 56); pk_add4(60, 60, 64)
        pk_add4(44, 44, 24); pk_add4(52, 52, 60); pk_add4(44, 44, 52)
    e("""v_permlane32_swap_b32 v45, v47
         v_permlane32_swap_b32 v44, v46""")
    if not sfl: e("s_waitcnt lgkmcnt(0)")
    e("""v_pk_fma_f32 v[44:45], v[46:47], v[40:41], v[44:45] op_sel:[0,0,0] op_sel_hi:[1,0,1] neg_lo:[0,1,0] neg_hi:[0,1,0]
         v_pk_mul_f32 v[44:45], v[44:45], v[40:41] op_sel:[0,1] op_sel_hi:[1,1]
         v_cvt_pk_bf16_f32 v45, v44, v45
         v_mov_b32_dpp v46, v45 row_ror:8 row_mask:0xf bank_mask:0xf
         v_perm_b32 v44, v46, v45, v74
         v_perm_b32 v45, v46, v45, v75""")
    e(f"""v_mul_f32 v46, v44, v44
          v_fmaak_f32 v46, v46, v76, {f2u(k0)}
          v_mul_f32 v46, v46, v44
          v_exp_f32 v46, v46
          v_add_f32 v46, 1.0, v46
          v_rcp_f32 v46, v46
          v_mul_f32 v46, v46, v44""")
    bfround(46)
    if dnt:
        e("v_mul_f32 v46, v46, v45")
        poll_init(2, 4, {1: L48})
        e("v_mov_b32_dpp v47, v46 quad_perm:[1,1,3,3] row_mask:0xf bank_mask:0xf\nv_cvt_pk_bf16_f32 v46, v46, v47")
        for j in range(8): e(f"v_mov_b32_dpp v{116+j}, v46 row_newbcast:{2*j} row_mask:0xf bank_mask:0xf")
        for h in range(2):
            for c in range(4):
                e(f"v_mfma_f32_16x16x32_bf16 v[{32+4*c}:{35+4*c}], v[{116+4*h}:{119+4*h}], v[{DT+8*c+4*h}:{DT+8*c+4*h+3}], " + ("0" if h == 0 else f"v[{32+4*c}:{35+4*c}]"))
        e("v_bfi_b32 v32, v245, v244, v32\nv_mov_b32 v33, v36\nv_pk_mov_b32 v[34:35], v[40:41], v[44:45] op_sel:[0,0]")
    else: e("v_mul_f32 v46, v46, v45\nv_cvt_pk_bf16_f32 v46, v46, v46")
    for i in range(0 if dnt else 17):
        if i < 16:
            a = 116 + 2*(i & 3)
            for j in range(2): e(f"v_and_b32_dpp v{a+j}, v46, v{MK+j} row_newbcast:{i} row_mask:0xf bank_mask:0xf")
        if i >= 1:
            p = i - 1; ap = 116 + 2*(p & 3)
            e(f"v_mfma_f32_16x16x16_bf16 v[32:35], v[{ap}:{ap+1}], v[{DN+2*p}:{DN+2*p+1}], " + ("0" if p == 0 else "v[32:35]"))
    if not dnt:
        poll_init(2, 4, {1: L48})
        e("v_bfi_b32 v32, v245, v244, v32")
    e(f"buffer_store_dwordx4 v[32:35], v4, s[32:35], s49 offen {est}")
    e(f"buffer_store_dwordx4 v[32:35], v10, s[32:35], s49 offen {est}")
    if ck & 2: e("s_barrier")
    stamp(12)
    if int(wb) & 8: e(f"s_cmp_lg_u32 s2, {56 + int(fin)}\ns_cbranch_scc1 L_nowb8\nbuffer_wbl2 sc1\nL_nowb8:")
    if ff:
        wbk = f"s_cmp_lg_u32 s29, {wbj}\ns_cbranch_scc1 L_finnowb\nbuffer_wbl2 sc1\nL_finnowb:"
        e(f"s_branch {'L_wb4' if int(wb) & 4 else 'L_Eend'}\nL_fin4:")
        if ffb or ffw == 0: e("s_waitcnt vmcnt(0)")
        if ffb: e("s_barrier")
        if ffw == 0: e(wbk)
        poll_init(2, 4, {1: L48})
        e("s_barrier")
        if ffw == 1: e(wbk)
        e(f"""ds_read_b32 v13, v9 offset:{HL}
              ds_read_b32 v11, v246 offset:{FLAGS+16}
              s_waitcnt lgkmcnt(0)
              v_and_b32 v13, 0xffff0000, v13
              v_add_u32 v7, v7, v11""")
        stamp(12)
    else: e(f"s_cmp_gt_u32 s50, 3\ns_cbranch_scc1 {'L_wb4' if int(wb) & 4 and int(wbk4) < 28 or sfl else 'L_Eend'}")
    if et:
        for r in range(4): e(f"v_mov_b32 v{80+r}, 0")
        poll_sum(lambda i, b: f"buffer_load_dwordx4 v[{b}:{b+3}], v7, s[32:35], {('s54', 's53')[i]} offen {eld}", 80, 160, 244, et)
        stamp(13)
    else:
        if eack: e("s_waitcnt vmcnt(%d)" % (1 if eack == "1" else 0))
        poll([("buffer_load_dwordx4 v[80:83], v7, s[32:35], s54 offen sc1", 80), ("buffer_load_dwordx4 v[84:87], v7, s[32:35], s53 offen sc1", 84)], 4, quad=244)
        stamp(13)
        pk_add4(80, 80, 84)
    trows(80)
    dpp_red("v_add_f32", [80], ["row_ror:4", "row_ror:8"])
    bfround(80)
    e(f"""v_add_f32 v80, v80, v13
          v_cvt_pk_bf16_f32 v80, v80, v80
          buffer_store_short v80, v8, s[40:43], s55 offen {osc.replace("_", " ")}""")
    if epo[0] != "C":
        e(f"""s_cmp_lg_u32 s2, 4
          s_cbranch_scc1 L_Eend
          v_mov_b32 v16, s31
          buffer_store_dword v16, v14, s[32:35], 0 offen {"sc1" if epo == "s" else ""}""")
    e("L_Eend:")
    if clean & 4: e("v_or_b32 v24, v24, v244\nbuffer_store_dwordx4 v[24:27], v1, s[32:35], s62 offen sc1")
    stamp(14)
    if amp is not None:
        e(f"""s_cmp_lg_u32 s2, 4
              s_cbranch_scc1 L_end
              s_memrealtime s[96:97]
              s_waitcnt lgkmcnt(0)
              s_sub_u32 s98, s{64+2*int(amp)}, s64
              s_lshl_b32 s98, s98, 3""")
        if skew is not None:
            e(f"""s_mov_b32 s56, {STAMP}
              buffer_load_dword v16, v246, s[32:35], s56 offen sc1
              buffer_load_dword v17, v246, s[32:35], s56 offen offset:{4*int(skew)} sc1
              s_waitcnt vmcnt(0)
              v_sub_u32 v16, v17, v16
              v_add_u32 v16, 100, v16
              v_readfirstlane_b32 s98, v16
              s_lshl_b32 s98, s98, 5""")
        e(f"""
              s_min_u32 s98, s98, 100000
              L_amp:
              s_memrealtime s[100:101]
              s_waitcnt lgkmcnt(0)
              s_sub_u32 s99, s100, s96
              s_cmp_lt_u32 s99, s98
              s_cbranch_scc1 L_amp""")
    finish()
    if dr: dmore()
    if sfl: e(late)
    if int(wb) & 4 or sfl: e("L_wb4:")
    if sfl:
        e(f"s_cmp_lg_u32 s2, {0 if fin != '0' else 1}\ns_cbranch_scc1 L_noepo\nv_mov_b32 v16, s31\nbuffer_store_dword v16, v14, s[32:35], 0 offen {epo[1:]}\nL_noepo:")
        if not int(wb) & 4: e("s_branch L_Eend")
    if int(wb) & 4 and int(wbk4) < 28:
        e(f"s_cmp_lg_u32 s29, {wbk4}\ns_cbranch_scc1 L_Eend")
        if fin == "t": e("s_cmp_ge_u32 s28, 4\ns_cbranch_scc1 L_Eend")
        e(f"s_waitcnt vmcnt({wbt})\nbuffer_wbl2 sc1\n" + ("s_waitcnt vmcnt(0)\n" if int(wbw) & 1 else "") + "s_branch L_Eend")
    sec("A")
    for t in extra: e(t)
    sec("Q3")
    for far, back, ins in deferred:
        e(f"{far}:\ns_nop 7")
        for t in ins: e(t + " sc1")
        e(f"s_nop 1\ns_branch {back}")
    if stamps:
        e("L_stamps:\ns_waitcnt lgkmcnt(0)\ns_mov_b64 exec, -1\nv_mov_b32 v250, 0")
        for k in range(16): e(f"v_writelane_b32 v250, s{64+2*k}, {k}")
        e(f"""s_lshl_b32 s60, s2, 3
              s_add_u32 s60, s60, s30
              s_lshl_b32 s60, s60, 6
              s_add_u32 s60, s60, {STAMP}
              v_lshlrev_b32 v251, 2, v0
              s_mov_b64 exec, 0xffff
              buffer_store_dword v250, v251, s[32:35], s60 offen""")
    e("L_exit:\ns_endpgm")

    head = open("cdna_kernels/" + NAME + ".s.ref").read()
    head = head[:head.index("; @launch")]
    out = head + f"; @launch grid=(256,1,1) block=(320,1,1) lds={LDS_SIZE}\n"
    out += f""".amdgcn_target "amdgcn-amd-amdhsa--gfx950"
.text
.globl {NAME}_kernel
.p2align 12
.fill {int(pad)//4}, 4, 0xbf800000
.p2align 8
.type {NAME}_kernel,@function
{NAME}_kernel:
"""
    for name, al in (("A", 0), ("K1", 0), ("Q1", 12), ("Q2", 12), ("K0", 0), ("K2", 0), ("Q3x", 0), ("Q3", 12), ("Q3y", 0)):
        if name not in secs: continue
        if al: out += f".p2align {al}\n"
        out += "\n".join(secs[name]) + "\n"
    out = out.replace("buffer_wbl2 sc1", "buffer_wbl2 " + wbf.replace("_", " "))
    out += f""".section .rodata,"a"
.p2align 6
.amdhsa_kernel {NAME}_kernel
  .amdhsa_next_free_vgpr 256
  .amdhsa_next_free_sgpr 102
  .amdhsa_accum_offset 256
  .amdhsa_group_segment_fixed_size 0
  .amdhsa_kernarg_size 96
  .amdhsa_user_sgpr_count 2
  .amdhsa_user_sgpr_kernarg_segment_ptr 1
  .amdhsa_system_sgpr_workgroup_id_x 1
.end_amdhsa_kernel
"""
    return out

if __name__ == "__main__":
    kw = {}
    for a in sys.argv[2:]:
        k, v = a.split("=")
        kw[k] = {"True": True, "False": False}.get(v, v)
    open(sys.argv[1], "w").write(gen(**kw))
```

```python
import sys, struct, re
from emit import Emitter, Ins, need

NAME = "sequential_preLN__sliding_block_cached__geglu_ffn__decode"
def f2u(x): return struct.unpack("<I", struct.pack("<f", x))[0]

QP, ML, CP, EP, OP, HH, DP, STAMP, WS_SIZE = 0x10000, 0x20000, 0x120000, 0x140000, 0x40000, 0xC0000, 0xD0000, 0x1E0000, 0x200000
XN, XR, QS, EB, RED, RED2, FLAGS, MLW, HL, PR, LDS_SIZE = 0, 2048, 3072, 4096, 5120, 7168, 11264, 11520, 11776, 12288, 14336
QC = 12032
FL = 0x30000
OOB = 0x7ffffff0
PB = 0x160000
SPIN = 1 << 16
NL = "\n"
CEXP = f2u(1.4426950408889634 / 16.0)
T0, T1, T2 = "s31", "s96", "s97"
TAGS = (T0, T0, T1, T2)

def gen(amp=None, nt="nt", wnt=None, stamps=False, force_global=False, wopos="V", gupos="B1", dnpos="F",
        code_pf=True, eack=True, kpre=0, W=6, qa=3, lc=15, rot="gj", skew=None, cack=True, ctmap="u", pad=0xD00, ksplit=3, order="V1GV16MW", tlb=0, tmap=1, w0=8, qnt=None, opat=1, skipz=0, opsc=False, ct="30", et="10", home="v", mlsc=False, gi="0112", sw=1, dirty=0, wb=6, epo="C", osc="", Wq=6, W2=0, Ww=0, Wm=0, lst="", opre="p", clean=0, fin="6", wbt=0, dbg=0, mlo="A", gfree="", sp="11111n", dnt=1, dspec=1, ospec=1, hlate=3, sfl=0, qsc="", pst=2, pre=7, qpre=0, tlm="0xff", cld="sc1", eld="sc1", cst="sc1", est="sc1", wbf="sc1", wbj=7, t4g="4567", sfx=0, zb=1, fsh=6, cnt=0, dnpf=40, dtl=1, dnf=None, pfl=0, wfl=None, dr=0, er=1, epb="0x140000", eps="0x40000", osr=0, pcdbg=0, su=None, st0=0, ck=0, ckw=0, ff=0, ffw=0, ffb=1, wbu=0, wbw=3, wbk4=31, amp0=0, ash=3, ampw=4):
    ff, ffw, ffb = int(ff), int(ffw), int(ffb)
    ck = int(ck)
    osr = int(osr)
    er = int(er)
    EP, ES = int(epb, 0), int(eps, 0)
    assert EP + ES*(er-1) + 0x1C000 <= STAMP
    dr = int(dr)
    if dnpf == "n": dnpf = None
    pfl = int(pfl)
    dtl = int(dtl)
    sfx, zb, fsh = int(sfx), int(zb), int(fsh)
    dnt, dspec, ospec, hlate, sfl = int(dnt), int(dspec), int(ospec), int(hlate), int(sfl)
    clean = int(clean)
    if clean & 8: epo, osc = "Csc1", "sc1"
    if wnt is None: wnt = nt
    BS = 16384
    cld, eld, cst, est = (x.replace("_", " ") for x in (cld, eld, cst, est))
    if ct: cack, ct = ct[0] if ct[0] in "ab" else "", ct.lstrip("ab")
    kpre, W, qa = int(kpre), int(W), int(qa)
    lx = str(lc).endswith("x")
    lc = int(str(lc).rstrip("x")); nb = lc - 12
    def koff(st): return ((st >> nb) << (lc + 5)) | ((st & (7 if lx else (1 << nb) - 1)) << 12)
    if skew is not None: amp = 0
    e = Emitter()
    uid = [0]
    deferred = []
    extra = []
    secs = {"A": e.lines}
    def sec(name, jump=None):
        if jump: e(f"s_branch {jump}")
        e.lines = secs.setdefault(name, []); e.hist = []
        if jump: e(f"{jump}:")
    def lab(p): uid[0] += 1; return f"L_{p}{uid[0]}"
    def srd_hi(d, n): e(f"s_mov_b32 s{d+2}, {n}\ns_mov_b32 s{d+3}, 0x00020000")
    def srd_lo(d, b): e(f"s_mov_b64 s[{d}:{d+1}], s[{b}:{b+1}]")
    def srd(d, b, n): srd_lo(d, b); srd_hi(d, n)
    def stamp(k):
        if stamps or (amp is not None and k in (int(amp0), int(amp))): e(f"s_memrealtime s[{64+2*k}:{65+2*k}]")
    def finish():
        if stamps: e("s_branch L_stamps")
        else: e("s_endpgm")
    def mode_store(ins):
        far, back = lab("far"), lab("back")
        e(f"s_cmp_lg_u32 s59, 0\ns_cbranch_scc1 {far}")
        for t in ins: e(t + " " + lst.replace("_", " "))
        e(f"{back}:")
        deferred.append((far, back, ins))
    def tags():
        e(f"""s_add_u32 s31, s31, 0x9E3779B1
              s_lshr_b32 s96, s31, 8
              s_or_b32 s96, s96, 1
              s_xor_b32 s96, s96, s31
              s_lshr_b32 s97, s31, 16""")
    def tag4(b, ff, last=T2):
        for r in range(4): e(f"v_bfi_b32 v{b+r}, v{ff}, {(T0, T0, T1, last)[r]}, v{b+r}")
    def lane_tag(d, idx, t):
        e(f"""v_mov_b32 v{d}, {T0}
              v_mov_b32 v{t}, {T1}
              v_cmp_eq_u32 vcc, 2, v{idx}
              v_cndmask_b32 v{d}, v{d}, v{t}, vcc
              v_mov_b32 v{t}, {T2}
              v_cmp_eq_u32 vcc, 3, v{idx}
              v_cndmask_b32 v{d}, v{d}, v{t}, vcc
              v_and_b32 v{d}, 0xff, v{d}""")
    def masks(m, t0, t1):
        e(f"""v_and_b32 v{t0}, 1, v0
              v_lshlrev_b32 v{t0}, 4, v{t0}
              v_mov_b32 v{t1}, 0xffff
              v_lshlrev_b32 v{t1}, v{t0}, v{t1}
              v_bfe_u32 v{t0}, v0, 1, 2""")
        for j in range(4):
            e(f"v_cmp_eq_u32 vcc, {j}, v{t0}\nv_cndmask_b32 v{m+j}, 0, v{t1}, vcc")
    def dpp_red(op, vs, ctrls):
        for c in ctrls:
            for v in vs: e(f"{op}_dpp v{v}, v{v}, v{v} {c} row_mask:0xf bank_mask:0xf")
    def xrow(op, vs, tmps):
        for sw in ("v_permlane16_swap_b32", "v_permlane32_swap_b32"):
            for v, t in zip(vs, tmps): e(f"v_mov_b32 v{t}, v{v}")
            for v, t in zip(vs, tmps): e(f"{sw} v{v}, v{t}")
            for v, t in zip(vs, tmps): e(f"{op} v{v}, v{v}, v{t}")
    def bfround(v): e(f"v_cvt_pk_bf16_f32 v{v}, v{v}, v{v}\nv_and_b32 v{v}, 0xffff0000, v{v}")
    def trows(a):
        e(f"""v_permlane32_swap_b32 v{a}, v{a+2}
              v_permlane32_swap_b32 v{a+1}, v{a+3}
              v_add_f32 v{a}, v{a}, v{a+2}
              v_add_f32 v{a+1}, v{a+1}, v{a+3}
              v_permlane16_swap_b32 v{a}, v{a+1}
              v_add_f32 v{a}, v{a}, v{a+1}""")
    def pk_add4(d, a, b):
        e(f"v_pk_add_f32 v[{d}:{d+1}], v[{a}:{a+1}], v[{b}:{b+1}]\nv_pk_add_f32 v[{d+2}:{d+3}], v[{a+2}:{a+3}], v[{b+2}:{b+3}]")
    def check(b, m, t):
        e(f"""v_bitop3_b32 v{t}, v{b}, v{b+1}, {T0} bitop3:0x7e
              v_bitop3_b32 v{t}, v{b+2}, {T1}, v{t} bitop3:0xbe
              v_bitop3_b32 v{t}, v{b+3}, {T2}, v{t} bitop3:0xbe
              v_cmp_ne_u32_sdwa s[{m}:{m+1}], v{t}, v246 src0_sel:BYTE_0 src1_sel:DWORD""")
    def qtag_reg(d, idx):
        e(f"v_lshlrev_b32 v{d}, 3, v{idx}\nv_lshrrev_b32 v{d}, v{d}, {T0}\nv_and_b32 v{d}, 0xff, v{d}")
    def qclean(loads):
        for t, b in loads: e(f"v_and_b32 v{b}, 0xffffff00, v{b}")
    def poll_init(n, m0, init=None):
        for i in range(n):
            v = (init or {}).get(i)
            if v is None: e(f"s_mov_b64 s[{m0+2*i}:{m0+2*i+1}], -1")
            else: e(f"s_mov_b32 s{m0+2*i}, {v & 0xffffffff}\ns_mov_b32 s{m0+2*i+1}, {v >> 32}")
        e(f"s_mov_b32 s58, {SPIN}")
    def poll(loads, m0, issued=False, behind=0, quad=None, pre=None, spec=None, hook=None):
        n = len(loads)
        top, chk, done = lab("poll"), lab("chk"), lab("pdone")
        if issued: e(f"s_branch {chk}")
        e(f"{top}:\ns_sub_u32 s58, s58, 1\ns_cbranch_scc1 {done}")
        if hook: e(hook)
        for i, (t, b) in enumerate(loads):
            sk = lab("sk")
            if int(skipz) and n > 2: e(f"s_wqm_b64 exec, s[{m0+2*i}:{m0+2*i+1}]\ns_cbranch_scc0 {sk}\n{t}\n{sk}:")
            else: e(f"s_wqm_b64 exec, s[{m0+2*i}:{m0+2*i+1}]\n{t}")
        e("s_mov_b64 exec, -1")
        if behind or (int(skipz) and n > 2): e("s_waitcnt vmcnt(0)")
        if issued: e(f"{chk}:")
        for i, (t, b) in enumerate(loads):
            e(f"s_waitcnt vmcnt({n-1-i+behind})")
            if quad: e(f"v_cmp_ne_u32_sdwa s[{m0+2*i}:{m0+2*i+1}], v{b}, v{quad} src0_sel:BYTE_0 src1_sel:DWORD")
            else: check(b, m0 + 2*i, 247 + (i & 1))
            if spec:
                if i < n - 1: spec(i, b)
                if i == 1: e(f"s_or_b64 vcc, s[{m0}:{m0+1}], s[{m0+2}:{m0+3}]")
                if i > 1: e(f"s_or_b64 vcc, vcc, s[{m0+2*i}:{m0+2*i+1}]")
        if spec: pass
        elif n == 1: e(f"s_cmp_lg_u64 s[{m0}:{m0+1}], 0")
        else:
            e(f"s_or_b64 vcc, s[{m0}:{m0+1}], s[{m0+2}:{m0+3}]")
            for i in range(2, n): e(f"s_or_b64 vcc, vcc, s[{m0+2*i}:{m0+2*i+1}]")
        e(f"s_cbranch_scc1 {top}\n{done}:")
        if pre: e(pre)
        if spec: spec(n - 1, loads[-1][1])
        elif quad: qclean(loads)
    def poll_sum(load, acc, base, quad, ticks):
        once = ticks.index("/") if "/" in ticks else 0
        ticks = ticks.replace("/", "")
        D = len(ticks)
        top, done = lab("ps"), lab("psd")
        def issue_round(r):
            for i in range(2): e(f"s_mov_b64 exec, s[{4+2*i}:{5+2*i}]\n" + load(i, base + 8*r + 4*i))
            e("s_mov_b64 exec, -1")
            if acc == 80 and er > 1: e(f"s_add_u32 s54, s54, {ES}\ns_min_u32 s54, s54, s57\ns_add_u32 s53, s54, 4096")
        for r, t in enumerate(ticks):
            if t != "x": e(f"s_waitcnt vmcnt({int(t) + 2*r})")
            if acc == 16 and r < 2: stamp(14 + r)
            if acc == 80 and int(st0) == 2: stamp(6 + r); e("s_mov_b32 s66, 0")
            issue_round(r)
            if acc == 16 and dnpos == f"T{r}": e("s_barrier")
        for r in range(D):
            if r == once: e(f"{top}:")
            for i in range(2):
                b, m = base + 8*r + 4*i, 4 + 2*i
                e(f"""s_waitcnt vmcnt({2*(D - min(r, once))-1-i})
                      v_cmp_ne_u32_sdwa vcc, v{b}, v{quad} src0_sel:BYTE_0 src1_sel:DWORD
                      v_and_b32 v{b}, 0xffffff00, v{b}
                      s_wqm_b64 vcc, vcc
                      s_andn2_b64 exec, s[{m}:{m+1}], vcc
                      s_and_b64 s[{m}:{m+1}], s[{m}:{m+1}], vcc""")
                pk_add4(acc, acc, b)
                e("s_mov_b64 exec, -1")
            if acc == 80 and int(st0) == 2: e("s_add_u32 s66, s66, 1")
            e(f"s_or_b64 vcc, s[4:5], s[6:7]\ns_cbranch_scc0 {done}")
            if r >= once: issue_round(r)
        e(f"s_sub_u32 s58, s58, 1\ns_cbranch_scc0 {top}\n{done}:")
    def read_mode(t):
        e(f"v_or3_b32 v{t}, v{t}, v{t+1}, v{t+2}\nv_or_b32 v{t}, v{t}, v{t+3}\nv_readfirstlane_b32 s59, v{t}")
    def ffn_scalars():
        order4 = [int(c) for c in t4g] + [g for g in range(8) if str(g) not in t4g]
        if ff: order4 = [g for g in range(8) if str(g) != fin] + [int(fin)]
        table = sum(order4.index(g) << (4*g) for g in range(8))
        assert fin == "t" or fin in t4g or ff
        e(f"""s_mul_i32 s50, s29, 37
             s_lshr_b32 s50, s50, 8
             s_mul_i32 s51, s50, 7
             s_sub_u32 s51, s29, s51
             s_lshl_b32 s101, s28, 2
             s_lshr_b32 s101, {table}, s101
             s_and_b32 s101, s101, 7
             s_lshl_b32 s52, s50, 3
             s_add_u32 s52, s52, s101""")
        if ff: e("s_lshl_b32 s100, s101, 2\ns_add_u32 s100, s100, s50\ns_cmp_lt_u32 s29, 28\ns_cselect_b32 s52, s100, s52\ns_min_u32 s100, s100, 27")
        elif int(tmap): e("s_mul_i32 s100, s101, 3\ns_min_u32 s101, s101, 4\ns_add_u32 s100, s100, s101\ns_add_u32 s100, s100, s50\ns_min_u32 s100, s100, 27")
        else: e("s_min_u32 s100, s52, 27")

    ctm = {"0": "s_lshr_b32 s48, s29, 3\ns_and_b32 s49, s29, 7", "1": "s_lshr_b32 s48, s29, 3\ns_add_u32 s49, s29, 1\ns_and_b32 s49, s49, 7",
           "t": "s_lshr_b32 s49, s29, 2\ns_and_b32 s48, s29, 3", "u": "s_lshr_b32 s49, s29, 2\ns_xor_b32 s49, s49, 4\ns_and_b32 s48, s29, 3"}[ctmap]
    e(f"""s_cmp_ge_u32 s2, 256
          s_cbranch_scc1 L_exit
          s_load_dwordx16 s[4:19], s[0:1], 0
          s_load_dwordx8 s[20:27], s[0:1], 64""")
    stamp(0)
    e(f"""v_lshrrev_b32 v1, 6, v0
         v_and_b32 v0, 63, v0
         v_readfirstlane_b32 s30, v1
         s_and_b32 s28, s2, 7
         s_lshr_b32 s29, s2, 3
         s_lshl_b32 s55, s28, 5
         s_add_u32 s55, s55, s29
         s_cmp_lg_u32 s30, 4
         s_cbranch_scc1 L_K""")
    sec("K1")
    e("L_K:")

    KR, VR, QG, SC, MK, WO, GU, AF, GA, MG = 16, 80, 148, 156, 164, 168, 184, 200, 216, 224
    QB, PE = QG, KR + 16
    if code_pf:
        e(f"""s_getpc_b64 s[48:49]
              L_pc:
              s_lshl_b32 s56, s29, 2
              s_add_u32 s56, s56, s30
              s_lshl_b32 s56, s56, 7
              s_min_u32 s56, s56, L_exit-{NAME}_kernel
              s_sub_u32 s48, s48, L_pc-{NAME}_kernel
              s_subb_u32 s49, s49, 0
              v_mov_b32 v1, s56
              s_mov_b64 exec, 1
              global_load_dword v15, v1, s[48:49]
              s_mov_b64 exec, -1""")
    e(f"""s_lshl_b32 s53, s28, 23
         s_lshl_b32 s54, s29, {lc}
         s_add_u32 s53, s53, s54
         s_add_u32 s53, s53, 6291456""")
    e({"0": "s_mov_b32 s56, 0", "gj": "s_lshl_b32 s56, s28, 1\ns_xor_b32 s56, s56, s29\ns_and_b32 s56, s56, 15",
       "gj1": "s_lshl_b32 s56, s28, 1\ns_and_b32 s54, s29, 1\ns_or_b32 s56, s56, s54", "j": "s_and_b32 s56, s29, 15", "g": "s_lshl_b32 s56, s28, 1", "j7": "s_and_b32 s56, s29, 7", "g8": "s_and_b32 s56, s28, 1\ns_lshl_b32 s56, s56, 3",
       "mul": "s_mul_i32 s56, s2, s2\ns_mul_i32 s56, s56, 0x9E3779B1\ns_lshr_b32 s56, s56, 28"}[rot])
    e(f"""s_lshr_b32 s54, s56, {nb}
          s_lshl_b32 s54, s54, {lc+5}
          s_or_b32 s53, s53, s54
          s_and_b32 s54, s56, {7 if lx else (1 << nb) - 1}
          s_lshl_b32 s54, s54, 12
          s_{"xor" if lx else "or"}_b32 s53, s53, s54
          v_bfe_u32 v9, v0, 3, 1
          v_lshlrev_b32 v1, 9, v9
          v_lshrrev_b32 v2, 4, v0
          v_lshl_add_u32 v1, v2, 7, v1
          v_and_b32 v10, 7, v0
          v_lshl_add_u32 v1, v10, 4, v1
          s_lshl_b32 s54, s30, 10
          s_add_u32 s98, s54, s53""")
    srd_hi(36, 67108864)
    stamp(15)
    e("s_waitcnt lgkmcnt(0)")
    srd_lo(36, 6)
    if kpre == 0: e("s_load_dword s31, s[26:27], 0\ns_barrier")
    stamp(13)

    pos, state = {}, {"n": 0, "done": -1}
    def arrived(i):
        if i > state["done"]:
            e(f"s_waitcnt vmcnt({state['n'] - 1 - i})"); state["done"] = i
    win = [W]
    def wof(name):
        if int(Wm) and name == "ML": return int(Wm)
        return int(Ww) if int(Ww) and name[:2] in ("WO", "ML") else win[0]
    far = []
    def gate(name):
        if name[0] in gfree: return -1
        w = wof(name)
        return far[-w] if len(far) >= w else -1
    def issue(name, text):
        arrived(gate(name))
        if name[0] not in gfree: far.append(state["n"])
        e(text); pos[name] = state["n"]; state["n"] += 1
    qg = [f"buffer_load_dwordx4 v[{QG}:{QG+3}], v4, s[32:35], s61 offen sc1", f"buffer_load_dwordx4 v[{QG+4}:{QG+7}], v4, s[32:35], s62 offen sc1"]
    mlg = f"buffer_load_dwordx4 v[{MG}:{MG+3}], v230, s[32:35], s3 offen sc1"
    def vop(i):
        t = f"buffer_load_dwordx4 v[{VR+4*i}:{VR+4*i+3}], v228, s[44:47], s54 offen offset:{2048*(i >> 4)} {nt}"
        t = f"s_xor_b32 s54, s99, {koff(min(i, 15))}\n" + t
        if i >= 15: t = "s_mov_b64 exec, s[22:23]\n" + t + "\ns_mov_b64 exec, -1"
        return (f"V{i}", t)
    wops = [(f"WO{m}", f"buffer_load_dwordx4 v[{WO+4*m}:{WO+4*m+3}], v11, s[40:43], s48 offen {wnt if wfl is None else wfl}\ns_add_u32 s48, s48, 7168") for m in range(4)]
    gops = [(f"GU{m}", f"global_load_dwordx4 v[{GU+4*m}:{GU+4*m+3}], v[{GA+2*m}:{GA+2*m+1}], off {wnt}") for m in range(4)]
    ops = [vop(i) for i in range(17)] + [("ML", mlg)]
    if wopos == "V": ops += wops
    if gupos == "V": ops += gops
    if wopos == "K": ops = wops + ops
    if gupos == "K": ops = gops + ops
    ops = ops[:qa] + [("G0", qg[0]), ("G1", qg[1])] + ops[qa:]
    if order:
        pool = {"V": [vop(i) for i in range(17)], "M": [("ML", mlg)], "W": list(wops), "U": list(gops), "G": [("G0", qg[0]), ("G1", qg[1])]}
        ops = []
        for c, n in re.findall(r"([A-Z])(\d*)", order):
            for _ in range(int(n) if n else len(pool[c])): ops.append(pool[c].pop(0))
        assert not any(pool[c] for c in "VMG") and bool(pool["U"]) == (gupos in ("B4", "B1"))
        gops, wlate = pool["U"], pool["W"]
    def next_op():
        if ops: issue(*ops.pop(0))
    spi = [0]
    def score_op():
        for _ in range(int(sp[spi[0]])):
            if sp[-1] == "w": next_op()
            else:
                w = win[0]; win[0] = 99; next_op(); win[0] = w
        spi[0] += 1

    w0 = int(w0) or W
    su = w0 - 1 if su is None else int(su)
    for i in range(-1, 16):
        if i == w0: arrived(0)
        win[0] = 99 if i < w0 else W
        if i >= 0: issue(f"K{i}", f"s_xor_b32 s54, s98, {koff(i)}\nbuffer_load_dwordx4 v[{KR+4*i}:{KR+4*i+3}], v1, s[36:39], s54 offen {nt}")
        if i == kpre - 1 and kpre: e("s_load_dword s31, s[26:27], 0\ns_barrier"); stamp(14)
        if i == su:
            srd(32, 26, WS_SIZE); srd(40, 12, 4096*896); srd(44, 8, 67108864)
            ffn_scalars()
            masks(MK, 7, 8)
            e(f"""v_mov_b32 v246, 0
                  v_mov_b32 v244, 0xff
                  v_and_b32 v3, 3, v0
                  v_lshrrev_b32 v5, 5, v0
                  v_and_b32 v6, 31, v0
                  v_lshlrev_b32 v4, 11, v5
                  v_lshl_add_u32 v4, v6, 4, v4
                  s_lshl_b32 s61, s28, 13
                  s_lshl_b32 s62, s30, 9
                  s_add_u32 s61, s61, s62
                  s_add_u32 s61, s61, {QP}
                  s_add_u32 s62, s61, 4096
                  v_lshlrev_b32 v6, 3, v6
                  v_lshl_add_u32 v6, v5, 2, v6
                  s_lshl_b32 s56, s30, 8
                  v_add_u32 v6, s56, v6
                  v_xor_b32 v7, 64, v1
                  v_and_b32 v12, 15, v0
                  v_lshlrev_b32 v228, 9, v2
                  v_lshl_add_u32 v228, v12, 4, v228
                  s_and_b32 s57, s30, 1
                  s_lshr_b32 s60, s30, 1
                  s_lshl_b32 s56, s57, 8
                  s_add_u32 s99, s53, s56
                  s_lshl_b32 s56, s60, 11
                  s_add_u32 s99, s99, s56
                  v_lshlrev_b32 v229, 10, v5
                  v_and_b32 v13, 1, v2
                  v_lshl_add_u32 v229, v13, 8, v229
                  v_lshl_add_u32 v229, v12, 4, v229
                  s_lshl_b32 s53, s55, 11
                  s_lshl_b32 s56, s57, 9
                  s_add_u32 s53, s53, s56
                  s_add_u32 s53, s53, {OP}
                  s_lshl_b32 s56, s57, 10
                  v_lshl_add_u32 v238, v0, 4, s56
                  v_bfe_u32 v14, v0, 2, 1
                  v_lshl_add_u32 v239, v5, 1, v9
                  v_lshl_add_u32 v239, v14, 4, v239
                  v_lshl_add_u32 v239, v13, 5, v239
                  s_lshl_b32 s56, s30, 6
                  v_lshl_add_u32 v239, v239, 4, s56
                  s_lshl_b32 s56, s30, 2
                  v_lshl_add_u32 v240, v9, 4, s56
                  v_mov_b32 v243, s56
                  v_lshrrev_b32 v241, 3, v0
                  s_lshl_b32 s56, s60, 7
                  v_lshl_add_u32 v241, v241, 4, s56
                  v_lshlrev_b32 v242, 4, v9
                  v_lshl_add_u32 v14, v2, 1, v14
                  v_lshl_add_u32 v230, v14, 2, v3
                  v_lshlrev_b32 v230, 4, v230
                  v_lshlrev_b32 v231, 11, v14
                  v_lshl_add_u32 v231, v9, 6, v231
                  v_lshl_add_u32 v231, v3, 4, v231
                  s_lshl_b32 s3, s28, 9
                  s_add_u32 s3, s3, {ML}
                  v_lshlrev_b32 v232, 4, v13
                  v_lshl_add_u32 v232, v10, 5, v232
                  v_lshl_add_u32 v232, v9, 8, v232
                  s_lshl_b32 s56, s30, 9
                  v_add_u32 v232, s56, v232
                  v_lshl_add_u32 v11, v9, 5, v2
                  v_mul_u32_u24 v11, 896, v11
                  v_lshl_add_u32 v11, v10, 4, v11
                  s_lshl_b32 s48, s28, 9
                  s_lshl_b32 s56, s50, 7
                  s_add_u32 s48, s48, s56
                  s_lshl_b32 s56, s57, 6
                  s_add_u32 s48, s48, s56
                  s_lshl_b32 s56, s60, 2
                  s_add_u32 s48, s48, s56
                  s_mul_i32 s48, s48, 896
                  s_lshl_b32 s56, s51, 7
                  s_add_u32 s48, s48, s56
                  s_cmp_lt_u32 s29, 28
                  s_cselect_b32 s42, s42, 0
                  s_cselect_b32 s48, s48, 0
                  s_lshl_b32 s49, s51, 6
                  s_lshl_b32 s56, s30, 4
                  s_add_u32 s49, s49, s56
                  s_mul_i32 s63, s49, 3584
                  s_lshl_b32 s56, s100, 7
                  s_add_u32 s63, s63, s56
                  v_mul_u32_u24 v12, 3584, v2
                  v_lshl_add_u32 v12, v10, 4, v12
                  v_add_u32 v12, s63, v12
                  s_cmp_lt_u32 s52, 28
                  s_cselect_b32 s56, -1, 0
                  v_and_b32 v12, s56, v12
                  v_cmp_eq_u32 vcc, 0, v9
                  v_mov_b32 v13, s18
                  v_mov_b32 v14, s16
                  v_cndmask_b32 v13, v13, v14, vcc
                  v_mov_b32 v14, s19
                  v_mov_b32 v8, s17
                  v_cndmask_b32 v14, v14, v8, vcc
                  v_add_co_u32 v{GA}, vcc, v13, v12
                  v_addc_co_u32 v{GA+1}, vcc, 0, v14, vcc""")
            for m in range(1, 4):
                e(f"v_add_co_u32 v{GA+2*m}, vcc, 14336, v{GA+2*m-2}\nv_addc_co_u32 v{GA+2*m+1}, vcc, 0, v{GA+2*m-1}, vcc")
            e(f"""s_cmp_eq_u32 s60, 0
                  s_cselect_b64 s[22:23], -1, 0
                  v_lshl_add_u32 v233, v3, 2, v2
                  v_add_u32 v233, s49, v233
                  v_lshlrev_b32 v234, 2, v233
                  v_and_b32 v234, 0xff, v234
                  v_lshlrev_b32 v233, 1, v233
                  v_lshl_add_u32 v235, v2, 2, v3
                  v_add_u32 v235, s49, v235
                  v_lshlrev_b32 v235, 2, v235
                  v_and_b32 v13, 12, v0
                  v_cmp_eq_u32 vcc, 0, v13
                  v_mov_b32 v13, {OOB}
                  v_cndmask_b32 v235, v13, v235, vcc
                  v_lshrrev_b32 v236, 2, v0
                  v_lshlrev_b32 v236, 8, v236
                  v_lshl_add_u32 v236, v3, 4, v236
                  s_lshl_b32 s56, s30, 10
                  v_lshl_add_u32 v237, v0, 4, s56
                  s_mov_b32 s57, {CEXP}""")
        if i == max(W, w0) + 1:
            e("s_waitcnt lgkmcnt(0)")
            tags()
            e(f"""s_getreg_b32 s56, hwreg(HW_REG_XCC_ID, 0, 4)
                  s_and_b32 s63, s97, 0xf0
                  s_or_b32 s63, s63, s56
                  s_mov_b32 s58, {SPIN}""")
            qtag_reg(8, 2)
            e("v_cmp_eq_u32 vcc, 0, v3\nv_cndmask_b32 v8, 0, v8, vcc")
            qtag_reg(245, 3)
    stamp(1)
    while "G1" not in pos: next_op()
    win[0] = int(Wq) or W
    while gate(ops[0][0]) < pos["G1"]: next_op()
    arrived(pos["G1"])
    e("L_qpoll:")
    stamp(2)
    a = QG
    e(f"""v_bitop3_b32 v12, v{a}, v{a+1}, {T0} bitop3:0x7e
          v_bitop3_b32 v13, v{a+4}, v{a+5}, {T0} bitop3:0x7e
          v_bitop3_b32 v14, v{a+2}, v{a+6}, {T1} bitop3:0x7e
          v_bitop3_b32 v15, v{a+3}, v{a+7}, s63 bitop3:0x7e
          v_or3_b32 v12, v12, v13, v14
          v_and_b32 v13, 0xf0, v15
          v_or_b32 v12, v12, v13
          v_cmp_ne_u32_sdwa vcc, v12, v246 src0_sel:BYTE_0 src1_sel:DWORD
          s_cbranch_vccnz L_qretry
          L_qdone:
          v_and_b32 v15, 15, v15
          v_cmp_ne_u32 vcc, 0, v15""")
    extra.append("L_qretry:\ns_sub_u32 s58, s58, 1\ns_cbranch_scc1 L_qdone\n" + ("" if qsc else "s_and_b32 s56, s58, 3\ns_cbranch_scc0 L_qpub\nL_qback:\n") + "\n".join(qg) + "\ns_waitcnt vmcnt(0)\ns_branch L_qpoll")
    score_op()
    for r in range(8): e(f"v_and_b32 v{a+r}, 0xffffff00, v{a+r}")
    e("s_cmp_eq_u64 vcc, 0\ns_cselect_b32 s56, %d, 1" % (1 if force_global else 0))
    for r in range(4): e(f"v_add_f32 v{a+r}, v{a+r}, v{a+4+r}")
    e(f"""v_mov_b32 v12, s56
          v_permlane32_swap_b32 v{a}, v{a+2}
          v_permlane32_swap_b32 v{a+1}, v{a+3}
          ds_write_b32 v243, v12 offset:{FLAGS}
          v_add_f32 v{a}, v{a}, v{a+2}
          v_add_f32 v{a+1}, v{a+1}, v{a+3}
          v_cvt_pk_bf16_f32 v{a}, v{a}, v{a+1}
          ds_write_b32 v6, v{a} offset:{QS}
          s_waitcnt lgkmcnt(0)
          s_barrier
          ds_read_b128 v[{QB}:{QB+3}], v1 offset:{QS}
          ds_read_b128 v[{QB+4}:{QB+7}], v7 offset:{QS}
          ds_read_b128 v[12:15], v246 offset:{FLAGS}
          ds_read_u16 v233, v233 offset:{XR}""")
    score_op()
    e("s_waitcnt lgkmcnt(0)")
    stamp(3)
    for m in list(range(0, 16, 2)) + list(range(1, 16, 2)):
        k, q = KR + 4*m, QB + 4*(m & 1)
        e(f"v_mfma_f32_16x16x32_bf16 v[{k}:{k+3}], v[{k}:{k+3}], v[{q}:{q+3}], 0")
    read_mode(12)
    e("v_lshlrev_b32 v233, 16, v233")
    for par in range(2):
        pat = (0xf0f00f0f, 0x0f0ff0f0)[par]
        e(f"s_mov_b32 exec_lo, {pat}\ns_mov_b32 exec_hi, {pat}")
        for r in range(4):
            for p in range(8):
                a = KR + 4*(2*p + par)
                if r == 0: e(f"v_mov_b32_dpp v{SC+p}, v{a} quad_perm:[0,0,0,0] row_mask:0xf bank_mask:0xf")
                else: e(f"v_add_f32_dpp v{SC+p}, v{a+r}, v{SC+p} quad_perm:[{r},{r},{r},{r}] row_mask:0xf bank_mask:0xf")
        e("s_mov_b64 exec, -1")
        if par == 0: score_op()
    Z = KR
    for u in range(4): e(f"v_permlane16_swap_b32 v{SC+2*u}, v{SC+2*u+1}")
    for u in range(4): e(f"v_add_f32_dpp v{Z+u}, v{SC+2*u+1}, v{SC+2*u} row_half_mirror row_mask:0xf bank_mask:0xf")
    for u in (0, 2): e(f"v_cvt_pk_bf16_f32 v{Z+u+1}, v{Z+u}, v{Z+u+1}")
    for u in (0, 2): e(f"v_lshlrev_b32 v{Z+u}, 16, v{Z+u+1}\nv_and_b32 v{Z+u+1}, 0xffff0000, v{Z+u+1}")
    e(f"v_max3_f32 v4, v{Z}, v{Z+1}, v{Z+2}\nv_max_f32 v4, v4, v{Z+3}")
    dpp_red("v_max_f32", [4], ["row_half_mirror"])
    xrow("v_max_f32", [4], [5])
    score_op()
    for u in range(4): e(f"v_sub_f32 v{Z+u}, v{Z+u}, v4")
    for u in range(4): e(f"v_mul_f32 v{Z+u}, s57, v{Z+u}")
    for u in range(4): e(f"v_exp_f32 v{Z+u}, v{Z+u}")
    e(f"v_add_f32 v5, v{Z}, v{Z+1}\nv_add_f32 v5, v5, v{Z+2}\nv_add_f32 v5, v5, v{Z+3}")
    dpp_red("v_add_f32", [5], ["row_half_mirror"])
    xrow("v_add_f32", [5], [6])
    e(f"""s_mov_b32 exec_lo, 0x11111111
          s_mov_b32 exec_hi, 0x11111111
          ds_write_b128 v239, v[{Z}:{Z+3}] offset:{EB}
          ds_write_b32 v240, v4 offset:{MLW}
          ds_write_b32 v240, v5 offset:{MLW+32}
          s_mov_b64 exec, -1
          s_waitcnt lgkmcnt(0)""")
    stamp(4)
    e(f"s_barrier\nds_read_b128 v[12:15], v242 offset:{MLW}")
    for mm in range(4): e(f"ds_read_b128 v[{PE+4*mm}:{PE+4*mm+3}], v241 offset:{EB+256*mm}")
    e(f"ds_read_b32 v{PE+16}, v241 offset:{EB+7*128+12}")
    score_op()
    e("s_waitcnt lgkmcnt(5)\nv_max3_f32 v4, v12, v13, v14\nv_max_f32 v4, v4, v15\nv_cmp_gt_u32 vcc, 32, v0")
    e("v_cndmask_b32 v12, v13, v12, vcc\nv_cndmask_b32 v13, v15, v14, vcc\nv_cndmask_b32 v12, v13, v12, s[22:23]")
    for w in range(2): e(f"v_sub_f32 v{12+w}, v{12+w}, v4")
    for w in range(2): e(f"v_mul_f32 v{12+w}, s57, v{12+w}")
    for w in range(2): e(f"v_exp_f32 v{12+w}, v{12+w}")
    e("s_waitcnt lgkmcnt(0)")
    for i in range(0, 16, 2): e(f"v_pk_mul_f32 v[{PE+i}:{PE+i+1}], v[{PE+i}:{PE+i+1}], v[12:13] op_sel:[0,0] op_sel_hi:[1,0]")
    e(f"v_mul_f32 v{PE+16}, v{PE+16}, v13")
    for i in range(17): e(f"v_cvt_pk_bf16_f32 v{PE+i}, v{PE+i}, v{PE+i}")
    stamp(5)
    def prep(i):
        p = PE + (4*(i & 3) + (i >> 2) if i < 16 else 16)
        for j in range(4): e(f"v_and_b32 v{AF+4*(i&3)+j}, v{p}, v{MK+j}")
    def pv(i):
        arrived(pos[f"V{i}"])
        a = AF + 4*(i & 3)
        e(f"v_mfma_f32_16x16x32_bf16 v[12:15], v[{a}:{a+3}], v[{VR+4*i}:{VR+4*i+3}], " + ("0" if i == 0 else "v[12:15]"))
    prep(0)
    if int(W2):
        win[0] = int(W2)
    since = 99
    for i in range(15):
        while not int(W2) and ops and (since >= 5 or f"V{i}" not in pos or pos[f"V{i}"] > state["done"]):
            next_op(); since = 0
        while int(W2) and ops and gate(ops[0][0]) <= max(state["done"], pos[f"V{i}"]): next_op()
        prep(i + 1); pv(i); since += 1
        if i == int(ksplit):
            sec("K2", "L_K2"); e("s_nop 4")
            if pfl:
                assert "WO0" not in pos
                e("s_cmp_ge_u32 s29, 28\ns_cbranch_scc1 L_pfa\nL_pfb:")
            if sfx: e(f"v_lshlrev_b32 v249, {fsh}, v0\nv_mov_b32 v248, s31\ns_lshl_b32 s98, s28, 13\ns_and_b32 s56, s30, 1\ns_lshl_b32 s56, s56, 5\ns_add_u32 s98, s98, s56\ns_add_u32 s98, s98, s29\ns_add_u32 s98, s98, {FL}")
    for name, t in ops:
        e(t); pos[name] = state["n"]; state["n"] += 1
    ops.clear()
    e(f"s_cmp_eq_u32 s60, 0\ns_cbranch_scc1 L_keep\nds_write_b128 v238, v[12:15] offset:{PR}\ns_waitcnt lgkmcnt(0)\ns_barrier\ns_branch L_joined\nL_keep:")
    saved = dict(state)
    prep(16); pv(15)
    e(f"s_barrier\nds_read_b128 v[4:7], v238 offset:{PR}")
    pv(16)
    e("s_waitcnt lgkmcnt(0)")
    pk_add4(12, 12, 4)
    e("v_bfi_b32 v12, v244, v245, v12")
    if opsc: e("buffer_store_dwordx4 v[12:15], v229, s[32:35], s53 offen sc1")
    else: mode_store(["buffer_store_dwordx4 v[12:15], v229, s[32:35], s53 offen"])
    if sfx: e(f"s_mov_b64 exec, {(1 << sfx) - 1 if sfx < 64 else -1}\nbuffer_store_byte v248, v249, s[32:35], s98 offen\ns_mov_b64 exec, -1")
    e("L_joined:")
    state.update(saved)
    stamp(6)
    e(f"""s_cmp_ge_u32 s29, {29 if int(wb) & 1 else 28}
          s_cbranch_scc1 {"L_dirty" if int(dirty) else "L_clean" if clean & 1 else "L_end" if dnpf is None else "L_pf"}
          s_lshl_b32 s60, s28, 16
          s_and_b32 s56, s50, 3
          s_lshl_b32 s56, s56, 9
          s_add_u32 s60, s60, s56
          s_lshl_b32 s56, s30, 7
          s_add_u32 s60, s60, s56
          s_add_u32 s60, s60, {OP}
          s_add_u32 s61, s60, 16384
          s_add_u32 s62, s60, 32768
          s_add_u32 s63, s60, 49152
          s_mov_b32 s58, {SPIN}""")
    if not sfx: e("s_barrier"); stamp(7)
    opg = [(f"buffer_load_dwordx4 v[{16+4*i}:{19+4*i}], v231, s[32:35], s{60+i} offen sc1", 16 + 4*i) for i in range(4)]
    for name, t in wlate:
        e(t); pos[name] = state["n"]; state["n"] += 1
    km, opat = state["n"] - 1 - pos["ML"], int(opat)
    def left(k, x=0):
        if k < len(wlate): e(f"s_waitcnt vmcnt({k+x})"); return
        k += x
        l1, l2 = lab("lf"), lab("lf")
        e(f"s_cmp_gt_u32 s30, 1\ns_cbranch_scc1 {l1}\ns_waitcnt vmcnt({k+1+(sfx > 0)})\ns_branch {l2}\n{l1}:\ns_waitcnt vmcnt({k})\n{l2}:")
    chk_text = lambda: "\n".join((f"v_bitop3_b32 v247, v{MG}, v{MG+1}, {T0} bitop3:0x7e", f"v_bitop3_b32 v247, v{MG+2}, {T1}, v247 bitop3:0xbe",
        f"v_bitop3_b32 v247, v{MG+3}, {T2}, v247 bitop3:0xbe", "v_cmp_ne_u32_sdwa s[4:5], v247, v246 src0_sel:BYTE_0 src1_sel:DWORD", "s_cmp_lg_u64 s[4:5], 0"))
    again = "L_mlretry:\ns_sub_u32 s58, s58, 1\ns_cbranch_scc1 L_mlgo\n" + mlg + "\ns_waitcnt vmcnt(0)\n" + chk_text() + "\ns_cbranch_scc1 L_mlretry\nL_mlgo:\n"
    if sfx:
        left(km)
        e(chk_text() + "\ns_cbranch_scc1 L_mlretry\nL_mldone:")
        extra2 = [again + "s_branch L_mldone"]
        opat = km
    elif mlo == "B":
        left(km)
        e(chk_text() + "\ns_cbranch_scc1 L_mlretry")
        if opat < km: left(opat)
        if int(dbg): stamp(1)
        e("L_opgo:")
        for t, b in opg: e(t)
        extra2 = [again + "s_branch L_opgo"]
        opat = km
    elif mlo == "A":
        e("s_mov_b32 s101, 0"); left(km)
        e(chk_text() + "\ns_cbranch_scc1 L_mlretry\nL_mldone:")
        extra2 = [again + "s_mov_b32 s101, 1\n" + "\n".join(t for t, b in opg) + "\ns_branch L_mldone"]
        assert opat < km
    else:
        if opat >= km:
            if opat < 20: left(opat)
            for t, b in opg: e(t)
            if opat > km: left(km, 4)
        else:
            e("s_mov_b32 s101, 0"); left(km)
        e("L_mlchk:")
        check(MG, 4, 247)
        e("s_cmp_lg_u64 s[4:5], 0\ns_cbranch_scc1 L_mlretry\nL_mldone:")
        extra2 = ["L_mlretry:\ns_sub_u32 s58, s58, 1\ns_cbranch_scc1 L_mldone\ns_mov_b32 s101, 1\n" + mlg + "\n" + "\n".join(t for t, b in opg) + "\ns_waitcnt vmcnt(4)\ns_branch L_mlchk"]
    e(f"""s_cmp_ge_u32 s50, 2
          s_cselect_b64 vcc, -1, 0
          v_cndmask_b32 v4, v{MG}, v{MG+2}, vcc
          v_cndmask_b32 v5, v{MG+1}, v{MG+3}, vcc
          v_and_b32 v4, 0xffff0000, v4
          v_and_b32 v5, 0xffffff00, v5
          v_mov_b32 v6, v4""")
    q8 = ["quad_perm:[1,0,3,2]", "quad_perm:[2,3,0,1]", "row_half_mirror"]
    dpp_red("v_max_f32", [6], q8); xrow("v_max_f32", [6], [7])
    e("v_sub_f32 v4, v4, v6\nv_mul_f32 v4, s57, v4\nv_exp_f32 v4, v4\nv_mul_f32 v6, v4, v5")
    dpp_red("v_add_f32", [6], q8); xrow("v_add_f32", [6], [7])
    e("v_rcp_f32 v6, v6\nv_mul_f32 v4, v4, v6")
    for i in range(4): e(f"v_mov_b32_dpp v{32+i}, v4 quad_perm:[{i},{i},{i},{i}] row_mask:0xf bank_mask:0xf")
    stamp(12)
    if opat < km:
        e("s_cmp_lg_u32 s101, 0\ns_cbranch_scc1 L_opsent")
        left(opat)
        if int(dbg): stamp(1)
        for t, b in opg: e(t)
        e("L_opsent:")
    if int(dbg): e("s_waitcnt vmcnt(4)"); stamp(3); e("s_waitcnt vmcnt(0)"); stamp(5)
    def op_acc(i, b):
        w, h = 32 + (i & 2), i & 1
        e(f"v_and_b32 v44, 0xffffff00, v{b}")
        if i == 0: e(f"v_pk_mul_f32 v[38:39], v[{b+2}:{b+3}], v[{w}:{w+1}] op_sel:[0,0] op_sel_hi:[1,0]\nv_mul_f32 v37, v{b+1}, v32\nv_mul_f32 v36, v44, v32")
        else: e(f"v_pk_fma_f32 v[38:39], v[{b+2}:{b+3}], v[{w}:{w+1}], v[38:39] op_sel:[0,{h},0] op_sel_hi:[1,{h},1]\nv_fmac_f32 v37, v{b+1}, v{32+i}\nv_fmac_f32 v36, v44, v{32+i}")
    if sfx:
        e("s_barrier"); stamp(7)
        for t, b in opg: e(t)
        if "y" in gi: e("s_barrier")
        for (name, t), c in zip(gops, gi):
            if c == "y": e(t)
        if dnpos == "Y" and zb: e("s_barrier")
        poll(opg, 4, issued=True, behind=gi.count("y"), quad=245, spec=op_acc, pre=("s_memrealtime s[80:81]\n" if stamps else "") + ("" if "y" in gi else "s_barrier\n") + "\n".join(t for (name, t), c in zip(gops, gi) if c == "0"))
        assert gupos == "B1" and ospec and not int(wb) & 1
    elif ospec:
        opre_ = ("s_memrealtime s[80:81]\n" if stamps else "") + "s_barrier\n" + "\n".join(t for (name, t), c in zip(gops, gi) if c == "0")
        hook = None
        if osr:
            hook = "\n".join(f"s_wqm_b64 s[{4+2*i}:{5+2*i}], s[{4+2*i}:{5+2*i}]" for i in range(4)) + """
                s_or_b64 s[12:13], s[4:5], s[6:7]
                s_or_b64 s[14:15], s[8:9], s[10:11]
                s_and_b64 s[16:17], s[4:5], s[6:7]
                s_and_b64 s[18:19], s[8:9], s[10:11]
                s_and_b64 vcc, s[12:13], s[14:15]
                s_or_b64 s[16:17], s[16:17], s[18:19]
                s_or_b64 vcc, vcc, s[16:17]
                s_cbranch_scc0 L_one"""
            def one_mode():
                ld = lambda r: f"s_mov_b64 exec, s[12:13]\nbuffer_load_dwordx4 v[{48+4*r}:{51+4*r}], v45, s[32:35], s60 offen sc1"
                e("L_one:\ns_or_b64 s[12:13], s[12:13], s[14:15]\nv_mov_b32 v45, v231")
                for i in range(1, 4): e(f"s_mov_b64 exec, s[{4+2*i}:{5+2*i}]\nv_add_u32 v45, {16384*i}, v231")
                e(ld(0))
                e("s_mov_b64 exec, -1\nv_cndmask_b32 v46, v32, v33, s[6:7]\nv_cndmask_b32 v47, v34, v35, s[10:11]\nv_mov_b64 v[36:37], 0\nv_mov_b64 v[38:39], 0\nv_cndmask_b32 v46, v46, v47, s[14:15]")
                at = {2: (3,), 3: (1, 3), 4: (0, 2, 3), 5: (0, 1, 2, 3), 6: (0, 1, 2, 3, 3)}[osr]
                for i in range(4):
                    w, h, b = 32 + (i & 2), i & 1, 16 + 4*i
                    e(f"""s_andn2_b64 exec, -1, s[{4+2*i}:{5+2*i}]
                          v_and_b32 v44, 0xffffff00, v{b}
                          v_pk_fma_f32 v[38:39], v[{b+2}:{b+3}], v[{w}:{w+1}], v[38:39] op_sel:[0,{h},0] op_sel_hi:[1,{h},1]
                          v_fmac_f32 v37, v{b+1}, v{32+i}
                          v_fmac_f32 v36, v44, v{32+i}""")
                    for r, a in enumerate(at):
                        if a == i: e(ld(r + 1))
                e("L_onetop:")
                for r in range(osr):
                    b = 48 + 4*r
                    e(f"""s_waitcnt vmcnt({osr-1})
                          v_cmp_ne_u32_sdwa vcc, v{b}, v245 src0_sel:BYTE_0 src1_sel:DWORD
                          v_and_b32 v44, 0xffffff00, v{b}
                          s_wqm_b64 vcc, vcc
                          s_andn2_b64 exec, s[12:13], vcc
                          v_pk_fma_f32 v[38:39], v[{b+2}:{b+3}], v[46:47], v[38:39] op_sel:[0,0,0] op_sel_hi:[1,0,1]
                          v_fmac_f32 v37, v{b+1}, v46
                          v_fmac_f32 v36, v44, v46
                          s_and_b64 s[12:13], s[12:13], vcc
                          s_cbranch_scc0 L_oneout""")
                    e(ld(r))
                e("s_sub_u32 s58, s58, 1\ns_cbranch_scc0 L_onetop\nL_oneout:\ns_mov_b64 exec, -1\n" + opre_ + "\ns_branch L_opsum")
        poll(opg, 4, issued=True, quad=245, spec=op_acc, pre=opre_, hook=hook)
        if osr: e("L_opsum:")
        assert gupos == "B1" and not int(wb) & 1
    else:
        poll(opg, 4, issued=True, quad=245)
        stamp(8)
    if int(dbg) or int(cnt) == 2: e(f"s_sub_u32 s68, {SPIN}, s58")
    def gu_at(k):
        if gupos == "B1":
            for (name, t), c in zip(gops, gi):
                if c == str(k): e(t)
    if gupos == "B1" and not ospec: e("s_barrier")
    if int(wb) & 1:
        e("s_cmp_eq_u32 s29, 28\ns_cbranch_scc1 L_wb")
        extra2.append("L_wb:\ns_cmp_lg_u32 s30, 0\ns_cbranch_scc1 L_end\nbuffer_wbl2 sc1\ns_waitcnt vmcnt(0)\n" + ("s_memrealtime s[82:83]\n" if stamps else "") + "s_branch L_end")
    if not ospec: gu_at(0)
    for i in range(0 if ospec else 4):
        w, s = 32 + (i & 2), i & 1
        for p in (0, 2):
            if i == 0: e(f"v_pk_mul_f32 v[{36+p}:{37+p}], v[{16+p}:{17+p}], v[{w}:{w+1}] op_sel:[0,0] op_sel_hi:[1,0]")
            else: e(f"v_pk_fma_f32 v[{36+p}:{37+p}], v[{16+4*i+p}:{17+4*i+p}], v[{w}:{w+1}], v[{36+p}:{37+p}] op_sel:[0,{s},0] op_sel_hi:[1,{s},1]")
    gu_at(1)
    trows(36)
    gu_at(2)
    e("""v_add_f32_dpp v37, v36, v36 row_shr:4 row_mask:0xf bank_mask:0xa
         v_add_f32_dpp v37, v36, v36 row_shl:4 row_mask:0xf bank_mask:0x5
         v_cvt_pk_bf16_f32 v37, v37, v37""")
    gu_at(3)
    def gemv4(src, wbase, bank):
        for m in range(5):
            if m < 4:
                for j in range(4): e(f"v_and_b32_dpp v{AF+4*m+j}, v{src}, v{MK+j} quad_perm:[{m},{m},{m},{m}] row_mask:0xf bank_mask:{bank}")
            if m >= 1:
                p = m - 1
                e(f"v_mfma_f32_16x16x32_bf16 v[40:43], v[{AF+4*p}:{AF+4*p+3}], v[{wbase+4*p}:{wbase+4*p+3}], " + ("0" if p == 0 else "v[40:43]"))
    gemv4(37, WO, "0xf")
    gu_at(4)
    e(f"""s_mov_b32 exec_lo, 0x00ff00ff
          s_mov_b32 exec_hi, 0xff00ff00
          ds_write_b128 v232, v[40:43] offset:{RED}
          s_mov_b64 exec, -1
          s_waitcnt lgkmcnt(0)""")
    stamp(9)
    e(f"""s_barrier
          s_lshl_b32 s56, s30, 6
          s_cmp_ge_u32 s52, 28
          s_cbranch_scc1 {"L_fin03" if ff else "L_end"}
          L_finback:
          v_mov_b32 v16, 0x3f803f80
          s_mul_i32 s60, s51, {BS}
          s_add_u32 s60, s60, s56
          s_add_u32 s60, s60, {CP}""")
    if ff:
        assert int(sw) != 0 and not cack and int(wb) & 6 != 6 and hlate == 3 and dnpos == "F" and not sfl and fin != "0"
        extra2.append("L_fin03:\ns_cmp_lg_u32 s30, s50\ns_cbranch_scc1 L_end\n" + ("" if stamps else "s_mov_b32 s30, 0\n") + "v_mov_b32 v235, 0x40000000\n" + ("s_barrier\n" if ffb else "") + "s_branch L_finback")
    if home == "v":
        e(f"""v_and_b32 v17, 0x100, v{MG}
              v_cmp_ne_u32 vcc, 0, v17
              s_bcnt1_i32_b64 s56, vcc
              s_cmp_lt_u32 s56, {4 if int(pst) == 2 else 26}
              s_cselect_b32 s56, 8192, 0""")
    else: e(f"s_lshr_b32 s56, s28, 2\ns_xor_b32 s56, s56, {home}\ns_lshl_b32 s56, s56, 13")
    e(f"s_add_u32 s60, s60, s56\nv_mov_b32 v17, s56\nds_write_b32 v246, v17 offset:{FLAGS+16}")
    e(f"""s_add_u32 s61, s60, 4096
          s_lshl_b32 s62, s52, 11
          s_add_u32 s62, s62, {HH}
          s_mov_b32 s63, 0xffff0000""")
    for m in range(4):
        for j in range(4): e(f"v_and_b32 v{AF+4*m+j}, v16, v{MK+j}")
    if gupos == "B4":
        for name, t in gops: e(t)
    for r in range(4): e(f"v_mov_b32 v{20+r}, {'v245' if r == 0 else 0}")
    e("v_lshlrev_b32 v1, 4, v0")
    poll_init(2, 4)
    if cack: e("s_barrier")
    assert ct
    if ct:
        for r in range(4): e(f"v_mov_b32 v{16+r}, 0")
        poll_sum(lambda i, b: f"buffer_load_dwordx4 v[{b}:{b+3}], v236, s[32:35], s{60+i} offen {cld}", 16, 48, 245, ct)
        stamp(10)
        if dnpos == "C": e("s_barrier")
        if dnpos == "F": e(f"ds_write_b32 v246, v244 offset:{FLAGS+32}")
    else:
        poll([(f"buffer_load_dwordx4 v[{16+4*i}:{19+4*i}], v236, s[32:35], s{60+i} offen sc1", 16 + 4*i) for i in range(2)], 4, quad=245)
        stamp(10)
        pk_add4(16, 16, 20)
    trows(16)
    dpp_red("v_add_f32", [16], ["row_ror:4", "row_ror:8"])
    bfround(16)
    e("v_add_f32 v16, v16, v233\nv_cvt_pk_bf16_f32 v16, v16, v16\nv_and_or_b32 v17, v16, s63, v8")
    if hlate < 2: mode_store(["buffer_store_dword v17, v235, s[32:35], s62 offen"])
    if hlate < 1: e(f"ds_write_b32 v234, v17 offset:{HL}")
    gemv4(16, GU, "0x3")
    if hlate == 2: mode_store(["buffer_store_dword v17, v235, s[32:35], s62 offen"])
    if hlate >= 1: e(f"ds_write_b32 v234, v17 offset:{HL}")
    e(f"ds_write_b128 v237, v[40:43] offset:{RED2}")
    if hlate == 3: mode_store(["buffer_store_dword v17, v235, s[32:35], s62 offen"])
    e("s_waitcnt lgkmcnt(0)")
    stamp(11)
    e(f"s_barrier\ns_cmp_lg_u32 s30, {sw}\ns_cbranch_scc1 L_end")
    if ff and stamps: e("s_cmp_ge_u32 s52, 28\ns_cbranch_scc1 L_end")
    L48 = (1 << 48) - 1
    r16 = ["row_ror:8", "row_ror:4", "row_ror:2", "row_ror:1"]
    poll_init(2, 4, {1: L48})
    assert not clean & 3
    poll([("buffer_load_dwordx4 v[16:19], v1, s[32:35], s62 offen sc1", 16), ("buffer_load_dwordx4 v[20:23], v1, s[32:35], s62 offen offset:1024 sc1", 20)], 4, quad=245)
    e("""v_pk_add_f32 v[28:29], v[18:19], v[22:23]
         v_pk_mul_f32 v[30:31], v[18:19], v[18:19]
         v_pk_add_f32 v[28:29], v[28:29], v[16:17]
         v_pk_fma_f32 v[30:31], v[22:23], v[22:23], v[30:31]
         v_pk_add_f32 v[28:29], v[28:29], v[20:21]
         v_pk_fma_f32 v[30:31], v[16:17], v[16:17], v[30:31]
         v_add_f32 v40, v28, v29
         v_pk_fma_f32 v[30:31], v[20:21], v[20:21], v[30:31]
         v_add_f32 v41, v30, v31
         v_permlane32_swap_b32 v40, v41
         v_add_f32 v40, v40, v41""")
    dpp_red("v_add_f32", [40], r16)
    e(f"""v_add_f32_dpp v40, v40, v40 row_bcast:15 row_mask:0xa bank_mask:0xf
          v_mul_f32 v40, {f2u(1/448)}, v40
          v_readlane_b32 s56, v40, 16
          s_brev_b64 exec, 1
          v_fma_f32 v41, -s56, s56, v40
          v_max_f32 v41, 0, v41
          v_cvt_pk_bf16_f32 v41, s56, v41
          v_lshlrev_b32 v40, 16, v41
          v_and_b32 v41, 0xffff0000, v41""")
    e(f"v_add_f32 v41, {f2u(1e-5)}, v41"); bfround(41)
    e("v_sqrt_f32 v41, v41"); bfround(41)
    e("v_rcp_f32 v41, v41")
    e(f"ds_write_b64 v246, v[40:41] offset:{FLAGS+24}\ns_waitcnt lgkmcnt(0)")
    stamp(13)
    if not sfl: e("s_barrier")
    if sfl: pass
    elif int(wb) & 6 == 6: e("s_cmp_lt_u32 s28, 4\ns_cbranch_scc1 L_nowb" if fin == "t" else f"s_cmp_lg_u32 s28, {fin}\ns_cbranch_scc1 L_nowb")
    if int(wb) & 2 and not sfl: e(f"s_cmp_lg_u32 s29, {wbj}\ns_cbranch_scc1 L_nowb\nbuffer_wbl2 sc1" + ("\ns_waitcnt vmcnt(0)" if int(wbw) & 2 else "")); stamp(9); e("L_nowb:")
    if clean & 2:
        e("""s_cmp_lg_u32 s51, 0
             s_cbranch_scc1 L_end
             buffer_store_dwordx4 v[16:19], v1, s[32:35], s62 offen sc1
             s_mov_b32 exec_hi, 0xffff
             buffer_store_dwordx4 v[20:23], v1, s[32:35], s62 offen offset:1024 sc1""")
    if ck & 2:
        e(f"""s_mul_i32 s60, s52, 7168
              s_lshl_b32 s56, s51, 10
              s_add_u32 s60, s60, s56
              s_lshl_b32 s56, s51, 8
              s_add_u32 s62, s62, s56
              s_barrier""")
        for i in range(8): e(f"s_load_dword s4, s[26:27], s60 offset:{DP + 128*i} glc")
        for i in range(2): e(f"s_load_dword s4, s[26:27], s62 offset:{128*i} glc")
        e("s_waitcnt lgkmcnt(0)")
        stamp(9)
    if epo[0] == "C" and not sfl: e("s_cmp_lg_u32 s2, 0\ns_cbranch_scc1 L_end\ns_mov_b64 exec, 1\nv_mov_b32 v16, s31\nbuffer_store_dword v16, v246, s[32:35], 0 offen " + epo[1:])
    if int(pcdbg): e("s_getpc_b64 s[4:5]\nv_mov_b32 v16, s4\nv_mov_b32 v17, s5\nglobal_store_dwordx2 v246, v[16:17], s[24:25] sc1")
    e("L_end:")
    finish()
    if osr: one_mode()
    sec("K0")
    for t in extra2: e(t)
    if not qsc:
        sec("Q3y" if osr else "Q3x")
        e(f"""L_qpub:
              v_lshlrev_b32 v204, 4, v0
              s_mov_b64 exec, 0xffff
              ds_read_b128 v[200:203], v204 offset:{QC}
              {ctm.replace("s48", "s54").replace("s49", "s56")}
              s_lshl_b32 s54, s54, 11
              s_lshl_b32 s56, s56, 8
              s_add_u32 s56, s56, s54
              s_lshl_b32 s54, s28, 13
              s_add_u32 s56, s56, s54
              s_add_u32 s56, s56, {QP}
              s_waitcnt lgkmcnt(0)
              v_bitop3_b32 v205, v200, v201, {T0} bitop3:0x7e
              v_bitop3_b32 v205, v202, {T1}, v205 bitop3:0xbe
              v_bitop3_b32 v205, v203, s63, v205 bitop3:0xbe
              v_cmp_eq_u32_sdwa vcc, v205, v246 src0_sel:BYTE_0 src1_sel:DWORD
              s_mov_b64 exec, vcc
              buffer_store_dwordx4 v[200:203], v204, s[32:35], s56 offen sc1
              s_mov_b64 exec, -1
              s_branch L_qback""")
    if dnpf is not None:
        sec("Q3x")
        def slab(d, none):
            if ff:
                e(f"""s_and_b32 s56, s52, 7
                  s_lshl_b32 s56, s56, 2
                  s_add_u32 s56, s56, s29
                  s_sub_u32 s{d}, s56, 28
                  s_cmp_ge_u32 s{d}, 28
                  s_cbranch_scc1 {none}
                  s_mul_i32 s{d}, s{d}, 57344""")
                return
            e(f"""s_sub_u32 s50, s29, 28
              s_and_b32 s56, s52, 7
              s_lshl_b32 s{d}, s50, 3
              s_add_u32 s{d}, s{d}, s56
              s_cmp_ge_u32 s{d}, 28
              {"s_cselect_b32 s50, 0, s50" if none is None else "s_cbranch_scc1 " + none}
              s_mul_i32 s{d}, s56, 3
              s_min_u32 s56, s56, 4
              s_add_u32 s{d}, s{d}, s56
              s_add_u32 s{d}, s{d}, s50
              s_mul_i32 s{d}, s{d}, 57344""")
        if pfl:
            e("L_pfa:"); slab(48, "L_pfb")
            e(f"""s_mul_i32 s56, s30, {128*pfl}
              s_add_u32 s48, s48, s56
              v_lshrrev_b32 v11, 2, v0
              v_min_u32 v11, {pfl-1}, v11
              v_lshlrev_b32 v11, 7, v11""")
            srd(40, 20, 1792*896)
            e("s_branch L_pfb")
        e("L_pf:")
        if ck & 1:
            e(f"""s_lshl_b32 s63, s29, 2
                  s_add_u32 s63, s63, s30
                  s_and_b32 s63, s63, 15
                  s_lshl_b32 s56, s28, 4
                  s_add_u32 s63, s63, s56
                  s_lshl_b32 s56, s63, 9""")
            for i in range(4): e(f"s_load_dword s4, s[26:27], s56 offset:{QP + 128*i} glc")
            e("s_lshl_b32 s63, s63, 12\ns_lshl_b32 s49, s30, 7\ns_add_u32 s49, s49, s3\ns_waitcnt lgkmcnt(0)" if int(dnpf) == 0 else "s_lshl_b32 s63, s63, 12\ns_lshl_b32 s49, s30, 7\ns_add_u32 s49, s49, s3")
        slab(60, None if ck & 1 else "L_end")
        e(f"""s_mul_i32 s56, s30, 7168
              s_add_u32 s61, s60, s56
              s_add_u32 s60, s61, 28672
              s_add_u32 s61, s61, {512*pfl}
              v_lshlrev_b32 v1, 7, v0""")
        srd(44, 20, 1792*896)
        if int(dnpf):
            e(f"""s_cmp_lg_u32 s30, 0
              s_cbranch_scc1 L_pfgo
              v_and_b32 v2, 31, v0
              v_lshlrev_b32 v2, 11, v2
              v_lshrrev_b32 v3, 5, v0
              v_lshl_add_u32 v2, v3, 9, v2
              v_mov_b32 v6, s31
              s_lshl_b32 s62, s28, 16
              s_add_u32 s62, s62, {OP}
              s_mov_b32 s58, 64
              L_pfpoll:
              s_sub_u32 s58, s58, 1
              s_cbranch_scc1 L_pfgo
              buffer_load_dword v3, v2, s[32:35], s62 offen sc1
              s_waitcnt vmcnt(0)
              v_cmp_eq_u32_sdwa vcc, v3, v6 src0_sel:BYTE_0 src1_sel:BYTE_0
              s_bcnt1_i32_b64 s56, vcc
              s_cmp_lt_u32 s56, {int(dnpf)}
              s_cbranch_scc1 L_pfpoll
              L_pfgo:""")
        e("s_barrier"); stamp(7)
        m2 = (1 << (56 - 4*pfl)) - 1
        if m2: e(f"s_mov_b32 exec_lo, {m2 & 0xffffffff}\ns_mov_b32 exec_hi, {m2 >> 32}\nbuffer_load_dword v5, v1, s[44:47], s61 offen")
        e("s_mov_b32 exec_lo, -1\ns_mov_b32 exec_hi, 0xffffff\nbuffer_load_dword v4, v1, s[44:47], s60 offen\ns_waitcnt vmcnt(%d)" % int(ckw))
        stamp(8)
        if ck & 1:
            for i in range(32): e(f"s_load_dword s4, s[26:27], s63 offset:{OP + 128*i} glc")
            e("s_load_dword s4, s[26:27], s49 glc\ns_waitcnt vmcnt(0) lgkmcnt(0)")
            stamp(9)
        e("s_branch L_end")
    if clean & 1:
        sec("Q3x")
        e(f"""L_clean:
              v_lshlrev_b32 v1, 4, v0
              v_mov_b32 v12, v245
              s_lshl_b32 s60, s28, 16
              s_and_b32 s56, s29, 3
              s_lshl_b32 s56, s56, 14
              s_add_u32 s60, s60, s56
              s_lshl_b32 s56, s30, 12
              s_add_u32 s60, s60, s56
              s_add_u32 s60, s60, {OP}
              s_cmp_lg_u32 s30, 0
              s_cbranch_scc1 L_clst
              v_lshlrev_b32 v2, 8, v0
              s_lshl_b32 s62, s28, 11
              s_add_u32 s62, s62, {HH}
              s_mov_b32 s58, {SPIN}
              s_mov_b64 exec, 0x7f
              L_clpoll:
              s_sub_u32 s58, s58, 1
              s_cbranch_scc1 L_clgo
              buffer_load_dwordx4 v[16:19], v2, s[32:35], s62 offen sc1
              s_waitcnt vmcnt(0)""")
        check(16, 4, 247)
        e(f"""s_cmp_lg_u64 s[4:5], 0
              s_cbranch_scc1 L_clpoll
              L_clgo:
              s_mov_b64 exec, -1
              s_cmp_lg_u32 s29, 28
              s_cbranch_scc1 L_clst
              buffer_store_dwordx4 v[{MG}:{MG+3}], v230, s[32:35], s3 offen sc1
              L_clst:
              s_barrier""")
        for i in range(4): e(f"buffer_store_dwordx4 v[12:15], v1, s[32:35], s60 offen offset:{1024*i} sc1")
        e("s_branch L_end")
    if int(dirty):
        sec("Q3x")
        e(f"""L_dirty:
              s_mov_b32 s34, 0x4000000
              s_lshl_b32 s56, s55, 2
              s_add_u32 s56, s56, s30
              s_mul_i32 s56, s56, {abs(int(dirty))*1024}
              s_add_u32 s56, s56, 0x400000
              s_mov_b32 s57, {abs(int(dirty))}
              v_lshlrev_b32 v1, 4, v0
              L_dloop:
              buffer_store_dwordx4 v[12:15], v1, s[32:35], s56 offen {"sc1" if int(dirty) < 0 else ""}
              s_add_u32 s56, s56, 1024
              s_sub_u32 s57, s57, 1
              s_cmp_lg_u32 s57, 0
              s_cbranch_scc1 L_dloop
              s_branch L_end""")

    WQ, F, XA, MK, DN = 16, 80, 96, 112, 128
    sec("A")
    e(f"""s_setprio 3
          v_lshlrev_b32 v1, 4, v0
          v_lshrrev_b32 v2, 3, v0
          v_and_b32 v3, 7, v0
          v_mul_u32_u24 v4, {14*8192}, v2
          v_lshl_add_u32 v4, v3, 4, v4
          {ctm}
          s_mul_i32 s54, s48, {112*8192}
          s_lshl_b32 s56, s28, 10
          s_add_u32 s54, s54, s56
          s_lshl_b32 s56, s49, 7
          s_add_u32 s54, s54, s56""")
    if not qsc: e(f"v_mov_b32 v6, 0\nv_mov_b32 v7, 1\nds_write_b64 v1, v[6:7] offset:{QC}")
    srd_hi(40, 896); srd_hi(36, 448*8192)
    stamp(15)
    e("s_waitcnt lgkmcnt(0)")
    if int(st0) == 1: stamp(6)
    srd_lo(40, 4)
    e("buffer_load_dwordx4 v[8:11], v1, s[40:43], 0 offen")
    srd_lo(36, 10)
    for i in range(14):
        e(f"buffer_load_dwordx4 v[{WQ+4*i}:{WQ+4*i+3}], v4, s[36:39], s54 offen {wnt if qnt is None else qnt}")
        if i < 13: e("s_add_u32 s54, s54, 8192")
        if int(st0) == 1 and i in (4, 9, 13): stamp({4: 7, 9: 8, 13: 9}[i])
    e("s_load_dword s31, s[26:27], 0\ns_barrier")
    sec("Q1", "L_Q1")
    tlb = int(tlb)
    if tlb:
        e(f"""s_lshl_b32 s54, s28, 23
              s_add_u32 s54, s54, 6291456
              s_add_u32 s60, s8, s54
              s_addc_u32 s61, s9, 0
              s_mul_i32 s54, s28, {512*896}
              s_add_u32 s62, s12, s54
              s_addc_u32 s63, s13, 0
              s_add_u32 s56, s62, {512*896-128}
              s_addc_u32 s57, s63, 0
              v_mov_b32 v12, s60
              v_mov_b32 v13, s61""")
        for ln, r in enumerate((62, 56, 16, 18, 20, 22, 26)):
            e(f"v_writelane_b32 v12, s{r}, {ln+1}\nv_writelane_b32 v13, s{r+1}, {ln+1}")
        touch = f"s_mov_b64 exec, {tlm}\nglobal_load_dword v250, v[12:13], off\ns_mov_b64 exec, -1"
        if tlb == 1: e(touch)
    srd(32, 26, WS_SIZE); srd(40, 22, 896); srd(44, 20, 1792*896)
    if int(qpre):
        e(f"""s_lshl_b32 s54, s28, 13
              s_add_u32 s54, s54, {QP}
              s_lshl_b32 s56, s48, 11
              s_add_u32 s56, s56, s54
              s_lshl_b32 s61, s49, 8
              s_add_u32 s56, s56, s61
              v_lshlrev_b32 v12, 7, v0
              s_mov_b64 exec, 3
              buffer_load_dword v250, v12, s[32:35], s56 offen sc1
              s_mov_b64 exec, -1""")
    ffn_scalars()
    masks(MK, 72, 73)
    e("v_mov_b32 v246, 0\nv_mov_b32 v245, 0xff\ns_waitcnt vmcnt(%d)" % (14 + (tlb == 1) + int(qpre)))
    if tlb == 2: e(touch)
    tlb = (tlb > 0) + int(qpre)
    skew_store = f"s_lshl_b32 s56, s2, 2\ns_add_u32 s56, s56, {STAMP}\nv_mov_b32 v13, s64\nbuffer_store_dword v13, v246, s[32:35], s56 offen sc1"
    stamp(1)
    e(f"ds_write_b128 v1, v[8:11] offset:{XR}")
    for i in range(4): e(f"v_lshlrev_b32 v{F+2*i}, 16, v{8+i}\nv_and_b32 v{F+2*i+1}, 0xffff0000, v{8+i}")
    e(f"v_add_f32 v72, v{F}, v{F+1}")
    for i in range(2, 8): e(f"v_add_f32 v72, v72, v{F+i}")
    r16 = ["row_ror:8", "row_ror:4", "row_ror:2", "row_ror:1"]
    dpp_red("v_add_f32", [72], r16)
    xrow("v_add_f32", [72], [73])
    e(f"v_mul_f32 v72, {f2u(1/448)}, v72\nv_mov_b32 v73, 0")
    for i in range(8): e(f"v_sub_f32 v74, v{F+i}, v72\nv_fmac_f32 v73, v74, v74")
    e("v_cmp_gt_u32 vcc, 56, v0\nv_cndmask_b32 v73, 0, v73, vcc")
    dpp_red("v_add_f32", [73], r16)
    xrow("v_add_f32", [73], [74])
    e(f"v_mul_f32 v73, {f2u(1/448)}, v73")
    bfround(72); bfround(73)
    e(f"v_add_f32 v73, {f2u(1e-5)}, v73"); bfround(73)
    e("v_sqrt_f32 v73, v73"); bfround(73)
    e("v_rcp_f32 v74, v73")
    for i in range(8): e(f"v_sub_f32 v{F+i}, v{F+i}, v72")
    for i in range(0, 8, 2): e(f"v_cvt_pk_bf16_f32 v{F+i+1}, v{F+i}, v{F+i+1}")
    for i in range(0, 8, 2): e(f"v_lshlrev_b32 v{F+i}, 16, v{F+i+1}\nv_and_b32 v{F+i+1}, 0xffff0000, v{F+i+1}")
    for i in range(8): e(f"v_mul_f32 v{F+8+i}, v{F+i}, v74")
    for i in range(8): e(f"v_fma_f32 v{F+i}, -v{F+8+i}, v73, v{F+i}")
    for i in range(8): e(f"v_fmac_f32 v{F+8+i}, v{F+i}, v74")
    for i in range(8): e(f"v_cvt_pk_bf16_f32 v{F+i}, v{F+8+i}, v{F+8+i}")
    e(f"""v_lshlrev_b32 v72, 5, v0
          ds_write_b128 v72, v[{F}:{F+3}] offset:{XN}
          ds_write_b128 v72, v[{F+4}:{F+7}] offset:{XN+16}
          v_mul_u32_u24 v73, 56, v2
          s_mul_i32 s56, s48, 448
          v_add_u32 v73, s56, v73
          s_waitcnt lgkmcnt(0)""")
    for i in range(7): e(f"ds_read_b64 v[{XA+2*i}:{XA+2*i+1}], v73 offset:{XN+8*i}")
    tags()
    e(f"""s_getreg_b32 s56, hwreg(HW_REG_XCC_ID, 0, 4)
          s_and_b32 s63, s97, 0xf0
          s_or_b32 s63, s63, s56
          s_waitcnt lgkmcnt(0)""")
    stamp(2)
    for i in range(15):
        if i < 14:
            a = (116, 120)[i & 1]
            for j in range(4): e(f"v_and_b32 v{a+j}, v{XA+i}, v{MK+j}")
        if i >= 1:
            p = i - 1; a = (116, 120)[p & 1]
            e(f"s_waitcnt vmcnt({13-p+tlb})\nv_mfma_f32_16x16x32_bf16 v[8:11], v[{a}:{a+3}], v[{WQ+4*p}:{WQ+4*p+3}], " + ("0" if p == 0 else "v[8:11]"))
    e(f"""v_lshrrev_b32 v5, 4, v0
          v_lshlrev_b32 v72, 4, v5
          v_lshl_add_u32 v72, v3, 5, v72
          v_and_b32 v73, 40, v0
          v_mov_b32 v12, {OOB}
          v_cmp_eq_u32 vcc, 0, v73
          v_cndmask_b32 v72, v12, v72, vcc
          s_lshl_b32 s54, s28, 13
          s_add_u32 s54, s54, {QP}
          s_lshl_b32 s56, s48, 11
          s_add_u32 s56, s56, s54
          s_lshl_b32 s61, s49, 8
          s_add_u32 s56, s56, s61""")
    for r in range(4): e(f"v_mov_b32_dpp v{F+r}, v{8+r} row_ror:8 row_mask:0xf bank_mask:0xf")
    for r in range(4): e(f"v_permlane32_swap_b32 v{F+r}, v{F+4+r}")
    for r in range(4): e(f"v_add_f32 v{8+r}, v{8+r}, v{F+4+r}")
    for r in range(4): e(f"v_add_u32 v{8+r}, 0x80, v{8+r}")
    tag4(8, 245, "s63")
    e(f"buffer_store_dwordx4 v[8:11], v72, s[32:35], s56 offen {qsc}")
    if not qsc: e(f"s_mov_b32 s3, s56\nv_mov_b32 v71, v72\ns_mov_b64 exec, vcc\nds_write_b128 v72, v[8:11] offset:{QC}\ns_mov_b64 exec, -1")
    stamp(3)
    if skew is not None: e(skew_store)
    e(f"""s_lshr_b32 s53, s2, 6
          s_lshl_b32 s53, s53, 14
          s_and_b32 s56, s2, 63
          s_lshl_b32 s56, s56, 7
          s_add_u32 s53, s53, s56
          s_add_u32 s53, s53, {PB}
          v_lshlrev_b32 v6, 10, v0
          v_and_b32 v6, 0x2000, v6
          v_lshl_add_u32 v6, v3, 4, v6""")
    for r in range(4): e(f"v_mov_b32 v{16+r}, 0x100")
    if int(pst) == 2: e("s_cmp_lt_u32 s29, 28\ns_cbranch_scc1 L_noprobe")
    if int(pst): e("s_mov_b64 exec, 0xffff\nbuffer_store_dwordx4 v[16:19], v6, s[32:35], s53 offen sc1\ns_mov_b64 exec, -1")
    e("L_noprobe:")
    e(f"""s_setprio 0
          s_lshl_b32 s54, s55, 11
          s_add_u32 s54, s54, {OP}
          v_lshl_add_u32 v6, v0, 7, s54
          s_lshr_b32 s48, s29, 3
          s_and_b32 s49, s29, 7
          s_lshl_b32 s60, s49, 6
          s_lshl_b32 s56, s48, 4
          s_add_u32 s60, s60, s56
          s_lshl_b32 s56, s28, 9
          s_add_u32 s60, s60, s56
          s_add_u32 s60, s60, {ML}
          s_mul_i32 s61, s52, 7168
          s_add_u32 s61, s61, {DP}
          s_lshl_b32 s56, s51, 10
          s_add_u32 s62, s61, s56
          s_sub_u32 s56, s62, {16*128}
          v_lshl_add_u32 v7, v0, 7, s56
          v_cmp_gt_u32 vcc, 16, v0
          v_cndmask_b32 v6, v7, v6, vcc
          s_lshl_b32 s63, s52, 11
          s_add_u32 s63, s63, {HH}
          s_lshl_b32 s56, s51, 8
          s_add_u32 s56, s56, s63
          v_writelane_b32 v6, s56, 24
          s_add_u32 s56, s56, 128
          v_writelane_b32 v6, s56, 25
          v_writelane_b32 v6, s60, 26
          {f"s_lshl_b32 s98, s28, 13{NL}s_and_b32 s56, s50, 1{NL}s_lshl_b32 s56, s56, 5{NL}s_add_u32 s98, s98, s56{NL}s_add_u32 s98, s98, {FL}{NL}s_lshl_b32 s56, s29, 7{NL}s_and_b32 s56, s56, {max((sfx << fsh) - 128, 0)}{NL}s_add_u32 s56, s56, s98{NL}v_writelane_b32 v6, s56, 27" if sfx else ""}
          s_cmp_lt_u32 s52, 28
          s_cselect_b32 s56, 0x03ff0000, 0
          s_or_b32 exec_lo, s56, {0x0c00ffff if sfx else 0x0400ffff}
          s_mov_b32 exec_hi, 0
          {"buffer_load_dword v13, v6, s[32:35], 0 offen sc1" if int(pre) & 1 else ""}
          s_mov_b64 exec, -1
          v_cmp_eq_u32 vcc, 0, v0
          v_cndmask_b32 v14, v12, v0, vcc
          v_and_b32 v72, 1, v0
          v_lshlrev_b32 v72, 4, v72
          s_mov_b32 s57, {CEXP}
          v_and_b32 v3, 3, v0
          v_and_b32 v6, 1, v5
          v_lshlrev_b32 v6, 2, v6
          v_lshrrev_b32 v7, 1, v5
          v_lshl_add_u32 v6, v7, 1, v6
          v_mul_u32_u24 v6, 896, v6
          v_and_b32 v7, 15, v0
          v_lshl_add_u32 v6, v7, 3, v6
          s_mul_i32 s48, s100, 57344
          s_lshl_b32 s56, s51, 7
          s_add_u32 s48, s48, s56
          s_mul_i32 s49, s51, {BS}
          s_lshl_b32 s56, s28, 10
          s_add_u32 s49, s49, s56
          s_lshl_b32 s56, s50, 8
          s_add_u32 s49, s49, s56
          s_add_u32 s49, s49, {CP}
          v_lshlrev_b32 v2, 2, v0""")
    qtag_reg(244, 3)
    e("v_bfe_u32 v15, v0, 2, 2")
    qtag_reg(15, 15)
    e("v_cmp_eq_u32 vcc, 0, v3\nv_cndmask_b32 v243, 0, v245, vcc")
    e(f"""s_mul_i32 s54, s51, {BS}
          s_add_u32 s54, s54, {EP}
          s_lshl_b32 s56, s52, 8
          s_add_u32 s54, s54, s56
          v_lshlrev_b32 v249, 7, v0
          v_lshlrev_b32 v250, 12, v0
          v_and_b32 v249, 0x80, v249
          v_and_b32 v250, 0x2000, v250
          v_or_b32 v249, v249, v250
          s_cmp_ge_u32 s29, 28
          s_cbranch_scc1 L_nopre
          s_mov_b64 exec, 15
          {"buffer_load_dword v250, v249, s[32:35], s49 offen sc1" if int(pre) & 2 else ""}
          s_cmp_ge_u32 s52, 28
          s_cbranch_scc1 {"L_opre" if ff else "L_nopre"}
          {f"s_mov_b64 exec, {(1 << 4*er) - 1}{NL}v_lshrrev_b32 v251, 2, v0{NL}v_mul_u32_u24 v251, {ES}, v251{NL}v_add_u32 v249, v249, v251" if er > 1 else ""}
          {"buffer_load_dword v250, v249, s[32:35], s54 offen sc1" if int(pre) & 4 else ""}""")
    if opre: e(f"""s_lshr_b32 s56, s52, 2
          {"s_cmp_lg_u32 s56, 1" if fin == "t" else f"s_cmp_lg_u32 s28, {fin}"}
          s_cbranch_scc1 L_nopre
          L_opre:
          s_lshl_b32 s56, s51, 7
          buffer_load_dword v250, v246, s[40:43], s56 offen {opre.replace("p", "")}""")
    e(f"""L_nopre:
          s_mov_b64 exec, -1""")
    def load_dn(guard=True, part=None):
        skip = lab("nodn")
        if guard: e(f"s_cmp_ge_u32 s52, 28\ns_cbranch_scc1 {skip}")
        for i in range(8) if part is None else range(4*part, 4*part + 4):
            for hi in range(2):
                d = DN + 2*(8*hi + i)
                e(f"buffer_load_dwordx2 v[{d}:{d+1}], v6, s[44:47], s48 offen offset:{896*hi} {wnt if dnf is None else dnf}")
            if i < 7: e("s_add_u32 s48, s48, 7168")
        e(f"{skip}:")
    if dnpos == "K": load_dn()
    if int(pst) == 2: e("s_mov_b32 s101, 0\ns_cmp_lt_u32 s29, 28\ns_cbranch_scc1 L_Q2")
    e("""s_waitcnt vmcnt(0)
         s_mov_b32 s99, 0
         s_load_dword s98, s[26:27], s53 offset:0
         s_load_dword s99, s[26:27], s53 offset:8192
         s_waitcnt lgkmcnt(1)
         s_andn2_b32 s101, 0x100, s99""")
    sec("Q2", "L_Q2")
    sec("Q3", "L_Q3")
    e(f"s_barrier\nds_read_b128 v[24:27], v246 offset:{FLAGS}\ns_waitcnt lgkmcnt(0)")
    read_mode(24)
    if not qsc:
        e("s_cmp_lg_u32 s59, 0\ns_cbranch_scc1 L_qfar\nL_qnear:")
        deferred.append(("L_qfar", "L_qnear", ["buffer_store_dwordx4 v[8:11], v71, s[32:35], s3 offen"]))
    if dnpos == "q": load_dn()
    e("s_setprio 3\ns_barrier")
    stamp(4)
    e(f"""
          ds_read_b128 v[16:19], v72 offset:{MLW}
          ds_read_b128 v[20:23], v72 offset:{MLW+32}
          s_waitcnt lgkmcnt(0)
          v_max3_f32 v8, v16, v17, v18
          v_max_f32 v8, v8, v19""")
    for w in range(4): e(f"v_sub_f32 v{16+w}, v{16+w}, v8")
    for w in range(4): e(f"v_mul_f32 v{16+w}, s57, v{16+w}")
    for w in range(4): e(f"v_exp_f32 v{16+w}, v{16+w}")
    e("""v_mul_f32 v9, v16, v20
         v_fmac_f32 v9, v17, v21
         v_fmac_f32 v9, v18, v22
         v_fmac_f32 v9, v19, v23
         v_mov_b32_dpp v10, v8 quad_perm:[1,1,1,1] row_mask:0xf bank_mask:0xf
         v_mov_b32_dpp v11, v9 quad_perm:[1,1,1,1] row_mask:0xf bank_mask:0xf""")
    e("v_or_b32 v8, s101, v8")
    tag4(8, 245)
    if mlsc: e("buffer_store_dwordx4 v[8:11], v14, s[32:35], s60 offen sc1")
    else: mode_store(["buffer_store_dwordx4 v[8:11], v14, s[32:35], s60 offen"])
    stamp(5)
    e("s_cmp_ge_u32 s29, 28\ns_cbranch_scc1 L_end\ns_setprio 0")
    if dnpos == "p": load_dn()
    if dnpos == "F": e(f"ds_write_b32 v246, v246 offset:{FLAGS+32}\ns_waitcnt lgkmcnt(0)")
    if dnpos == "pB": load_dn(part=0)
    e("s_add_u32 s53, s49, 8192")
    if sfx: e(f"s_and_b32 s12, s31, 0xff\ns_mul_i32 s12, s12, 0x01010101\ns_mov_b32 s13, s12\ns_cmp_eq_u32 s59, 0\ns_cselect_b32 s58, {sfx if sfx > 1 else 256}, 0\ns_setprio 3")
    e("s_barrier")
    if sfx:
        e(f"""L_hint:
             s_sub_u32 s58, s58, 1
             s_cbranch_scc1 L_hinted
             s_load_dwordx8 s[4:11], s[26:27], s98 {"glc" if sfx == 1 else ""}
             s_waitcnt lgkmcnt(0)
             {f"s_add_u32 s98, s98, {1 << fsh}" if sfx > 1 else ""}
             s_xor_b64 s[4:5], s[4:5], s[12:13]
             s_xor_b64 s[6:7], s[6:7], s[12:13]
             s_xor_b64 s[8:9], s[8:9], s[12:13]
             s_xor_b64 s[10:11], s[10:11], s[12:13]
             s_or_b64 s[4:5], s[4:5], s[6:7]
             s_or_b64 s[8:9], s[8:9], s[10:11]
             s_or_b64 s[4:5], s[4:5], s[8:9]
             s_cbranch_scc1 L_hint
             L_hinted:""")
        if stamps and int(cnt): e(f"s_sub_u32 s66, {sfx if sfx > 1 else 256}, s58")
    if dnpos == "h": e("s_barrier"); load_dn()
    else: e("s_barrier")
    if gupos == "B1": e("s_barrier")
    if dnpos == "Y":
        if zb: e("s_barrier")
        e("s_setprio 0"); load_dn()
    if dnpos == "B1": load_dn()
    if dnpos == "pB": load_dn(part=1)
    e("s_setprio 3\ns_barrier")
    stamp(6)
    if dnpos == "B3": load_dn()
    for k in range(4): e(f"ds_read2st64_b32 v[{16+2*k}:{17+2*k}], v2 offset0:{RED//256+2*k} offset1:{RED//256+2*k+1}")
    e(f"""s_waitcnt lgkmcnt(2)
         v_pk_add_f32 v[16:17], v[16:17], v[18:19]
         s_waitcnt lgkmcnt(0)
         v_pk_add_f32 v[20:21], v[20:21], v[22:23]
         v_pk_add_f32 v[16:17], v[16:17], v[20:21]
         v_add_f32 v16, v16, v17
         v_bfi_b32 v16, v243, v15, v16
         buffer_store_dword v16, v2, s[32:35], s49 offen {cst}
         buffer_store_dword v16, v2, s[32:35], s53 offen {cst}""")
    stamp(7)
    e("s_setprio 0" if ff else "s_setprio 0\ns_cmp_ge_u32 s52, 28\ns_cbranch_scc1 L_end")
    if dnpos == "B4": load_dn(False)
    if cack == "b": e("s_barrier")
    elif cack: e("s_waitcnt vmcnt(%d)\ns_barrier" % (16 if dnpos == "B4" else 0))
    if dnpos == "B5": load_dn(False)
    for r in range(4): e(f"v_mov_b32 v{84+r}, {'v244' if r == 0 else 0}")
    DS = (20, 21, 22, 23, 24, 25)
    for p in range(6):
        e(f"s_add_u32 s56, s51, {p+1}\ns_sub_u32 s60, s56, 7\ns_cselect_b32 s56, s56, s60\ns_lshl_b32 s56, s56, 10\ns_add_u32 s{DS[p]}, s56, s61")
    e(f"""
          s_mul_i32 s54, s51, {BS}
          s_add_u32 s54, s54, {EP}
          s_lshl_b32 s56, s52, 8
          s_add_u32 s49, s54, s56
          v_cmp_gt_u32 vcc, {16*er}, v0
          {f"v_mul_u32_u24 v4, {ES-256}, v5{NL}v_add_u32 v4, v4, v1{NL}v_cndmask_b32 v4, v12, v4, vcc" if er > 1 else "v_cndmask_b32 v4, v12, v1, vcc"}
          {"s_sub_u32 s50, s52, 4" if fin == "t" else f"s_cmp_eq_u32 s28, {fin}" + chr(10) + "s_cselect_b32 s50, s50, 4"}
          s_lshl_b32 s56, s50, 6
          s_add_u32 s54, s54, s56
          s_add_u32 s53, s54, 4096
          {f"s_add_u32 s57, s54, {ES*(er-1)}" if er > 1 else ""}
          v_lshrrev_b32 v7, 2, v0
          v_lshlrev_b32 v7, 8, v7
          v_lshl_add_u32 v7, v3, 4, v7
          v_lshl_add_u32 v8, v3, 2, v5
          v_lshl_add_u32 v9, v8, 2, s56
          v_and_b32 v9, 0xff, v9
          v_lshlrev_b32 v8, 1, v8
          v_and_b32 v10, 12, v0
          v_cmp_eq_u32 vcc, 0, v10
          v_cndmask_b32 v8, v12, v8, vcc
          s_lshl_b32 s55, s51, 7
          s_lshl_b32 s56, s50, 5
          s_add_u32 s55, s55, s56""")
    L48 = (1 << 48) - 1
    if ff: e("s_cmp_ge_u32 s52, 28\ns_cbranch_scc1 L_fin4")
    DT = 192
    k0 = -2.0 * 0.7978845608028654 * 1.4426950408889634
    e(f"""v_bfe_u32 v76, v0, 3, 1
          v_mul_u32_u24 v74, 0x0606, v76
          v_mul_u32_u24 v75, 0x0202, v76
          v_lshlrev_b32 v74, 16, v74
          v_lshlrev_b32 v75, 16, v75
          v_add_u32 v74, 0x01000c0c, v74
          v_sub_u32 v75, 0x05040c0c, v75
          v_mov_b32 v76, {f2u(k0*0.044715)}""")
    if sfl: e(f"ds_write_b32 v246, v246 offset:{FLAGS+28}\ns_waitcnt lgkmcnt(0)")
    def dn_perm(w, cs=range(4)):
        if w is not None: e(f"s_waitcnt vmcnt({w})")
        for c in cs:
            for j in range(8):
                a = DN + 4*j + (c >> 1)
                e(f"v_perm_b32 v{DT+8*c+j}, v{a+2}, v{a}, s{(56, 60)[c & 1]}")
    if dnt: e("s_mov_b32 s56, 0x05040100\ns_mov_b32 s60, 0x07060302")
    if dnpos in ("C", "T0", "T1"): e("s_barrier"); load_dn(False)
    if int(wb) & 16: e(f"s_cmp_lg_u32 s29, {wbj}\ns_cbranch_scc1 L_nowb16\ns_waitcnt vmcnt({wbu})\nbuffer_wbl2 sc1\nL_nowb16:")
    if dnpos == "F":
        e(f"""s_mov_b32 s58, {SPIN*16}
              L_fwait:
              ds_read_b32 v11, v246 offset:{FLAGS+32}
              s_sub_u32 s58, s58, 1
              s_cbranch_scc1 L_fgo
              s_waitcnt lgkmcnt(0)
              v_cmp_eq_u32 vcc, 0, v11
              s_cbranch_vccnz L_fwait
              L_fgo:""")
        load_dn(False)
    if dnt and not dtl: dn_perm(0 if dnpos in ("B4", "B5", "C", "T0", "T1", "F") else 2)
    e(f"s_mov_b32 s58, {SPIN}")
    e("s_setprio 3\ns_barrier")
    stamp(8)
    for k in range(4): e(f"ds_read_b128 v[{24+4*k}:{27+4*k}], v1 offset:{RED2+1024*k}")
    e("s_waitcnt lgkmcnt(2)")
    pk_add4(24, 24, 28)
    e("s_waitcnt lgkmcnt(0)")
    pk_add4(32, 32, 36); pk_add4(24, 24, 32)
    e("v_bfi_b32 v24, v245, v244, v24")
    mode_store(["buffer_store_dwordx4 v[24:27], v1, s[32:35], s62 offen"])
    stamp(9)
    dset = lambda b: [(f"buffer_load_dwordx4 v[{b+4*p}:{b+4*p+3}], v1, s[32:35], s{DS[p]} offen sc1", b + 4*p) for p in range(6)]
    dsets = [dset(b) for b in (48, 88, 160)[:dr]]
    dg = dsets[0] if dr else dset(44)
    for t, b in dg: e(t)
    e(f"""ds_read_b32 v13, v9 offset:{HL}
          ds_read_b32 v11, v246 offset:{FLAGS+16}
          v_and_b32 v24, 0xffffff00, v24
          s_waitcnt lgkmcnt(0)
          v_and_b32 v13, 0xffff0000, v13
          v_add_u32 v7, v7, v11
          v_add_u32 v4, v4, v11
          v_xor_b32 v10, 0x2000, v4""")
    if dr:
        assert dnt and dtl and dspec and not sfl
        for r in range(1, dr):
            dn_perm(7 if r == 1 else None, range(4*(r-1)//(dr-1), 4*r//(dr-1)))
            for t, b in dsets[r]: e(t)
    elif dnt and dtl: dn_perm(7)
    stamp(10)
    def d_acc(i, b):
        a, d = (24 if i == 0 else 28), (44 if i == 5 else 28)
        if sfl and i == 1: e(f"ds_read_b64 v[40:41], v246 offset:{FLAGS+24}")
        e(f"v_and_b32 v36, 0xffffff00, v{b}\nv_pk_add_f32 v[{d+2}:{d+3}], v[{a+2}:{a+3}], v[{b+2}:{b+3}]\nv_add_f32 v{d+1}, v{a+1}, v{b+1}\nv_add_f32 v{d}, v{a}, v36")
        if sfl and i == 4: e("s_waitcnt lgkmcnt(0)\nv_cmp_eq_u32 s[6:7], 0, v41")
    pre = "s_memrealtime s[86:87]\n" if stamps else ""
    if sfl:
        assert dspec
        pre += "s_cmp_lg_u64 s[6:7], 0\ns_cbranch_scc1 L_stwait\nL_stgot:\n"
        late = f"L_stwait:\ns_sub_u32 s58, s58, 1\ns_cbranch_scc1 L_stgot\nds_read_b64 v[40:41], v246 offset:{FLAGS+24}\ns_waitcnt lgkmcnt(0)\nv_cmp_eq_u32 vcc, 0, v41\ns_cbranch_vccnz L_stwait\ns_branch L_stgot"
        if int(wb) & 2:
            wbd = f"s_cmp_eq_u32 s2, {56 + int(fin)}\ns_cbranch_scc1 L_dowb\nL_nowb:"
            late += "\nL_dowb:\nbuffer_wbl2 sc1\ns_branch L_nowb"
    else: pre += f"s_barrier\nds_read_b64 v[40:41], v246 offset:{FLAGS+24}"
    if dr:
        def dcheck(r):
            g = [b for t, b in dsets[r]]
            for p in range(6):
                e(f"s_waitcnt vmcnt({6*dr-1-p})")
                if p in (1, 3): e(f"v_bitop3_b32 v{37+(p >> 1)}, v{g[p-1]}, v{g[p]}, v244 bitop3:0x7e")
                if p == 4: e(f"v_bitop3_b32 v37, v{g[4]}, v244, v37 bitop3:0xbe\nv_or_b32 v37, v37, v38")
                if p == 5: e(f"v_bitop3_b32 v37, v{g[5]}, v244, v37 bitop3:0xbe\nv_cmp_ne_u32_sdwa vcc, v37, v246 src0_sel:BYTE_0 src1_sel:DWORD")
                else: d_acc(p, g[p])
        e("L_dtop:")
        dcheck(0)
        e("s_cbranch_vccnz L_dmore\nL_dx0:\n" + pre)
        d_acc(5, dsets[0][5][1])
        e("L_ddone:")
        def dmore():
            e("L_dmore:\ns_sub_u32 s58, s58, 1\ns_cbranch_scc1 L_dx0")
            for t, b in dsets[0]: e(t)
            for r in range(1, dr):
                dcheck(r)
                e(f"s_cbranch_vccnz L_dn{r}\n" + pre)
                d_acc(5, dsets[r][5][1])
                e(f"s_branch L_ddone\nL_dn{r}:")
                for t, b in dsets[r]: e(t)
            e("s_branch L_dtop")
    else: poll(dg, 8, issued=True, quad=244, pre=pre, spec=d_acc if dspec else None)
    if sfl and int(wb) & 2: e(wbd)
    if not dspec:
        pk_add4(44, 44, 48); pk_add4(52, 52, 56); pk_add4(60, 60, 64)
        pk_add4(44, 44, 24); pk_add4(52, 52, 60); pk_add4(44, 44, 52)
    e("""v_permlane32_swap_b32 v45, v47
         v_permlane32_swap_b32 v44, v46""")
    if not sfl: e("s_waitcnt lgkmcnt(0)")
    e("""v_pk_fma_f32 v[44:45], v[46:47], v[40:41], v[44:45] op_sel:[0,0,0] op_sel_hi:[1,0,1] neg_lo:[0,1,0] neg_hi:[0,1,0]
         v_pk_mul_f32 v[44:45], v[44:45], v[40:41] op_sel:[0,1] op_sel_hi:[1,1]
         v_cvt_pk_bf16_f32 v45, v44, v45
         v_mov_b32_dpp v46, v45 row_ror:8 row_mask:0xf bank_mask:0xf
         v_perm_b32 v44, v46, v45, v74
         v_perm_b32 v45, v46, v45, v75""")
    e(f"""v_mul_f32 v46, v44, v44
          v_fmaak_f32 v46, v46, v76, {f2u(k0)}
          v_mul_f32 v46, v46, v44
          v_exp_f32 v46, v46
          v_add_f32 v46, 1.0, v46
          v_rcp_f32 v46, v46
          v_mul_f32 v46, v46, v44""")
    bfround(46)
    if dnt:
        e("v_mul_f32 v46, v46, v45")
        poll_init(2, 4, {1: L48})
        e("v_mov_b32_dpp v47, v46 quad_perm:[1,1,3,3] row_mask:0xf bank_mask:0xf\nv_cvt_pk_bf16_f32 v46, v46, v47")
        for j in range(8): e(f"v_mov_b32_dpp v{116+j}, v46 row_newbcast:{2*j} row_mask:0xf bank_mask:0xf")
        for h in range(2):
            for c in range(4):
                e(f"v_mfma_f32_16x16x32_bf16 v[{32+4*c}:{35+4*c}], v[{116+4*h}:{119+4*h}], v[{DT+8*c+4*h}:{DT+8*c+4*h+3}], " + ("0" if h == 0 else f"v[{32+4*c}:{35+4*c}]"))
        e("v_bfi_b32 v32, v245, v244, v32\nv_mov_b32 v33, v36\nv_pk_mov_b32 v[34:35], v[40:41], v[44:45] op_sel:[0,0]")
    else: e("v_mul_f32 v46, v46, v45\nv_cvt_pk_bf16_f32 v46, v46, v46")
    for i in range(0 if dnt else 17):
        if i < 16:
            a = 116 + 2*(i & 3)
            for j in range(2): e(f"v_and_b32_dpp v{a+j}, v46, v{MK+j} row_newbcast:{i} row_mask:0xf bank_mask:0xf")
        if i >= 1:
            p = i - 1; ap = 116 + 2*(p & 3)
            e(f"v_mfma_f32_16x16x16_bf16 v[32:35], v[{ap}:{ap+1}], v[{DN+2*p}:{DN+2*p+1}], " + ("0" if p == 0 else "v[32:35]"))
    if not dnt:
        poll_init(2, 4, {1: L48})
        e("v_bfi_b32 v32, v245, v244, v32")
    e(f"buffer_store_dwordx4 v[32:35], v4, s[32:35], s49 offen {est}")
    e(f"buffer_store_dwordx4 v[32:35], v10, s[32:35], s49 offen {est}")
    if ck & 2: e("s_barrier")
    stamp(12)
    if int(wb) & 8: e(f"s_cmp_lg_u32 s2, {56 + int(fin)}\ns_cbranch_scc1 L_nowb8\nbuffer_wbl2 sc1\nL_nowb8:")
    if ff:
        wbk = f"s_cmp_lg_u32 s29, {wbj}\ns_cbranch_scc1 L_finnowb\nbuffer_wbl2 sc1\nL_finnowb:"
        e(f"s_branch {'L_wb4' if int(wb) & 4 else 'L_Eend'}\nL_fin4:")
        if ffb or ffw == 0: e("s_waitcnt vmcnt(0)")
        if ffb: e("s_barrier")
        if ffw == 0: e(wbk)
        poll_init(2, 4, {1: L48})
        e("s_barrier")
        if ffw == 1: e(wbk)
        e(f"""ds_read_b32 v13, v9 offset:{HL}
              ds_read_b32 v11, v246 offset:{FLAGS+16}
              s_waitcnt lgkmcnt(0)
              v_and_b32 v13, 0xffff0000, v13
              v_add_u32 v7, v7, v11""")
        stamp(12)
    else: e(f"s_cmp_gt_u32 s50, 3\ns_cbranch_scc1 {'L_wb4' if int(wb) & 4 and int(wbk4) < 28 or sfl else 'L_Eend'}")
    if et:
        for r in range(4): e(f"v_mov_b32 v{80+r}, 0")
        poll_sum(lambda i, b: f"buffer_load_dwordx4 v[{b}:{b+3}], v7, s[32:35], {('s54', 's53')[i]} offen {eld}", 80, 160, 244, et)
        stamp(13)
    else:
        if eack: e("s_waitcnt vmcnt(%d)" % (1 if eack == "1" else 0))
        poll([("buffer_load_dwordx4 v[80:83], v7, s[32:35], s54 offen sc1", 80), ("buffer_load_dwordx4 v[84:87], v7, s[32:35], s53 offen sc1", 84)], 4, quad=244)
        stamp(13)
        pk_add4(80, 80, 84)
    trows(80)
    dpp_red("v_add_f32", [80], ["row_ror:4", "row_ror:8"])
    bfround(80)
    e(f"""v_add_f32 v80, v80, v13
          v_cvt_pk_bf16_f32 v80, v80, v80
          buffer_store_short v80, v8, s[40:43], s55 offen {osc.replace("_", " ")}""")
    if epo[0] != "C":
        e(f"""s_cmp_lg_u32 s2, 4
          s_cbranch_scc1 L_Eend
          v_mov_b32 v16, s31
          buffer_store_dword v16, v14, s[32:35], 0 offen {"sc1" if epo == "s" else ""}""")
    e("L_Eend:")
    if clean & 4: e("v_or_b32 v24, v24, v244\nbuffer_store_dwordx4 v[24:27], v1, s[32:35], s62 offen sc1")
    stamp(14)
    if amp is not None:
        e(f"""s_cmp_lg_u32 s2, {ampw}
              s_cbranch_scc1 L_end
              s_memrealtime s[96:97]
              s_waitcnt lgkmcnt(0)
              s_sub_u32 s98, s{64+2*int(amp)}, s{64+2*int(amp0)}
              s_lshl_b32 s98, s98, {ash}""")
        if skew is not None:
            e(f"""s_mov_b32 s56, {STAMP}
              buffer_load_dword v16, v246, s[32:35], s56 offen sc1
              buffer_load_dword v17, v246, s[32:35], s56 offen offset:{4*int(skew)} sc1
              s_waitcnt vmcnt(0)
              v_sub_u32 v16, v17, v16
              v_add_u32 v16, 100, v16
              v_readfirstlane_b32 s98, v16
              s_lshl_b32 s98, s98, 5""")
        e(f"""
              s_min_u32 s98, s98, 100000
              L_amp:
              s_memrealtime s[100:101]
              s_waitcnt lgkmcnt(0)
              s_sub_u32 s99, s100, s96
              s_cmp_lt_u32 s99, s98
              s_cbranch_scc1 L_amp""")
    finish()
    if dr: dmore()
    if sfl: e(late)
    if int(wb) & 4 or sfl: e("L_wb4:")
    if sfl:
        e(f"s_cmp_lg_u32 s2, {0 if fin != '0' else 1}\ns_cbranch_scc1 L_noepo\nv_mov_b32 v16, s31\nbuffer_store_dword v16, v14, s[32:35], 0 offen {epo[1:]}\nL_noepo:")
        if not int(wb) & 4: e("s_branch L_Eend")
    if int(wb) & 4 and int(wbk4) < 28:
        e(f"s_cmp_lg_u32 s29, {wbk4}\ns_cbranch_scc1 L_Eend")
        if fin == "t": e("s_cmp_ge_u32 s28, 4\ns_cbranch_scc1 L_Eend")
        e(f"s_waitcnt vmcnt({wbt})\nbuffer_wbl2 sc1\n" + ("s_waitcnt vmcnt(0)\n" if int(wbw) & 1 else "") + "s_branch L_Eend")
    sec("A")
    for t in extra: e(t)
    sec("Q3")
    for far, back, ins in deferred:
        e(f"{far}:\ns_nop 7")
        for t in ins: e(t + " sc1")
        e(f"s_nop 1\ns_branch {back}")
    if stamps:
        e("L_stamps:\ns_waitcnt lgkmcnt(0)\ns_mov_b64 exec, -1\nv_mov_b32 v250, 0")
        for k in range(16): e(f"v_writelane_b32 v250, s{64+2*k}, {k}")
        e(f"""s_lshl_b32 s60, s2, 3
              s_add_u32 s60, s60, s30
              s_lshl_b32 s60, s60, 6
              s_add_u32 s60, s60, {STAMP}
              v_lshlrev_b32 v251, 2, v0
              s_mov_b64 exec, 0xffff
              buffer_store_dword v250, v251, s[32:35], s60 offen""")
    e("L_exit:\ns_endpgm")

    head = open("cdna_kernels/" + NAME + ".s.ref").read()
    head = head[:head.index("; @launch")]
    out = head + f"; @launch grid=(256,1,1) block=(320,1,1) lds={LDS_SIZE}\n"
    out += f""".amdgcn_target "amdgcn-amd-amdhsa--gfx950"
.text
.globl {NAME}_kernel
.p2align 12
.fill {int(pad)//4}, 4, 0xbf800000
.p2align 8
.type {NAME}_kernel,@function
{NAME}_kernel:
"""
    for name, al in (("A", 0), ("K1", 0), ("Q1", 12), ("Q2", 12), ("K0", 0), ("K2", 0), ("Q3x", 0), ("Q3", 12), ("Q3y", 0)):
        if name not in secs: continue
        if al: out += f".p2align {al}\n"
        out += "\n".join(secs[name]) + "\n"
    out = out.replace("buffer_wbl2 sc1", "buffer_wbl2 " + wbf.replace("_", " "))
    out += f""".section .rodata,"a"
.p2align 6
.amdhsa_kernel {NAME}_kernel
  .amdhsa_next_free_vgpr 256
  .amdhsa_next_free_sgpr 102
  .amdhsa_accum_offset 256
  .amdhsa_group_segment_fixed_size 0
  .amdhsa_kernarg_size 96
  .amdhsa_user_sgpr_count 2
  .amdhsa_user_sgpr_kernarg_segment_ptr 1
  .amdhsa_system_sgpr_workgroup_id_x 1
.end_amdhsa_kernel
"""
    return out

if __name__ == "__main__":
    kw = {}
    for a in sys.argv[2:]:
        k, v = a.split("=")
        kw[k] = {"True": True, "False": False}.get(v, v)
    open(sys.argv[1], "w").write(gen(**kw))
```

```python
import sys, struct, re
from emit import Emitter, Ins, need

NAME = "sequential_preLN__sliding_block_cached__geglu_ffn__decode"
def f2u(x): return struct.unpack("<I", struct.pack("<f", x))[0]

QP, ML, CP, EP, OP, HH, DP, STAMP, WS_SIZE = 0x10000, 0x20000, 0x120000, 0x140000, 0x40000, 0xC0000, 0xD0000, 0x1E0000, 0x200000
XN, XR, QS, EB, RED, RED2, FLAGS, MLW, HL, PR, LDS_SIZE = 0, 2048, 3072, 4096, 5120, 7168, 11264, 11520, 11776, 12288, 14336
QC = 12032
FL = 0x30000
OOB = 0x7ffffff0
PB = 0x160000
SPIN = 1 << 16
NL = "\n"
CEXP = f2u(1.4426950408889634 / 16.0)
T0, T1, T2 = "s31", "s96", "s97"
TAGS = (T0, T0, T1, T2)

def gen(amp=None, nt="nt", wnt=None, stamps=False, force_global=False, wopos="V", gupos="B1", dnpos="F",
        code_pf=True, eack=True, kpre=0, W=6, qa=3, lc=15, rot="gj", skew=None, cack=True, ctmap="u", pad=0xD00, ksplit=3, order="V1GV16MW", tlb=0, tmap=1, w0=8, qnt=None, opat=1, skipz=0, opsc=False, ct="20", et="10", home="v", mlsc=False, gi="0112", sw=1, dirty=0, wb=6, epo="C", osc="", Wq=6, W2=0, Ww=0, Wm=0, lst="", opre="p", clean=0, fin="6", wbt=0, dbg=0, mlo="A", gfree="", sp="11111n", dnt=1, dspec=1, ospec=1, hlate=3, sfl=0, qsc="", pst=2, pre=7, qpre=0, tlm="0xff", cld="sc1", eld="sc1", cst="sc1", est="sc1", wbf="sc1", wbj=7, t4g="4567", sfx=0, zb=1, fsh=6, cnt=0, dnpf=40, dtl=1, dnf=None, pfl=0, wfl=None, dr=0, er=1, epb="0x140000", eps="0x40000", osr=0, pcdbg=0, su=None, st0=0, ck=0, ckw=0, ff=0, ffw=0, ffb=1, wbu=0, wbw=3, wbk4=31, amp0=0, ash=3, ampw=4, ge=0, gen_=4, gep="", c0="", e0="", c0p="", o0=0, cl=1, el=0, ol=0):
    ff, ffw, ffb = int(ff), int(ffw), int(ffb)
    ck = int(ck); ol = int(ol)
    osr = int(osr)
    er = int(er)
    EP, ES = int(epb, 0), int(eps, 0)
    assert EP + ES*(er-1) + 0x1C000 <= STAMP
    dr = int(dr)
    if dnpf == "n": dnpf = None
    pfl = int(pfl)
    dtl = int(dtl)
    sfx, zb, fsh = int(sfx), int(zb), int(fsh)
    dnt, dspec, ospec, hlate, sfl = int(dnt), int(dspec), int(ospec), int(hlate), int(sfl)
    clean = int(clean)
    if clean & 8: epo, osc = "Csc1", "sc1"
    if wnt is None: wnt = nt
    BS = 16384
    cld, eld, cst, est = (x.replace("_", " ") for x in (cld, eld, cst, est))
    if ct: cack, ct = ct[0] if ct[0] in "ab" else "", ct.lstrip("ab")
    kpre, W, qa = int(kpre), int(W), int(qa)
    lx = str(lc).endswith("x")
    lc = int(str(lc).rstrip("x")); nb = lc - 12
    def koff(st): return ((st >> nb) << (lc + 5)) | ((st & (7 if lx else (1 << nb) - 1)) << 12)
    if skew is not None: amp = 0
    e = Emitter()
    uid = [0]
    deferred = []
    extra = []
    secs = {"A": e.lines}
    def sec(name, jump=None):
        if jump: e(f"s_branch {jump}")
        e.lines = secs.setdefault(name, []); e.hist = []
        if jump: e(f"{jump}:")
    def lab(p): uid[0] += 1; return f"L_{p}{uid[0]}"
    def srd_hi(d, n): e(f"s_mov_b32 s{d+2}, {n}\ns_mov_b32 s{d+3}, 0x00020000")
    def srd_lo(d, b): e(f"s_mov_b64 s[{d}:{d+1}], s[{b}:{b+1}]")
    def srd(d, b, n): srd_lo(d, b); srd_hi(d, n)
    def stamp(k):
        if stamps or (amp is not None and k in (int(amp0), int(amp))): e(f"s_memrealtime s[{64+2*k}:{65+2*k}]")
    def finish():
        if stamps: e("s_branch L_stamps")
        else: e("s_endpgm")
    def mode_store(ins):
        far, back = lab("far"), lab("back")
        e(f"s_cmp_lg_u32 s59, 0\ns_cbranch_scc1 {far}")
        for t in ins: e(t + " " + lst.replace("_", " "))
        e(f"{back}:")
        deferred.append((far, back, ins))
    def tags():
        e(f"""s_add_u32 s31, s31, 0x9E3779B1
              s_lshr_b32 s96, s31, 8
              s_or_b32 s96, s96, 1
              s_xor_b32 s96, s96, s31
              s_lshr_b32 s97, s31, 16""")
    def tag4(b, ff, last=T2):
        for r in range(4): e(f"v_bfi_b32 v{b+r}, v{ff}, {(T0, T0, T1, last)[r]}, v{b+r}")
    def lane_tag(d, idx, t):
        e(f"""v_mov_b32 v{d}, {T0}
              v_mov_b32 v{t}, {T1}
              v_cmp_eq_u32 vcc, 2, v{idx}
              v_cndmask_b32 v{d}, v{d}, v{t}, vcc
              v_mov_b32 v{t}, {T2}
              v_cmp_eq_u32 vcc, 3, v{idx}
              v_cndmask_b32 v{d}, v{d}, v{t}, vcc
              v_and_b32 v{d}, 0xff, v{d}""")
    def masks(m, t0, t1):
        e(f"""v_and_b32 v{t0}, 1, v0
              v_lshlrev_b32 v{t0}, 4, v{t0}
              v_mov_b32 v{t1}, 0xffff
              v_lshlrev_b32 v{t1}, v{t0}, v{t1}
              v_bfe_u32 v{t0}, v0, 1, 2""")
        for j in range(4):
            e(f"v_cmp_eq_u32 vcc, {j}, v{t0}\nv_cndmask_b32 v{m+j}, 0, v{t1}, vcc")
    def dpp_red(op, vs, ctrls):
        for c in ctrls:
            for v in vs: e(f"{op}_dpp v{v}, v{v}, v{v} {c} row_mask:0xf bank_mask:0xf")
    def xrow(op, vs, tmps):
        for sw in ("v_permlane16_swap_b32", "v_permlane32_swap_b32"):
            for v, t in zip(vs, tmps): e(f"v_mov_b32 v{t}, v{v}")
            for v, t in zip(vs, tmps): e(f"{sw} v{v}, v{t}")
            for v, t in zip(vs, tmps): e(f"{op} v{v}, v{v}, v{t}")
    def bfround(v): e(f"v_cvt_pk_bf16_f32 v{v}, v{v}, v{v}\nv_and_b32 v{v}, 0xffff0000, v{v}")
    def trows(a):
        e(f"""v_permlane32_swap_b32 v{a}, v{a+2}
              v_permlane32_swap_b32 v{a+1}, v{a+3}
              v_add_f32 v{a}, v{a}, v{a+2}
              v_add_f32 v{a+1}, v{a+1}, v{a+3}
              v_permlane16_swap_b32 v{a}, v{a+1}
              v_add_f32 v{a}, v{a}, v{a+1}""")
    def pk_add4(d, a, b):
        e(f"v_pk_add_f32 v[{d}:{d+1}], v[{a}:{a+1}], v[{b}:{b+1}]\nv_pk_add_f32 v[{d+2}:{d+3}], v[{a+2}:{a+3}], v[{b+2}:{b+3}]")
    def check(b, m, t):
        e(f"""v_bitop3_b32 v{t}, v{b}, v{b+1}, {T0} bitop3:0x7e
              v_bitop3_b32 v{t}, v{b+2}, {T1}, v{t} bitop3:0xbe
              v_bitop3_b32 v{t}, v{b+3}, {T2}, v{t} bitop3:0xbe
              v_cmp_ne_u32_sdwa s[{m}:{m+1}], v{t}, v246 src0_sel:BYTE_0 src1_sel:DWORD""")
    def qtag_reg(d, idx):
        e(f"v_lshlrev_b32 v{d}, 3, v{idx}\nv_lshrrev_b32 v{d}, v{d}, {T0}\nv_and_b32 v{d}, 0xff, v{d}")
    def qclean(loads):
        for t, b in loads: e(f"v_and_b32 v{b}, 0xffffff00, v{b}")
    def poll_init(n, m0, init=None):
        for i in range(n):
            v = (init or {}).get(i)
            if v is None: e(f"s_mov_b64 s[{m0+2*i}:{m0+2*i+1}], -1")
            else: e(f"s_mov_b32 s{m0+2*i}, {v & 0xffffffff}\ns_mov_b32 s{m0+2*i+1}, {v >> 32}")
        e(f"s_mov_b32 s58, {SPIN}")
    def poll(loads, m0, issued=False, behind=0, quad=None, pre=None, spec=None, hook=None):
        n = len(loads)
        top, chk, done = lab("poll"), lab("chk"), lab("pdone")
        if issued: e(f"s_branch {chk}")
        e(f"{top}:\ns_sub_u32 s58, s58, 1\ns_cbranch_scc1 {done}")
        if hook: e(hook)
        for i, (t, b) in enumerate(loads):
            sk = lab("sk")
            if int(skipz) and n > 2: e(f"s_wqm_b64 exec, s[{m0+2*i}:{m0+2*i+1}]\ns_cbranch_scc0 {sk}\n{t}\n{sk}:")
            else: e(f"s_wqm_b64 exec, s[{m0+2*i}:{m0+2*i+1}]\n{t}")
        e("s_mov_b64 exec, -1")
        if behind or (int(skipz) and n > 2): e("s_waitcnt vmcnt(0)")
        if issued: e(f"{chk}:")
        for i, (t, b) in enumerate(loads):
            e(f"s_waitcnt vmcnt({n-1-i+behind})")
            if quad: e(f"v_cmp_ne_u32_sdwa s[{m0+2*i}:{m0+2*i+1}], v{b}, v{quad} src0_sel:BYTE_0 src1_sel:DWORD")
            else: check(b, m0 + 2*i, 247 + (i & 1))
            if spec:
                if i < n - 1: spec(i, b)
                if i == 1: e(f"s_or_b64 vcc, s[{m0}:{m0+1}], s[{m0+2}:{m0+3}]")
                if i > 1: e(f"s_or_b64 vcc, vcc, s[{m0+2*i}:{m0+2*i+1}]")
        if spec: pass
        elif n == 1: e(f"s_cmp_lg_u64 s[{m0}:{m0+1}], 0")
        else:
            e(f"s_or_b64 vcc, s[{m0}:{m0+1}], s[{m0+2}:{m0+3}]")
            for i in range(2, n): e(f"s_or_b64 vcc, vcc, s[{m0+2*i}:{m0+2*i+1}]")
        e(f"s_cbranch_scc1 {top}\n{done}:")
        if pre: e(pre)
        if spec: spec(n - 1, loads[-1][1])
        elif quad: qclean(loads)
    def poll_sum(load, acc, base, quad, ticks):
        once = ticks.index("/") if "/" in ticks else 0
        ticks = ticks.replace("/", "")
        D = len(ticks)
        top, done = lab("ps"), lab("psd")
        def issue_round(r, shared=False):
            for i in range(2): e(f"s_mov_b64 exec, s[{4+2*i}:{5+2*i}]\n" + load(i, base + 8*r + 4*i).replace("sc1", c0p if shared else "sc1"))
            e("s_mov_b64 exec, -1")
            if acc == 80 and er > 1: e(f"s_add_u32 s54, s54, {ES}\ns_min_u32 s54, s54, s57\ns_add_u32 s53, s54, 4096")
        for r, t in enumerate(ticks):
            if t != "x": e(f"s_waitcnt vmcnt({int(t) + 2*r})")
            if acc == 16 and r < 2: stamp(14 + r)
            if acc == 80 and int(st0) == 2: stamp(6 + r); e("s_mov_b32 s66, 0")
            issue_round(r, str(r) in (c0 if acc == 16 else e0))
            if acc == 16 and dnpos == f"T{r}": e("s_barrier")
        for r in range(D):
            if r == once: e(f"{top}:")
            for i in range(2):
                b, m = base + 8*r + 4*i, 4 + 2*i
                e(f"""s_waitcnt vmcnt({2*(D - min(r, once))-1-i})
                      v_cmp_ne_u32_sdwa vcc, v{b}, v{quad} src0_sel:BYTE_0 src1_sel:DWORD
                      v_and_b32 v{b}, 0xffffff00, v{b}
                      s_wqm_b64 vcc, vcc
                      s_andn2_b64 exec, s[{m}:{m+1}], vcc
                      s_and_b64 s[{m}:{m+1}], s[{m}:{m+1}], vcc""")
                pk_add4(acc, acc, b)
                e("s_mov_b64 exec, -1")
            if acc == 80 and int(st0) == 2: e("s_add_u32 s66, s66, 1")
            e(f"s_or_b64 vcc, s[4:5], s[6:7]\ns_cbranch_scc0 {done}")
            if r >= once: issue_round(r)
        e(f"s_sub_u32 s58, s58, 1\ns_cbranch_scc0 {top}\n{done}:")
    def read_mode(t):
        e(f"v_or3_b32 v{t}, v{t}, v{t+1}, v{t+2}\nv_or_b32 v{t}, v{t}, v{t+3}\nv_readfirstlane_b32 s59, v{t}")
    def ffn_scalars():
        order4 = [int(c) for c in t4g] + [g for g in range(8) if str(g) not in t4g]
        if ff: order4 = [g for g in range(8) if str(g) != fin] + [int(fin)]
        table = sum(order4.index(g) << (4*g) for g in range(8))
        assert fin == "t" or fin in t4g or ff
        e(f"""s_mul_i32 s50, s29, 37
             s_lshr_b32 s50, s50, 8
             s_mul_i32 s51, s50, 7
             s_sub_u32 s51, s29, s51
             s_lshl_b32 s101, s28, 2
             s_lshr_b32 s101, {table}, s101
             s_and_b32 s101, s101, 7
             s_lshl_b32 s52, s50, 3
             s_add_u32 s52, s52, s101""")
        if ff: e("s_lshl_b32 s100, s101, 2\ns_add_u32 s100, s100, s50\ns_cmp_lt_u32 s29, 28\ns_cselect_b32 s52, s100, s52\ns_min_u32 s100, s100, 27")
        elif int(tmap): e("s_mul_i32 s100, s101, 3\ns_min_u32 s101, s101, 4\ns_add_u32 s100, s100, s101\ns_add_u32 s100, s100, s50\ns_min_u32 s100, s100, 27")
        else: e("s_min_u32 s100, s52, 27")

    ctm = {"0": "s_lshr_b32 s48, s29, 3\ns_and_b32 s49, s29, 7", "1": "s_lshr_b32 s48, s29, 3\ns_add_u32 s49, s29, 1\ns_and_b32 s49, s49, 7",
           "t": "s_lshr_b32 s49, s29, 2\ns_and_b32 s48, s29, 3", "u": "s_lshr_b32 s49, s29, 2\ns_xor_b32 s49, s49, 4\ns_and_b32 s48, s29, 3"}[ctmap]
    e(f"""s_cmp_ge_u32 s2, 256
          s_cbranch_scc1 L_exit
          s_load_dwordx16 s[4:19], s[0:1], 0
          s_load_dwordx8 s[20:27], s[0:1], 64""")
    stamp(0)
    e(f"""v_lshrrev_b32 v1, 6, v0
         v_and_b32 v0, 63, v0
         v_readfirstlane_b32 s30, v1
         s_and_b32 s28, s2, 7
         s_lshr_b32 s29, s2, 3
         s_lshl_b32 s55, s28, 5
         s_add_u32 s55, s55, s29
         s_cmp_lg_u32 s30, 4
         s_cbranch_scc1 L_K""")
    sec("K1")
    e("L_K:")

    KR, VR, QG, SC, MK, WO, GU, AF, GA, MG = 16, 80, 148, 156, 164, 168, 184, 200, 216, 224
    QB, PE = QG, KR + 16
    if code_pf:
        e(f"""s_getpc_b64 s[48:49]
              L_pc:
              s_lshl_b32 s56, s29, 2
              s_add_u32 s56, s56, s30
              s_lshl_b32 s56, s56, 7
              s_min_u32 s56, s56, L_exit-{NAME}_kernel
              s_sub_u32 s48, s48, L_pc-{NAME}_kernel
              s_subb_u32 s49, s49, 0
              v_mov_b32 v1, s56
              s_mov_b64 exec, 1
              global_load_dword v15, v1, s[48:49]
              s_mov_b64 exec, -1""")
    e(f"""s_lshl_b32 s53, s28, 23
         s_lshl_b32 s54, s29, {lc}
         s_add_u32 s53, s53, s54
         s_add_u32 s53, s53, 6291456""")
    e({"0": "s_mov_b32 s56, 0", "gj": "s_lshl_b32 s56, s28, 1\ns_xor_b32 s56, s56, s29\ns_and_b32 s56, s56, 15",
       "gj1": "s_lshl_b32 s56, s28, 1\ns_and_b32 s54, s29, 1\ns_or_b32 s56, s56, s54", "j": "s_and_b32 s56, s29, 15", "g": "s_lshl_b32 s56, s28, 1", "j7": "s_and_b32 s56, s29, 7", "g8": "s_and_b32 s56, s28, 1\ns_lshl_b32 s56, s56, 3",
       "mul": "s_mul_i32 s56, s2, s2\ns_mul_i32 s56, s56, 0x9E3779B1\ns_lshr_b32 s56, s56, 28"}[rot])
    e(f"""s_lshr_b32 s54, s56, {nb}
          s_lshl_b32 s54, s54, {lc+5}
          s_or_b32 s53, s53, s54
          s_and_b32 s54, s56, {7 if lx else (1 << nb) - 1}
          s_lshl_b32 s54, s54, 12
          s_{"xor" if lx else "or"}_b32 s53, s53, s54
          v_bfe_u32 v9, v0, 3, 1
          v_lshlrev_b32 v1, 9, v9
          v_lshrrev_b32 v2, 4, v0
          v_lshl_add_u32 v1, v2, 7, v1
          v_and_b32 v10, 7, v0
          v_lshl_add_u32 v1, v10, 4, v1
          s_lshl_b32 s54, s30, 10
          s_add_u32 s98, s54, s53""")
    srd_hi(36, 67108864)
    stamp(15)
    e("s_waitcnt lgkmcnt(0)")
    srd_lo(36, 6)
    if kpre == 0: e("s_load_dword s31, s[26:27], 0\ns_barrier")
    stamp(13)

    pos, state = {}, {"n": 0, "done": -1}
    def arrived(i):
        if i > state["done"]:
            e(f"s_waitcnt vmcnt({state['n'] - 1 - i})"); state["done"] = i
    win = [W]
    def wof(name):
        if int(Wm) and name == "ML": return int(Wm)
        return int(Ww) if int(Ww) and name[:2] in ("WO", "ML") else win[0]
    far = []
    def gate(name):
        if name[0] in gfree: return -1
        w = wof(name)
        return far[-w] if len(far) >= w else -1
    def issue(name, text):
        arrived(gate(name))
        if name[0] not in gfree: far.append(state["n"])
        e(text); pos[name] = state["n"]; state["n"] += 1
    qg = [f"buffer_load_dwordx4 v[{QG}:{QG+3}], v4, s[32:35], s61 offen sc1", f"buffer_load_dwordx4 v[{QG+4}:{QG+7}], v4, s[32:35], s62 offen sc1"]
    mlg = f"buffer_load_dwordx4 v[{MG}:{MG+3}], v230, s[32:35], s3 offen sc1"
    def vop(i):
        t = f"buffer_load_dwordx4 v[{VR+4*i}:{VR+4*i+3}], v228, s[44:47], s54 offen offset:{2048*(i >> 4)} {nt}"
        t = f"s_xor_b32 s54, s99, {koff(min(i, 15))}\n" + t
        if i >= 15: t = "s_mov_b64 exec, s[22:23]\n" + t + "\ns_mov_b64 exec, -1"
        return (f"V{i}", t)
    wops = [(f"WO{m}", f"buffer_load_dwordx4 v[{WO+4*m}:{WO+4*m+3}], v11, s[40:43], s48 offen {wnt if wfl is None else wfl}\ns_add_u32 s48, s48, 7168") for m in range(4)]
    gops = [(f"GU{m}", f"global_load_dwordx4 v[{GU+4*m}:{GU+4*m+3}], v[{GA+2*m}:{GA+2*m+1}], off {wnt}") for m in range(4)]
    ops = [vop(i) for i in range(17)] + [("ML", mlg)]
    if wopos == "V": ops += wops
    if gupos == "V": ops += gops
    if wopos == "K": ops = wops + ops
    if gupos == "K": ops = gops + ops
    ops = ops[:qa] + [("G0", qg[0]), ("G1", qg[1])] + ops[qa:]
    if order:
        pool = {"V": [vop(i) for i in range(17)], "M": [("ML", mlg)], "W": list(wops), "U": list(gops), "G": [("G0", qg[0]), ("G1", qg[1])]}
        ops = []
        for c, n in re.findall(r"([A-Z])(\d*)", order):
            for _ in range(int(n) if n else len(pool[c])): ops.append(pool[c].pop(0))
        assert not any(pool[c] for c in "VMG") and bool(pool["U"]) == (gupos in ("B4", "B1"))
        gops, wlate = pool["U"], pool["W"]
    def next_op():
        if ops: issue(*ops.pop(0))
    spi = [0]
    def score_op():
        for _ in range(int(sp[spi[0]])):
            if sp[-1] == "w": next_op()
            else:
                w = win[0]; win[0] = 99; next_op(); win[0] = w
        spi[0] += 1

    w0 = int(w0) or W
    su = w0 - 1 if su is None else int(su)
    for i in range(-1, 16):
        if i == w0: arrived(0)
        win[0] = 99 if i < w0 else W
        if i >= 0: issue(f"K{i}", f"s_xor_b32 s54, s98, {koff(i)}\nbuffer_load_dwordx4 v[{KR+4*i}:{KR+4*i+3}], v1, s[36:39], s54 offen {nt}")
        if i == kpre - 1 and kpre: e("s_load_dword s31, s[26:27], 0\ns_barrier"); stamp(14)
        if i == su:
            srd(32, 26, WS_SIZE); srd(40, 12, 4096*896); srd(44, 8, 67108864)
            ffn_scalars()
            masks(MK, 7, 8)
            e(f"""v_mov_b32 v246, 0
                  v_mov_b32 v244, 0xff
                  v_and_b32 v3, 3, v0
                  v_lshrrev_b32 v5, 5, v0
                  v_and_b32 v6, 31, v0
                  v_lshlrev_b32 v4, 11, v5
                  v_lshl_add_u32 v4, v6, 4, v4
                  s_lshl_b32 s61, s28, 13
                  s_lshl_b32 s62, s30, 9
                  s_add_u32 s61, s61, s62
                  s_add_u32 s61, s61, {QP}
                  s_add_u32 s62, s61, 4096
                  v_lshlrev_b32 v6, 3, v6
                  v_lshl_add_u32 v6, v5, 2, v6
                  s_lshl_b32 s56, s30, 8
                  v_add_u32 v6, s56, v6
                  v_xor_b32 v7, 64, v1
                  v_and_b32 v12, 15, v0
                  v_lshlrev_b32 v228, 9, v2
                  v_lshl_add_u32 v228, v12, 4, v228
                  s_and_b32 s57, s30, 1
                  s_lshr_b32 s60, s30, 1
                  s_lshl_b32 s56, s57, 8
                  s_add_u32 s99, s53, s56
                  s_lshl_b32 s56, s60, 11
                  s_add_u32 s99, s99, s56
                  {f"v_lshrrev_b32 v229, 3, v12{NL}v_mul_u32_u24 v229, 3968, v229{NL}v_lshl_add_u32 v229, v5, 15, v229" if ol else "v_lshlrev_b32 v229, 10, v5"}
                  v_and_b32 v13, 1, v2
                  v_lshl_add_u32 v229, v13, {13 if ol else 8}, v229
                  v_lshl_add_u32 v229, v12, 4, v229
                  {f"s_lshl_b32 s53, s28, 9{NL}s_add_u32 s53, s53, s29{NL}s_lshl_b32 s53, s53, 7" if ol else "s_lshl_b32 s53, s55, 11"}
                  s_lshl_b32 s56, s57, {14 if ol else 9}
                  s_add_u32 s53, s53, s56
                  s_add_u32 s53, s53, {OP}
                  s_lshl_b32 s56, s57, 10
                  v_lshl_add_u32 v238, v0, 4, s56
                  v_bfe_u32 v14, v0, 2, 1
                  v_lshl_add_u32 v239, v5, 1, v9
                  v_lshl_add_u32 v239, v14, 4, v239
                  v_lshl_add_u32 v239, v13, 5, v239
                  s_lshl_b32 s56, s30, 6
                  v_lshl_add_u32 v239, v239, 4, s56
                  s_lshl_b32 s56, s30, 2
                  v_lshl_add_u32 v240, v9, 4, s56
                  v_mov_b32 v243, s56
                  v_lshrrev_b32 v241, 3, v0
                  s_lshl_b32 s56, s60, 7
                  v_lshl_add_u32 v241, v241, 4, s56
                  v_lshlrev_b32 v242, 4, v9
                  v_lshl_add_u32 v14, v2, 1, v14
                  v_lshl_add_u32 v230, v14, 2, v3
                  v_lshlrev_b32 v230, 4, v230
                  v_lshlrev_b32 v231, {7 if ol else 11}, v14
                  v_lshl_add_u32 v231, v9, 6, v231
                  v_lshl_add_u32 v231, v3, 4, v231
                  s_lshl_b32 s3, s28, 9
                  s_add_u32 s3, s3, {ML}
                  v_lshlrev_b32 v232, 4, v13
                  v_lshl_add_u32 v232, v10, 5, v232
                  v_lshl_add_u32 v232, v9, 8, v232
                  s_lshl_b32 s56, s30, 9
                  v_add_u32 v232, s56, v232
                  v_lshl_add_u32 v11, v9, 5, v2
                  v_mul_u32_u24 v11, 896, v11
                  v_lshl_add_u32 v11, v10, 4, v11
                  s_lshl_b32 s48, s28, 9
                  s_lshl_b32 s56, s50, 7
                  s_add_u32 s48, s48, s56
                  s_lshl_b32 s56, s57, 6
                  s_add_u32 s48, s48, s56
                  s_lshl_b32 s56, s60, 2
                  s_add_u32 s48, s48, s56
                  s_mul_i32 s48, s48, 896
                  s_lshl_b32 s56, s51, 7
                  s_add_u32 s48, s48, s56
                  s_cmp_lt_u32 s29, 28
                  s_cselect_b32 s42, s42, 0
                  s_cselect_b32 s48, s48, 0
                  s_lshl_b32 s49, s51, 6
                  s_lshl_b32 s56, s30, 4
                  s_add_u32 s49, s49, s56
                  s_mul_i32 s63, s49, 3584
                  s_lshl_b32 s56, s100, 7
                  s_add_u32 s63, s63, s56
                  v_mul_u32_u24 v12, 3584, v2
                  v_lshl_add_u32 v12, v10, 4, v12
                  v_add_u32 v12, s63, v12
                  s_cmp_lt_u32 s52, 28
                  s_cselect_b32 s56, -1, 0
                  v_and_b32 v12, s56, v12
                  v_cmp_eq_u32 vcc, 0, v9
                  v_mov_b32 v13, s18
                  v_mov_b32 v14, s16
                  v_cndmask_b32 v13, v13, v14, vcc
                  v_mov_b32 v14, s19
                  v_mov_b32 v8, s17
                  v_cndmask_b32 v14, v14, v8, vcc
                  v_add_co_u32 v{GA}, vcc, v13, v12
                  v_addc_co_u32 v{GA+1}, vcc, 0, v14, vcc""")
            for m in range(1, 4):
                e(f"v_add_co_u32 v{GA+2*m}, vcc, 14336, v{GA+2*m-2}\nv_addc_co_u32 v{GA+2*m+1}, vcc, 0, v{GA+2*m-1}, vcc")
            e(f"""s_cmp_eq_u32 s60, 0
                  s_cselect_b64 s[22:23], -1, 0
                  v_lshl_add_u32 v233, v3, 2, v2
                  v_add_u32 v233, s49, v233
                  v_lshlrev_b32 v234, 2, v233
                  v_and_b32 v234, 0xff, v234
                  v_lshlrev_b32 v233, 1, v233
                  v_lshl_add_u32 v235, v2, 2, v3
                  v_add_u32 v235, s49, v235
                  v_lshlrev_b32 v235, 2, v235
                  v_and_b32 v13, 12, v0
                  v_cmp_eq_u32 vcc, 0, v13
                  v_mov_b32 v13, {OOB}
                  v_cndmask_b32 v235, v13, v235, vcc
                  {"v_lshlrev_b32 v236, 4, v0" if int(cl) else f"v_lshrrev_b32 v236, 2, v0{NL}v_lshlrev_b32 v236, 8, v236{NL}v_lshl_add_u32 v236, v3, 4, v236"}
                  s_lshl_b32 s56, s30, 10
                  v_lshl_add_u32 v237, v0, 4, s56
                  s_mov_b32 s57, {CEXP}""")
        if i == max(W, w0) + 1:
            e("s_waitcnt lgkmcnt(0)")
            tags()
            e(f"""s_getreg_b32 s56, hwreg(HW_REG_XCC_ID, 0, 4)
                  s_and_b32 s63, s97, 0xf0
                  s_or_b32 s63, s63, s56
                  s_mov_b32 s58, {SPIN}""")
            qtag_reg(8, 2)
            e("v_cmp_eq_u32 vcc, 0, v3\nv_cndmask_b32 v8, 0, v8, vcc")
            qtag_reg(245, 3)
    stamp(1)
    while "G1" not in pos: next_op()
    win[0] = int(Wq) or W
    while gate(ops[0][0]) < pos["G1"]: next_op()
    arrived(pos["G1"])
    e("L_qpoll:")
    stamp(2)
    a = QG
    e(f"""v_bitop3_b32 v12, v{a}, v{a+1}, {T0} bitop3:0x7e
          v_bitop3_b32 v13, v{a+4}, v{a+5}, {T0} bitop3:0x7e
          v_bitop3_b32 v14, v{a+2}, v{a+6}, {T1} bitop3:0x7e
          v_bitop3_b32 v15, v{a+3}, v{a+7}, s63 bitop3:0x7e
          v_or3_b32 v12, v12, v13, v14
          v_and_b32 v13, 0xf0, v15
          v_or_b32 v12, v12, v13
          v_cmp_ne_u32_sdwa vcc, v12, v246 src0_sel:BYTE_0 src1_sel:DWORD
          s_cbranch_vccnz L_qretry
          L_qdone:
          v_and_b32 v15, 15, v15
          v_cmp_ne_u32 vcc, 0, v15""")
    extra.append("L_qretry:\ns_sub_u32 s58, s58, 1\ns_cbranch_scc1 L_qdone\n" + ("" if qsc else "s_and_b32 s56, s58, 3\ns_cbranch_scc0 L_qpub\nL_qback:\n") + "\n".join(qg) + "\ns_waitcnt vmcnt(0)\ns_branch L_qpoll")
    score_op()
    for r in range(8): e(f"v_and_b32 v{a+r}, 0xffffff00, v{a+r}")
    e("s_cmp_eq_u64 vcc, 0\ns_cselect_b32 s56, %d, 1" % (1 if force_global else 0))
    for r in range(4): e(f"v_add_f32 v{a+r}, v{a+r}, v{a+4+r}")
    e(f"""v_mov_b32 v12, s56
          v_permlane32_swap_b32 v{a}, v{a+2}
          v_permlane32_swap_b32 v{a+1}, v{a+3}
          ds_write_b32 v243, v12 offset:{FLAGS}
          v_add_f32 v{a}, v{a}, v{a+2}
          v_add_f32 v{a+1}, v{a+1}, v{a+3}
          v_cvt_pk_bf16_f32 v{a}, v{a}, v{a+1}
          ds_write_b32 v6, v{a} offset:{QS}
          s_waitcnt lgkmcnt(0)
          s_barrier
          ds_read_b128 v[{QB}:{QB+3}], v1 offset:{QS}
          ds_read_b128 v[{QB+4}:{QB+7}], v7 offset:{QS}
          ds_read_b128 v[12:15], v246 offset:{FLAGS}
          ds_read_u16 v233, v233 offset:{XR}""")
    score_op()
    e("s_waitcnt lgkmcnt(0)")
    stamp(3)
    for m in list(range(0, 16, 2)) + list(range(1, 16, 2)):
        k, q = KR + 4*m, QB + 4*(m & 1)
        e(f"v_mfma_f32_16x16x32_bf16 v[{k}:{k+3}], v[{k}:{k+3}], v[{q}:{q+3}], 0")
    read_mode(12)
    e("v_lshlrev_b32 v233, 16, v233")
    for par in range(2):
        pat = (0xf0f00f0f, 0x0f0ff0f0)[par]
        e(f"s_mov_b32 exec_lo, {pat}\ns_mov_b32 exec_hi, {pat}")
        for r in range(4):
            for p in range(8):
                a = KR + 4*(2*p + par)
                if r == 0: e(f"v_mov_b32_dpp v{SC+p}, v{a} quad_perm:[0,0,0,0] row_mask:0xf bank_mask:0xf")
                else: e(f"v_add_f32_dpp v{SC+p}, v{a+r}, v{SC+p} quad_perm:[{r},{r},{r},{r}] row_mask:0xf bank_mask:0xf")
        e("s_mov_b64 exec, -1")
        if par == 0: score_op()
    Z = KR
    for u in range(4): e(f"v_permlane16_swap_b32 v{SC+2*u}, v{SC+2*u+1}")
    for u in range(4): e(f"v_add_f32_dpp v{Z+u}, v{SC+2*u+1}, v{SC+2*u} row_half_mirror row_mask:0xf bank_mask:0xf")
    for u in (0, 2): e(f"v_cvt_pk_bf16_f32 v{Z+u+1}, v{Z+u}, v{Z+u+1}")
    for u in (0, 2): e(f"v_lshlrev_b32 v{Z+u}, 16, v{Z+u+1}\nv_and_b32 v{Z+u+1}, 0xffff0000, v{Z+u+1}")
    e(f"v_max3_f32 v4, v{Z}, v{Z+1}, v{Z+2}\nv_max_f32 v4, v4, v{Z+3}")
    dpp_red("v_max_f32", [4], ["row_half_mirror"])
    xrow("v_max_f32", [4], [5])
    score_op()
    for u in range(4): e(f"v_sub_f32 v{Z+u}, v{Z+u}, v4")
    for u in range(4): e(f"v_mul_f32 v{Z+u}, s57, v{Z+u}")
    for u in range(4): e(f"v_exp_f32 v{Z+u}, v{Z+u}")
    e(f"v_add_f32 v5, v{Z}, v{Z+1}\nv_add_f32 v5, v5, v{Z+2}\nv_add_f32 v5, v5, v{Z+3}")
    dpp_red("v_add_f32", [5], ["row_half_mirror"])
    xrow("v_add_f32", [5], [6])
    e(f"""s_mov_b32 exec_lo, 0x11111111
          s_mov_b32 exec_hi, 0x11111111
          ds_write_b128 v239, v[{Z}:{Z+3}] offset:{EB}
          ds_write_b32 v240, v4 offset:{MLW}
          ds_write_b32 v240, v5 offset:{MLW+32}
          s_mov_b64 exec, -1
          s_waitcnt lgkmcnt(0)""")
    stamp(4)
    e(f"s_barrier\nds_read_b128 v[12:15], v242 offset:{MLW}")
    for mm in range(4): e(f"ds_read_b128 v[{PE+4*mm}:{PE+4*mm+3}], v241 offset:{EB+256*mm}")
    e(f"ds_read_b32 v{PE+16}, v241 offset:{EB+7*128+12}")
    score_op()
    e("s_waitcnt lgkmcnt(5)\nv_max3_f32 v4, v12, v13, v14\nv_max_f32 v4, v4, v15\nv_cmp_gt_u32 vcc, 32, v0")
    e("v_cndmask_b32 v12, v13, v12, vcc\nv_cndmask_b32 v13, v15, v14, vcc\nv_cndmask_b32 v12, v13, v12, s[22:23]")
    for w in range(2): e(f"v_sub_f32 v{12+w}, v{12+w}, v4")
    for w in range(2): e(f"v_mul_f32 v{12+w}, s57, v{12+w}")
    for w in range(2): e(f"v_exp_f32 v{12+w}, v{12+w}")
    e("s_waitcnt lgkmcnt(0)")
    for i in range(0, 16, 2): e(f"v_pk_mul_f32 v[{PE+i}:{PE+i+1}], v[{PE+i}:{PE+i+1}], v[12:13] op_sel:[0,0] op_sel_hi:[1,0]")
    e(f"v_mul_f32 v{PE+16}, v{PE+16}, v13")
    for i in range(17): e(f"v_cvt_pk_bf16_f32 v{PE+i}, v{PE+i}, v{PE+i}")
    stamp(5)
    def prep(i):
        p = PE + (4*(i & 3) + (i >> 2) if i < 16 else 16)
        for j in range(4): e(f"v_and_b32 v{AF+4*(i&3)+j}, v{p}, v{MK+j}")
    def pv(i):
        arrived(pos[f"V{i}"])
        a = AF + 4*(i & 3)
        e(f"v_mfma_f32_16x16x32_bf16 v[12:15], v[{a}:{a+3}], v[{VR+4*i}:{VR+4*i+3}], " + ("0" if i == 0 else "v[12:15]"))
    prep(0)
    if int(W2):
        win[0] = int(W2)
    since = 99
    for i in range(15):
        while not int(W2) and ops and (since >= 5 or f"V{i}" not in pos or pos[f"V{i}"] > state["done"]):
            next_op(); since = 0
        while int(W2) and ops and gate(ops[0][0]) <= max(state["done"], pos[f"V{i}"]): next_op()
        prep(i + 1); pv(i); since += 1
        if i == int(ksplit):
            sec("K2", "L_K2"); e("s_nop 4")
            if pfl:
                assert "WO0" not in pos
                e("s_cmp_ge_u32 s29, 28\ns_cbranch_scc1 L_pfa\nL_pfb:")
            if sfx: e(f"v_lshlrev_b32 v249, {fsh}, v0\nv_mov_b32 v248, s31\ns_lshl_b32 s98, s28, 13\ns_and_b32 s56, s30, 1\ns_lshl_b32 s56, s56, 5\ns_add_u32 s98, s98, s56\ns_add_u32 s98, s98, s29\ns_add_u32 s98, s98, {FL}")
    for name, t in ops:
        e(t); pos[name] = state["n"]; state["n"] += 1
    ops.clear()
    e(f"s_cmp_eq_u32 s60, 0\ns_cbranch_scc1 L_keep\nds_write_b128 v238, v[12:15] offset:{PR}\ns_waitcnt lgkmcnt(0)\ns_barrier\ns_branch L_joined\nL_keep:")
    saved = dict(state)
    prep(16); pv(15)
    e(f"s_barrier\nds_read_b128 v[4:7], v238 offset:{PR}")
    pv(16)
    e("s_waitcnt lgkmcnt(0)")
    pk_add4(12, 12, 4)
    e("v_bfi_b32 v12, v244, v245, v12")
    if opsc: e("buffer_store_dwordx4 v[12:15], v229, s[32:35], s53 offen sc1")
    else: mode_store(["buffer_store_dwordx4 v[12:15], v229, s[32:35], s53 offen"])
    if sfx: e(f"s_mov_b64 exec, {(1 << sfx) - 1 if sfx < 64 else -1}\nbuffer_store_byte v248, v249, s[32:35], s98 offen\ns_mov_b64 exec, -1")
    e("L_joined:")
    state.update(saved)
    stamp(6)
    e(f"""s_cmp_ge_u32 s29, {29 if int(wb) & 1 else 28}
          s_cbranch_scc1 {"L_dirty" if int(dirty) else "L_clean" if clean & 1 else "L_end" if dnpf is None else "L_pf"}
          s_lshl_b32 s60, s28, 16
          s_and_b32 s56, s50, 3
          s_lshl_b32 s56, s56, {14 if ol else 9}
          s_add_u32 s60, s60, s56
          s_lshl_b32 s56, s30, {12 if ol else 7}
          s_add_u32 s60, s60, s56
          s_add_u32 s60, s60, {OP}
          s_add_u32 s61, s60, {1024 if ol else 16384}
          s_add_u32 s62, s60, {2048 if ol else 32768}
          s_add_u32 s63, s60, {3072 if ol else 49152}
          s_mov_b32 s58, {SPIN}""")
    if not sfx: e("s_barrier"); stamp(7)
    opg = [(f"buffer_load_dwordx4 v[{16+4*i}:{19+4*i}], v231, s[32:35], s{60+i} offen sc1", 16 + 4*i) for i in range(4)]
    for name, t in wlate:
        e(t); pos[name] = state["n"]; state["n"] += 1
    km, opat = state["n"] - 1 - pos["ML"], int(opat)
    def left(k, x=0):
        if k < len(wlate): e(f"s_waitcnt vmcnt({k+x})"); return
        k += x
        l1, l2 = lab("lf"), lab("lf")
        e(f"s_cmp_gt_u32 s30, 1\ns_cbranch_scc1 {l1}\ns_waitcnt vmcnt({k+1+(sfx > 0)})\ns_branch {l2}\n{l1}:\ns_waitcnt vmcnt({k})\n{l2}:")
    chk_text = lambda: "\n".join((f"v_bitop3_b32 v247, v{MG}, v{MG+1}, {T0} bitop3:0x7e", f"v_bitop3_b32 v247, v{MG+2}, {T1}, v247 bitop3:0xbe",
        f"v_bitop3_b32 v247, v{MG+3}, {T2}, v247 bitop3:0xbe", "v_cmp_ne_u32_sdwa s[4:5], v247, v246 src0_sel:BYTE_0 src1_sel:DWORD", "s_cmp_lg_u64 s[4:5], 0"))
    again = "L_mlretry:\ns_sub_u32 s58, s58, 1\ns_cbranch_scc1 L_mlgo\n" + mlg + "\ns_waitcnt vmcnt(0)\n" + chk_text() + "\ns_cbranch_scc1 L_mlretry\nL_mlgo:\n"
    if sfx:
        left(km)
        e(chk_text() + "\ns_cbranch_scc1 L_mlretry\nL_mldone:")
        extra2 = [again + "s_branch L_mldone"]
        opat = km
    elif mlo == "B":
        left(km)
        e(chk_text() + "\ns_cbranch_scc1 L_mlretry")
        if opat < km: left(opat)
        if int(dbg): stamp(1)
        e("L_opgo:")
        for t, b in opg: e(t)
        extra2 = [again + "s_branch L_opgo"]
        opat = km
    elif mlo == "A":
        e("s_mov_b32 s101, 0"); left(km)
        e(chk_text() + "\ns_cbranch_scc1 L_mlretry\nL_mldone:")
        extra2 = [again + "s_mov_b32 s101, 1\n" + "\n".join(t for t, b in opg) + "\ns_branch L_mldone"]
        assert opat < km
    else:
        if opat >= km:
            if opat < 20: left(opat)
            for t, b in opg: e(t)
            if opat > km: left(km, 4)
        else:
            e("s_mov_b32 s101, 0"); left(km)
        e("L_mlchk:")
        check(MG, 4, 247)
        e("s_cmp_lg_u64 s[4:5], 0\ns_cbranch_scc1 L_mlretry\nL_mldone:")
        extra2 = ["L_mlretry:\ns_sub_u32 s58, s58, 1\ns_cbranch_scc1 L_mldone\ns_mov_b32 s101, 1\n" + mlg + "\n" + "\n".join(t for t, b in opg) + "\ns_waitcnt vmcnt(4)\ns_branch L_mlchk"]
    e(f"""s_cmp_ge_u32 s50, 2
          s_cselect_b64 vcc, -1, 0
          v_cndmask_b32 v4, v{MG}, v{MG+2}, vcc
          v_cndmask_b32 v5, v{MG+1}, v{MG+3}, vcc
          v_and_b32 v4, 0xffff0000, v4
          v_and_b32 v5, 0xffffff00, v5
          v_mov_b32 v6, v4""")
    q8 = ["quad_perm:[1,0,3,2]", "quad_perm:[2,3,0,1]", "row_half_mirror"]
    dpp_red("v_max_f32", [6], q8); xrow("v_max_f32", [6], [7])
    e("v_sub_f32 v4, v4, v6\nv_mul_f32 v4, s57, v4\nv_exp_f32 v4, v4\nv_mul_f32 v6, v4, v5")
    dpp_red("v_add_f32", [6], q8); xrow("v_add_f32", [6], [7])
    e("v_rcp_f32 v6, v6\nv_mul_f32 v4, v4, v6")
    for i in range(4): e(f"v_mov_b32_dpp v{32+i}, v4 quad_perm:[{i},{i},{i},{i}] row_mask:0xf bank_mask:0xf")
    stamp(12)
    if opat < km:
        e("s_cmp_lg_u32 s101, 0\ns_cbranch_scc1 L_opsent")
        left(opat)
        if int(dbg): stamp(1)
        for t, b in opg: e(t.replace("sc1", "") if int(o0) & 1 else t)
        e("L_opsent:")
    if int(dbg): e("s_waitcnt vmcnt(4)"); stamp(3); e("s_waitcnt vmcnt(0)"); stamp(5)
    def op_acc(i, b):
        w, h = 32 + (i & 2), i & 1
        e(f"v_and_b32 v44, 0xffffff00, v{b}")
        if i == 0: e(f"v_pk_mul_f32 v[38:39], v[{b+2}:{b+3}], v[{w}:{w+1}] op_sel:[0,0] op_sel_hi:[1,0]\nv_mul_f32 v37, v{b+1}, v32\nv_mul_f32 v36, v44, v32")
        else: e(f"v_pk_fma_f32 v[38:39], v[{b+2}:{b+3}], v[{w}:{w+1}], v[38:39] op_sel:[0,{h},0] op_sel_hi:[1,{h},1]\nv_fmac_f32 v37, v{b+1}, v{32+i}\nv_fmac_f32 v36, v44, v{32+i}")
    if sfx:
        e("s_barrier"); stamp(7)
        for t, b in opg: e(t)
        if "y" in gi: e("s_barrier")
        for (name, t), c in zip(gops, gi):
            if c == "y": e(t)
        if dnpos == "Y" and zb: e("s_barrier")
        poll(opg, 4, issued=True, behind=gi.count("y"), quad=245, spec=op_acc, pre=("s_memrealtime s[80:81]\n" if stamps else "") + ("" if "y" in gi else "s_barrier\n") + "\n".join(t for (name, t), c in zip(gops, gi) if c == "0"))
        assert gupos == "B1" and ospec and not int(wb) & 1
    elif ospec:
        opre_ = ("s_memrealtime s[80:81]\n" if stamps else "") + "s_barrier\n" + "\n".join(t for (name, t), c in zip(gops, gi) if c == "0")
        hook = None
        if int(ge):
            hook = f"s_cmp_eq_u32 s58, {SPIN-1}\ns_cbranch_scc1 L_ge\nL_geback:"
            extra2.append("L_ge:\n" + "\n".join(f"s_bcnt1_i32_b64 s{12+i}, s[{4+2*i}:{5+2*i}]" for i in range(4))
                + f"\ns_add_u32 s12, s12, s13\ns_add_u32 s14, s14, s15\ns_add_u32 s12, s12, s14\ns_cmp_lt_u32 s52, 28\ns_cselect_b32 s12, s12, 0\ns_cmp_lt_u32 s12, {8*int(ge)}\ns_cbranch_scc1 L_geback\n"
                + "\n".join(t.rsplit("off", 1)[0] + "off " + gep for name, t in gops[4-int(gen_):]) + "\ns_branch L_geback")
        if osr:
            hook = "\n".join(f"s_wqm_b64 s[{4+2*i}:{5+2*i}], s[{4+2*i}:{5+2*i}]" for i in range(4)) + """
                s_or_b64 s[12:13], s[4:5], s[6:7]
                s_or_b64 s[14:15], s[8:9], s[10:11]
                s_and_b64 s[16:17], s[4:5], s[6:7]
                s_and_b64 s[18:19], s[8:9], s[10:11]
                s_and_b64 vcc, s[12:13], s[14:15]
                s_or_b64 s[16:17], s[16:17], s[18:19]
                s_or_b64 vcc, vcc, s[16:17]
                s_cbranch_scc0 L_one"""
            def one_mode():
                ld = lambda r: f"s_mov_b64 exec, s[12:13]\nbuffer_load_dwordx4 v[{48+4*r}:{51+4*r}], v45, s[32:35], s60 offen sc1"
                e("L_one:\ns_or_b64 s[12:13], s[12:13], s[14:15]\nv_mov_b32 v45, v231")
                for i in range(1, 4): e(f"s_mov_b64 exec, s[{4+2*i}:{5+2*i}]\nv_add_u32 v45, {16384*i}, v231")
                e(ld(0))
                e("s_mov_b64 exec, -1\nv_cndmask_b32 v46, v32, v33, s[6:7]\nv_cndmask_b32 v47, v34, v35, s[10:11]\nv_mov_b64 v[36:37], 0\nv_mov_b64 v[38:39], 0\nv_cndmask_b32 v46, v46, v47, s[14:15]")
                at = {2: (3,), 3: (1, 3), 4: (0, 2, 3), 5: (0, 1, 2, 3), 6: (0, 1, 2, 3, 3)}[osr]
                for i in range(4):
                    w, h, b = 32 + (i & 2), i & 1, 16 + 4*i
                    e(f"""s_andn2_b64 exec, -1, s[{4+2*i}:{5+2*i}]
                          v_and_b32 v44, 0xffffff00, v{b}
                          v_pk_fma_f32 v[38:39], v[{b+2}:{b+3}], v[{w}:{w+1}], v[38:39] op_sel:[0,{h},0] op_sel_hi:[1,{h},1]
                          v_fmac_f32 v37, v{b+1}, v{32+i}
                          v_fmac_f32 v36, v44, v{32+i}""")
                    for r, a in enumerate(at):
                        if a == i: e(ld(r + 1))
                e("L_onetop:")
                for r in range(osr):
                    b = 48 + 4*r
                    e(f"""s_waitcnt vmcnt({osr-1})
                          v_cmp_ne_u32_sdwa vcc, v{b}, v245 src0_sel:BYTE_0 src1_sel:DWORD
                          v_and_b32 v44, 0xffffff00, v{b}
                          s_wqm_b64 vcc, vcc
                          s_andn2_b64 exec, s[12:13], vcc
                          v_pk_fma_f32 v[38:39], v[{b+2}:{b+3}], v[46:47], v[38:39] op_sel:[0,0,0] op_sel_hi:[1,0,1]
                          v_fmac_f32 v37, v{b+1}, v46
                          v_fmac_f32 v36, v44, v46
                          s_and_b64 s[12:13], s[12:13], vcc
                          s_cbranch_scc0 L_oneout""")
                    e(ld(r))
                e("s_sub_u32 s58, s58, 1\ns_cbranch_scc0 L_onetop\nL_oneout:\ns_mov_b64 exec, -1\n" + opre_ + "\ns_branch L_opsum")
        poll(opg, 4, issued=True, quad=245, spec=op_acc, pre=opre_, hook=hook)
        if osr: e("L_opsum:")
        assert gupos == "B1" and not int(wb) & 1
    else:
        poll(opg, 4, issued=True, quad=245)
        stamp(8)
    if int(dbg) or int(cnt) == 2: e(f"s_sub_u32 s68, {SPIN}, s58")
    def gu_at(k):
        if gupos == "B1":
            for (name, t), c in zip(gops, gi):
                if c == str(k): e(t)
    if gupos == "B1" and not ospec: e("s_barrier")
    if int(wb) & 1:
        e("s_cmp_eq_u32 s29, 28\ns_cbranch_scc1 L_wb")
        extra2.append("L_wb:\ns_cmp_lg_u32 s30, 0\ns_cbranch_scc1 L_end\nbuffer_wbl2 sc1\ns_waitcnt vmcnt(0)\n" + ("s_memrealtime s[82:83]\n" if stamps else "") + "s_branch L_end")
    if not ospec: gu_at(0)
    for i in range(0 if ospec else 4):
        w, s = 32 + (i & 2), i & 1
        for p in (0, 2):
            if i == 0: e(f"v_pk_mul_f32 v[{36+p}:{37+p}], v[{16+p}:{17+p}], v[{w}:{w+1}] op_sel:[0,0] op_sel_hi:[1,0]")
            else: e(f"v_pk_fma_f32 v[{36+p}:{37+p}], v[{16+4*i+p}:{17+4*i+p}], v[{w}:{w+1}], v[{36+p}:{37+p}] op_sel:[0,{s},0] op_sel_hi:[1,{s},1]")
    gu_at(1)
    trows(36)
    gu_at(2)
    e("""v_add_f32_dpp v37, v36, v36 row_shr:4 row_mask:0xf bank_mask:0xa
         v_add_f32_dpp v37, v36, v36 row_shl:4 row_mask:0xf bank_mask:0x5
         v_cvt_pk_bf16_f32 v37, v37, v37""")
    gu_at(3)
    def gemv4(src, wbase, bank):
        for m in range(5):
            if m < 4:
                for j in range(4): e(f"v_and_b32_dpp v{AF+4*m+j}, v{src}, v{MK+j} quad_perm:[{m},{m},{m},{m}] row_mask:0xf bank_mask:{bank}")
            if m >= 1:
                p = m - 1
                e(f"v_mfma_f32_16x16x32_bf16 v[40:43], v[{AF+4*p}:{AF+4*p+3}], v[{wbase+4*p}:{wbase+4*p+3}], " + ("0" if p == 0 else "v[40:43]"))
    gemv4(37, WO, "0xf")
    gu_at(4)
    e(f"""s_mov_b32 exec_lo, 0x00ff00ff
          s_mov_b32 exec_hi, 0xff00ff00
          ds_write_b128 v232, v[40:43] offset:{RED}
          s_mov_b64 exec, -1
          s_waitcnt lgkmcnt(0)""")
    stamp(9)
    e(f"""s_barrier
          s_lshl_b32 s56, s30, {11 if int(cl) else 6}
          s_cmp_ge_u32 s52, 28
          s_cbranch_scc1 {"L_fin03" if ff else "L_end"}
          L_finback:
          v_mov_b32 v16, 0x3f803f80
          s_mul_i32 s60, s51, {BS}
          s_add_u32 s60, s60, s56
          s_add_u32 s60, s60, {CP}""")
    if ff:
        assert int(sw) != 0 and not cack and int(wb) & 6 != 6 and hlate == 3 and dnpos == "F" and not sfl and fin != "0"
        extra2.append("L_fin03:\ns_cmp_lg_u32 s30, s50\ns_cbranch_scc1 L_end\n" + ("" if stamps else "s_mov_b32 s30, 0\n") + "v_mov_b32 v235, 0x40000000\n" + ("s_barrier\n" if ffb else "") + "s_branch L_finback")
    if home == "v":
        e(f"""v_and_b32 v17, 0x100, v{MG}
              v_cmp_ne_u32 vcc, 0, v17
              s_bcnt1_i32_b64 s56, vcc
              s_cmp_lt_u32 s56, {4 if int(pst) == 2 else 26}
              s_cselect_b32 s56, 8192, 0""")
    else: e(f"s_lshr_b32 s56, s28, 2\ns_xor_b32 s56, s56, {home}\ns_lshl_b32 s56, s56, 13")
    e(f"s_add_u32 s60, s60, s56\nv_mov_b32 v17, s56\nds_write_b32 v246, v17 offset:{FLAGS+16}")
    e(f"""s_add_u32 s61, s60, {1024 if int(cl) else 4096}
          s_lshl_b32 s62, s52, 11
          s_add_u32 s62, s62, {HH}
          s_mov_b32 s63, 0xffff0000""")
    for m in range(4):
        for j in range(4): e(f"v_and_b32 v{AF+4*m+j}, v16, v{MK+j}")
    if gupos == "B4":
        for name, t in gops: e(t)
    for r in range(4): e(f"v_mov_b32 v{20+r}, {'v245' if r == 0 else 0}")
    e("v_lshlrev_b32 v1, 4, v0")
    poll_init(2, 4)
    if cack: e("s_barrier")
    assert ct
    if ct:
        for r in range(4): e(f"v_mov_b32 v{16+r}, 0")
        poll_sum(lambda i, b: f"buffer_load_dwordx4 v[{b}:{b+3}], v236, s[32:35], s{60+i} offen {cld}", 16, 48, 245, ct)
        stamp(10)
        if dnpos == "C": e("s_barrier")
        if dnpos == "F": e(f"ds_write_b32 v246, v244 offset:{FLAGS+32}")
    else:
        poll([(f"buffer_load_dwordx4 v[{16+4*i}:{19+4*i}], v236, s[32:35], s{60+i} offen sc1", 16 + 4*i) for i in range(2)], 4, quad=245)
        stamp(10)
        pk_add4(16, 16, 20)
    trows(16)
    dpp_red("v_add_f32", [16], ["row_ror:4", "row_ror:8"])
    bfround(16)
    e("v_add_f32 v16, v16, v233\nv_cvt_pk_bf16_f32 v16, v16, v16\nv_and_or_b32 v17, v16, s63, v8")
    if hlate < 2: mode_store(["buffer_store_dword v17, v235, s[32:35], s62 offen"])
    if hlate < 1: e(f"ds_write_b32 v234, v17 offset:{HL}")
    gemv4(16, GU, "0x3")
    if hlate == 2: mode_store(["buffer_store_dword v17, v235, s[32:35], s62 offen"])
    if hlate >= 1: e(f"ds_write_b32 v234, v17 offset:{HL}")
    e(f"ds_write_b128 v237, v[40:43] offset:{RED2}")
    if hlate == 3: mode_store(["buffer_store_dword v17, v235, s[32:35], s62 offen"])
    e("s_waitcnt lgkmcnt(0)")
    stamp(11)
    e(f"s_barrier\ns_cmp_lg_u32 s30, {sw}\ns_cbranch_scc1 L_end")
    if ff and stamps: e("s_cmp_ge_u32 s52, 28\ns_cbranch_scc1 L_end")
    L48 = (1 << 48) - 1
    r16 = ["row_ror:8", "row_ror:4", "row_ror:2", "row_ror:1"]
    poll_init(2, 4, {1: L48})
    assert not clean & 3
    if int(o0) & 4: e("buffer_load_dwordx4 v[16:19], v1, s[32:35], s62 offen\ns_mov_b64 exec, s[6:7]\nbuffer_load_dwordx4 v[20:23], v1, s[32:35], s62 offen offset:1024\ns_mov_b64 exec, -1")
    poll([("buffer_load_dwordx4 v[16:19], v1, s[32:35], s62 offen sc1", 16), ("buffer_load_dwordx4 v[20:23], v1, s[32:35], s62 offen offset:1024 sc1", 20)], 4, quad=245, issued=bool(int(o0) & 4))
    e("""v_pk_add_f32 v[28:29], v[18:19], v[22:23]
         v_pk_mul_f32 v[30:31], v[18:19], v[18:19]
         v_pk_add_f32 v[28:29], v[28:29], v[16:17]
         v_pk_fma_f32 v[30:31], v[22:23], v[22:23], v[30:31]
         v_pk_add_f32 v[28:29], v[28:29], v[20:21]
         v_pk_fma_f32 v[30:31], v[16:17], v[16:17], v[30:31]
         v_add_f32 v40, v28, v29
         v_pk_fma_f32 v[30:31], v[20:21], v[20:21], v[30:31]
         v_add_f32 v41, v30, v31
         v_permlane32_swap_b32 v40, v41
         v_add_f32 v40, v40, v41""")
    dpp_red("v_add_f32", [40], r16)
    e(f"""v_add_f32_dpp v40, v40, v40 row_bcast:15 row_mask:0xa bank_mask:0xf
          v_mul_f32 v40, {f2u(1/448)}, v40
          v_readlane_b32 s56, v40, 16
          s_brev_b64 exec, 1
          v_fma_f32 v41, -s56, s56, v40
          v_max_f32 v41, 0, v41
          v_cvt_pk_bf16_f32 v41, s56, v41
          v_lshlrev_b32 v40, 16, v41
          v_and_b32 v41, 0xffff0000, v41""")
    e(f"v_add_f32 v41, {f2u(1e-5)}, v41"); bfround(41)
    e("v_sqrt_f32 v41, v41"); bfround(41)
    e("v_rcp_f32 v41, v41")
    e(f"ds_write_b64 v246, v[40:41] offset:{FLAGS+24}\ns_waitcnt lgkmcnt(0)")
    stamp(13)
    if not sfl: e("s_barrier")
    if sfl: pass
    elif int(wb) & 6 == 6: e("s_cmp_lt_u32 s28, 4\ns_cbranch_scc1 L_nowb" if fin == "t" else f"s_cmp_lg_u32 s28, {fin}\ns_cbranch_scc1 L_nowb")
    if int(wb) & 2 and not sfl: e(f"s_cmp_lg_u32 s29, {wbj}\ns_cbranch_scc1 L_nowb\nbuffer_wbl2 sc1" + ("\ns_waitcnt vmcnt(0)" if int(wbw) & 2 else "")); stamp(9); e("L_nowb:")
    if clean & 2:
        e("""s_cmp_lg_u32 s51, 0
             s_cbranch_scc1 L_end
             buffer_store_dwordx4 v[16:19], v1, s[32:35], s62 offen sc1
             s_mov_b32 exec_hi, 0xffff
             buffer_store_dwordx4 v[20:23], v1, s[32:35], s62 offen offset:1024 sc1""")
    if ck & 2:
        e(f"""s_mul_i32 s60, s52, 7168
              s_lshl_b32 s56, s51, 10
              s_add_u32 s60, s60, s56
              s_lshl_b32 s56, s51, 8
              s_add_u32 s62, s62, s56
              s_barrier""")
        for i in range(8): e(f"s_load_dword s4, s[26:27], s60 offset:{DP + 128*i} glc")
        for i in range(2): e(f"s_load_dword s4, s[26:27], s62 offset:{128*i} glc")
        e("s_waitcnt lgkmcnt(0)")
        stamp(9)
    if epo[0] == "C" and not sfl: e("s_cmp_lg_u32 s2, 0\ns_cbranch_scc1 L_end\ns_mov_b64 exec, 1\nv_mov_b32 v16, s31\nbuffer_store_dword v16, v246, s[32:35], 0 offen " + epo[1:])
    if int(pcdbg): e("s_getpc_b64 s[4:5]\nv_mov_b32 v16, s4\nv_mov_b32 v17, s5\nglobal_store_dwordx2 v246, v[16:17], s[24:25] sc1")
    e("L_end:")
    finish()
    if osr: one_mode()
    sec("K0")
    for t in extra2: e(t)
    if not qsc:
        sec("Q3y" if osr else "Q3x")
        e(f"""L_qpub:
              v_lshlrev_b32 v204, 4, v0
              s_mov_b64 exec, 0xffff
              ds_read_b128 v[200:203], v204 offset:{QC}
              {ctm.replace("s48", "s54").replace("s49", "s56")}
              s_lshl_b32 s54, s54, 11
              s_lshl_b32 s56, s56, 8
              s_add_u32 s56, s56, s54
              s_lshl_b32 s54, s28, 13
              s_add_u32 s56, s56, s54
              s_add_u32 s56, s56, {QP}
              s_waitcnt lgkmcnt(0)
              v_bitop3_b32 v205, v200, v201, {T0} bitop3:0x7e
              v_bitop3_b32 v205, v202, {T1}, v205 bitop3:0xbe
              v_bitop3_b32 v205, v203, s63, v205 bitop3:0xbe
              v_cmp_eq_u32_sdwa vcc, v205, v246 src0_sel:BYTE_0 src1_sel:DWORD
              s_mov_b64 exec, vcc
              buffer_store_dwordx4 v[200:203], v204, s[32:35], s56 offen sc1
              s_mov_b64 exec, -1
              s_branch L_qback""")
    if dnpf is not None:
        sec("Q3x")
        def slab(d, none):
            if ff:
                e(f"""s_and_b32 s56, s52, 7
                  s_lshl_b32 s56, s56, 2
                  s_add_u32 s56, s56, s29
                  s_sub_u32 s{d}, s56, 28
                  s_cmp_ge_u32 s{d}, 28
                  s_cbranch_scc1 {none}
                  s_mul_i32 s{d}, s{d}, 57344""")
                return
            e(f"""s_sub_u32 s50, s29, 28
              s_and_b32 s56, s52, 7
              s_lshl_b32 s{d}, s50, 3
              s_add_u32 s{d}, s{d}, s56
              s_cmp_ge_u32 s{d}, 28
              {"s_cselect_b32 s50, 0, s50" if none is None else "s_cbranch_scc1 " + none}
              s_mul_i32 s{d}, s56, 3
              s_min_u32 s56, s56, 4
              s_add_u32 s{d}, s{d}, s56
              s_add_u32 s{d}, s{d}, s50
              s_mul_i32 s{d}, s{d}, 57344""")
        if pfl:
            e("L_pfa:"); slab(48, "L_pfb")
            e(f"""s_mul_i32 s56, s30, {128*pfl}
              s_add_u32 s48, s48, s56
              v_lshrrev_b32 v11, 2, v0
              v_min_u32 v11, {pfl-1}, v11
              v_lshlrev_b32 v11, 7, v11""")
            srd(40, 20, 1792*896)
            e("s_branch L_pfb")
        e("L_pf:")
        if ck & 1:
            e(f"""s_lshl_b32 s63, s29, 2
                  s_add_u32 s63, s63, s30
                  s_and_b32 s63, s63, 15
                  s_lshl_b32 s56, s28, 4
                  s_add_u32 s63, s63, s56
                  s_lshl_b32 s56, s63, 9""")
            for i in range(4): e(f"s_load_dword s4, s[26:27], s56 offset:{QP + 128*i} glc")
            e("s_lshl_b32 s63, s63, 12\ns_lshl_b32 s49, s30, 7\ns_add_u32 s49, s49, s3\ns_waitcnt lgkmcnt(0)" if int(dnpf) == 0 else "s_lshl_b32 s63, s63, 12\ns_lshl_b32 s49, s30, 7\ns_add_u32 s49, s49, s3")
        slab(60, None if ck & 1 else "L_end")
        e(f"""s_mul_i32 s56, s30, 7168
              s_add_u32 s61, s60, s56
              s_add_u32 s60, s61, 28672
              s_add_u32 s61, s61, {512*pfl}
              v_lshlrev_b32 v1, 7, v0""")
        srd(44, 20, 1792*896)
        if int(dnpf):
            e(f"""s_cmp_lg_u32 s30, 0
              s_cbranch_scc1 L_pfgo
              v_and_b32 v2, 31, v0
              v_lshlrev_b32 v2, {7 if ol else 11}, v2
              v_lshrrev_b32 v3, 5, v0
              v_lshl_add_u32 v2, v3, {14 if ol else 9}, v2
              v_mov_b32 v6, s31
              s_lshl_b32 s62, s28, 16
              s_add_u32 s62, s62, {OP}
              s_mov_b32 s58, 64
              L_pfpoll:
              s_sub_u32 s58, s58, 1
              s_cbranch_scc1 L_pfgo
              buffer_load_dword v3, v2, s[32:35], s62 offen sc1
              s_waitcnt vmcnt(0)
              v_cmp_eq_u32_sdwa vcc, v3, v6 src0_sel:BYTE_0 src1_sel:BYTE_0
              s_bcnt1_i32_b64 s56, vcc
              s_cmp_lt_u32 s56, {int(dnpf)}
              s_cbranch_scc1 L_pfpoll
              L_pfgo:""")
        e("s_barrier"); stamp(7)
        m2 = (1 << (56 - 4*pfl)) - 1
        if m2: e(f"s_mov_b32 exec_lo, {m2 & 0xffffffff}\ns_mov_b32 exec_hi, {m2 >> 32}\nbuffer_load_dword v5, v1, s[44:47], s61 offen")
        e("s_mov_b32 exec_lo, -1\ns_mov_b32 exec_hi, 0xffffff\nbuffer_load_dword v4, v1, s[44:47], s60 offen\ns_waitcnt vmcnt(%d)" % int(ckw))
        stamp(8)
        if ck & 1:
            for i in range(32): e(f"s_load_dword s4, s[26:27], s63 offset:{OP + 128*i} glc")
            e("s_load_dword s4, s[26:27], s49 glc\ns_waitcnt vmcnt(0) lgkmcnt(0)")
            stamp(9)
        e("s_branch L_end")
    if clean & 1:
        sec("Q3x")
        e(f"""L_clean:
              v_lshlrev_b32 v1, 4, v0
              v_mov_b32 v12, v245
              s_lshl_b32 s60, s28, 16
              s_and_b32 s56, s29, 3
              s_lshl_b32 s56, s56, 14
              s_add_u32 s60, s60, s56
              s_lshl_b32 s56, s30, 12
              s_add_u32 s60, s60, s56
              s_add_u32 s60, s60, {OP}
              s_cmp_lg_u32 s30, 0
              s_cbranch_scc1 L_clst
              v_lshlrev_b32 v2, 8, v0
              s_lshl_b32 s62, s28, 11
              s_add_u32 s62, s62, {HH}
              s_mov_b32 s58, {SPIN}
              s_mov_b64 exec, 0x7f
              L_clpoll:
              s_sub_u32 s58, s58, 1
              s_cbranch_scc1 L_clgo
              buffer_load_dwordx4 v[16:19], v2, s[32:35], s62 offen sc1
              s_waitcnt vmcnt(0)""")
        check(16, 4, 247)
        e(f"""s_cmp_lg_u64 s[4:5], 0
              s_cbranch_scc1 L_clpoll
              L_clgo:
              s_mov_b64 exec, -1
              s_cmp_lg_u32 s29, 28
              s_cbranch_scc1 L_clst
              buffer_store_dwordx4 v[{MG}:{MG+3}], v230, s[32:35], s3 offen sc1
              L_clst:
              s_barrier""")
        for i in range(4): e(f"buffer_store_dwordx4 v[12:15], v1, s[32:35], s60 offen offset:{1024*i} sc1")
        e("s_branch L_end")
    if int(dirty):
        sec("Q3x")
        e(f"""L_dirty:
              s_mov_b32 s34, 0x4000000
              s_lshl_b32 s56, s55, 2
              s_add_u32 s56, s56, s30
              s_mul_i32 s56, s56, {abs(int(dirty))*1024}
              s_add_u32 s56, s56, 0x400000
              s_mov_b32 s57, {abs(int(dirty))}
              v_lshlrev_b32 v1, 4, v0
              L_dloop:
              buffer_store_dwordx4 v[12:15], v1, s[32:35], s56 offen {"sc1" if int(dirty) < 0 else ""}
              s_add_u32 s56, s56, 1024
              s_sub_u32 s57, s57, 1
              s_cmp_lg_u32 s57, 0
              s_cbranch_scc1 L_dloop
              s_branch L_end""")

    WQ, F, XA, MK, DN = 16, 80, 96, 112, 128
    sec("A")
    e(f"""s_setprio 3
          v_lshlrev_b32 v1, 4, v0
          v_lshrrev_b32 v2, 3, v0
          v_and_b32 v3, 7, v0
          v_mul_u32_u24 v4, {14*8192}, v2
          v_lshl_add_u32 v4, v3, 4, v4
          {ctm}
          s_mul_i32 s54, s48, {112*8192}
          s_lshl_b32 s56, s28, 10
          s_add_u32 s54, s54, s56
          s_lshl_b32 s56, s49, 7
          s_add_u32 s54, s54, s56""")
    if not qsc: e(f"v_mov_b32 v6, 0\nv_mov_b32 v7, 1\nds_write_b64 v1, v[6:7] offset:{QC}")
    srd_hi(40, 896); srd_hi(36, 448*8192)
    stamp(15)
    e("s_waitcnt lgkmcnt(0)")
    if int(st0) == 1: stamp(6)
    srd_lo(40, 4)
    e("buffer_load_dwordx4 v[8:11], v1, s[40:43], 0 offen")
    srd_lo(36, 10)
    for i in range(14):
        e(f"buffer_load_dwordx4 v[{WQ+4*i}:{WQ+4*i+3}], v4, s[36:39], s54 offen {wnt if qnt is None else qnt}")
        if i < 13: e("s_add_u32 s54, s54, 8192")
        if int(st0) == 1 and i in (4, 9, 13): stamp({4: 7, 9: 8, 13: 9}[i])
    e("s_load_dword s31, s[26:27], 0\ns_barrier")
    sec("Q1", "L_Q1")
    tlb = int(tlb)
    if tlb:
        e(f"""s_lshl_b32 s54, s28, 23
              s_add_u32 s54, s54, 6291456
              s_add_u32 s60, s8, s54
              s_addc_u32 s61, s9, 0
              s_mul_i32 s54, s28, {512*896}
              s_add_u32 s62, s12, s54
              s_addc_u32 s63, s13, 0
              s_add_u32 s56, s62, {512*896-128}
              s_addc_u32 s57, s63, 0
              v_mov_b32 v12, s60
              v_mov_b32 v13, s61""")
        for ln, r in enumerate((62, 56, 16, 18, 20, 22, 26)):
            e(f"v_writelane_b32 v12, s{r}, {ln+1}\nv_writelane_b32 v13, s{r+1}, {ln+1}")
        touch = f"s_mov_b64 exec, {tlm}\nglobal_load_dword v250, v[12:13], off\ns_mov_b64 exec, -1"
        if tlb == 1: e(touch)
    srd(32, 26, WS_SIZE); srd(40, 22, 896); srd(44, 20, 1792*896)
    if int(qpre):
        e(f"""s_lshl_b32 s54, s28, 13
              s_add_u32 s54, s54, {QP}
              s_lshl_b32 s56, s48, 11
              s_add_u32 s56, s56, s54
              s_lshl_b32 s61, s49, 8
              s_add_u32 s56, s56, s61
              v_lshlrev_b32 v12, 7, v0
              s_mov_b64 exec, 3
              buffer_load_dword v250, v12, s[32:35], s56 offen sc1
              s_mov_b64 exec, -1""")
    ffn_scalars()
    masks(MK, 72, 73)
    e("v_mov_b32 v246, 0\nv_mov_b32 v245, 0xff\ns_waitcnt vmcnt(%d)" % (14 + (tlb == 1) + int(qpre)))
    if tlb == 2: e(touch)
    tlb = (tlb > 0) + int(qpre)
    skew_store = f"s_lshl_b32 s56, s2, 2\ns_add_u32 s56, s56, {STAMP}\nv_mov_b32 v13, s64\nbuffer_store_dword v13, v246, s[32:35], s56 offen sc1"
    stamp(1)
    e(f"ds_write_b128 v1, v[8:11] offset:{XR}")
    for i in range(4): e(f"v_lshlrev_b32 v{F+2*i}, 16, v{8+i}\nv_and_b32 v{F+2*i+1}, 0xffff0000, v{8+i}")
    e(f"v_add_f32 v72, v{F}, v{F+1}")
    for i in range(2, 8): e(f"v_add_f32 v72, v72, v{F+i}")
    r16 = ["row_ror:8", "row_ror:4", "row_ror:2", "row_ror:1"]
    dpp_red("v_add_f32", [72], r16)
    xrow("v_add_f32", [72], [73])
    e(f"v_mul_f32 v72, {f2u(1/448)}, v72\nv_mov_b32 v73, 0")
    for i in range(8): e(f"v_sub_f32 v74, v{F+i}, v72\nv_fmac_f32 v73, v74, v74")
    e("v_cmp_gt_u32 vcc, 56, v0\nv_cndmask_b32 v73, 0, v73, vcc")
    dpp_red("v_add_f32", [73], r16)
    xrow("v_add_f32", [73], [74])
    e(f"v_mul_f32 v73, {f2u(1/448)}, v73")
    bfround(72); bfround(73)
    e(f"v_add_f32 v73, {f2u(1e-5)}, v73"); bfround(73)
    e("v_sqrt_f32 v73, v73"); bfround(73)
    e("v_rcp_f32 v74, v73")
    for i in range(8): e(f"v_sub_f32 v{F+i}, v{F+i}, v72")
    for i in range(0, 8, 2): e(f"v_cvt_pk_bf16_f32 v{F+i+1}, v{F+i}, v{F+i+1}")
    for i in range(0, 8, 2): e(f"v_lshlrev_b32 v{F+i}, 16, v{F+i+1}\nv_and_b32 v{F+i+1}, 0xffff0000, v{F+i+1}")
    for i in range(8): e(f"v_mul_f32 v{F+8+i}, v{F+i}, v74")
    for i in range(8): e(f"v_fma_f32 v{F+i}, -v{F+8+i}, v73, v{F+i}")
    for i in range(8): e(f"v_fmac_f32 v{F+8+i}, v{F+i}, v74")
    for i in range(8): e(f"v_cvt_pk_bf16_f32 v{F+i}, v{F+8+i}, v{F+8+i}")
    e(f"""v_lshlrev_b32 v72, 5, v0
          ds_write_b128 v72, v[{F}:{F+3}] offset:{XN}
          ds_write_b128 v72, v[{F+4}:{F+7}] offset:{XN+16}
          v_mul_u32_u24 v73, 56, v2
          s_mul_i32 s56, s48, 448
          v_add_u32 v73, s56, v73
          s_waitcnt lgkmcnt(0)""")
    for i in range(7): e(f"ds_read_b64 v[{XA+2*i}:{XA+2*i+1}], v73 offset:{XN+8*i}")
    tags()
    e(f"""s_getreg_b32 s56, hwreg(HW_REG_XCC_ID, 0, 4)
          s_and_b32 s63, s97, 0xf0
          s_or_b32 s63, s63, s56
          s_waitcnt lgkmcnt(0)""")
    stamp(2)
    for i in range(15):
        if i < 14:
            a = (116, 120)[i & 1]
            for j in range(4): e(f"v_and_b32 v{a+j}, v{XA+i}, v{MK+j}")
        if i >= 1:
            p = i - 1; a = (116, 120)[p & 1]
            e(f"s_waitcnt vmcnt({13-p+tlb})\nv_mfma_f32_16x16x32_bf16 v[8:11], v[{a}:{a+3}], v[{WQ+4*p}:{WQ+4*p+3}], " + ("0" if p == 0 else "v[8:11]"))
    e(f"""v_lshrrev_b32 v5, 4, v0
          v_lshlrev_b32 v72, 4, v5
          v_lshl_add_u32 v72, v3, 5, v72
          v_and_b32 v73, 40, v0
          v_mov_b32 v12, {OOB}
          v_cmp_eq_u32 vcc, 0, v73
          v_cndmask_b32 v72, v12, v72, vcc
          s_lshl_b32 s54, s28, 13
          s_add_u32 s54, s54, {QP}
          s_lshl_b32 s56, s48, 11
          s_add_u32 s56, s56, s54
          s_lshl_b32 s61, s49, 8
          s_add_u32 s56, s56, s61""")
    for r in range(4): e(f"v_mov_b32_dpp v{F+r}, v{8+r} row_ror:8 row_mask:0xf bank_mask:0xf")
    for r in range(4): e(f"v_permlane32_swap_b32 v{F+r}, v{F+4+r}")
    for r in range(4): e(f"v_add_f32 v{8+r}, v{8+r}, v{F+4+r}")
    for r in range(4): e(f"v_add_u32 v{8+r}, 0x80, v{8+r}")
    tag4(8, 245, "s63")
    e(f"buffer_store_dwordx4 v[8:11], v72, s[32:35], s56 offen {qsc}")
    if not qsc: e(f"s_mov_b32 s3, s56\nv_mov_b32 v71, v72\ns_mov_b64 exec, vcc\nds_write_b128 v72, v[8:11] offset:{QC}\ns_mov_b64 exec, -1")
    stamp(3)
    if skew is not None: e(skew_store)
    e(f"""s_lshr_b32 s53, s2, 6
          s_lshl_b32 s53, s53, 14
          s_and_b32 s56, s2, 63
          s_lshl_b32 s56, s56, 7
          s_add_u32 s53, s53, s56
          s_add_u32 s53, s53, {PB}
          v_lshlrev_b32 v6, 10, v0
          v_and_b32 v6, 0x2000, v6
          v_lshl_add_u32 v6, v3, 4, v6""")
    for r in range(4): e(f"v_mov_b32 v{16+r}, 0x100")
    if int(pst) == 2: e("s_cmp_lt_u32 s29, 28\ns_cbranch_scc1 L_noprobe")
    if int(pst): e("s_mov_b64 exec, 0xffff\nbuffer_store_dwordx4 v[16:19], v6, s[32:35], s53 offen sc1\ns_mov_b64 exec, -1")
    e("L_noprobe:")
    e(f"""s_setprio 0
          {f"s_lshl_b32 s54, s28, 9{NL}s_add_u32 s54, s54, s29{NL}s_lshl_b32 s54, s54, 7" if ol else "s_lshl_b32 s54, s55, 11"}
          s_add_u32 s54, s54, {OP}
          v_lshl_add_u32 v6, v0, {12 if ol else 7}, s54
          s_lshr_b32 s48, s29, 3
          s_and_b32 s49, s29, 7
          s_lshl_b32 s60, s49, 6
          s_lshl_b32 s56, s48, 4
          s_add_u32 s60, s60, s56
          s_lshl_b32 s56, s28, 9
          s_add_u32 s60, s60, s56
          s_add_u32 s60, s60, {ML}
          s_mul_i32 s61, s52, 7168
          s_add_u32 s61, s61, {DP}
          s_lshl_b32 s56, s51, 10
          s_add_u32 s62, s61, s56
          s_sub_u32 s56, s62, {16*128}
          v_lshl_add_u32 v7, v0, 7, s56
          v_cmp_gt_u32 vcc, 16, v0
          v_cndmask_b32 v6, v7, v6, vcc
          s_lshl_b32 s63, s52, 11
          s_add_u32 s63, s63, {HH}
          s_lshl_b32 s56, s51, 8
          s_add_u32 s56, s56, s63
          v_writelane_b32 v6, s56, 24
          s_add_u32 s56, s56, 128
          v_writelane_b32 v6, s56, 25
          v_writelane_b32 v6, s60, 26
          {f"s_lshl_b32 s98, s28, 13{NL}s_and_b32 s56, s50, 1{NL}s_lshl_b32 s56, s56, 5{NL}s_add_u32 s98, s98, s56{NL}s_add_u32 s98, s98, {FL}{NL}s_lshl_b32 s56, s29, 7{NL}s_and_b32 s56, s56, {max((sfx << fsh) - 128, 0)}{NL}s_add_u32 s56, s56, s98{NL}v_writelane_b32 v6, s56, 27" if sfx else ""}
          s_cmp_lt_u32 s52, 28
          s_cselect_b32 s56, 0x03ff0000, 0
          s_or_b32 exec_lo, s56, {0x0c00ffff if sfx else 0x0400ffff}
          s_mov_b32 exec_hi, 0
          {"buffer_load_dword v13, v6, s[32:35], 0 offen sc1" if int(pre) & 1 else ""}
          s_mov_b64 exec, -1
          v_cmp_eq_u32 vcc, 0, v0
          v_cndmask_b32 v14, v12, v0, vcc
          v_and_b32 v72, 1, v0
          v_lshlrev_b32 v72, 4, v72
          s_mov_b32 s57, {CEXP}
          v_and_b32 v3, 3, v0
          v_and_b32 v6, 1, v5
          v_lshlrev_b32 v6, 2, v6
          v_lshrrev_b32 v7, 1, v5
          v_lshl_add_u32 v6, v7, 1, v6
          v_mul_u32_u24 v6, 896, v6
          v_and_b32 v7, 15, v0
          v_lshl_add_u32 v6, v7, 3, v6
          s_mul_i32 s48, s100, 57344
          s_lshl_b32 s56, s51, 7
          s_add_u32 s48, s48, s56
          s_mul_i32 s49, s51, {BS}
          s_lshl_b32 s56, s28, {8 if int(cl) else 10}
          s_add_u32 s49, s49, s56
          s_lshl_b32 s56, s50, {6 if int(cl) else 8}
          s_add_u32 s49, s49, s56
          s_add_u32 s49, s49, {CP}
          {f"v_lshlrev_b32 v253, 11, v0{NL}v_lshrrev_b32 v252, 4, v0{NL}v_lshlrev_b32 v252, 9, v252{NL}v_add_lshl_u32 v252, v252, v7, 2" if int(cl) else ""}
          v_lshlrev_b32 v2, 2, v0""")
    qtag_reg(244, 3)
    e("v_bfe_u32 v15, v0, 2, 2")
    qtag_reg(15, 15)
    e("v_cmp_eq_u32 vcc, 0, v3\nv_cndmask_b32 v243, 0, v245, vcc")
    e(f"""s_mul_i32 s54, s51, {BS}
          s_add_u32 s54, s54, {EP}
          {f"s_and_b32 s56, s52, 7{NL}s_lshl_b32 s56, s56, 2{NL}s_add_u32 s56, s56, s50{NL}s_lshl_b32 s56, s56, 6" if int(el) == 1 else "s_lshl_b32 s56, s52, 6" if int(el) else "s_lshl_b32 s56, s52, 8"}
          s_add_u32 s54, s54, s56
          v_lshlrev_b32 v249, 7, v0
          v_lshlrev_b32 v250, 12, v0
          v_and_b32 v249, 0x80, v249
          v_and_b32 v250, 0x2000, v250
          v_or_b32 v249, v249, v250
          s_cmp_ge_u32 s29, 28
          s_cbranch_scc1 L_nopre
          {f"s_mov_b64 exec, 0xff{NL}buffer_load_dword v250, v253, s[32:35], s49 offen sc1" if int(cl) and int(pre) & 2 else ""}
          s_mov_b64 exec, 15
          {"buffer_load_dword v250, v249, s[32:35], s49 offen sc1" if int(pre) & 2 and not int(cl) else ""}
          s_cmp_ge_u32 s52, 28
          s_cbranch_scc1 {"L_opre" if ff else "L_nopre"}
          {f"s_mov_b64 exec, {(1 << 4*er) - 1}{NL}v_lshrrev_b32 v251, 2, v0{NL}v_mul_u32_u24 v251, {ES}, v251{NL}v_add_u32 v249, v249, v251" if er > 1 else ""}
          {(f"s_mov_b64 exec, 0xff{NL}buffer_load_dword v250, v253, s[32:35], s54 offen sc1" if int(el) else "buffer_load_dword v250, v249, s[32:35], s54 offen sc1") if int(pre) & 4 else ""}""")
    if opre: e(f"""s_lshr_b32 s56, s52, 2
          {"s_cmp_lg_u32 s56, 1" if fin == "t" else f"s_cmp_lg_u32 s28, {fin}"}
          s_cbranch_scc1 L_nopre
          L_opre:
          s_lshl_b32 s56, s51, 7
          buffer_load_dword v250, v246, s[40:43], s56 offen {opre.replace("p", "")}""")
    e(f"""L_nopre:
          s_mov_b64 exec, -1""")
    def load_dn(guard=True, part=None):
        skip = lab("nodn")
        if guard: e(f"s_cmp_ge_u32 s52, 28\ns_cbranch_scc1 {skip}")
        for i in range(8) if part is None else range(4*part, 4*part + 4):
            for hi in range(2):
                d = DN + 2*(8*hi + i)
                e(f"buffer_load_dwordx2 v[{d}:{d+1}], v6, s[44:47], s48 offen offset:{896*hi} {wnt if dnf is None else dnf}")
            if i < 7: e("s_add_u32 s48, s48, 7168")
        e(f"{skip}:")
    if dnpos == "K": load_dn()
    if int(pst) == 2: e("s_mov_b32 s101, 0\ns_cmp_lt_u32 s29, 28\ns_cbranch_scc1 L_Q2")
    e("""s_waitcnt vmcnt(0)
         s_mov_b32 s99, 0
         s_load_dword s98, s[26:27], s53 offset:0
         s_load_dword s99, s[26:27], s53 offset:8192
         s_waitcnt lgkmcnt(1)
         s_andn2_b32 s101, 0x100, s99""")
    sec("Q2", "L_Q2")
    sec("Q3", "L_Q3")
    e(f"s_barrier\nds_read_b128 v[24:27], v246 offset:{FLAGS}\ns_waitcnt lgkmcnt(0)")
    read_mode(24)
    if not qsc:
        e("s_cmp_lg_u32 s59, 0\ns_cbranch_scc1 L_qfar\nL_qnear:")
        deferred.append(("L_qfar", "L_qnear", ["buffer_store_dwordx4 v[8:11], v71, s[32:35], s3 offen"]))
    if dnpos == "q": load_dn()
    e("s_setprio 3\ns_barrier")
    stamp(4)
    e(f"""
          ds_read_b128 v[16:19], v72 offset:{MLW}
          ds_read_b128 v[20:23], v72 offset:{MLW+32}
          s_waitcnt lgkmcnt(0)
          v_max3_f32 v8, v16, v17, v18
          v_max_f32 v8, v8, v19""")
    for w in range(4): e(f"v_sub_f32 v{16+w}, v{16+w}, v8")
    for w in range(4): e(f"v_mul_f32 v{16+w}, s57, v{16+w}")
    for w in range(4): e(f"v_exp_f32 v{16+w}, v{16+w}")
    e("""v_mul_f32 v9, v16, v20
         v_fmac_f32 v9, v17, v21
         v_fmac_f32 v9, v18, v22
         v_fmac_f32 v9, v19, v23
         v_mov_b32_dpp v10, v8 quad_perm:[1,1,1,1] row_mask:0xf bank_mask:0xf
         v_mov_b32_dpp v11, v9 quad_perm:[1,1,1,1] row_mask:0xf bank_mask:0xf""")
    e("v_or_b32 v8, s101, v8")
    tag4(8, 245)
    if mlsc: e("buffer_store_dwordx4 v[8:11], v14, s[32:35], s60 offen sc1")
    else: mode_store(["buffer_store_dwordx4 v[8:11], v14, s[32:35], s60 offen"])
    stamp(5)
    e("s_cmp_ge_u32 s29, 28\ns_cbranch_scc1 L_end\ns_setprio 0")
    if dnpos == "p": load_dn()
    if dnpos == "F": e(f"ds_write_b32 v246, v246 offset:{FLAGS+32}\ns_waitcnt lgkmcnt(0)")
    if dnpos == "pB": load_dn(part=0)
    e("s_add_u32 s53, s49, 8192")
    if sfx: e(f"s_and_b32 s12, s31, 0xff\ns_mul_i32 s12, s12, 0x01010101\ns_mov_b32 s13, s12\ns_cmp_eq_u32 s59, 0\ns_cselect_b32 s58, {sfx if sfx > 1 else 256}, 0\ns_setprio 3")
    e("s_barrier")
    if sfx:
        e(f"""L_hint:
             s_sub_u32 s58, s58, 1
             s_cbranch_scc1 L_hinted
             s_load_dwordx8 s[4:11], s[26:27], s98 {"glc" if sfx == 1 else ""}
             s_waitcnt lgkmcnt(0)
             {f"s_add_u32 s98, s98, {1 << fsh}" if sfx > 1 else ""}
             s_xor_b64 s[4:5], s[4:5], s[12:13]
             s_xor_b64 s[6:7], s[6:7], s[12:13]
             s_xor_b64 s[8:9], s[8:9], s[12:13]
             s_xor_b64 s[10:11], s[10:11], s[12:13]
             s_or_b64 s[4:5], s[4:5], s[6:7]
             s_or_b64 s[8:9], s[8:9], s[10:11]
             s_or_b64 s[4:5], s[4:5], s[8:9]
             s_cbranch_scc1 L_hint
             L_hinted:""")
        if stamps and int(cnt): e(f"s_sub_u32 s66, {sfx if sfx > 1 else 256}, s58")
    if dnpos == "h": e("s_barrier"); load_dn()
    else: e("s_barrier")
    if gupos == "B1": e("s_barrier")
    if dnpos == "Y":
        if zb: e("s_barrier")
        e("s_setprio 0"); load_dn()
    if dnpos == "B1": load_dn()
    if dnpos == "pB": load_dn(part=1)
    e("s_setprio 3\ns_barrier")
    stamp(6)
    if dnpos == "B3": load_dn()
    for k in range(4): e(f"ds_read2st64_b32 v[{16+2*k}:{17+2*k}], v2 offset0:{RED//256+2*k} offset1:{RED//256+2*k+1}")
    e(f"""s_waitcnt lgkmcnt(2)
         v_pk_add_f32 v[16:17], v[16:17], v[18:19]
         s_waitcnt lgkmcnt(0)
         v_pk_add_f32 v[20:21], v[20:21], v[22:23]
         v_pk_add_f32 v[16:17], v[16:17], v[20:21]
         v_add_f32 v16, v16, v17
         v_bfi_b32 v16, v243, v15, v16
         buffer_store_dword v16, v{252 if int(cl) else 2}, s[32:35], s49 offen {cst}
         buffer_store_dword v16, v{252 if int(cl) else 2}, s[32:35], s53 offen {cst}""")
    stamp(7)
    e("s_setprio 0" if ff else "s_setprio 0\ns_cmp_ge_u32 s52, 28\ns_cbranch_scc1 L_end")
    if dnpos == "B4": load_dn(False)
    if cack == "b": e("s_barrier")
    elif cack: e("s_waitcnt vmcnt(%d)\ns_barrier" % (16 if dnpos == "B4" else 0))
    if dnpos == "B5": load_dn(False)
    for r in range(4): e(f"v_mov_b32 v{84+r}, {'v244' if r == 0 else 0}")
    DS = (20, 21, 22, 23, 24, 25)
    for p in range(6):
        e(f"s_add_u32 s56, s51, {p+1}\ns_sub_u32 s60, s56, 7\ns_cselect_b32 s56, s56, s60\ns_lshl_b32 s56, s56, 10\ns_add_u32 s{DS[p]}, s56, s61")
    e(f"""
          s_mul_i32 s54, s51, {BS}
          s_add_u32 s54, s54, {EP}
          {f"s_and_b32 s56, s52, 7{NL}s_lshl_b32 s56, s56, 2{NL}s_add_u32 s56, s56, s50{NL}s_lshl_b32 s56, s56, 6" if int(el) == 1 else "s_lshl_b32 s56, s52, 6" if int(el) else "s_lshl_b32 s56, s52, 8"}
          s_add_u32 s49, s54, s56
          v_cmp_gt_u32 vcc, {16*er}, v0
          {f"v_mul_u32_u24 v4, {ES-256}, v5{NL}v_add_u32 v4, v4, v1{NL}v_cndmask_b32 v4, v12, v4, vcc" if er > 1 else f"v_lshrrev_b32 v4, 2, v0{NL}v_lshlrev_b32 v4, 11, v4{NL}v_lshl_add_u32 v4, v3, 4, v4{NL}v_cndmask_b32 v4, v12, v4, vcc" if int(el) else "v_cndmask_b32 v4, v12, v1, vcc"}
          {"s_sub_u32 s50, s52, 4" if fin == "t" else f"s_cmp_eq_u32 s28, {fin}" + chr(10) + "s_cselect_b32 s50, s50, 4"}
          s_lshl_b32 s56, s50, {11 if int(el) else 6}
          s_add_u32 s54, s54, s56
          {"s_lshl_b32 s56, s50, 6" if int(el) else ""}
          s_add_u32 s53, s54, {1024 if int(el) else 4096}
          {f"s_add_u32 s57, s54, {ES*(er-1)}" if er > 1 else ""}
          {"v_mov_b32 v7, v1" if int(el) else f"v_lshrrev_b32 v7, 2, v0{NL}v_lshlrev_b32 v7, 8, v7{NL}v_lshl_add_u32 v7, v3, 4, v7"}
          v_lshl_add_u32 v8, v3, 2, v5
          v_lshl_add_u32 v9, v8, 2, s56
          v_and_b32 v9, 0xff, v9
          v_lshlrev_b32 v8, 1, v8
          v_and_b32 v10, 12, v0
          v_cmp_eq_u32 vcc, 0, v10
          v_cndmask_b32 v8, v12, v8, vcc
          s_lshl_b32 s55, s51, 7
          s_lshl_b32 s56, s50, 5
          s_add_u32 s55, s55, s56""")
    L48 = (1 << 48) - 1
    if ff: e("s_cmp_ge_u32 s52, 28\ns_cbranch_scc1 L_fin4")
    DT = 192
    k0 = -2.0 * 0.7978845608028654 * 1.4426950408889634
    e(f"""v_bfe_u32 v76, v0, 3, 1
          v_mul_u32_u24 v74, 0x0606, v76
          v_mul_u32_u24 v75, 0x0202, v76
          v_lshlrev_b32 v74, 16, v74
          v_lshlrev_b32 v75, 16, v75
          v_add_u32 v74, 0x01000c0c, v74
          v_sub_u32 v75, 0x05040c0c, v75
          v_mov_b32 v76, {f2u(k0*0.044715)}""")
    if sfl: e(f"ds_write_b32 v246, v246 offset:{FLAGS+28}\ns_waitcnt lgkmcnt(0)")
    def dn_perm(w, cs=range(4)):
        if w is not None: e(f"s_waitcnt vmcnt({w})")
        for c in cs:
            for j in range(8):
                a = DN + 4*j + (c >> 1)
                e(f"v_perm_b32 v{DT+8*c+j}, v{a+2}, v{a}, s{(56, 60)[c & 1]}")
    if dnt: e("s_mov_b32 s56, 0x05040100\ns_mov_b32 s60, 0x07060302")
    if dnpos in ("C", "T0", "T1"): e("s_barrier"); load_dn(False)
    if int(wb) & 16: e(f"s_cmp_lg_u32 s29, {wbj}\ns_cbranch_scc1 L_nowb16\ns_waitcnt vmcnt({wbu})\nbuffer_wbl2 sc1\nL_nowb16:")
    if dnpos == "F":
        e(f"""s_mov_b32 s58, {SPIN*16}
              L_fwait:
              ds_read_b32 v11, v246 offset:{FLAGS+32}
              s_sub_u32 s58, s58, 1
              s_cbranch_scc1 L_fgo
              s_waitcnt lgkmcnt(0)
              v_cmp_eq_u32 vcc, 0, v11
              s_cbranch_vccnz L_fwait
              L_fgo:""")
        load_dn(False)
    if dnt and not dtl: dn_perm(0 if dnpos in ("B4", "B5", "C", "T0", "T1", "F") else 2)
    e(f"s_mov_b32 s58, {SPIN}")
    e("s_setprio 3\ns_barrier")
    stamp(8)
    for k in range(4): e(f"ds_read_b128 v[{24+4*k}:{27+4*k}], v1 offset:{RED2+1024*k}")
    e("s_waitcnt lgkmcnt(2)")
    pk_add4(24, 24, 28)
    e("s_waitcnt lgkmcnt(0)")
    pk_add4(32, 32, 36); pk_add4(24, 24, 32)
    e("v_bfi_b32 v24, v245, v244, v24")
    mode_store(["buffer_store_dwordx4 v[24:27], v1, s[32:35], s62 offen"])
    stamp(9)
    dset = lambda b: [(f"buffer_load_dwordx4 v[{b+4*p}:{b+4*p+3}], v1, s[32:35], s{DS[p]} offen sc1", b + 4*p) for p in range(6)]
    dsets = [dset(b) for b in (48, 88, 160)[:dr]]
    dg = dsets[0] if dr else dset(44)
    for t, b in dg: e(t.replace("sc1", "") if int(o0) & 2 else t)
    e(f"""ds_read_b32 v13, v9 offset:{HL}
          ds_read_b32 v11, v246 offset:{FLAGS+16}
          v_and_b32 v24, 0xffffff00, v24
          s_waitcnt lgkmcnt(0)
          v_and_b32 v13, 0xffff0000, v13
          v_add_u32 v7, v7, v11
          v_add_u32 v4, v4, v11
          v_xor_b32 v10, 0x2000, v4""")
    if dr:
        assert dnt and dtl and dspec and not sfl
        for r in range(1, dr):
            dn_perm(7 if r == 1 else None, range(4*(r-1)//(dr-1), 4*r//(dr-1)))
            for t, b in dsets[r]: e(t)
    elif dnt and dtl: dn_perm(7)
    stamp(10)
    def d_acc(i, b):
        a, d = (24 if i == 0 else 28), (44 if i == 5 else 28)
        if sfl and i == 1: e(f"ds_read_b64 v[40:41], v246 offset:{FLAGS+24}")
        e(f"v_and_b32 v36, 0xffffff00, v{b}\nv_pk_add_f32 v[{d+2}:{d+3}], v[{a+2}:{a+3}], v[{b+2}:{b+3}]\nv_add_f32 v{d+1}, v{a+1}, v{b+1}\nv_add_f32 v{d}, v{a}, v36")
        if sfl and i == 4: e("s_waitcnt lgkmcnt(0)\nv_cmp_eq_u32 s[6:7], 0, v41")
    pre = "s_memrealtime s[86:87]\n" if stamps else ""
    if sfl:
        assert dspec
        pre += "s_cmp_lg_u64 s[6:7], 0\ns_cbranch_scc1 L_stwait\nL_stgot:\n"
        late = f"L_stwait:\ns_sub_u32 s58, s58, 1\ns_cbranch_scc1 L_stgot\nds_read_b64 v[40:41], v246 offset:{FLAGS+24}\ns_waitcnt lgkmcnt(0)\nv_cmp_eq_u32 vcc, 0, v41\ns_cbranch_vccnz L_stwait\ns_branch L_stgot"
        if int(wb) & 2:
            wbd = f"s_cmp_eq_u32 s2, {56 + int(fin)}\ns_cbranch_scc1 L_dowb\nL_nowb:"
            late += "\nL_dowb:\nbuffer_wbl2 sc1\ns_branch L_nowb"
    else: pre += f"s_barrier\nds_read_b64 v[40:41], v246 offset:{FLAGS+24}"
    if dr:
        def dcheck(r):
            g = [b for t, b in dsets[r]]
            for p in range(6):
                e(f"s_waitcnt vmcnt({6*dr-1-p})")
                if p in (1, 3): e(f"v_bitop3_b32 v{37+(p >> 1)}, v{g[p-1]}, v{g[p]}, v244 bitop3:0x7e")
                if p == 4: e(f"v_bitop3_b32 v37, v{g[4]}, v244, v37 bitop3:0xbe\nv_or_b32 v37, v37, v38")
                if p == 5: e(f"v_bitop3_b32 v37, v{g[5]}, v244, v37 bitop3:0xbe\nv_cmp_ne_u32_sdwa vcc, v37, v246 src0_sel:BYTE_0 src1_sel:DWORD")
                else: d_acc(p, g[p])
        e("L_dtop:")
        dcheck(0)
        e("s_cbranch_vccnz L_dmore\nL_dx0:\n" + pre)
        d_acc(5, dsets[0][5][1])
        e("L_ddone:")
        def dmore():
            e("L_dmore:\ns_sub_u32 s58, s58, 1\ns_cbranch_scc1 L_dx0")
            for t, b in dsets[0]: e(t)
            for r in range(1, dr):
                dcheck(r)
                e(f"s_cbranch_vccnz L_dn{r}\n" + pre)
                d_acc(5, dsets[r][5][1])
                e(f"s_branch L_ddone\nL_dn{r}:")
                for t, b in dsets[r]: e(t)
            e("s_branch L_dtop")
    else: poll(dg, 8, issued=True, quad=244, pre=pre, spec=d_acc if dspec else None)
    if sfl and int(wb) & 2: e(wbd)
    if not dspec:
        pk_add4(44, 44, 48); pk_add4(52, 52, 56); pk_add4(60, 60, 64)
        pk_add4(44, 44, 24); pk_add4(52, 52, 60); pk_add4(44, 44, 52)
    e("""v_permlane32_swap_b32 v45, v47
         v_permlane32_swap_b32 v44, v46""")
    if not sfl: e("s_waitcnt lgkmcnt(0)")
    e("""v_pk_fma_f32 v[44:45], v[46:47], v[40:41], v[44:45] op_sel:[0,0,0] op_sel_hi:[1,0,1] neg_lo:[0,1,0] neg_hi:[0,1,0]
         v_pk_mul_f32 v[44:45], v[44:45], v[40:41] op_sel:[0,1] op_sel_hi:[1,1]
         v_cvt_pk_bf16_f32 v45, v44, v45
         v_mov_b32_dpp v46, v45 row_ror:8 row_mask:0xf bank_mask:0xf
         v_perm_b32 v44, v46, v45, v74
         v_perm_b32 v45, v46, v45, v75""")
    e(f"""v_mul_f32 v46, v44, v44
          v_fmaak_f32 v46, v46, v76, {f2u(k0)}
          v_mul_f32 v46, v46, v44
          v_exp_f32 v46, v46
          v_add_f32 v46, 1.0, v46
          v_rcp_f32 v46, v46
          v_mul_f32 v46, v46, v44""")
    bfround(46)
    if dnt:
        e("v_mul_f32 v46, v46, v45")
        assert not int(el) or (int(cl) and et and er == 1 and not ff)
        poll_init(2, 4, {1: 0x0fff0fff0fff0fff if int(el) == 1 else L48})
        e("v_mov_b32_dpp v47, v46 quad_perm:[1,1,3,3] row_mask:0xf bank_mask:0xf\nv_cvt_pk_bf16_f32 v46, v46, v47")
        for j in range(8): e(f"v_mov_b32_dpp v{116+j}, v46 row_newbcast:{2*j} row_mask:0xf bank_mask:0xf")
        for h in range(2):
            for c in range(4):
                e(f"v_mfma_f32_16x16x32_bf16 v[{32+4*c}:{35+4*c}], v[{116+4*h}:{119+4*h}], v[{DT+8*c+4*h}:{DT+8*c+4*h+3}], " + ("0" if h == 0 else f"v[{32+4*c}:{35+4*c}]"))
        e("v_bfi_b32 v32, v245, v244, v32\nv_mov_b32 v33, v36\nv_pk_mov_b32 v[34:35], v[40:41], v[44:45] op_sel:[0,0]")
    else: e("v_mul_f32 v46, v46, v45\nv_cvt_pk_bf16_f32 v46, v46, v46")
    for i in range(0 if dnt else 17):
        if i < 16:
            a = 116 + 2*(i & 3)
            for j in range(2): e(f"v_and_b32_dpp v{a+j}, v46, v{MK+j} row_newbcast:{i} row_mask:0xf bank_mask:0xf")
        if i >= 1:
            p = i - 1; ap = 116 + 2*(p & 3)
            e(f"v_mfma_f32_16x16x16_bf16 v[32:35], v[{ap}:{ap+1}], v[{DN+2*p}:{DN+2*p+1}], " + ("0" if p == 0 else "v[32:35]"))
    if not dnt:
        poll_init(2, 4, {1: L48})
        e("v_bfi_b32 v32, v245, v244, v32")
    e(f"buffer_store_dwordx4 v[32:35], v4, s[32:35], s49 offen {est}")
    e(f"buffer_store_dwordx4 v[32:35], v10, s[32:35], s49 offen {est}")
    if ck & 2: e("s_barrier")
    stamp(12)
    if int(wb) & 8: e(f"s_cmp_lg_u32 s2, {56 + int(fin)}\ns_cbranch_scc1 L_nowb8\nbuffer_wbl2 sc1\nL_nowb8:")
    if ff:
        wbk = f"s_cmp_lg_u32 s29, {wbj}\ns_cbranch_scc1 L_finnowb\nbuffer_wbl2 sc1\nL_finnowb:"
        e(f"s_branch {'L_wb4' if int(wb) & 4 else 'L_Eend'}\nL_fin4:")
        if ffb or ffw == 0: e("s_waitcnt vmcnt(0)")
        if ffb: e("s_barrier")
        if ffw == 0: e(wbk)
        poll_init(2, 4, {1: L48})
        e("s_barrier")
        if ffw == 1: e(wbk)
        e(f"""ds_read_b32 v13, v9 offset:{HL}
              ds_read_b32 v11, v246 offset:{FLAGS+16}
              s_waitcnt lgkmcnt(0)
              v_and_b32 v13, 0xffff0000, v13
              v_add_u32 v7, v7, v11""")
        stamp(12)
    else: e(f"s_cmp_gt_u32 s50, 3\ns_cbranch_scc1 {'L_wb4' if int(wb) & 4 and int(wbk4) < 28 or sfl else 'L_Eend'}")
    if et:
        for r in range(4): e(f"v_mov_b32 v{80+r}, 0")
        poll_sum(lambda i, b: f"buffer_load_dwordx4 v[{b}:{b+3}], v7, s[32:35], {('s54', 's53')[i]} offen {eld}", 80, 160, 244, et)
        stamp(13)
    else:
        if eack: e("s_waitcnt vmcnt(%d)" % (1 if eack == "1" else 0))
        poll([("buffer_load_dwordx4 v[80:83], v7, s[32:35], s54 offen sc1", 80), ("buffer_load_dwordx4 v[84:87], v7, s[32:35], s53 offen sc1", 84)], 4, quad=244)
        stamp(13)
        pk_add4(80, 80, 84)
    trows(80)
    dpp_red("v_add_f32", [80], ["row_ror:4", "row_ror:8"])
    bfround(80)
    e(f"""v_add_f32 v80, v80, v13
          v_cvt_pk_bf16_f32 v80, v80, v80
          buffer_store_short v80, v8, s[40:43], s55 offen {osc.replace("_", " ")}""")
    if epo[0] != "C":
        e(f"""s_cmp_lg_u32 s2, 4
          s_cbranch_scc1 L_Eend
          v_mov_b32 v16, s31
          buffer_store_dword v16, v14, s[32:35], 0 offen {"sc1" if epo == "s" else ""}""")
    e("L_Eend:")
    if clean & 4: e("v_or_b32 v24, v24, v244\nbuffer_store_dwordx4 v[24:27], v1, s[32:35], s62 offen sc1")
    stamp(14)
    if amp is not None:
        e(f"""s_cmp_lg_u32 s2, {ampw}
              s_cbranch_scc1 L_end
              s_memrealtime s[96:97]
              s_waitcnt lgkmcnt(0)
              s_sub_u32 s98, s{64+2*int(amp)}, s{64+2*int(amp0)}
              s_lshl_b32 s98, s98, {ash}""")
        if skew is not None:
            e(f"""s_mov_b32 s56, {STAMP}
              buffer_load_dword v16, v246, s[32:35], s56 offen sc1
              buffer_load_dword v17, v246, s[32:35], s56 offen offset:{4*int(skew)} sc1
              s_waitcnt vmcnt(0)
              v_sub_u32 v16, v17, v16
              v_add_u32 v16, 100, v16
              v_readfirstlane_b32 s98, v16
              s_lshl_b32 s98, s98, 5""")
        e(f"""
              s_min_u32 s98, s98, 100000
              L_amp:
              s_memrealtime s[100:101]
              s_waitcnt lgkmcnt(0)
              s_sub_u32 s99, s100, s96
              s_cmp_lt_u32 s99, s98
              s_cbranch_scc1 L_amp""")
    finish()
    if dr: dmore()
    if sfl: e(late)
    if int(wb) & 4 or sfl: e("L_wb4:")
    if sfl:
        e(f"s_cmp_lg_u32 s2, {0 if fin != '0' else 1}\ns_cbranch_scc1 L_noepo\nv_mov_b32 v16, s31\nbuffer_store_dword v16, v14, s[32:35], 0 offen {epo[1:]}\nL_noepo:")
        if not int(wb) & 4: e("s_branch L_Eend")
    if int(wb) & 4 and int(wbk4) < 28:
        e(f"s_cmp_lg_u32 s29, {wbk4}\ns_cbranch_scc1 L_Eend")
        if fin == "t": e("s_cmp_ge_u32 s28, 4\ns_cbranch_scc1 L_Eend")
        e(f"s_waitcnt vmcnt({wbt})\nbuffer_wbl2 sc1\n" + ("s_waitcnt vmcnt(0)\n" if int(wbw) & 1 else "") + "s_branch L_Eend")
    sec("A")
    for t in extra: e(t)
    sec("Q3")
    for far, back, ins in deferred:
        e(f"{far}:\ns_nop 7")
        for t in ins: e(t + " sc1")
        e(f"s_nop 1\ns_branch {back}")
    if stamps:
        e("L_stamps:\ns_waitcnt lgkmcnt(0)\ns_mov_b64 exec, -1\nv_mov_b32 v250, 0")
        for k in range(16): e(f"v_writelane_b32 v250, s{64+2*k}, {k}")
        e(f"""s_lshl_b32 s60, s2, 3
              s_add_u32 s60, s60, s30
              s_lshl_b32 s60, s60, 6
              s_add_u32 s60, s60, {STAMP}
              v_lshlrev_b32 v251, 2, v0
              s_mov_b64 exec, 0xffff
              buffer_store_dword v250, v251, s[32:35], s60 offen""")
    e("L_exit:\ns_endpgm")

    head = open("cdna_kernels/" + NAME + ".s.ref").read()
    head = head[:head.index("; @launch")]
    out = head + f"; @launch grid=(256,1,1) block=(320,1,1) lds={LDS_SIZE}\n"
    out += f""".amdgcn_target "amdgcn-amd-amdhsa--gfx950"
.text
.globl {NAME}_kernel
.p2align 12
.fill {int(pad)//4}, 4, 0xbf800000
.p2align 8
.type {NAME}_kernel,@function
{NAME}_kernel:
"""
    for name, al in (("A", 0), ("K1", 0), ("Q1", 12), ("Q2", 12), ("K0", 0), ("K2", 0), ("Q3x", 0), ("Q3", 12), ("Q3y", 0)):
        if name not in secs: continue
        if al: out += f".p2align {al}\n"
        out += "\n".join(secs[name]) + "\n"
    out = out.replace("buffer_wbl2 sc1", "buffer_wbl2 " + wbf.replace("_", " "))
    out += f""".section .rodata,"a"
.p2align 6
.amdhsa_kernel {NAME}_kernel
  .amdhsa_next_free_vgpr 256
  .amdhsa_next_free_sgpr 102
  .amdhsa_accum_offset 256
  .amdhsa_group_segment_fixed_size 0
  .amdhsa_kernarg_size 96
  .amdhsa_user_sgpr_count 2
  .amdhsa_user_sgpr_kernarg_segment_ptr 1
  .amdhsa_system_sgpr_workgroup_id_x 1
.end_amdhsa_kernel
"""
    return out

if __name__ == "__main__":
    kw = {}
    for a in sys.argv[2:]:
        k, v = a.split("=")
        kw[k] = {"True": True, "False": False}.get(v, v)
    open(sys.argv[1], "w").write(gen(**kw))
```
